```python
import torch

def _softmax(x, axis=-1):
    return torch.softmax(x, dim=axis)
def _gelu(x):
    return torch.nn.functional.gelu(x, approximate="tanh")
def _silu(x):
    return torch.nn.functional.silu(x)
def _sigmoid(x):
    return torch.sigmoid(x)
def _layernorm(x, axis=-1, eps=1e-5):
    m = x.mean(dim=axis, keepdim=True)
    v = x.var(dim=axis, keepdim=True, unbiased=False)
    return (x - m) / torch.sqrt(v + eps)
def _scatter_add(tgt, idx, src, axis=0):
    return tgt.clone().index_add_(axis, idx, src)
def _segment_sum(src, seg, n):
    out = torch.zeros((n,) + src.shape[1:], dtype=src.dtype)
    return out.index_add_(0, seg, src)
def _pad(x, pw):
    flat = tuple(v for pair in reversed(pw) for v in pair)
    return torch.nn.functional.pad(x, flat)

kernel_name = 'interleave_layers__mha_block_cached__glu_gated_geglu__decode'

def setup_inputs():

    _w = (lambda a: (lambda t: t.to(torch.bfloat16) if t.is_floating_point() else t)(torch.as_tensor(a)))
    def _A_setup():
        B, Sq, D = 4, 1, 640
        H, Sk, Dh = 32, 8192, 192
        return {
            "x": _w((lambda *s: torch.randn(*s, dtype=torch.bfloat16) * 0.05)(B, Sq, D)),
            "k_cache": _w((lambda *s: torch.randn(*s, dtype=torch.bfloat16) * 0.4)(B, H, Sk, Dh)),
            "v_cache": _w((lambda *s: torch.randn(*s, dtype=torch.bfloat16) * 1.6)(B, H, Sk, Dh)),
            "wq": _w((lambda *s: torch.randn(*s, dtype=torch.bfloat16) * 0.4)(D, H * Dh) * (D ** -0.5)),
            "wo": _w((lambda *s: torch.randn(*s, dtype=torch.bfloat16) * 1.6)(H * Dh, D) * ((H * Dh) ** -0.5)),
        }
    _A_in = _A_setup()

    def _B_setup():
        B, S, Dm, Df = 4, 1, 640, 1536
        return {
            "x": _w((lambda *s: torch.randn(*s, dtype=torch.bfloat16) * 0.05)(B, S, Dm)),
            "w_gate": _w((lambda *s: torch.randn(*s, dtype=torch.bfloat16) * 0.4)(Dm, Df) * (Dm ** -0.5)),
            "w_up": _w((lambda *s: torch.randn(*s, dtype=torch.bfloat16) * 0.4)(Dm, Df) * (Dm ** -0.5)),
            "w_down": _w((lambda *s: torch.randn(*s, dtype=torch.bfloat16) * 0.4)(Df, Dm) * (Df ** -0.5)),
        }
    _B_in = _B_setup()

    return {
        "A_x": _A_in["x"],
        "A_k_cache": _A_in["k_cache"],
        "A_v_cache": _A_in["v_cache"],
        "A_wq": _A_in["wq"],
        "A_wo": _A_in["wo"],
        "B_x": _B_in["x"],
        "B_w_gate": _B_in["w_gate"],
        "B_w_up": _B_in["w_up"],
        "B_w_down": _B_in["w_down"],
    }

def reference(A_x, A_k_cache, A_v_cache, A_wq, A_wo, B_x, B_w_gate, B_w_up, B_w_down):
    def _A_ref(x, k_cache, v_cache, wq, wo):
        B, Sq, D = x.shape
        H, Dh = 32, 192
        q = (lambda x, *d: x.permute(*d))((x @ wq).reshape(B, Sq, H, Dh), 0, 2, 1, 3)
        scores = torch.einsum("bhqd,bhkd->bhqk", q, k_cache) * (Dh ** -0.5)
        p = _softmax(scores, axis=-1)
        o = torch.einsum("bhqk,bhkd->bhqd", p, v_cache)
        return (lambda x, *d: x.permute(*d))(o, 0, 2, 1, 3).reshape(B, Sq, H * Dh) @ wo

    def _B_ref(x, w_gate, w_up, w_down):
        g = torch.einsum("bsd,df->bsf", x, w_gate)
        u = torch.einsum("bsd,df->bsf", x, w_up)
        h = _gelu(g) * u
        return torch.einsum("bsf,fd->bsd", h, w_down)

    x = A_x
    x = x + _A_ref(_layernorm(x, axis=-1), A_k_cache, A_v_cache, A_wq, A_wo)
    x = x + _B_ref(_layernorm(x, axis=-1), B_w_gate, B_w_up, B_w_down)
    x = x + _A_ref(_layernorm(x, axis=-1), A_k_cache, A_v_cache, A_wq, A_wo)
    x = x + _B_ref(_layernorm(x, axis=-1), B_w_gate, B_w_up, B_w_down)
    return x
```

```python
import re

def R(kind, base, n=1):
    return [(kind, base + i) for i in range(n)]

def vr(b, n=1):
    return f'v{b}' if n == 1 else f'v[{b}:{b+n-1}]'
def ar(b, n=1):
    return f'a{b}' if n == 1 else f'a[{b}:{b+n-1}]'
def sr(b, n=1):
    return f's{b}' if n == 1 else f's[{b}:{b+n-1}]'

_REG = re.compile(r'^(-|\|)?([vas])(\d+)$')
_RNG = re.compile(r'^([vas])\[(\d+):(\d+)\]$')

def parse_regs(tok):
    tok = tok.strip()
    if tok.startswith('-'):
        tok = tok[1:]
    if tok.startswith('abs(') and tok.endswith(')'):
        tok = tok[4:-1]
    if tok == 'vcc':
        return [('s', 106), ('s', 107)]
    if tok == 'exec':
        return [('s', 126), ('s', 127)]
    m = re.match(r'^([vas])(\d+)$', tok)
    if m:
        return [(m.group(1), int(m.group(2)))]
    m = _RNG.match(tok)
    if m:
        return [(m.group(1), i) for i in range(int(m.group(2)), int(m.group(3)) + 1)]
    return []

TRANS = ('v_exp_f32', 'v_log_f32', 'v_rcp_f32', 'v_rsq_f32', 'v_sqrt_f32', 'v_sin_f32', 'v_cos_f32')

class Asm:
    def __init__(self):
        self.lines = []
        self.hist = []
        self.vm = []
        self.lg = []
        self.ninstr = 0
        self._mac = None

    def raw(self, s):
        self.lines.append(s)

    def label(self, name):
        self.lines.append(f'{name}:')

    def comment(self, s):
        self.lines.append(f'; {s}')

    def _need(self, cls, op, dst, src, dppsrc, sgpr_src_valu, sgpr_src_vmem, lanesel):
        need = 0
        dist = 0
        dsts = set(dst); srcs = set(src)
        for h in reversed(self.hist):
            hd = h['dst']
            if h['cls'] in ('valu', 'trans', 'dot'):
                vd = {r for r in hd if r[0] == 'v'}
                sd = {r for r in hd if r[0] == 's'}
                if h['cls'] == 'dot' and vd:
                    if op == h['op']:
                        ab = srcs - dsts
                        if vd & ab:
                            need = max(need, 3 - dist)
                    else:
                        if vd & (srcs | dsts):
                            need = max(need, 3 - dist)
                if h['cls'] == 'trans' and cls != 'trans' and (vd & srcs):
                    need = max(need, 1 - dist)
                if dppsrc and (vd & set(dppsrc)):
                    need = max(need, 2 - dist)
                if cls == 'permlane' and (vd & (srcs | dsts)):
                    need = max(need, 2 - dist)
                if cls == 'readlane' and (vd & srcs):
                    need = max(need, 1 - dist)
                if sd:
                    if cls in ('valu', 'trans', 'dot', 'permlane', 'readlane') and (sd & srcs):
                        need = max(need, 2 - dist)
                    if lanesel and (sd & set(lanesel)):
                        need = max(need, 4 - dist)
                    if cls in ('vmem',) and (sd & srcs):
                        need = max(need, 5 - dist)
            if h['cls'] in ('permlane', 'readlane'):
                vd = {r for r in hd if r[0] == 'v'}
                sd = {r for r in hd if r[0] == 's'}
                if dppsrc and (vd & set(dppsrc)):
                    need = max(need, 2 - dist)
                if cls == 'permlane' and (vd & (srcs | dsts)):
                    need = max(need, 2 - dist)
                if cls == 'readlane' and (vd & srcs):
                    need = max(need, 1 - dist)
                if sd:
                    if cls in ('valu', 'trans', 'dot', 'permlane', 'readlane') and (sd & srcs):
                        need = max(need, 2 - dist)
                    if lanesel and (sd & set(lanesel)):
                        need = max(need, 4 - dist)
                    if cls in ('vmem',) and (sd & srcs):
                        need = max(need, 5 - dist)
            if h['cls'] == 'widestore':
                if set(h['data']) & dsts:
                    need = max(need, 2 - dist)
            dist += h['states']
            if dist >= 6:
                break
        return need

    def _push(self, text, cls, op, dst, src, states=1, data=None):
        self.lines.append('  ' + text)
        self.hist.append({'cls': cls, 'op': op, 'dst': dst, 'src': src, 'states': states, 'data': data or []})
        if len(self.hist) > 8:
            self.hist.pop(0)
        self.ninstr += 1

    def nop(self, n):
        while n > 0:
            k = min(n, 16)
            self._push(f's_nop {k-1}', 'nop', 's_nop', [], [], states=k)
            n -= k
        if self._mac is not None:
            self._mac['dirty'] = True

    def ins(self, text, cls=None, dst=None, src=None, dppsrc=None, lanesel=None, data=None):
        parts = text.split(None, 1)
        op = parts[0]
        ops = []
        mo = re.search(r'offset:(\d+)', text)
        if mo:
            lim = 4095 if (op.startswith('buffer_') or op.startswith('global_')) else 65535
            assert int(mo.group(1)) <= lim, text
        if len(parts) > 1:
            body = parts[1]
            toks = []
            depth = 0; cur = ''
            for ch in body:
                if ch == '[': depth += 1
                if ch == ']': depth -= 1
                if ch == ',' and depth == 0:
                    toks.append(cur); cur = ''
                else:
                    cur += ch
            toks.append(cur)
            for t in toks:
                t = t.strip()
                ops.append(t.split()[0] if t else t)
        if cls is None:
            if op.startswith('v_dot2'):
                cls = 'dot'
            elif op in TRANS:
                cls = 'trans'
            elif op.startswith('v_permlane'):
                cls = 'permlane'
            elif op.startswith('v_readlane') or op.startswith('v_readfirstlane'):
                cls = 'readlane'
            elif op.startswith('v_'):
                cls = 'valu'
            elif op.startswith('buffer_') or op.startswith('global_'):
                cls = 'vmem'
            elif op.startswith('ds_'):
                cls = 'ds'
            else:
                cls = 'salu'
        if dst is None or src is None:
            regs = [parse_regs(o) for o in ops]
            if cls in ('valu', 'trans', 'dot', 'readlane'):
                d = regs[0] if regs else []
                s = [r for x in regs[1:] for r in x]
                if op.startswith('v_cmp'):
                    pass
                if op.startswith('v_dot2c') or op.startswith('v_fmac') or op.startswith('v_pk_fmac'):
                    s = s + d
                if op.startswith('v_cndmask') and len(ops) == 3:
                    s = s + parse_regs('vcc')
                if op.startswith('v_add_co') or op.startswith('v_addc_co') or op.startswith('v_sub_co'):
                    d = regs[0] + regs[1]
                    s = [r for x in regs[2:] for r in x]
                if op.startswith('v_swap'):
                    d = regs[0] + regs[1]; s = d
                if '_dpp' in op and dppsrc is None:
                    dppsrc = regs[1]
                    if not op.startswith('v_mov'):
                        pass
                if op.startswith('v_readlane') and len(regs) > 2:
                    lanesel = regs[2]
            elif cls == 'permlane':
                d = regs[0] + regs[1]; s = d
            elif cls == 'vmem':
                if 'store' in op or ('atomic' in op):
                    d = []
                    s = [r for x in regs for r in x]
                else:
                    d = regs[0]
                    s = [r for x in regs[1:] for r in x]
            elif cls == 'ds':
                if op.startswith('ds_read') or op.startswith('ds_bpermute'):
                    d = regs[0]; s = [r for x in regs[1:] for r in x]
                else:
                    d = []; s = [r for x in regs for r in x]
            else:
                d = regs[0] if regs else []
                s = [r for x in regs[1:] for r in x]
            dst = d if dst is None else dst
            src = s if src is None else src
        need = self._need(cls, op, dst, src, dppsrc, None, None, lanesel)
        if need > 0:
            self.nop(need)
        hcls = cls
        hdata = None
        if cls == 'vmem' and ('store_dwordx4' in op or 'store_dwordx3' in op):
            hcls = 'widestore'
            hdata = parse_regs(ops[0]) if op.startswith('buffer') else parse_regs(ops[1])
        self._push(text, hcls, op, dst, src, data=hdata)

    def mbegin(self, call):
        assert self._mac is None
        self._mac = {'call': call, 'start': len(self.lines), 'dirty': False}

    def mend(self):
        m = self._mac
        self._mac = None
        if not m['dirty']:
            del self.lines[m['start']:]
            self.lines.append('  ' + m['call'])

    def vmem(self, text, tag):
        self.ins(text)
        self.vm.append(tag)
        assert len(self.vm) <= 63, f'too many outstanding vmem ops {len(self.vm)}'

    def wait_vm(self, tag):
        idx = None
        for i, t in enumerate(self.vm):
            if t == tag:
                idx = i
        if idx is None:
            return
        n = len(self.vm) - 1 - idx
        self.ins(f's_waitcnt vmcnt({n})')
        self.vm = self.vm[idx + 1:]

    def wait_vm_all(self):
        self.ins('s_waitcnt vmcnt(0)')
        self.vm = []

    def lds(self, text, tag=None):
        self.ins(text)
        self.lg.append(tag)
        if len(self.lg) > 15:
            self.ins('s_waitcnt lgkmcnt(8)')
            self.lg = self.lg[-8:]

    def wait_lg(self, tag):
        idx = None
        for i, t in enumerate(self.lg):
            if t == tag:
                idx = i
        if idx is None:
            return
        n = len(self.lg) - 1 - idx
        self.ins(f's_waitcnt lgkmcnt({n})')
        self.lg = self.lg[idx + 1:]

    def wait_lg_all(self):
        self.ins('s_waitcnt lgkmcnt(0)')
        self.lg = []

    def barrier(self):
        self.wait_lg_all()
        self.ins('s_barrier')

    def fence_hazards(self):
        self.nop(5)

    def text(self):
        return '\n'.join(self.lines) + '\n'
```

```python
import struct, sys, math
from asmlib import *

NAME = 'interleave_layers__mha_block_cached__glu_gated_geglu__decode'
KNAME = NAME + '_kernel'

NA, NQ = 32, 16
NCH = NA + NQ
NST = 256 - NCH
WPH = NST * 4 // 32
REC = 784
PART_OFF = 0
PART_C = 32 * WPH * REC
AR_OFF = 5 * 1024 * 1024
AR_SZ = 32 * 2560
Q_OFF = AR_OFF + 16 * AR_SZ
COMM = 34 * 48 * 4096
assert Q_OFF + 8 * 32 * 384 <= COMM and 8 * PART_C <= AR_OFF
ARM_PER = COMM // NCH
BATCH_STRIDE = 32 * 8192 * 384
SPIN_MAX = 400000

def f32(x):
    return struct.unpack('<I', struct.pack('<f', x))[0]

CSCALE = f32((192 ** -0.5) * math.log2(math.e))

a = Asm()
_lab = [0]
def newlab(p='L'):
    _lab[0] += 1
    return f'{p}{_lab[0]}'

MACROS = r'''
.macro QK2 ta, tb, q, s
  v_dot2_f32_bf16 v[\s+0], v[\ta+0], v[\q+0], 0
  v_dot2_f32_bf16 v[\s+1], v[\ta+4], v[\q+4], 0
  v_dot2_f32_bf16 v[\s+2], v[\ta+8], v[\q+8], 0
  v_dot2_f32_bf16 v[\s+3], v[\tb+0], v[\q+0], 0
  v_dot2_f32_bf16 v[\s+4], v[\tb+4], v[\q+4], 0
  v_dot2_f32_bf16 v[\s+5], v[\tb+8], v[\q+8], 0
  .irp k, 1, 2, 3
  v_dot2c_f32_bf16 v[\s+0], v[\ta+\k], v[\q+\k]
  v_dot2c_f32_bf16 v[\s+1], v[\ta+4+\k], v[\q+4+\k]
  v_dot2c_f32_bf16 v[\s+2], v[\ta+8+\k], v[\q+8+\k]
  v_dot2c_f32_bf16 v[\s+3], v[\tb+\k], v[\q+\k]
  v_dot2c_f32_bf16 v[\s+4], v[\tb+4+\k], v[\q+4+\k]
  v_dot2c_f32_bf16 v[\s+5], v[\tb+8+\k], v[\q+8+\k]
  .endr
.endm
.macro PV t, p, acc
  .irp k, 0, 1, 2, 3, 4, 5, 6, 7, 8, 9, 10, 11
  v_dot2c_f32_bf16 v[\acc+2*\k], v[\t+\k], v[\p]
  v_dot2c_f32_bf16 v[\acc+2*\k+1], v[\t+\k], v[\p+1]
  .endr
.endm
.macro ACR t, s
  .irp k, 0, 1, 2, 3, 4, 5, 6, 7, 8, 9, 10, 11
  v_accvgpr_read_b32 v[\t+\k], a[\s+\k]
  .endr
.endm
.macro LDT k, d, srd
  buffer_load_dwordx4 \k[\d:\d+3], v1, s[\srd:\srd+3], s76 offen nt
  buffer_load_dwordx4 \k[\d+4:\d+7], v1, s[\srd:\srd+3], s76 offen offset:128 nt
  buffer_load_dwordx4 \k[\d+8:\d+11], v1, s[\srd:\srd+3], s76 offen offset:256 nt
.endm
.macro RESC acc, al
  .irp k, 0, 1, 2, 3, 4, 5, 6, 7, 8, 9, 10, 11, 12, 13, 14, 15, 16, 17, 18, 19, 20, 21, 22, 23
  v_mul_f32 v[\acc+\k], v[\al], v[\acc+\k]
  .endr
.endm
.macro GV8 w, x, acc
  .irp k, 0, 1, 2, 3
  v_dot2c_f32_bf16 v[\acc+2*\k], v[\w+\k], v[\x]
  v_dot2c_f32_bf16 v[\acc+2*\k+1], v[\w+\k], v[\x+1]
  .endr
.endm
.macro AC4 t, s
  .irp k, 0, 1, 2, 3
  v_accvgpr_read_b32 v[\t+\k], a[\s+\k]
  .endr
.endm
'''

def m_qk2(ta, tb, q, s):
    a.mbegin(f'QK2 {ta}, {tb}, {q}, {s}')
    for i, (t, o) in enumerate([(ta, 0), (ta, 4), (ta, 8), (tb, 0), (tb, 4), (tb, 8)]):
        a.ins(f'v_dot2_f32_bf16 v{s+i}, v{t+o}, v{q+o}, 0')
    for k in (1, 2, 3):
        for i, (t, o) in enumerate([(ta, 0), (ta, 4), (ta, 8), (tb, 0), (tb, 4), (tb, 8)]):
            a.ins(f'v_dot2c_f32_bf16 v{s+i}, v{t+o+k}, v{q+o+k}')
    a.mend()

def m_pv(t, p, acc):
    a.mbegin(f'PV {t}, {p}, {acc}')
    for k in range(12):
        a.ins(f'v_dot2c_f32_bf16 v{acc+2*k}, v{t+k}, v{p}')
        a.ins(f'v_dot2c_f32_bf16 v{acc+2*k+1}, v{t+k}, v{p+1}')
    a.mend()

def m_acr(t, s):
    a.mbegin(f'ACR {t}, {s}')
    for k in range(12):
        a.ins(f'v_accvgpr_read_b32 v{t+k}, a{s+k}')
    a.mend()

def m_ldt(kind, d, srd, tag):
    a.mbegin(f'LDT {kind}, {d}, {srd}')
    for i in range(3):
        off = f' offset:{i*128}' if i else ''
        a.vmem(f'buffer_load_dwordx4 {kind}[{d+4*i}:{d+4*i+3}], v1, s[{srd}:{srd+3}], s76 offen{off} nt', tag)
    a.mend()

def m_resc(acc, al):
    a.mbegin(f'RESC {acc}, {al}')
    for k in range(24):
        a.ins(f'v_mul_f32 v{acc+k}, v{al}, v{acc+k}')
    a.mend()

def m_gv8(w, x, acc):
    a.mbegin(f'GV8 {w}, {x}, {acc}')
    for k in range(4):
        a.ins(f'v_dot2c_f32_bf16 v{acc+2*k}, v{w+k}, v{x}')
        a.ins(f'v_dot2c_f32_bf16 v{acc+2*k+1}, v{w+k}, v{x+1}')
    a.mend()

def m_ac4(t, s):
    a.mbegin(f'AC4 {t}, {s}')
    for k in range(4):
        a.ins(f'v_accvgpr_read_b32 v{t+k}, a{s+k}')
    a.mend()

DPP = 'row_mask:0xf bank_mask:0xf'

def smov(s, val):
    val &= 0xffffffff
    a.ins(f's_mov_b32 s{s}, {val if val <= 64 else hex(val)}')

def srd(d, lo, hi, nrec):
    a.ins(f's_mov_b32 s{d}, s{lo}')
    a.ins(f's_and_b32 s{d+1}, s{hi}, 0xffff')
    if isinstance(nrec, int):
        smov(d + 2, nrec)
    else:
        a.ins(f's_mov_b32 s{d+2}, {nrec}')
    a.ins(f's_mov_b32 s{d+3}, 0x20000')

def srd_off(d, lo, hi, offs, nrec):
    a.ins(f's_add_u32 s{d}, s{lo}, s{offs}')
    a.ins(f's_addc_u32 s{d+1}, s{hi}, 0')
    a.ins(f's_and_b32 s{d+1}, s{d+1}, 0xffff')
    if isinstance(nrec, int):
        smov(d + 2, nrec)
    else:
        a.ins(f's_mov_b32 s{d+2}, {nrec}')
    a.ins(f's_mov_b32 s{d+3}, 0x20000')

def set_exec_lanes(n):
    if n >= 64:
        a.ins('s_mov_b64 exec, -1')
    elif n <= 32:
        a.ins(f's_mov_b32 exec_lo, {hex((1 << n) - 1)}', dst=[], src=[])
        a.ins('s_mov_b32 exec_hi, 0', dst=[], src=[])
    else:
        a.ins('s_mov_b32 exec_lo, -1', dst=[], src=[])
        a.ins(f's_mov_b32 exec_hi, {hex((1 << (n - 32)) - 1)}', dst=[], src=[])

def wait_armed():
    L = newlab('Lar'); D = newlab('Lad')
    smov(75, SPIN_MAX)
    a.ins('v_mov_b32 v254, 0')
    a.label(L)
    a.ins('global_load_dword v255, v254, s[28:29] sc1')
    a.ins('s_waitcnt vmcnt(0)')
    a.vm = []
    a.ins(f'v_cmp_gt_u32 vcc, {NCH}, v255')
    a.ins(f's_cbranch_vccz {D}')
    a.ins('s_sleep 4')
    a.ins('s_sub_u32 s75, s75, 1')
    a.ins('s_cmp_lg_u32 s75, 0')
    a.ins(f's_cbranch_scc1 {L}')
    a.label(D)
    a.fence_hazards()

RING = [8, 20, 32, 44]
T0, T1 = 56, 68
Q, QS = 80, 92
SX, SY = 104, 130
VSLOT = 156
WK = 228
NR = 20
NN = 20

def srd_k(b): return 32 + 8 * b
def srd_v(b): return 36 + 8 * b

def r_storage(kind, t):
    if kind == 'K':
        return ('a', 12 * t)
    if t == 0:
        return ('a', 240)
    if t <= 6:
        return ('v', VSLOT + 12 * (t - 1))
    return ('l', t - 7)

class Stream:
    def __init__(self):
        P = []
        P.append(('A', 0, 0, SX, True, False))
        P.append(('C', 0, 0, SX, False, True))
        P.append(('C', 0, 1, SX, True, False))
        for b in range(4):
            P.append(('D', 1, b, SY, True, False))
            if b < 3:
                P.append(('A', 0, b + 1, SX, False, True))
            P.append(('B', 1, b, SY, False, True))
            if b + 2 <= 3:
                P.append(('C', 0, b + 2, SX, True, False))
        self.P = P
        self.LQ = []
        for pi, (ty, ps, b, st, fr, pub) in enumerate(P):
            if ty == 'D':
                continue
            for g in range(10):
                for kind in ('K', 'V'):
                    for u in range(2):
                        t = 2 * g + u
                        if ty == 'A':
                            stg = r_storage(kind, t)
                            dest = stg if stg[0] != 'l' else ('r', None)
                            tile = t
                        else:
                            dest = ('r', None)
                            tile = NR + t
                        self.LQ.append({'pi': pi, 'kind': kind, 't': t, 'tile': tile, 'b': b, 'dest': dest, 'reg': None})
        self.lqi = 0
        self.ring_free = [True] * 4
        self.ring_next = 0
        self.ded_free = {}
        self.d_done = set()
        self.cur_pi = 0
        self.loc = {}

    def ring_alloc(self):
        s = self.ring_next
        if not self.ring_free[s]:
            return None
        self.ring_free[s] = False
        self.ring_next = (s + 1) % 4
        return s

    def try_issue(self, cap=57):
        while self.lqi < len(self.LQ):
            e = self.LQ[self.lqi]
            if len(a.vm) + 3 > cap:
                return
            if e['dest'][0] == 'r':
                if any(self.P[pd][0] == 'D' and pd not in self.d_done for pd in range(self.cur_pi, e['pi'])):
                    return
                s = self.ring_alloc()
                if s is None:
                    return
                kind, base = 'v', RING[s]
                self.loc[(e['pi'], e['kind'], e['t'])] = ('r', s)
            else:
                key = e['dest']
                if not self.ded_free.get(key, True):
                    return
                self.ded_free[key] = False
                kind, base = key
                self.loc[(e['pi'], e['kind'], e['t'])] = key
            smov(76, e['tile'] * 3072)
            sd = srd_k(e['b']) if e['kind'] == 'K' else srd_v(e['b'])
            m_ldt(kind, base, sd, ('T', e['pi'], e['kind'], e['t']))
            self.lqi += 1

    def q_issue(self, ps, b):
        a.ins(f's_add_u32 s76, s72, {hex((ps * 4 + b) * 32 * 384)}')
        for i in range(3):
            off = f' offset:{i*128}' if i else ''
            a.vmem(f'buffer_load_dwordx4 v[{QS+4*i}:{QS+4*i+3}], v2, s[64:67], s76 offen{off} sc1', ('Q', ps, b))

    def q_check(self):
        w = WK
        a.ins(f'v_max3_u32 v{w}, v{QS}, v{QS+1}, v{QS+2}')
        for k in range(3, 12, 2):
            k2 = min(k + 1, 11)
            a.ins(f'v_max3_u32 v{w}, v{w}, v{QS+k}, v{QS+k2}')
        a.ins(f'v_cmp_eq_u32 vcc, -1, v{w}')

    def q_take(self, ps, b):
        a.wait_vm(('Q', ps, b))
        OK = newlab('Lqo'); RT = newlab('Lqr')
        self.q_check()
        a.ins(f's_cbranch_vccz {OK}')
        smov(75, SPIN_MAX)
        a.label(RT)
        a.ins('s_sleep 2')
        a.ins(f's_add_u32 s77, s72, {hex((ps * 4 + b) * 32 * 384)}')
        for i in range(3):
            off = f' offset:{i*128}' if i else ''
            a.ins(f'buffer_load_dwordx4 v[{QS+4*i}:{QS+4*i+3}], v2, s[64:67], s77 offen{off} sc1')
        a.ins('s_waitcnt vmcnt(0)')
        self.q_check()
        a.ins(f's_cbranch_vccz {OK}')
        a.ins('s_sub_u32 s75, s75, 1')
        a.ins('s_cmp_lg_u32 s75, 0')
        a.ins(f's_cbranch_scc1 {RT}')
        a.label(OK)
        for k in range(12):
            a.ins(f'v_mov_b32 v{Q+k}, v{QS+k}')

    def get_tile(self, pi, ty, kind, t, tmp):
        if ty == 'D':
            stg = r_storage(kind, t)
            if stg[0] == 'a':
                m_acr(tmp, stg[1])
                self.ded_free[stg] = True
                return tmp, None
            if stg[0] == 'v':
                return stg[1], ('ded', stg)
            s = self.loc[(pi, kind, t)][1]
            a.wait_lg(('L', pi, t))
            return RING[s], ('ring', s)
        a.wait_vm(('T', pi, kind, t))
        loc = self.loc[(pi, kind, t)]
        if loc[0] == 'a':
            m_acr(tmp, loc[1])
            return tmp, None
        if loc[0] == 'v':
            return loc[1], None
        return RING[loc[1]], ('ring', loc[1])

    def release(self, rel):
        if rel is None:
            return
        if rel[0] == 'ring':
            self.ring_free[rel[1]] = True
        else:
            self.ded_free[rel[1]] = True

    def lds_prefetch(self, pi, t):
        s = self.ring_alloc()
        assert s is not None
        self.loc[(pi, 'V', t)] = ('r', s)
        slot = t - 7
        for i in range(3):
            a.lds(f'ds_read_b128 v[{RING[s]+4*i}:{RING[s]+4*i+3}], v3 offset:{slot*3072+i*1024}', ('L', pi, t))

    def group(self, pi, ty, st, g, last_dummy):
        acc, m, l = st, st + 24, st + 25
        s = WK
        sa, sb = WK, WK + 3
        mn, cm, al = WK + 6, WK + 7, WK + 8
        pa, pb = WK + 9, WK + 10
        PA, PB = WK + 12, WK + 14
        ta_i, tb_i = 2 * g, 2 * g + 1
        if ty == 'D':
            for t in (ta_i, tb_i):
                if r_storage('V', t)[0] == 'l':
                    self.lds_prefetch(pi, t)
            if g == 9:
                self.d_done.add(pi)
        ta, ra = self.get_tile(pi, ty, 'K', ta_i, T0)
        tb, rb = self.get_tile(pi, ty, 'K', tb_i, T1)
        m_qk2(ta, tb, Q, s)
        self.release(ra); self.release(rb)
        self.try_issue()
        a.ins(f'v_add_f32 v{sa}, v{s}, v{s+1}')
        a.ins(f'v_add_f32 v{sa}, v{sa}, v{s+2}')
        a.ins(f'v_add_f32 v{sb}, v{s+3}, v{s+4}')
        a.ins(f'v_add_f32 v{sb}, v{sb}, v{s+5}')
        for pat in ('quad_perm:[1,0,3,2]', 'quad_perm:[2,3,0,1]', 'row_half_mirror'):
            a.ins(f'v_add_f32_dpp v{sa}, v{sa}, v{sa} {pat} {DPP}')
            a.ins(f'v_add_f32_dpp v{sb}, v{sb}, v{sb} {pat} {DPP}')
        if last_dummy:
            a.ins(f'v_add_f32 v{sb}, s69, v{sb}')
        a.ins(f'v_max3_f32 v{mn}, v{m}, v{sa}, v{sb}')
        a.ins(f'v_cmp_gt_f32 vcc, v{mn}, v{m}')
        SK = newlab('Lsk')
        a.ins(f's_cbranch_vccz {SK}')
        a.ins(f'v_sub_f32 v{al}, v{m}, v{mn}')
        a.ins(f'v_mul_f32 v{al}, s74, v{al}')
        a.ins(f'v_exp_f32 v{al}, v{al}')
        a.ins(f'v_mov_b32 v{m}, v{mn}')
        m_resc(acc, al)
        a.ins(f'v_mul_f32 v{l}, v{al}, v{l}')
        a.label(SK)
        a.ins(f'v_mul_f32 v{cm}, s74, v{m}')
        a.ins(f'v_fma_f32 v{pa}, v{sa}, s74, -v{cm}')
        a.ins(f'v_fma_f32 v{pb}, v{sb}, s74, -v{cm}')
        a.ins(f'v_exp_f32 v{pa}, v{pa}')
        a.ins(f'v_exp_f32 v{pb}, v{pb}')
        a.ins(f'v_cvt_pk_bf16_f32 v{PA}, v{pa}, 0')
        a.ins(f'v_cvt_pk_bf16_f32 v{PA+1}, 0, v{pa}')
        a.ins(f'v_cvt_pk_bf16_f32 v{PB}, v{pb}, 0')
        a.ins(f'v_cvt_pk_bf16_f32 v{PB+1}, 0, v{pb}')
        a.ins(f'v_add_f32 v{l}, v{l}, v{PA+1}')
        a.ins(f'v_add_f32 v{l}, v{l}, v{PB+1}')
        for (t, P, tmp) in ((ta_i, PA, T0), (tb_i, PB, T1)):
            tv, rv = self.get_tile(pi, ty, 'V', t, tmp)
            m_pv(tv, P, acc)
            if ty == 'A' and r_storage('V', t)[0] == 'l':
                slot = t - 7
                for i in range(3):
                    a.lds(f'ds_write_b128 v3, v[{tv+4*i}:{tv+4*i+3}] offset:{slot*3072+i*1024}', ('W', pi, t))
            self.release(rv)
            self.try_issue()

    def publish(self, st, c):
        acc, m, l = st, st + 24, st + 25
        M, u, sc = WK, WK + 1, WK + 2
        a.ins(f'v_max_f32_dpp v{M}, v{m}, v{m} row_ror:8 {DPP}')
        a.ins(f'v_mov_b32 v{u}, v{M}')
        a.ins(f'v_permlane16_swap_b32 v{M}, v{u}')
        a.ins(f'v_max_f32 v{M}, v{M}, v{u}')
        a.ins(f'v_mov_b32 v{u}, v{M}')
        a.ins(f'v_permlane32_swap_b32 v{M}, v{u}')
        a.ins(f'v_max_f32 v{M}, v{M}, v{u}')
        a.ins(f'v_sub_f32 v{sc}, v{m}, v{M}')
        a.ins(f'v_mul_f32 v{sc}, s74, v{sc}')
        a.ins(f'v_exp_f32 v{sc}, v{sc}')
        a.ins(f'v_mul_f32 v{M}, s74, v{M}')
        m_resc(acc, sc)
        a.ins(f'v_mul_f32 v{l}, v{sc}, v{l}')
        a.ins(f'v_add_f32_dpp v{l}, v{l}, v{l} row_ror:8 {DPP}')
        a.ins(f'v_mov_b32 v{u}, v{l}')
        a.ins(f'v_permlane16_swap_b32 v{l}, v{u}')
        a.ins(f'v_add_f32 v{l}, v{l}, v{u}')
        a.ins(f'v_mov_b32 v{u}, v{l}')
        a.ins(f'v_permlane32_swap_b32 v{l}, v{u}')
        a.ins(f'v_add_f32 v{l}, v{l}, v{u}')
        for k in range(12):
            a.ins(f'v_permlane32_swap_b32 v{acc+k}, v{acc+k+12}')
        for k in range(12):
            a.ins(f'v_add_f32 v{acc+k}, v{acc+k}, v{acc+k+12}')
        for k in range(6):
            a.ins(f'v_permlane16_swap_b32 v{acc+k}, v{acc+k+6}')
        for k in range(6):
            a.ins(f'v_add_f32 v{acc+k}, v{acc+k}, v{acc+k+6}')
        for k in range(6):
            a.ins(f'v_add_f32_dpp v{acc+k}, v{acc+k}, v{acc+k} row_ror:8 {DPP}')
        t1, t2 = WK + 3, WK + 4
        for k in range(6):
            a.ins(f'v_add_u32 v{t1}, {k}, v7')
            a.ins(f'v_lshrrev_b32 v{t2}, 3, v{t1}')
            a.ins(f'v_and_b32 v{t1}, 7, v{t1}')
            a.ins(f'v_lshlrev_b32 v{t2}, 6, v{t2}')
            a.ins(f'v_add_u32 v{t1}, v{t1}, v{t2}')
            a.ins(f'v_lshl_add_u32 v{t1}, v{t1}, 2, v4')
            a.lds(f'ds_write_b32 v{t1}, v{acc+k}')
        z = WK + 8
        a.ins(f'v_mov_b32 v{z}, v{M}')
        a.ins(f'v_mov_b32 v{z+1}, v{l}')
        a.ins(f'v_mov_b32 v{z+2}, 0')
        a.ins(f'v_mov_b32 v{z+3}, 0')
        a.ins(f'v_and_b32 v{t1}, 0xffffff1f, v4')
        a.lds(f'ds_write_b128 v{t1}, v[{z}:{z+3}] offset:768')
        a.wait_lg_all()
        a.lds(f'ds_read_b128 v[{z}:{z+3}], v5')
        a.wait_lg_all()
        a.ins(f's_add_u32 s76, s73, {hex(c * PART_C)}')
        set_exec_lanes(49)
        a.vmem(f'buffer_store_dwordx4 v[{z}:{z+3}], v6, s[64:67], s76 offen sc1', ('P', c))
        set_exec_lanes(64)

    def run(self):
        P = self.P
        self.try_issue()
        wait_armed()
        self.q_issue(P[0][1], P[0][2])
        for pi, (ty, ps, b, st, fresh, pub) in enumerate(P):
            a.comment(f'---- phase {pi}: {ty} pass{ps} b{b}')
            self.cur_pi = pi
            self.q_take(ps, b)
            if fresh:
                for k in range(24):
                    a.ins(f'v_mov_b32 v{st+k}, 0')
                a.ins(f'v_mov_b32 v{st+24}, 0xf149f2ca')
                a.ins(f'v_mov_b32 v{st+25}, 0')
            for g in range(10):
                if g == 7 and pi + 1 < len(P):
                    self.q_issue(P[pi + 1][1], P[pi + 1][2])
                self.group(pi, ty, st, g, last_dummy=(ty in 'BC' and g == 9))
            if pub:
                self.publish(st, ps * 4 + b)
            self.try_issue()
        a.ins('s_waitcnt vmcnt(0)')
        a.ins('s_endpgm')

def gen_stream():
    a.label('L_stream')
    a.ins(f's_sub_u32 s4, s2, {NCH}')
    a.ins('s_lshl_b32 s4, s4, 2')
    a.ins('s_add_u32 s4, s4, s3')
    a.ins('s_mul_i32 s5, s4, 2521')
    a.ins('s_lshr_b32 s5, s5, 16')
    a.ins(f's_mul_i32 s6, s5, {WPH}')
    a.ins('s_sub_u32 s6, s4, s6')
    a.ins('s_mul_i32 s7, s6, 39')
    a.ins('s_min_u32 s68, s6, 10')
    a.ins('s_add_u32 s7, s7, s68')
    a.ins('s_cmp_lt_u32 s6, 10')
    a.ins('s_cselect_b32 s68, 40, 39')
    a.ins('s_cselect_b32 s69, 0, 0xff800000')
    a.ins('s_mul_i32 s68, s68, 3072')
    a.ins('s_mul_i32 s70, s5, 3145728')
    a.ins('s_mul_i32 s71, s7, 3072')
    a.ins('s_add_u32 s70, s70, s71')
    for b in range(4):
        a.ins(f's_add_u32 s71, s70, {hex(b * BATCH_STRIDE)}')
        srd_off(srd_k(b), 10, 11, 71, 's68')
        srd_off(srd_v(b), 12, 13, 71, 's68')
    a.ins('s_mul_i32 s72, s5, 384')
    a.ins(f's_add_u32 s72, s72, {hex(Q_OFF)}')
    a.ins(f's_mul_i32 s73, s4, {REC}')
    smov(74, CSCALE)
    a.ins('v_lshrrev_b32 v1, 3, v0')
    a.ins('v_mul_u32_u24 v1, 384, v1')
    a.ins('v_and_b32 v2, 7, v0')
    a.ins('v_lshlrev_b32 v2, 4, v2')
    a.ins('v_add_u32 v1, v1, v2')
    a.ins('s_mul_i32 s71, s3, 40960')
    a.ins('v_lshlrev_b32 v6, 4, v0')
    a.ins('v_add_u32 v3, s71, v6')
    a.ins('s_add_u32 s71, s71, 39936')
    a.ins('v_add_u32 v5, s71, v6')
    a.ins('v_lshlrev_b32 v4, 1, v2')
    a.ins('v_add_u32 v4, s71, v4')
    a.ins('v_bfe_u32 v7, v0, 4, 1')
    a.ins('v_mul_u32_u24 v7, 6, v7')
    a.ins('v_bfe_u32 v254, v0, 5, 1')
    a.ins('v_mul_u32_u24 v254, 12, v254')
    a.ins('v_add_u32 v7, v7, v254')
    Stream().run()

XS = 0
RED = 5120
XRES = 25600
X1 = 35840
WL = 38912
W1 = 128

def vm_auto(text):
    if len(a.vm) >= 60:
        a.ins('s_waitcnt vmcnt(30)')
        a.vm = a.vm[-30:]
    a.vmem(text, None)

def wave_sum(t, u):
    for pat in ('quad_perm:[1,0,3,2]', 'quad_perm:[2,3,0,1]', 'row_half_mirror', 'row_mirror'):
        a.ins(f'v_add_f32_dpp v{t}, v{t}, v{t} {pat} {DPP}')
    a.ins(f'v_mov_b32 v{u}, v{t}')
    a.ins(f'v_permlane16_swap_b32 v{t}, v{u}')
    a.ins(f'v_add_f32 v{t}, v{t}, v{u}')
    a.ins(f'v_mov_b32 v{u}, v{t}')
    a.ins(f'v_permlane32_swap_b32 v{t}, v{u}')
    a.ins(f'v_add_f32 v{t}, v{t}, v{u}')

def bf16r(d, s):
    a.ins(f'v_cvt_pk_bf16_f32 v{d}, 0, v{s}')

def poll_indicator(voff, nl, sreg):
    L = newlab('Lpi'); D = newlab('Lpd')
    smov(75, SPIN_MAX)
    set_exec_lanes(nl)
    a.label(L)
    a.ins(f'buffer_load_dword v127, v{voff}, s[64:67], s{sreg} offen sc1')
    a.ins('s_waitcnt vmcnt(0)')
    a.ins('v_cmp_eq_u32 vcc, -1, v127')
    a.ins(f's_cbranch_vccz {D}')
    a.ins('s_sleep 3')
    a.ins('s_sub_u32 s75, s75, 1')
    a.ins('s_cmp_lg_u32 s75, 0')
    a.ins(f's_cbranch_scc1 {L}')
    a.label(D)
    set_exec_lanes(64)
    a.vm = []

def check_regs(regs, w):
    regs = list(regs)
    a.ins(f'v_max3_u32 v{w}, v{regs[0]}, v{regs[1]}, v{regs[2]}')
    k = 3
    while k < len(regs):
        k2 = min(k + 1, len(regs) - 1)
        a.ins(f'v_max3_u32 v{w}, v{w}, v{regs[k]}, v{regs[k2]}')
        k += 2
    a.ins(f'v_cmp_eq_u32 vcc, -1, v{w}')

def gather_ar(sreg):
    poll_indicator(8, 8, sreg)
    L = newlab('Lg'); D = newlab('Lgd')
    smov(75, SPIN_MAX)
    a.label(L)
    for i in range(20):
        if i % 4 == 0:
            a.ins(f's_add_u32 s76, s{sreg}, {(i // 4) * 4096}')
        off = f' offset:{(i % 4) * 1024}' if i % 4 else ''
        a.ins(f'buffer_load_dwordx4 v[{16+4*i}:{19+4*i}], v9, s[64:67], s76 offen{off} sc1')
    a.ins('s_waitcnt vmcnt(0)')
    check_regs(range(16, 96), 127)
    a.ins(f's_cbranch_vccz {D}')
    a.ins('s_sleep 1')
    a.ins('s_sub_u32 s75, s75, 1')
    a.ins('s_cmp_lg_u32 s75, 0')
    a.ins(f's_cbranch_scc1 {L}')
    a.label(D)
    for grp in range(5):
        for k in range(1, 4):
            for e in range(4):
                a.ins(f'v_add_f32 v{16+4*grp+e}, v{16+4*grp+e}, v{16+4*(grp+5*k)+e}')
    for grp in range(5):
        a.lds(f'ds_write_b128 v10, v[{16+4*grp}:{19+4*grp}] offset:{grp*1024}')
    a.barrier()

def ar_sum_wave0():
    for wv in range(8):
        for k in range(5):
            r = 32 + (wv * 5 + k) * 2
            a.lds(f'ds_read_b64 v[{r}:{r+1}], v12 offset:{RED + wv*2560 + k*512}')
    a.wait_lg_all()
    for k in range(5):
        for e in range(2):
            d = 16 + 2 * k + e
            a.ins(f'v_add_f32 v{d}, v{32+2*k+e}, v{32+(5+k)*2+e}')
    for p in range(2, 8):
        for k in range(5):
            for e in range(2):
                d = 16 + 2 * k + e
                a.ins(f'v_add_f32 v{d}, v{d}, v{32+(5*p+k)*2+e}')

def residual(areg, src_off):
    for k in range(5):
        a.lds(f'ds_read_b64 v[{32+2*k}:{33+2*k}], v{areg} offset:{src_off + k*512}')
    for i in range(10):
        bf16r(16 + i, 16 + i)
    a.wait_lg_all()
    for i in range(10):
        a.ins(f'v_add_f32 v{16+i}, v{16+i}, v{32+i}')
    for i in range(10):
        bf16r(16 + i, 16 + i)

def store_x(areg, dst_off):
    for k in range(5):
        a.lds(f'ds_write_b64 v{areg}, v[{16+2*k}:{17+2*k}] offset:{dst_off + k*512}')

def layernorm_to_xs():
    t, u, mean, var = 32, 33, 34, 35
    a.ins(f'v_add_f32 v{t}, v16, v17')
    for i in range(2, 10):
        a.ins(f'v_add_f32 v{t}, v{t}, v{16+i}')
    wave_sum(t, u)
    a.ins(f'v_mul_f32 v{mean}, {hex(f32(1.0/640))}, v{t}')
    for i in range(10):
        a.ins(f'v_sub_f32 v{40+i}, v{16+i}, v{mean}')
    a.ins(f'v_mul_f32 v{t}, v40, v40')
    for i in range(1, 10):
        a.ins(f'v_fmac_f32 v{t}, v{40+i}, v{40+i}')
    wave_sum(t, u)
    a.ins(f'v_mul_f32 v{var}, {hex(f32(1.0/640))}, v{t}')
    bf16r(mean, mean)
    bf16r(var, var)
    a.ins(f'v_add_f32 v{var}, {hex(f32(1e-5))}, v{var}')
    bf16r(var, var)
    a.ins(f'v_sqrt_f32 v{var}, v{var}')
    bf16r(var, var)
    a.ins(f'v_rcp_f32 v{u}, v{var}')
    for i in range(10):
        a.ins(f'v_sub_f32 v{40+i}, v{16+i}, v{mean}')
    for i in range(10):
        bf16r(40 + i, 40 + i)
    for i in range(10):
        a.ins(f'v_mul_f32 v{50+i}, v{40+i}, v{u}')
    for i in range(10):
        a.ins(f'v_fma_f32 v{60+i}, -v{50+i}, v{var}, v{40+i}')
    for i in range(10):
        a.ins(f'v_fma_f32 v{50+i}, v{60+i}, v{u}, v{50+i}')
    for k in range(5):
        r = 72 + 4 * k
        a.ins(f'v_cvt_pk_bf16_f32 v{r}, v{50+2*k}, 0')
        a.ins(f'v_cvt_pk_bf16_f32 v{r+1}, 0, v{50+2*k}')
        a.ins(f'v_cvt_pk_bf16_f32 v{r+2}, v{51+2*k}, 0')
        a.ins(f'v_cvt_pk_bf16_f32 v{r+3}, 0, v{51+2*k}')
        a.lds(f'ds_write_b128 v13, v[{r}:{r+3}] offset:{XS + k*1024}')

def only_wave0_begin():
    L = newlab('Lw0')
    a.ins('s_cmp_lg_u32 s3, 0')
    a.ins(f's_cbranch_scc1 {L}')
    return L

def only_wave0_end(L):
    a.wait_lg_all()
    a.label(L)
    a.fence_hazards()

def gemv_rows(nrows, xaddr, wsrc, acc=56):
    for k in range(8):
        a.ins(f'v_mov_b32 v{acc+k}, 0')
    B = 8
    for r0 in range(0, nrows, B):
        for k in range(B // 2):
            a.lds(f'ds_read_b128 v[{16+4*k}:{19+4*k}], v{xaddr} offset:{(r0+2*k)*8}')
        for k in range(B):
            ws = wsrc(r0 + k)
            if ws[0] == 'l':
                a.lds(f'ds_read_b128 v[{64+4*k}:{67+4*k}], v{ws[1]} offset:{ws[2]}')
        a.wait_lg_all()
        for k in range(B):
            ws = wsrc(r0 + k)
            x = 16 + 2 * k
            if ws[0] == 'a':
                tmp = 48 + 4 * (k % 2)
                m_ac4(tmp, ws[1])
                m_gv8(tmp, x, acc)
            elif ws[0] == 'v':
                m_gv8(ws[1], x, acc)
            else:
                m_gv8(64 + 4 * k, x, acc)

def write_red(addr, acc=56):
    set_exec_lanes(60)
    a.lds(f'ds_write_b128 v{addr}, v[{acc}:{acc+3}]')
    a.lds(f'ds_write_b128 v{addr}, v[{acc+4}:{acc+7}] offset:16')
    set_exec_lanes(64)
    a.barrier()

def reduce3_publish(sreg):
    L = newlab('Lr3')
    a.ins('s_cmp_eq_u32 s3, 3')
    a.ins(f's_cbranch_scc1 {L}')
    M = newlab('Lr3m')
    a.ins('s_cmp_lg_u32 s3, 2')
    a.ins(f's_cbranch_scc1 {M}')
    set_exec_lanes(32)
    a.label(M)
    for r in range(3):
        a.lds(f'ds_read_b128 v[{16+4*r}:{19+4*r}], v15 offset:{RED + r*2560}')
    a.wait_lg_all()
    for e in range(4):
        a.ins(f'v_add_f32 v{16+e}, v{16+e}, v{20+e}')
    for e in range(4):
        a.ins(f'v_add_f32 v{16+e}, v{16+e}, v{24+e}')
    a.ins(f's_add_u32 s76, s70, s{sreg}')
    a.ins('buffer_store_dwordx4 v[16:19], v15, s[64:67], s76 offen sc1')
    set_exec_lanes(64)
    a.label(L)
    a.fence_hazards()

def combine_records(n, first_reg, Mv, Lv, out):
    for k in range(n):
        a.ins(f'v_readlane_b32 s{40+k}, v{first_reg+4*k}, 48')
        a.ins(f'v_readlane_b32 s{48+k}, v{first_reg+4*k+1}, 48')
    a.ins(f'v_mov_b32 v{Mv}, s40')
    for k in range(1, n):
        a.ins(f'v_max_f32 v{Mv}, s{40+k}, v{Mv}')
    E = 100
    for k in range(n):
        a.ins(f'v_sub_f32 v{E+k}, s{40+k}, v{Mv}')
    for k in range(n):
        a.ins(f'v_exp_f32 v{E+k}, v{E+k}')
    a.ins(f'v_mul_f32 v{Lv}, s48, v{E}')
    for k in range(1, n):
        a.ins(f'v_fma_f32 v{Lv}, v{E+k}, s{48+k}, v{Lv}')
    for e in range(4):
        a.ins(f'v_mul_f32 v{out+e}, v{E}, v{first_reg+e}')
    for k in range(1, n):
        for e in range(4):
            a.ins(f'v_fma_f32 v{out+e}, v{E+k}, v{first_reg+4*k+e}, v{out+e}')

def chain_common_init():
    a.ins('s_lshl_b32 s4, s3, 6')
    a.ins('v_add_u32 v1, s4, v0')
    a.ins('v_lshlrev_b32 v15, 4, v1')
    for k in range(4):
        a.ins(f'v_mov_b32 v{16+k}, -1')
    a.ins(f's_mul_i32 s4, s2, {ARM_PER}')
    for k in range(34):
        a.ins(f's_add_u32 s76, s4, {k*4096}')
        a.vmem('buffer_store_dwordx4 v[16:19], v15, s[64:67], s76 offen sc1', 'arm')
    a.ins('v_min_u32 v2, 59, v0')
    a.ins('s_mul_i32 s4, s3, 60')
    a.ins('v_add_u32 v2, s4, v2')
    a.ins('v_lshlrev_b32 v14, 4, v2')
    a.ins(f'v_add_u32 v14, {WL}, v14')
    a.ins('v_add_u32 v120, 61440, v14')
    a.ins('s_lshl_b32 s4, s3, 3')
    a.ins('v_add_u32 v8, s4, v0')
    a.ins('v_mul_u32_u24 v8, 2560, v8')
    a.ins('v_add_u32 v8, 2556, v8')
    a.ins('s_mul_i32 s4, s3, 20480')
    a.ins('v_lshlrev_b32 v13, 4, v0')
    a.ins('v_add_u32 v9, s4, v13')
    a.ins(f's_mul_i32 s4, s3, 5120')
    a.ins(f's_add_u32 s4, s4, {RED}')
    a.ins('v_add_u32 v10, s4, v13')
    a.ins('v_lshlrev_b32 v12, 3, v0')

def arm_arrive():
    a.wait_vm('arm')
    a.ins('s_barrier')
    L = only_wave0_begin()
    a.ins('v_mov_b32 v124, 0')
    a.ins('v_mov_b32 v125, 1')
    set_exec_lanes(1)
    a.vmem('global_atomic_add v124, v125, s[28:29] sc1', None)
    set_exec_lanes(64)
    a.label(L)
    a.fence_hazards()

def load_xres():
    L = only_wave0_begin()
    srd(96, 8, 9, 4 * 1280)
    a.ins('v_lshlrev_b32 v127, 2, v0')
    for b in range(4):
        smov(76, b * 1280)
        for k in range(5):
            a.ins(f'buffer_load_dword v{16+b*5+k}, v127, s[96:99], s76 offen offset:{k*256}')
    a.ins('s_waitcnt vmcnt(0)')
    for b in range(4):
        for k in range(5):
            r = 16 + b * 5 + k
            d = 40 + 2 * (b * 5 + k)
            a.ins(f'v_lshlrev_b32 v{d}, 16, v{r}')
            a.ins(f'v_and_b32 v{d+1}, 0xffff0000, v{r}')
            a.lds(f'ds_write_b64 v12, v[{d}:{d+1}] offset:{XRES + b*2560 + k*512}')
    only_wave0_end(L)

CHAIN_ORDER = [(0, 0), (0, 1), (1, 0), (0, 2), (1, 1), (0, 3), (1, 2), (1, 3)]

def gen_acu():
    a.label('L_acu')
    chain_common_init()
    a.ins('v_mul_u32_u24 v3, 205, v2')
    a.ins('v_lshrrev_b32 v3, 14, v3')
    a.ins('v_mul_u32_u24 v4, 80, v3')
    a.ins('v_sub_u32 v4, v2, v4')
    a.ins('v_mul_u32_u24 v5, 171, v2')
    a.ins('v_lshrrev_b32 v5, 11, v5')
    a.ins('v_mul_u32_u24 v6, 12, v5')
    a.ins('v_sub_u32 v6, v2, v6')
    a.ins('s_mul_i32 s70, s2, 2560')
    a.ins('s_mul_i32 s4, s2, 245760')
    srd_off(96, 16, 17, 4, 245760)
    a.ins('v_mul_u32_u24 v126, 81920, v3')
    a.ins('v_lshl_add_u32 v126, v4, 4, v126')
    for i in range(64):
        if i % 3 == 0:
            smov(76, (i // 3) * 3840)
        off = f' offset:{(i % 3) * 1280}' if i % 3 else ''
        if i == 24:
            arm_arrive()
            a.vm = [None] * 30
        vm_auto(f'buffer_load_dwordx4 a[{4*i}:{4*i+3}], v126, s[96:99], s76 offen{off} nt')
    a.ins('s_mul_i32 s4, s2, 96')
    a.ins(f's_sub_u32 s5, {640*3072}, s4')
    srd_off(80, 20, 21, 4, 's5')
    srd_off(84, 22, 23, 4, 's5')
    a.ins(f'v_mul_u32_u24 v126, {32*3072}, v5')
    a.ins('v_subrev_u32 v127, 6, v6')
    a.ins('v_cmp_gt_u32 vcc, 6, v6')
    a.ins('v_cndmask_b32 v127, v127, v6, vcc')
    a.ins('v_lshl_add_u32 v126, v127, 4, v126')
    a.ins('s_mov_b64 s[88:89], vcc')
    a.ins('s_not_b64 s[90:91], vcc')
    for i in range(32):
        smov(76, i * 3072)
        a.ins('s_mov_b64 exec, s[88:89]')
        vm_auto(f'buffer_load_dwordx4 v[{W1+4*i}:{W1+4*i+3}], v126, s[80:83], s76 offen nt')
        a.ins('s_mov_b64 exec, s[90:91]')
        vm_auto(f'buffer_load_dwordx4 v[{W1+4*i}:{W1+4*i+3}], v126, s[84:87], s76 offen nt')
    a.ins('s_mov_b64 exec, -1')
    a.ins('s_mul_i32 s4, s2, 61440')
    srd_off(96, 24, 25, 4, 61440)
    a.ins('v_mul_u32_u24 v126, 20480, v3')
    a.ins('v_lshl_add_u32 v126, v4, 4, v126')
    for i in range(16):
        if i % 3 == 0:
            smov(76, (i // 3) * 3840)
        off = f' offset:{(i % 3) * 1280}' if i % 3 else ''
        vm_auto(f'buffer_load_dwordx4 v[{16+4*i}:{19+4*i}], v126, s[96:99], s76 offen{off} nt')
    a.wait_vm_all()
    for i in range(16):
        a.lds(f'ds_write_b128 v14, v[{16+4*i}:{19+4*i}] offset:{i*3840}')
    a.wait_lg_all()
    load_xres()
    a.ins(f'v_lshlrev_b32 v112, 9, v3')
    a.ins(f'v_add_u32 v112, {XS}, v112')
    a.ins(f'v_lshlrev_b32 v113, 8, v5')
    a.ins(f'v_add_u32 v113, {XS}, v113')
    a.ins(f'v_lshlrev_b32 v114, 7, v3')
    a.ins(f'v_add_u32 v114, {XS}, v114')
    a.ins('v_mul_u32_u24 v115, 2560, v3')
    a.ins('v_lshl_add_u32 v115, v4, 5, v115')
    a.ins(f'v_add_u32 v115, {RED}, v115')
    a.ins('v_mul_u32_u24 v116, 384, v5')
    a.ins('v_lshl_add_u32 v116, v6, 5, v116')
    a.ins(f'v_add_u32 v116, {RED}, v116')
    a.ins('v_lshlrev_b32 v117, 2, v0')
    a.ins('v_add_u32 v117, s3, v117')
    a.ins('v_min_u32 v117, 25, v117')
    a.ins(f'v_mul_u32_u24 v117, {REC}, v117')
    a.ins('v_add_u32 v117, 772, v117')
    a.ins(f's_mul_i32 s71, s2, {WPH*REC}')
    a.ins(f's_mul_i32 s72, s3, {REC}')
    a.ins('s_add_u32 s72, s72, s71')
    a.ins(f's_mul_i32 s4, s3, {REC}')
    a.ins(f's_add_u32 s4, s4, {RED}')
    a.ins('v_add_u32 v118, s4, v13')
    a.ins('v_add_u32 v117, s71, v117')
    srd(92, 26, 27, 4 * 1280)
    a.ins('v_lshlrev_b32 v119, 2, v0')
    wait_armed_chain()
    order = 0
    for i, (ly, b) in enumerate(CHAIN_ORDER):
        order |= (ly * 4 + b) << (4 * i)
    a.ins('s_mov_b32 s78, 0')
    a.label('L_aloop')
    a.fence_hazards()
    if True:
        a.ins('s_lshl_b32 s4, s78, 2')
        a.ins(f's_lshr_b32 s79, {hex(order)}, s4')
        a.ins('s_and_b32 s79, s79, 15')
        a.ins(f's_mul_i32 s80, s79, {PART_C}')
        a.ins(f's_mul_i32 s81, s79, {2*AR_SZ}')
        a.ins(f's_add_u32 s81, s81, {hex(AR_OFF)}')
        a.ins(f's_add_u32 s82, s81, {AR_SZ}')
        a.ins('s_and_b32 s83, s79, 3')
        a.ins('s_mul_i32 s84, s83, 1280')
        a.ins('s_mul_i32 s4, s83, 2560')
        a.ins('v_add_u32 v121, s4, v12')
        a.ins('s_lshr_b32 s85, s79, 2')
        a.ins('s_add_u32 s86, s72, s80')
        poll_indicator(117, 7, 80)
        L = newlab('Ls1'); D = newlab('Ls1d'); SK = newlab('Ls1k')
        smov(75, SPIN_MAX)
        a.label(L)
        a.ins('v_mov_b32 v40, 0xf149f2ca')
        for e in range(1, 4):
            a.ins(f'v_mov_b32 v{40+e}, 0')
        set_exec_lanes(49)
        for k in range(7):
            if k == 6:
                a.ins('s_cmp_ge_u32 s3, 2')
                a.ins(f's_cbranch_scc1 {SK}')
            a.ins(f's_add_u32 s76, s86, {k * 4 * REC}')
            a.ins(f'buffer_load_dwordx4 v[{16+4*k}:{19+4*k}], v13, s[64:67], s76 offen sc1')
        a.label(SK)
        a.ins('s_waitcnt vmcnt(0)')
        check_regs(range(16, 44), 127)
        set_exec_lanes(64)
        a.ins(f's_cbranch_vccz {D}')
        a.ins('s_sleep 1')
        a.ins('s_sub_u32 s75, s75, 1')
        a.ins('s_cmp_lg_u32 s75, 0')
        a.ins(f's_cbranch_scc1 {L}')
        a.label(D)
        combine_records(7, 16, 48, 49, 52)
        a.ins('s_mov_b32 exec_lo, 0', dst=[], src=[])
        a.ins('s_mov_b32 exec_hi, 0x10000', dst=[], src=[])
        a.ins('v_mov_b32 v52, v48')
        a.ins('v_mov_b32 v53, v49')
        set_exec_lanes(49)
        a.lds('ds_write_b128 v118, v[52:55]')
        set_exec_lanes(64)
        a.barrier()
        L0 = only_wave0_begin()
        for k in range(4):
            a.lds(f'ds_read_b128 v[{16+4*k}:{19+4*k}], v13 offset:{RED + k*REC}')
        a.wait_lg_all()
        combine_records(4, 16, 48, 49, 52)
        a.ins('v_rcp_f32 v50, v49')
        for e in range(4):
            a.ins(f'v_mul_f32 v{52+e}, v{52+e}, v50')
        for e in range(4):
            a.ins(f'v_cvt_pk_bf16_f32 v{56+2*e}, v{52+e}, 0')
            a.ins(f'v_cvt_pk_bf16_f32 v{57+2*e}, 0, v{52+e}')
        a.ins('v_lshlrev_b32 v127, 1, v13')
        set_exec_lanes(48)
        a.lds(f'ds_write_b128 v127, v[56:59] offset:{XS}')
        a.lds(f'ds_write_b128 v127, v[60:63] offset:{XS+16}')
        set_exec_lanes(64)
        only_wave0_end(L0)
        a.barrier()
        gemv_rows(64, 112, lambda i: ('a', 4 * i))
        write_red(115)
        reduce3_publish(81)
        gather_ar(81)
        L0 = only_wave0_begin()
        ar_sum_wave0()
        residual(121, XRES)
        store_x(12, X1)
        layernorm_to_xs()
        only_wave0_end(L0)
        a.barrier()
        gemv_rows(32, 113, lambda i: ('v', W1 + 4 * i))
        write_red(116)
        L0 = only_wave0_begin()
        for r in range(20):
            a.lds(f'ds_read_b32 v{16+r}, v119 offset:{RED + r*384}')
            a.lds(f'ds_read_b32 v{36+r}, v119 offset:{RED + r*384 + 192}')
        a.wait_lg_all()
        for r in range(1, 20):
            a.ins(f'v_add_f32 v16, v16, v{16+r}')
            a.ins(f'v_add_f32 v36, v36, v{36+r}')
        bf16r(16, 16); bf16r(36, 36)
        a.ins('v_mul_f32 v17, v16, v16')
        a.ins('v_mul_f32 v17, v17, v16')
        a.ins(f'v_mov_b32 v18, {hex(f32(0.044715))}')
        a.ins('v_fma_f32 v17, v17, v18, v16')
        a.ins(f'v_mul_f32 v17, {hex(f32(2*0.7978845608028654*math.log2(math.e)))}, v17')
        a.ins('v_exp_f32 v17, v17')
        a.ins('v_add_f32 v17, 1.0, v17')
        a.ins('v_rcp_f32 v17, v17')
        a.ins('v_fma_f32 v17, v17, -2.0, 1.0')
        a.ins('v_add_f32 v17, 1.0, v17')
        a.ins('v_mul_f32 v17, v17, v16')
        a.ins('v_mul_f32 v17, 0.5, v17')
        bf16r(17, 17)
        a.ins('v_mul_f32 v17, v17, v36')
        a.ins('v_cvt_pk_bf16_f32 v18, v17, 0')
        a.ins('v_cvt_pk_bf16_f32 v19, 0, v17')
        set_exec_lanes(48)
        a.lds(f'ds_write_b64 v12, v[18:19] offset:{XS}')
        set_exec_lanes(64)
        only_wave0_end(L0)
        a.barrier()
        gemv_rows(16, 114, lambda i: ('l', 14, i * 3840))
        write_red(115)
        reduce3_publish(82)
        gather_ar(82)
        L0 = only_wave0_begin()
        ar_sum_wave0()
        residual(12, X1)
        store_x(121, XRES)
        LO = newlab('Lout')
        a.ins('s_cmp_lg_u32 s2, 0')
        a.ins(f's_cbranch_scc1 {LO}')
        a.ins('s_cmp_lg_u32 s85, 1')
        a.ins(f's_cbranch_scc1 {LO}')
        for k in range(5):
            a.ins(f'v_cvt_pk_bf16_f32 v{32+k}, v{16+2*k}, v{17+2*k}')
            a.ins(f'buffer_store_dword v{32+k}, v119, s[92:95], s84 offen offset:{k*256}')
        a.label(LO)
        only_wave0_end(L0)
        a.barrier()
    a.ins('s_add_u32 s78, s78, 1')
    a.ins('s_cmp_lt_u32 s78, 8')
    a.ins('s_cbranch_scc1 L_aloop')
    a.ins('s_waitcnt vmcnt(0)')
    a.ins('s_endpgm')

def wait_armed_chain():
    L = newlab('Lar'); D = newlab('Lad')
    smov(75, SPIN_MAX)
    a.ins('v_mov_b32 v126, 0')
    a.label(L)
    a.ins('global_load_dword v127, v126, s[28:29] sc1')
    a.ins('s_waitcnt vmcnt(0)')
    a.vm = []
    a.ins(f'v_cmp_gt_u32 vcc, {NCH}, v127')
    a.ins(f's_cbranch_vccz {D}')
    a.ins('s_sleep 2')
    a.ins('s_sub_u32 s75, s75, 1')
    a.ins('s_cmp_lg_u32 s75, 0')
    a.ins(f's_cbranch_scc1 {L}')
    a.label(D)
    a.fence_hazards()

def q_gemv_publish():
    def wsrc(r):
        if r < 64:
            return ('a', 4 * r)
        if r < 96:
            return ('v', W1 + 4 * (r - 64))
        if r < 112:
            return ('l', 14, (r - 96) * 3840)
        return ('l', 120, (r - 112) * 3840)
    gemv_rows(128, 112, wsrc)
    write_red(115)
    L0 = only_wave0_begin()
    a.ins('v_lshlrev_b32 v127, 1, v13')
    for r in range(5):
        a.lds(f'ds_read_b128 v[{16+8*r}:{19+8*r}], v127 offset:{RED + r*1536}')
        a.lds(f'ds_read_b128 v[{20+8*r}:{23+8*r}], v127 offset:{RED + r*1536 + 16}')
    a.wait_lg_all()
    for r in range(1, 5):
        for e in range(8):
            a.ins(f'v_add_f32 v{16+e}, v{16+e}, v{16+8*r+e}')
    for e in range(4):
        a.ins(f'v_cvt_pk_bf16_f32 v{60+e}, v{16+2*e}, v{17+2*e}')
    a.ins('s_add_u32 s76, s70, s86')
    set_exec_lanes(48)
    a.ins('buffer_store_dwordx4 v[60:63], v13, s[64:67], s76 offen sc1')
    set_exec_lanes(64)
    only_wave0_end(L0)
    a.barrier()

def gen_qcu():
    a.label('L_qcu')
    chain_common_init()
    a.ins(f's_sub_u32 s5, s2, {NA}')
    a.ins('v_mul_u32_u24 v3, 171, v2')
    a.ins('v_lshrrev_b32 v3, 13, v3')
    a.ins('v_mul_u32_u24 v4, 48, v3')
    a.ins('v_sub_u32 v4, v2, v4')
    a.ins('s_mul_i32 s70, s5, 768')
    a.ins(f's_sub_u32 s6, {640*12288}, s70')
    srd_off(96, 14, 15, 70, 's6')
    a.ins(f'v_mul_u32_u24 v126, {128*12288}, v3')
    a.ins('v_lshl_add_u32 v126, v4, 4, v126')
    load_xres_done = False
    for r in range(128):
        smov(76, r * 12288)
        if r == 24:
            arm_arrive()
            a.vm = [None] * 30
        if r < 64:
            vm_auto(f'buffer_load_dwordx4 a[{4*r}:{4*r+3}], v126, s[96:99], s76 offen nt')
        elif r < 96:
            vm_auto(f'buffer_load_dwordx4 v[{W1+4*(r-64)}:{W1+4*(r-64)+3}], v126, s[96:99], s76 offen nt')
        else:
            k = (r - 96) % 16
            vm_auto(f'buffer_load_dwordx4 v[{16+4*k}:{19+4*k}], v126, s[96:99], s76 offen nt')
            if k == 15:
                a.wait_vm_all()
                for kk in range(16):
                    a.lds(f'ds_write_b128 v{14 if r < 112 else 120}, v[{16+4*kk}:{19+4*kk}] offset:{kk*3840}')
                a.wait_lg_all()
    load_xres()
    a.ins(f'v_lshlrev_b32 v112, 10, v3')
    a.ins(f'v_add_u32 v112, {XS}, v112')
    a.ins('v_mul_u32_u24 v115, 1536, v3')
    a.ins('v_lshl_add_u32 v115, v4, 5, v115')
    a.ins(f'v_add_u32 v115, {RED}, v115')
    wait_armed_chain()
    a.ins('s_mov_b32 s78, 0')
    a.label('L_qloop')
    a.fence_hazards()
    a.ins('s_and_b32 s83, s78, 3')
    a.ins('s_mul_i32 s4, s83, 2560')
    a.ins('v_add_u32 v121, s4, v12')
    a.ins(f's_mul_i32 s86, s78, {32*384}')
    a.ins(f's_add_u32 s86, s86, {hex(Q_OFF)}')
    a.ins(f's_mul_i32 s81, s83, {2*AR_SZ}')
    a.ins(f's_add_u32 s81, s81, {hex(AR_OFF)}')
    a.ins(f's_add_u32 s82, s81, {AR_SZ}')
    a.ins('s_cmp_ge_u32 s78, 4')
    a.ins('s_cbranch_scc1 L_qchain')
    L0 = only_wave0_begin()
    for k in range(5):
        a.lds(f'ds_read_b64 v[{16+2*k}:{17+2*k}], v121 offset:{XRES + k*512}')
    a.wait_lg_all()
    only_wave0_end(L0)
    a.ins('s_branch L_qln')
    a.label('L_qchain')
    a.fence_hazards()
    gather_ar(81)
    L0 = only_wave0_begin()
    ar_sum_wave0()
    residual(121, XRES)
    store_x(12, X1)
    only_wave0_end(L0)
    a.barrier()
    gather_ar(82)
    L0 = only_wave0_begin()
    ar_sum_wave0()
    residual(12, X1)
    only_wave0_end(L0)
    a.label('L_qln')
    a.fence_hazards()
    L0 = only_wave0_begin()
    layernorm_to_xs()
    only_wave0_end(L0)
    a.barrier()
    q_gemv_publish()
    a.ins('s_add_u32 s78, s78, 1')
    a.ins('s_cmp_lt_u32 s78, 8')
    a.ins('s_cbranch_scc1 L_qloop')
    a.ins('s_waitcnt vmcnt(0)')
    a.ins('s_endpgm')

def main(outpath):
    hdr = open('cdna_kernels/' + NAME + '.s.ref').read().split('\n')
    top = [l for l in hdr if l.startswith(';') and '@launch' not in l]
    out = []
    out += top
    out.append('; @launch grid=(256,1,1) block=(256,1,1) lds=163840')
    out.append('.amdgcn_target "amdgcn-amd-amdhsa--gfx950"')
    out.append('.text')
    out.append(MACROS)
    out.append(f'.globl {KNAME}')
    out.append('.p2align 8')
    out.append(f'.type {KNAME},@function')
    out.append(f'{KNAME}:')
    a.ins('s_cmp_ge_u32 s2, 256')
    a.ins('s_cbranch_scc1 L_exit')
    a.ins('s_load_dwordx16 s[8:23], s[0:1], 0')
    a.ins('s_load_dwordx8 s[24:31], s[0:1], 64')
    a.ins('v_lshrrev_b32 v1, 6, v0')
    a.ins('v_and_b32 v0, 63, v0')
    a.ins('v_readfirstlane_b32 s3, v1')
    a.ins('s_waitcnt lgkmcnt(0)')
    srd(64, 30, 31, COMM)
    a.ins(f's_cmp_ge_u32 s2, {NCH}')
    a.ins('s_cbranch_scc0 L_chain')
    a.ins('s_branch L_stream')
    a.label('L_exit')
    a.ins('s_endpgm')
    a.label('L_chain')
    a.ins(f's_cmp_ge_u32 s2, {NA}')
    a.ins('s_cbranch_scc1 L_qcu')
    a.fence_hazards()
    gen_acu()
    a.hist = []; a.vm = []; a.lg = []
    a.fence_hazards()
    gen_qcu()
    a.hist = []; a.vm = []; a.lg = []
    a.fence_hazards()
    gen_stream()
    out.append(a.text())
    out.append('.section .rodata,"a"')
    out.append('.p2align 6')
    out.append(f'.amdhsa_kernel {KNAME}')
    out.append('  .amdhsa_next_free_vgpr 512')
    out.append('  .amdhsa_next_free_sgpr 102')
    out.append('  .amdhsa_accum_offset 256')
    out.append('  .amdhsa_group_segment_fixed_size 0')
    out.append('  .amdhsa_kernarg_size 96')
    out.append('  .amdhsa_user_sgpr_count 2')
    out.append('  .amdhsa_user_sgpr_kernarg_segment_ptr 1')
    out.append('  .amdhsa_system_sgpr_workgroup_id_x 1')
    out.append('.end_amdhsa_kernel')
    open(outpath, 'w').write('\n'.join(out) + '\n')
    print('instrs', a.ninstr, 'bytes', sum(len(x) + 1 for x in out))

if __name__ == '__main__':
    main(sys.argv[1] if len(sys.argv) > 1 else 'cdna_kernels/' + NAME + '.s')
```

```python
import struct, sys, math, os
from asmlib import *

NAME = 'interleave_layers__mha_block_cached__glu_gated_geglu__decode'
KNAME = NAME + '_kernel'

NA, NQ = 32, 16
NCH = NA + NQ
NST = 256 - NCH
WPH = NST * 4 // 32
REC = 784
PART_OFF = 0
PART_C = 32 * WPH * REC
NR = 21
NL = int(os.environ.get('NL', '0'))
LMODE = os.environ.get('LMODE', 'touch')
NN = 40 - NR - NL
NA_HALF = (NN + 1) // 2
NT_ALL = 40
R_T = list(range(NR + NL)); D_T = list(range(NR, NR + NL)) + list(range(NR)); N_T = list(range(NR + NL, NT_ALL)); NA_T = N_T[:NA_HALF]; NB_T = N_T[NA_HALF:]
SCHED = [('A', 0, 0, R_T), ('N', 0, 0, N_T), ('N', 0, 1, N_T), ('N', 0, 2, NA_T),
         ('D', 1, 0, D_T), ('A', 0, 1, R_T), ('N', 0, 2, NB_T), ('N', 1, 0, N_T),
         ('D', 1, 1, D_T), ('A', 0, 2, R_T), ('N', 0, 3, N_T), ('N', 1, 1, NA_T),
         ('D', 1, 2, D_T), ('A', 0, 3, R_T), ('N', 1, 1, NB_T), ('N', 1, 2, N_T),
         ('D', 1, 3, D_T), ('N', 1, 3, N_T)]
NSEG = len(SCHED)
_last = {}
for _i, (_t, _p, _b, _tl) in enumerate(SCHED):
    _last[(_p, _b)] = _i
CHAIN_ORDER = sorted(_last, key=lambda k: _last[k])
CHAIN_SEGS = {k: [i for i, (t, p, b, tl) in enumerate(SCHED) if (p, b) == k] for k in CHAIN_ORDER}
AR_OFF = ((NSEG * PART_C + 4095) // 4096) * 4096
AR_SZ = 32 * 2560
Q_OFF = AR_OFF + 16 * AR_SZ
X2_OFF = Q_OFF + 8 * 32 * 384
ARM_N = (X2_OFF + 4 * 2560 + 48 * 4096 - 1) // (48 * 4096)
COMM = ARM_N * 48 * 4096
assert Q_OFF % 4096 == 0
ARM_PER = COMM // NCH
BATCH_STRIDE = 32 * 8192 * 384
SPIN_MAX = 400000
import os
DIAG = int(os.environ.get('DIAG', '0'))
STAMP_OFF = COMM
WS_SIZE = COMM + (1 << 20 if DIAG else 0)

def f32(x):
    return struct.unpack('<I', struct.pack('<f', x))[0]

CSCALE = f32((192 ** -0.5) * math.log2(math.e))

a = Asm()
_lab = [0]
def newlab(p='L'):
    _lab[0] += 1
    return f'{p}{_lab[0]}'

MACROS = r'''
.macro QK2 ta, tb, q, s
  v_dot2_f32_bf16 v[\s+0], v[\ta+0], v[\q+0], 0
  v_dot2_f32_bf16 v[\s+1], v[\ta+4], v[\q+4], 0
  v_dot2_f32_bf16 v[\s+2], v[\ta+8], v[\q+8], 0
  v_dot2_f32_bf16 v[\s+3], v[\tb+0], v[\q+0], 0
  v_dot2_f32_bf16 v[\s+4], v[\tb+4], v[\q+4], 0
  v_dot2_f32_bf16 v[\s+5], v[\tb+8], v[\q+8], 0
  .irp k, 1, 2, 3
  v_dot2c_f32_bf16 v[\s+0], v[\ta+\k], v[\q+\k]
  v_dot2c_f32_bf16 v[\s+1], v[\ta+4+\k], v[\q+4+\k]
  v_dot2c_f32_bf16 v[\s+2], v[\ta+8+\k], v[\q+8+\k]
  v_dot2c_f32_bf16 v[\s+3], v[\tb+\k], v[\q+\k]
  v_dot2c_f32_bf16 v[\s+4], v[\tb+4+\k], v[\q+4+\k]
  v_dot2c_f32_bf16 v[\s+5], v[\tb+8+\k], v[\q+8+\k]
  .endr
.endm
.macro PV t, p, acc
  .irp k, 0, 1, 2, 3, 4, 5, 6, 7, 8, 9, 10, 11
  v_dot2c_f32_bf16 v[\acc+2*\k], v[\t+\k], v[\p]
  v_dot2c_f32_bf16 v[\acc+2*\k+1], v[\t+\k], v[\p+1]
  .endr
.endm
.macro ACR t, s
  .irp k, 0, 1, 2, 3, 4, 5, 6, 7, 8, 9, 10, 11
  v_accvgpr_read_b32 v[\t+\k], a[\s+\k]
  .endr
.endm
.macro LDT k, d, srd
  buffer_load_dwordx4 \k[\d:\d+3], v1, s[\srd:\srd+3], s76 offen nt
  buffer_load_dwordx4 \k[\d+4:\d+7], v1, s[\srd:\srd+3], s76 offen offset:128 nt
  buffer_load_dwordx4 \k[\d+8:\d+11], v1, s[\srd:\srd+3], s76 offen offset:256 nt
.endm
.macro LDC k, d, srd
  buffer_load_dwordx4 \k[\d:\d+3], v1, s[\srd:\srd+3], s76 offen
  buffer_load_dwordx4 \k[\d+4:\d+7], v1, s[\srd:\srd+3], s76 offen offset:128
  buffer_load_dwordx4 \k[\d+8:\d+11], v1, s[\srd:\srd+3], s76 offen offset:256
.endm
.macro RESC acc, al
  .irp k, 0, 1, 2, 3, 4, 5, 6, 7, 8, 9, 10, 11, 12, 13, 14, 15, 16, 17, 18, 19, 20, 21, 22, 23
  v_mul_f32 v[\acc+\k], v[\al], v[\acc+\k]
  .endr
.endm
.macro GV8 w, x, acc
  .irp k, 0, 1, 2, 3
  v_dot2c_f32_bf16 v[\acc+2*\k], v[\w+\k], v[\x]
  v_dot2c_f32_bf16 v[\acc+2*\k+1], v[\w+\k], v[\x+1]
  .endr
.endm
.macro AC4 t, s
  .irp k, 0, 1, 2, 3
  v_accvgpr_read_b32 v[\t+\k], a[\s+\k]
  .endr
.endm
'''

def m_qk2(ta, tb, q, s):
    a.mbegin(f'QK2 {ta}, {tb}, {q}, {s}')
    for i, (t, o) in enumerate([(ta, 0), (ta, 4), (ta, 8), (tb, 0), (tb, 4), (tb, 8)]):
        a.ins(f'v_dot2_f32_bf16 v{s+i}, v{t+o}, v{q+o}, 0')
    for k in (1, 2, 3):
        for i, (t, o) in enumerate([(ta, 0), (ta, 4), (ta, 8), (tb, 0), (tb, 4), (tb, 8)]):
            a.ins(f'v_dot2c_f32_bf16 v{s+i}, v{t+o+k}, v{q+o+k}')
    a.mend()

def m_pv(t, p, acc):
    a.mbegin(f'PV {t}, {p}, {acc}')
    for k in range(12):
        a.ins(f'v_dot2c_f32_bf16 v{acc+2*k}, v{t+k}, v{p}')
        a.ins(f'v_dot2c_f32_bf16 v{acc+2*k+1}, v{t+k}, v{p+1}')
    a.mend()

def m_acr(t, s):
    a.mbegin(f'ACR {t}, {s}')
    for k in range(12):
        a.ins(f'v_accvgpr_read_b32 v{t+k}, a{s+k}')
    a.mend()

def m_ldt(kind, d, srd, tag, pol='nt'):
    a.mbegin(f'{"LDT" if pol else "LDC"} {kind}, {d}, {srd}')
    for i in range(3):
        off = f' offset:{i*128}' if i else ''
        a.vmem(f'buffer_load_dwordx4 {kind}[{d+4*i}:{d+4*i+3}], v1, s[{srd}:{srd+3}], s76 offen{off} {pol}', tag)
    a.mend()

def m_resc(acc, al):
    a.mbegin(f'RESC {acc}, {al}')
    for k in range(24):
        a.ins(f'v_mul_f32 v{acc+k}, v{al}, v{acc+k}')
    a.mend()

def m_gv8(w, x, acc):
    a.mbegin(f'GV8 {w}, {x}, {acc}')
    for k in range(4):
        a.ins(f'v_dot2c_f32_bf16 v{acc+2*k}, v{w+k}, v{x}')
        a.ins(f'v_dot2c_f32_bf16 v{acc+2*k+1}, v{w+k}, v{x+1}')
    a.mend()

def m_ac4(t, s):
    a.mbegin(f'AC4 {t}, {s}')
    for k in range(4):
        a.ins(f'v_accvgpr_read_b32 v{t+k}, a{s+k}')
    a.mend()

DPP = 'row_mask:0xf bank_mask:0xf'

def smov(s, val):
    val &= 0xffffffff
    a.ins(f's_mov_b32 s{s}, {val if val <= 64 else hex(val)}')

def srd(d, lo, hi, nrec):
    a.ins(f's_mov_b32 s{d}, s{lo}')
    a.ins(f's_and_b32 s{d+1}, s{hi}, 0xffff')
    if isinstance(nrec, int):
        smov(d + 2, nrec)
    else:
        a.ins(f's_mov_b32 s{d+2}, {nrec}')
    a.ins(f's_mov_b32 s{d+3}, 0x20000')

def srd_off(d, lo, hi, offs, nrec):
    a.ins(f's_add_u32 s{d}, s{lo}, s{offs}')
    a.ins(f's_addc_u32 s{d+1}, s{hi}, 0')
    a.ins(f's_and_b32 s{d+1}, s{d+1}, 0xffff')
    if isinstance(nrec, int):
        smov(d + 2, nrec)
    else:
        a.ins(f's_mov_b32 s{d+2}, {nrec}')
    a.ins(f's_mov_b32 s{d+3}, 0x20000')

def set_exec_lanes(n):
    if n >= 64:
        a.ins('s_mov_b64 exec, -1')
    elif n <= 32:
        a.ins(f's_mov_b32 exec_lo, {hex((1 << n) - 1)}', dst=[], src=[])
        a.ins('s_mov_b32 exec_hi, 0', dst=[], src=[])
    else:
        a.ins('s_mov_b32 exec_lo, -1', dst=[], src=[])
        a.ins(f's_mov_b32 exec_hi, {hex((1 << (n - 32)) - 1)}', dst=[], src=[])

def stamp(idx, base_s, vt, dyn=None):
    if not DIAG:
        return
    a.ins('s_memrealtime s[100:101]')
    a.ins('s_waitcnt lgkmcnt(0)')
    a.lg = []
    a.ins(f'v_mov_b32 v{vt}, s100')
    a.ins(f'v_mov_b32 v{vt+1}, 0')
    if dyn is None:
        a.ins(f's_add_u32 s101, s{base_s}, {idx*4}')
    else:
        a.ins(f's_add_u32 s101, s{base_s}, s{dyn}')
        a.ins(f's_add_u32 s101, s101, {idx*4}')
    a.vmem(f'buffer_store_dword v{vt}, v{vt+1}, s[64:67], s101 offen', 'stamp')

def flags_addr(va, stage):
    if stage == 1:
        a.ins(f'v_min_u32 v{va}, 11, v0')
        a.ins(f'v_lshlrev_b32 v{va}, 2, v{va}')
    else:
        a.ins(f'v_min_u32 v{va}, 23, v0')
        a.ins(f'v_lshlrev_b32 v{va}, 2, v{va}')
        a.ins(f'v_add_u32 v{va}, 128, v{va}')

def flags_check(vreg, stage):
    a.ins(f'v_cmp_ne_u32 vcc, {1 if stage == 1 else "0x10001"}, v{vreg}')

def wait_flags(stage, va=254, plain_first=True):
    L = newlab('Lar'); D = newlab('Lad')
    smov(75, SPIN_MAX)
    flags_addr(va, stage)
    if plain_first:
        a.ins(f'global_load_dword v{va+1}, v{va}, s[28:29]')
        a.ins('s_waitcnt vmcnt(0)')
        flags_check(va + 1, stage)
        a.ins(f's_cbranch_vccz {D}')
    a.label(L)
    a.ins(f'global_load_dword v{va+1}, v{va}, s[28:29] sc1')
    a.ins('s_waitcnt vmcnt(0)')
    a.vm = []
    flags_check(va + 1, stage)
    a.ins(f's_cbranch_vccz {D}')
    a.ins('s_sleep 8')
    a.ins('s_sub_u32 s75, s75, 1')
    a.ins('s_cmp_lg_u32 s75, 0')
    a.ins(f's_cbranch_scc1 {L}')
    a.label(D)
    a.fence_hazards()

def set_flag(stage):
    L = only_wave0_begin()
    if stage == 1:
        a.ins('s_lshl_b32 s4, s2, 2')
    else:
        a.ins('s_lshl_b32 s4, s2, 1')
        a.ins('s_add_u32 s4, s4, 128')
    a.ins('v_mov_b32 v150, s4')
    a.ins('v_mov_b32 v151, 1')
    set_exec_lanes(1)
    a.ins(f'global_store_{"dword" if stage == 1 else "short"} v150, v151, s[28:29] sc1')
    set_exec_lanes(64)
    a.label(L)
    a.fence_hazards()

SU_W = 56
SU_ACC = 96
SU_X = 226
SU_RED = 20480

def startup1():
    srd(96, 8, 9, 4 * 1280)
    a.ins('v_lshlrev_b32 v254, 2, v0')
    a.ins('s_mul_i32 s76, s3, 1280')
    for k in range(5):
        a.vmem(f'buffer_load_dword v{SU_X+k}, v254, s[96:99], s76 offen offset:{k*256}', 'sux')
    a.ins('s_mul_i32 s4, s2, 48')
    a.ins(f's_sub_u32 s5, {640*12288}, s4')
    srd_off(92, 14, 15, 4, 's5')
    a.ins('v_and_b32 v255, 15, v0')
    a.ins(f'v_mul_u32_u24 v255, {10*12288}, v255')
    a.ins('v_lshrrev_b32 v128, 4, v0')
    a.ins('v_min_u32 v128, 2, v128')
    a.ins('v_lshl_add_u32 v255, v128, 4, v255')
    a.ins(f's_mul_i32 s4, s3, {160*12288}')
    for i in range(10):
        a.ins(f's_add_u32 s76, s4, {i*12288}')
        a.vmem(f'buffer_load_dwordx4 v[{SU_W+4*i}:{SU_W+4*i+3}], v255, s[92:95], s76 offen', 'suw')

def startup2a(topup=None, st=False, after_x=None):
    X = SU_X
    a.wait_vm('sux')
    if after_x:
        after_x()
    if st: stamp(56, 78, 252)
    xs = X + 5
    for k in range(5):
        a.ins(f'v_lshlrev_b32 v{xs+2*k}, 16, v{X+k}')
        a.ins(f'v_and_b32 v{xs+2*k+1}, 0xffff0000, v{X+k}')
    A = SU_ACC
    t, u, mean, var = A, A + 1, A + 2, A + 3
    d0, q0, e0 = A + 4, A + 14, X + 15
    a.ins(f'v_add_f32 v{t}, v{xs}, v{xs+1}')
    for i in range(2, 10):
        a.ins(f'v_add_f32 v{t}, v{t}, v{xs+i}')
    wave_sum(t, u)
    a.ins(f'v_mul_f32 v{mean}, {hex(f32(1.0/640))}, v{t}')
    for i in range(10):
        a.ins(f'v_sub_f32 v{d0+i}, v{xs+i}, v{mean}')
    a.ins(f'v_mul_f32 v{t}, v{d0}, v{d0}')
    for i in range(1, 10):
        a.ins(f'v_fmac_f32 v{t}, v{d0+i}, v{d0+i}')
    wave_sum(t, u)
    a.ins(f'v_mul_f32 v{var}, {hex(f32(1.0/640))}, v{t}')
    bf16r(mean, mean)
    bf16r(var, var)
    a.ins(f'v_add_f32 v{var}, {hex(f32(1e-5))}, v{var}')
    bf16r(var, var)
    a.ins(f'v_sqrt_f32 v{var}, v{var}')
    bf16r(var, var)
    a.ins(f'v_rcp_f32 v{u}, v{var}')
    for i in range(10):
        a.ins(f'v_sub_f32 v{d0+i}, v{xs+i}, v{mean}')
    for i in range(10):
        bf16r(d0 + i, d0 + i)
    for i in range(10):
        a.ins(f'v_mul_f32 v{q0+i}, v{d0+i}, v{u}')
    for i in range(10):
        a.ins(f'v_fma_f32 v{e0+i}, -v{q0+i}, v{var}, v{d0+i}')
    for i in range(10):
        a.ins(f'v_fma_f32 v{q0+i}, v{e0+i}, v{u}, v{q0+i}')
    a.ins('s_mul_i32 s4, s3, 5120')
    a.ins('v_lshlrev_b32 v254, 4, v0')
    a.ins('v_add_u32 v254, s4, v254')
    r = A + 24
    for k in range(5):
        a.ins(f'v_cvt_pk_bf16_f32 v{r}, v{q0+2*k}, 0')
        a.ins(f'v_cvt_pk_bf16_f32 v{r+1}, 0, v{q0+2*k}')
        a.ins(f'v_cvt_pk_bf16_f32 v{r+2}, v{q0+2*k+1}, 0')
        a.ins(f'v_cvt_pk_bf16_f32 v{r+3}, 0, v{q0+2*k+1}')
        a.lds(f'ds_write_b128 v254, v[{r}:{r+3}] offset:{k*1024}')
        a.wait_lg_all()
    a.barrier()
    if st: stamp(57, 78, 252)
    a.ins('v_and_b32 v254, 15, v0')
    a.ins('v_mul_u32_u24 v254, 80, v254')
    a.ins('s_mul_i32 s4, s3, 1280')
    a.ins('v_add_u32 v254, s4, v254')
    for k in range(32):
        a.ins(f'v_mov_b32 v{SU_ACC+k}, 0')
    a.wait_vm('suw')
    if st: stamp(58, 78, 252)
    for b in range(4):
        for k in range(5):
            a.lds(f'ds_read_b128 v[{X+4*k}:{X+4*k+3}], v254 offset:{b*5120 + k*16}')
        a.wait_lg_all()
        for i in range(10):
            m_gv8(SU_W + 4 * i, X + 2 * i, SU_ACC + 8 * b)
    for pat in ('quad_perm:[1,0,3,2]', 'quad_perm:[2,3,0,1]', 'row_half_mirror', 'row_mirror'):
        for k in range(32):
            a.ins(f'v_add_f32_dpp v{SU_ACC+k}, v{SU_ACC+k}, v{SU_ACC+k} {pat} {DPP}')
    a.ins('v_lshrrev_b32 v254, 4, v0')
    a.ins('v_lshlrev_b32 v254, 7, v254')
    a.ins('s_mul_i32 s4, s3, 384')
    a.ins(f's_add_u32 s4, s4, {SU_RED}')
    a.ins('v_add_u32 v254, s4, v254')
    a.ins('s_mov_b32 exec_lo, 0x10001', dst=[], src=[])
    a.ins('s_mov_b32 exec_hi, 1', dst=[], src=[])
    for k in range(8):
        a.lds(f'ds_write_b128 v254, v[{SU_ACC+4*k}:{SU_ACC+4*k+3}] offset:{k*16}')
    set_exec_lanes(64)
    if topup:
        topup()
    if st: stamp(59, 78, 252)
    a.barrier()
    if st: stamp(60, 78, 252)

def startup2b(st=False):
    a.ins('v_mul_u32_u24 v254, 171, v0')
    a.ins('v_lshrrev_b32 v254, 9, v254')
    a.ins('v_mul_u32_u24 v255, 3, v254')
    a.ins('v_sub_u32 v255, v0, v255')
    a.ins('v_lshlrev_b32 v128, 7, v255')
    a.ins('v_lshl_add_u32 v128, v254, 5, v128')
    a.ins('v_and_b32 v128, 0x1ff, v128')
    for wv in range(4):
        a.lds(f'ds_read_b128 v[{SU_W+8*wv}:{SU_W+8*wv+3}], v128 offset:{SU_RED + wv*384}')
        a.lds(f'ds_read_b128 v[{SU_W+8*wv+4}:{SU_W+8*wv+7}], v128 offset:{SU_RED + wv*384 + 16}')
    a.wait_lg_all()
    for wv in range(1, 4):
        for e in range(8):
            a.ins(f'v_add_f32 v{SU_W+e}, v{SU_W+e}, v{SU_W+8*wv+e}')
    for e in range(4):
        a.ins(f'v_cvt_pk_bf16_f32 v{SU_ACC+e}, v{SU_W+2*e}, v{SU_W+2*e+1}')
    a.ins('v_mul_u32_u24 v254, 12288, v254')
    a.ins('v_lshl_add_u32 v254, v255, 4, v254')
    if st: stamp(61, 78, 250)
    wait_flags(1, 252)
    if st: stamp(62, 78, 250)
    a.ins('s_mul_i32 s76, s2, 48')
    a.ins(f's_add_u32 s76, s76, {hex(Q_OFF)}')
    set_exec_lanes(12)
    a.vmem(f'buffer_store_dwordx4 v[{SU_ACC}:{SU_ACC+3}], v254, s[64:67], s76 offen sc1', 'q1pub')
    set_exec_lanes(64)

RING = [8, 20, 32, 44]
T0, T1 = 56, 68
Q, QS = 80, 92
ST = 104
VSLOT = 130
NVS = 8
WK = 226

def srd_k(b): return 32 + 8 * b
def srd_v(b): return 36 + 8 * b

def r_storage(kind, t):
    if t >= NR:
        return ('c',)
    if kind == 'K':
        return ('a', 12 * t)
    if t < NVS:
        return ('v', VSLOT + 12 * t)
    return ('l', t - NVS)

def groups_of(tiles):
    return [tiles[i:i + 2] for i in range(0, len(tiles), 2)]

class Stream:
    def __init__(self):
        self.P = SCHED
        self.LQ = []
        for pi, (ty, ps, b, tiles) in enumerate(self.P):
            for grp in groups_of(tiles):
                for kind in ('K', 'V'):
                    for t in grp:
                        pol = 'nt'
                        if ty == 'D':
                            if r_storage(kind, t)[0] != 'c':
                                continue
                            dest = ('r', None)
                        elif ty == 'A':
                            stg = r_storage(kind, t)
                            dest = stg if stg[0] in 'av' else ('r', None)
                            if stg[0] == 'c' and LMODE == 'def':
                                pol = ''
                        else:
                            dest = ('r', None)
                        self.LQ.append({'pi': pi, 'kind': kind, 't': t, 'b': b, 'dest': dest, 'pol': pol})
        self.lqi = 0
        self.nissued = 0
        self.ring_free = [True] * 4
        self.ring_next = 0
        self.ded_free = {}
        self.d_done = set()
        self.cur_pi = 0
        self.loc = {}
        self.last_A = max(i for i, p in enumerate(self.P) if p[0] == 'A')
        self.all_ded = [r_storage(k, t) for t in R_T for k in 'KV' if r_storage(k, t)[0] in 'av']

    def ring_alloc(self):
        s = self.ring_next
        if not self.ring_free[s]:
            return None
        self.ring_free[s] = False
        self.ring_next = (s + 1) % 4
        return s

    def _issue_one(self, e):
        if e['dest'][0] == 'r':
            s = self.ring_alloc()
            if s is not None:
                kind, base = 'v', RING[s]
                self.loc[(e['pi'], e['kind'], e['t'])] = ('r', s)
            else:
                key = None
                if self.cur_pi > self.last_A and e['pi'] == len(self.P) - 1:
                    for k in self.all_ded:
                        if self.ded_free.get(k, True):
                            key = k
                            break
                if key is None:
                    return False
                self.ded_free[key] = False
                kind, base = key
                self.loc[(e['pi'], e['kind'], e['t'])] = ('x', key)
        else:
            key = e['dest']
            if not self.ded_free.get(key, True):
                return False
            self.ded_free[key] = False
            kind, base = key
            self.loc[(e['pi'], e['kind'], e['t'])] = key
        smov(76, e['t'] * 3072)
        sd = srd_k(e['b']) if e['kind'] == 'K' else srd_v(e['b'])
        m_ldt(kind, base, sd, ('T', e['pi'], e['kind'], e['t']), e['pol'])
        if LMODE == 'touch' and self.P[e['pi']][0] == 'A' and r_storage(e['kind'], e['t'])[0] == 'c':
            a.vmem(f'buffer_load_dword v249, v248, s[{sd}:{sd+3}], s76 offen sc1', 'touch')
        e['done'] = True
        self.nissued += 1
        return True

    def try_issue(self, cap=None, limit=None):
        if cap is None:
            cap = int(os.environ.get('CAP', '54'))
        while True:
            if len(a.vm) + 4 > cap:
                return
            if limit is not None and self.nissued >= limit:
                return
            cand = []
            seen = set()
            for i in range(self.lqi, len(self.LQ)):
                e = self.LQ[i]
                if e.get('done'):
                    continue
                c = 'r' if e['dest'][0] == 'r' else 'd'
                if c not in seen:
                    seen.add(c)
                    cand.append(e)
                if len(seen) == 2:
                    break
            ok = False
            for e in cand:
                if self._issue_one(e):
                    ok = True
                    break
            while self.lqi < len(self.LQ) and self.LQ[self.lqi].get('done'):
                self.lqi += 1
            if not ok:
                return

    def q_issue(self, ps, b):
        a.ins(f's_add_u32 s76, s72, {hex((ps * 4 + b) * 32 * 384)}')
        for i in range(3):
            off = f' offset:{i*128}' if i else ''
            a.vmem(f'buffer_load_dwordx4 v[{QS+4*i}:{QS+4*i+3}], v2, s[64:67], s76 offen{off} sc1', ('Q', ps, b))

    def q_check(self):
        w = WK
        a.ins(f'v_max3_u32 v{w}, v{QS}, v{QS+1}, v{QS+2}')
        for k in range(3, 12, 2):
            k2 = min(k + 1, 11)
            a.ins(f'v_max3_u32 v{w}, v{w}, v{QS+k}, v{QS+k2}')
        a.ins(f'v_cmp_eq_u32 vcc, -1, v{w}')

    def q_take(self, ps, b):
        a.wait_vm(('Q', ps, b))
        OK = newlab('Lqo'); RT = newlab('Lqr')
        self.q_check()
        a.ins(f's_cbranch_vccz {OK}')
        smov(75, SPIN_MAX)
        a.label(RT)
        a.ins('s_sleep 2')
        a.ins(f's_add_u32 s77, s72, {hex((ps * 4 + b) * 32 * 384)}')
        for i in range(3):
            off = f' offset:{i*128}' if i else ''
            a.ins(f'buffer_load_dwordx4 v[{QS+4*i}:{QS+4*i+3}], v2, s[64:67], s77 offen{off} sc1')
        a.ins('s_waitcnt vmcnt(0)')
        self.q_check()
        a.ins(f's_cbranch_vccz {OK}')
        a.ins('s_sub_u32 s75, s75, 1')
        a.ins('s_cmp_lg_u32 s75, 0')
        a.ins(f's_cbranch_scc1 {RT}')
        a.label(OK)
        for k in range(12):
            a.ins(f'v_mov_b32 v{Q+k}, v{QS+k}')

    def get_tile(self, pi, ty, kind, t, tmp):
        if ty == 'D' and r_storage(kind, t)[0] != 'c':
            stg = r_storage(kind, t)
            if stg[0] == 'a':
                m_acr(tmp, stg[1])
                self.ded_free[stg] = True
                return tmp, None
            if stg[0] == 'v':
                return stg[1], ('ded', stg)
            a.wait_lg(('L', pi, t))
            return tmp, None
        a.wait_vm(('T', pi, kind, t))
        loc = self.loc[(pi, kind, t)]
        if loc[0] == 'x':
            key = loc[1]
            if key[0] == 'a':
                m_acr(tmp, key[1])
                self.ded_free[key] = True
                return tmp, None
            return key[1], ('ded', key)
        if loc[0] == 'a':
            m_acr(tmp, loc[1])
            return tmp, None
        if loc[0] == 'v':
            return loc[1], None
        return RING[loc[1]], ('ring', loc[1])

    def touch(self, pi, ty, kind, t):
        if ty != 'A' or r_storage(kind, t)[0] != 'c':
            return
        b = self.P[pi][2]
        sd = srd_k(b) if kind == 'K' else srd_v(b)
        smov(76, t * 3072)
        a.vmem(f'buffer_load_dword v249, v248, s[{sd}:{sd+3}], s76 offen sc1', 'touch')

    def release(self, rel):
        if rel is None:
            return
        if rel[0] == 'ring':
            self.ring_free[rel[1]] = True
        else:
            self.ded_free[rel[1]] = True

    def lds_prefetch(self, pi, t, tmp):
        slot = t - NVS
        for i in range(3):
            a.lds(f'ds_read_b128 v[{tmp+4*i}:{tmp+4*i+3}], v3 offset:{slot*3072+i*1024}', ('L', pi, t))

    def group(self, pi, ty, grp, last_group):
        st = ST
        acc, m, l = st, st + 24, st + 25
        s = WK
        sa, sb = WK, WK + 3
        mn, cm, al = WK + 6, WK + 7, WK + 8
        pa, pb = WK + 9, WK + 10
        PA, PB = WK + 12, WK + 14
        two = len(grp) == 2
        ta, ra = self.get_tile(pi, ty, 'K', grp[0], T0)
        if two:
            tb, rb = self.get_tile(pi, ty, 'K', grp[1], T1)
            m_qk2(ta, tb, Q, s)
            self.release(ra); self.release(rb)
        else:
            for i, o in enumerate((0, 4, 8)):
                a.ins(f'v_dot2_f32_bf16 v{s+i}, v{ta+o}, v{Q+o}, 0')
            for k in (1, 2, 3):
                for i, o in enumerate((0, 4, 8)):
                    a.ins(f'v_dot2c_f32_bf16 v{s+i}, v{ta+o+k}, v{Q+o+k}')
            self.release(ra)
        if ty == 'D':
            for t, tmp in zip(grp, (T0, T1)):
                if r_storage('V', t)[0] == 'l':
                    self.lds_prefetch(pi, t, tmp)
        self.try_issue()
        a.ins(f'v_add_f32 v{sa}, v{s}, v{s+1}')
        a.ins(f'v_add_f32 v{sa}, v{sa}, v{s+2}')
        if two:
            a.ins(f'v_add_f32 v{sb}, v{s+3}, v{s+4}')
            a.ins(f'v_add_f32 v{sb}, v{sb}, v{s+5}')
        for pat in ('quad_perm:[1,0,3,2]', 'quad_perm:[2,3,0,1]', 'row_half_mirror'):
            a.ins(f'v_add_f32_dpp v{sa}, v{sa}, v{sa} {pat} {DPP}')
            if two:
                a.ins(f'v_add_f32_dpp v{sb}, v{sb}, v{sb} {pat} {DPP}')
        if grp[-1] == NT_ALL - 1:
            x = sb if two else sa
            a.ins(f'v_add_f32 v{x}, s69, v{x}')
        if two:
            a.ins(f'v_max3_f32 v{mn}, v{m}, v{sa}, v{sb}')
        else:
            a.ins(f'v_max_f32 v{mn}, v{m}, v{sa}')
        a.ins(f'v_cmp_gt_f32 vcc, v{mn}, v{m}')
        SK = newlab('Lsk')
        a.ins(f's_cbranch_vccz {SK}')
        a.ins(f'v_sub_f32 v{al}, v{m}, v{mn}')
        a.ins(f'v_mul_f32 v{al}, s74, v{al}')
        a.ins(f'v_exp_f32 v{al}, v{al}')
        a.ins(f'v_mov_b32 v{m}, v{mn}')
        m_resc(acc, al)
        a.ins(f'v_mul_f32 v{l}, v{al}, v{l}')
        a.label(SK)
        a.ins(f'v_mul_f32 v{cm}, s74, v{m}')
        a.ins(f'v_fma_f32 v{pa}, v{sa}, s74, -v{cm}')
        if two:
            a.ins(f'v_fma_f32 v{pb}, v{sb}, s74, -v{cm}')
        a.ins(f'v_exp_f32 v{pa}, v{pa}')
        if two:
            a.ins(f'v_exp_f32 v{pb}, v{pb}')
        a.ins(f'v_cvt_pk_bf16_f32 v{PA}, v{pa}, 0')
        a.ins(f'v_cvt_pk_bf16_f32 v{PA+1}, 0, v{pa}')
        if two:
            a.ins(f'v_cvt_pk_bf16_f32 v{PB}, v{pb}, 0')
            a.ins(f'v_cvt_pk_bf16_f32 v{PB+1}, 0, v{pb}')
        a.ins(f'v_add_f32 v{l}, v{l}, v{PA+1}')
        if two:
            a.ins(f'v_add_f32 v{l}, v{l}, v{PB+1}')
        for (t, P, tmp) in list(zip(grp, (PA, PB), (T0, T1))):
            tv, rv = self.get_tile(pi, ty, 'V', t, tmp)
            m_pv(tv, P, acc)
            if ty == 'A' and r_storage('V', t)[0] == 'l':
                slot = t - NVS
                for i in range(3):
                    a.lds(f'ds_write_b128 v3, v[{tv+4*i}:{tv+4*i+3}] offset:{slot*3072+i*1024}', ('W', pi, t))
            self.release(rv)
            self.try_issue()

    def publish(self, st, c):
        acc, m, l = st, st + 24, st + 25
        M, u, sc = WK, WK + 1, WK + 2
        a.ins(f'v_max_f32_dpp v{M}, v{m}, v{m} row_ror:8 {DPP}')
        a.ins(f'v_mov_b32 v{u}, v{M}')
        a.ins(f'v_permlane16_swap_b32 v{M}, v{u}')
        a.ins(f'v_max_f32 v{M}, v{M}, v{u}')
        a.ins(f'v_mov_b32 v{u}, v{M}')
        a.ins(f'v_permlane32_swap_b32 v{M}, v{u}')
        a.ins(f'v_max_f32 v{M}, v{M}, v{u}')
        a.ins(f'v_sub_f32 v{sc}, v{m}, v{M}')
        a.ins(f'v_mul_f32 v{sc}, s74, v{sc}')
        a.ins(f'v_exp_f32 v{sc}, v{sc}')
        a.ins(f'v_mul_f32 v{M}, s74, v{M}')
        m_resc(acc, sc)
        a.ins(f'v_mul_f32 v{l}, v{sc}, v{l}')
        a.ins(f'v_add_f32_dpp v{l}, v{l}, v{l} row_ror:8 {DPP}')
        a.ins(f'v_mov_b32 v{u}, v{l}')
        a.ins(f'v_permlane16_swap_b32 v{l}, v{u}')
        a.ins(f'v_add_f32 v{l}, v{l}, v{u}')
        a.ins(f'v_mov_b32 v{u}, v{l}')
        a.ins(f'v_permlane32_swap_b32 v{l}, v{u}')
        a.ins(f'v_add_f32 v{l}, v{l}, v{u}')
        for k in range(12):
            a.ins(f'v_permlane32_swap_b32 v{acc+k}, v{acc+k+12}')
        for k in range(12):
            a.ins(f'v_add_f32 v{acc+k}, v{acc+k}, v{acc+k+12}')
        for k in range(6):
            a.ins(f'v_permlane16_swap_b32 v{acc+k}, v{acc+k+6}')
        for k in range(6):
            a.ins(f'v_add_f32 v{acc+k}, v{acc+k}, v{acc+k+6}')
        for k in range(6):
            a.ins(f'v_add_f32_dpp v{acc+k}, v{acc+k}, v{acc+k} row_ror:8 {DPP}')
        t1, t2 = WK + 3, WK + 4
        for k in range(6):
            a.ins(f'v_add_u32 v{t1}, {k}, v7')
            a.ins(f'v_lshrrev_b32 v{t2}, 3, v{t1}')
            a.ins(f'v_and_b32 v{t1}, 7, v{t1}')
            a.ins(f'v_lshlrev_b32 v{t2}, 6, v{t2}')
            a.ins(f'v_add_u32 v{t1}, v{t1}, v{t2}')
            a.ins(f'v_lshl_add_u32 v{t1}, v{t1}, 2, v4')
            a.lds(f'ds_write_b32 v{t1}, v{acc+k}')
        z = WK + 8
        a.ins(f'v_mov_b32 v{z}, v{M}')
        a.ins(f'v_mov_b32 v{z+1}, v{l}')
        a.ins(f'v_mov_b32 v{z+2}, 0')
        a.ins(f'v_mov_b32 v{z+3}, 0')
        a.ins(f'v_and_b32 v{t1}, 0xffffff1f, v4')
        a.lds(f'ds_write_b128 v{t1}, v[{z}:{z+3}] offset:768')
        a.wait_lg_all()
        a.lds(f'ds_read_b128 v[{z}:{z+3}], v5')
        a.wait_lg_all()
        a.ins(f's_add_u32 s76, s73, {hex(c * PART_C)}')
        set_exec_lanes(49)
        a.vmem(f'buffer_store_dwordx4 v[{z}:{z+3}], v6, s[64:67], s76 offen sc1', ('P', c))
        set_exec_lanes(64)

    def run(self):
        P = self.P
        stamp(0, 78, 252)
        SCAP = int(os.environ.get('SCAP', '24'))
        def fill(n_more):
            done = 0
            while done < n_more:
                before = self.nissued
                tags = [t for t in a.vm if isinstance(t, tuple) and t[0] == 'T']
                if len(tags) + 3 > SCAP:
                    a.wait_vm(tags[2])
                self.try_issue(cap=len(a.vm) + 4)
                if self.nissued == before:
                    break
                done += self.nissued - before
        def snapshot():
            return (self.lqi, self.nissued, list(self.ring_free), self.ring_next, dict(self.ded_free), dict(self.loc), list(a.vm), [e.get('done', False) for e in self.LQ])
        def restore(sn):
            self.lqi, self.nissued = sn[0], sn[1]
            self.ring_free, self.ring_next, self.ded_free, self.loc, a.vm = list(sn[2]), sn[3], dict(sn[4]), dict(sn[5]), list(sn[6])
            for e, d in zip(self.LQ, sn[7]):
                e['done'] = d
        FLAG_LDS = 3 * 40960 + 39936 + 1016
        a.ins(f'v_mov_b32 v250, {FLAG_LDS}')
        a.ins('v_mov_b32 v251, 0')
        a.lds('ds_write_b32 v250, v251')
        startup2a(after_x=lambda: self.try_issue(cap=len(a.vm) + SCAP), st=True)
        sv = list(a.vm)
        L0 = only_wave0_begin()
        startup2b(st=True)
        a.ins(f'v_mov_b32 v250, {FLAG_LDS}')
        a.ins('v_mov_b32 v251, 1')
        a.lds('ds_write_b32 v250, v251')
        only_wave0_end(L0)
        a.vm = sv
        fill(100)
        LF = newlab('Llf'); LD = newlab('Lld')
        smov(75, SPIN_MAX)
        a.ins(f'v_mov_b32 v250, {FLAG_LDS}')
        a.label(LF)
        a.ins('ds_read_b32 v251, v250')
        a.ins('s_waitcnt lgkmcnt(0)')
        a.ins('v_cmp_ne_u32 vcc, 1, v251')
        a.ins(f's_cbranch_vccz {LD}')
        a.ins('s_sleep 1')
        a.ins('s_sub_u32 s75, s75, 1')
        a.ins('s_cmp_lg_u32 s75, 0')
        a.ins(f's_cbranch_scc1 {LF}')
        a.label(LD)
        a.fence_hazards()
        stamp(1, 78, 252)
        a.ins('v_min_u32 v248, 23, v0')
        a.ins('v_lshlrev_b32 v248, 7, v248')
        self.q_issue(P[0][1], P[0][2])
        for pi, (ty, ps, b, tiles) in enumerate(P):
            a.comment(f'---- phase {pi}: {ty} pass{ps} b{b}')
            self.cur_pi = pi
            stamp(2 + 3 * pi, 78, 252)
            self.q_take(ps, b)
            stamp(3 + 3 * pi, 78, 252)
            for k in range(24):
                a.ins(f'v_mov_b32 v{ST+k}, 0')
            a.ins(f'v_mov_b32 v{ST+24}, 0xf149f2ca')
            a.ins(f'v_mov_b32 v{ST+25}, 0')
            gs = groups_of(tiles)
            for g, grp in enumerate(gs):
                if g == len(gs) - 3 and pi + 1 < len(P):
                    self.q_issue(P[pi + 1][1], P[pi + 1][2])
                if g == len(gs) - 4 and pi == 0:
                    flags_addr(250, 2)
                    a.vmem('global_load_dword v251, v250, s[28:29]', 'fl2')
                self.group(pi, ty, grp, g == len(gs) - 1)
            if pi == 0:
                a.wait_vm('fl2')
                FO = newlab('Lfo')
                flags_check(251, 2)
                a.ins(f's_cbranch_vccz {FO}')
                sv = list(a.vm)
                wait_flags(2, 250, plain_first=False)
                a.vm = sv
                a.label(FO)
                a.fence_hazards()
            self.publish(ST, pi)
            stamp(4 + 3 * pi, 78, 252)
            self.try_issue()
        a.ins('s_waitcnt vmcnt(0)')
        a.ins('s_endpgm')

def gen_stream():
    a.label('L_stream')
    startup1()
    a.ins(f's_sub_u32 s4, s2, {NCH}')
    a.ins('s_lshl_b32 s4, s4, 2')
    a.ins('s_add_u32 s4, s4, s3')
    a.ins('s_mul_i32 s5, s4, 2521')
    a.ins('s_lshr_b32 s5, s5, 16')
    a.ins(f's_mul_i32 s6, s5, {WPH}')
    a.ins('s_sub_u32 s6, s4, s6')
    a.ins('s_mul_i32 s7, s6, 39')
    a.ins('s_min_u32 s68, s6, 10')
    a.ins('s_add_u32 s7, s7, s68')
    a.ins('s_cmp_lt_u32 s6, 10')
    a.ins('s_cselect_b32 s68, 40, 39')
    a.ins('s_cselect_b32 s69, 0, 0xff800000')
    a.ins('s_mul_i32 s68, s68, 3072')
    a.ins('s_mul_i32 s70, s5, 3145728')
    a.ins('s_mul_i32 s71, s7, 3072')
    a.ins('s_add_u32 s70, s70, s71')
    for b in range(4):
        a.ins(f's_add_u32 s71, s70, {hex(b * BATCH_STRIDE)}')
        srd_off(srd_k(b), 10, 11, 71, 's68')
        srd_off(srd_v(b), 12, 13, 71, 's68')
    a.ins('s_mul_i32 s72, s5, 384')
    a.ins(f's_add_u32 s72, s72, {hex(Q_OFF)}')
    a.ins(f's_mul_i32 s73, s4, {REC}')
    smov(74, CSCALE)
    a.ins('s_lshl_b32 s78, s4, 8')
    a.ins(f's_add_u32 s78, s78, {hex(STAMP_OFF)}')
    a.ins('v_lshrrev_b32 v1, 3, v0')
    a.ins('v_mul_u32_u24 v1, 384, v1')
    a.ins('v_and_b32 v2, 7, v0')
    a.ins('v_lshlrev_b32 v2, 4, v2')
    a.ins('v_add_u32 v1, v1, v2')
    a.ins('s_mul_i32 s71, s3, 40960')
    a.ins('v_lshlrev_b32 v6, 4, v0')
    a.ins('v_add_u32 v3, s71, v6')
    a.ins('s_add_u32 s71, s71, 39936')
    a.ins('v_add_u32 v5, s71, v6')
    a.ins('v_lshlrev_b32 v4, 1, v2')
    a.ins('v_add_u32 v4, s71, v4')
    a.ins('v_bfe_u32 v7, v0, 4, 1')
    a.ins('v_mul_u32_u24 v7, 6, v7')
    a.ins('v_bfe_u32 v254, v0, 5, 1')
    a.ins('v_mul_u32_u24 v254, 12, v254')
    a.ins('v_add_u32 v7, v7, v254')
    Stream().run()

XS = 0
RED = 5120
XRES = 25600
X1 = 35840
WL = 38912
X1A = 100352
W1 = 128

def vm_auto(text):
    if len(a.vm) >= 60:
        a.ins('s_waitcnt vmcnt(30)')
        a.vm = a.vm[-30:]
    a.vmem(text, None)

def wave_sum(t, u):
    for pat in ('quad_perm:[1,0,3,2]', 'quad_perm:[2,3,0,1]', 'row_half_mirror', 'row_mirror'):
        a.ins(f'v_add_f32_dpp v{t}, v{t}, v{t} {pat} {DPP}')
    a.ins(f'v_mov_b32 v{u}, v{t}')
    a.ins(f'v_permlane16_swap_b32 v{t}, v{u}')
    a.ins(f'v_add_f32 v{t}, v{t}, v{u}')
    a.ins(f'v_mov_b32 v{u}, v{t}')
    a.ins(f'v_permlane32_swap_b32 v{t}, v{u}')
    a.ins(f'v_add_f32 v{t}, v{t}, v{u}')

def bf16r(d, s):
    a.ins(f'v_cvt_pk_bf16_f32 v{d}, 0, v{s}')

def poll_indicator(voff, nl, sreg):
    L = newlab('Lpi'); D = newlab('Lpd')
    smov(75, SPIN_MAX)
    set_exec_lanes(nl)
    a.label(L)
    a.ins(f'buffer_load_dword v127, v{voff}, s[64:67], s{sreg} offen sc1')
    a.ins('s_waitcnt vmcnt(0)')
    a.ins('v_cmp_eq_u32 vcc, -1, v127')
    a.ins(f's_cbranch_vccz {D}')
    a.ins('s_sleep 3')
    a.ins('s_sub_u32 s75, s75, 1')
    a.ins('s_cmp_lg_u32 s75, 0')
    a.ins(f's_cbranch_scc1 {L}')
    a.label(D)
    set_exec_lanes(64)
    a.vm = []

def check_regs(regs, w):
    regs = list(regs)
    a.ins(f'v_max3_u32 v{w}, v{regs[0]}, v{regs[1]}, v{regs[2]}')
    k = 3
    while k < len(regs):
        k2 = min(k + 1, len(regs) - 1)
        a.ins(f'v_max3_u32 v{w}, v{w}, v{regs[k]}, v{regs[k2]}')
        k += 2
    a.ins(f'v_cmp_eq_u32 vcc, -1, v{w}')

def gather_ar(sreg):
    poll_indicator(8, 8, sreg)
    L = newlab('Lg'); D = newlab('Lgd')
    smov(75, SPIN_MAX)
    a.label(L)
    for i in range(20):
        if i % 4 == 0:
            a.ins(f's_add_u32 s76, s{sreg}, {(i // 4) * 4096}')
        off = f' offset:{(i % 4) * 1024}' if i % 4 else ''
        a.ins(f'buffer_load_dwordx4 v[{16+4*i}:{19+4*i}], v9, s[64:67], s76 offen{off} sc1')
    a.ins('s_waitcnt vmcnt(0)')
    check_regs(range(16, 96), 127)
    a.ins(f's_cbranch_vccz {D}')
    a.ins('s_sleep 1')
    a.ins('s_sub_u32 s75, s75, 1')
    a.ins('s_cmp_lg_u32 s75, 0')
    a.ins(f's_cbranch_scc1 {L}')
    a.label(D)
    for grp in range(5):
        for k in range(1, 4):
            for e in range(4):
                a.ins(f'v_add_f32 v{16+4*grp+e}, v{16+4*grp+e}, v{16+4*(grp+5*k)+e}')
    for grp in range(5):
        a.lds(f'ds_write_b128 v10, v[{16+4*grp}:{19+4*grp}] offset:{grp*1024}')
    a.barrier()

def ar_sum_wave0():
    for wv in range(8):
        for k in range(5):
            r = 32 + (wv * 5 + k) * 2
            a.lds(f'ds_read_b64 v[{r}:{r+1}], v12 offset:{RED + wv*2560 + k*512}')
    a.wait_lg_all()
    for k in range(5):
        for e in range(2):
            d = 16 + 2 * k + e
            a.ins(f'v_add_f32 v{d}, v{32+2*k+e}, v{32+(5+k)*2+e}')
    for p in range(2, 8):
        for k in range(5):
            for e in range(2):
                d = 16 + 2 * k + e
                a.ins(f'v_add_f32 v{d}, v{d}, v{32+(5*p+k)*2+e}')

def residual(areg, src_off):
    for k in range(5):
        a.lds(f'ds_read_b64 v[{32+2*k}:{33+2*k}], v{areg} offset:{src_off + k*512}')
    for i in range(10):
        bf16r(16 + i, 16 + i)
    a.wait_lg_all()
    for i in range(10):
        a.ins(f'v_add_f32 v{16+i}, v{16+i}, v{32+i}')
    for i in range(10):
        bf16r(16 + i, 16 + i)

def store_x(areg, dst_off):
    for k in range(5):
        a.lds(f'ds_write_b64 v{areg}, v[{16+2*k}:{17+2*k}] offset:{dst_off + k*512}')

def layernorm_to_xs():
    t, u, mean, var = 32, 33, 34, 35
    a.ins(f'v_add_f32 v{t}, v16, v17')
    for i in range(2, 10):
        a.ins(f'v_add_f32 v{t}, v{t}, v{16+i}')
    wave_sum(t, u)
    a.ins(f'v_mul_f32 v{mean}, {hex(f32(1.0/640))}, v{t}')
    for i in range(10):
        a.ins(f'v_sub_f32 v{40+i}, v{16+i}, v{mean}')
    a.ins(f'v_mul_f32 v{t}, v40, v40')
    for i in range(1, 10):
        a.ins(f'v_fmac_f32 v{t}, v{40+i}, v{40+i}')
    wave_sum(t, u)
    a.ins(f'v_mul_f32 v{var}, {hex(f32(1.0/640))}, v{t}')
    bf16r(mean, mean)
    bf16r(var, var)
    a.ins(f'v_add_f32 v{var}, {hex(f32(1e-5))}, v{var}')
    bf16r(var, var)
    a.ins(f'v_sqrt_f32 v{var}, v{var}')
    bf16r(var, var)
    a.ins(f'v_rcp_f32 v{u}, v{var}')
    for i in range(10):
        a.ins(f'v_sub_f32 v{40+i}, v{16+i}, v{mean}')
    for i in range(10):
        bf16r(40 + i, 40 + i)
    for i in range(10):
        a.ins(f'v_mul_f32 v{50+i}, v{40+i}, v{u}')
    for i in range(10):
        a.ins(f'v_fma_f32 v{60+i}, -v{50+i}, v{var}, v{40+i}')
    for i in range(10):
        a.ins(f'v_fma_f32 v{50+i}, v{60+i}, v{u}, v{50+i}')
    for k in range(5):
        r = 72 + 4 * k
        a.ins(f'v_cvt_pk_bf16_f32 v{r}, v{50+2*k}, 0')
        a.ins(f'v_cvt_pk_bf16_f32 v{r+1}, 0, v{50+2*k}')
        a.ins(f'v_cvt_pk_bf16_f32 v{r+2}, v{51+2*k}, 0')
        a.ins(f'v_cvt_pk_bf16_f32 v{r+3}, 0, v{51+2*k}')
        a.lds(f'ds_write_b128 v13, v[{r}:{r+3}] offset:{XS + k*1024}')

def only_wave0_begin():
    L = newlab('Lw0')
    a.ins('s_cmp_lg_u32 s3, 0')
    a.ins(f's_cbranch_scc1 {L}')
    return L

def only_wave0_end(L):
    a.wait_lg_all()
    a.label(L)
    a.fence_hazards()

def gemv_rows(nrows, xaddr, wsrc, acc=56):
    for k in range(8):
        a.ins(f'v_mov_b32 v{acc+k}, 0')
    B = 4
    XB = (16, 24); WB = (64, 80)
    nb = nrows // B
    def issue(j):
        r0 = j * B
        for k in range(B // 2):
            a.lds(f'ds_read_b128 v[{XB[j%2]+4*k}:{XB[j%2]+4*k+3}], v{xaddr} offset:{(r0+2*k)*8}', ('g', j))
        for k in range(B):
            ws = wsrc(r0 + k)
            if ws[0] == 'l':
                a.lds(f'ds_read_b128 v[{WB[j%2]+4*k}:{WB[j%2]+4*k+3}], v{ws[1]} offset:{ws[2]}', ('g', j))
    issue(0)
    for j in range(nb):
        if j + 1 < nb:
            issue(j + 1)
        a.wait_lg(('g', j))
        for k in range(B):
            ws = wsrc(j * B + k)
            x = XB[j % 2] + 2 * k
            if ws[0] == 'a':
                tmp = 48 + 4 * (k % 2)
                m_ac4(tmp, ws[1])
                m_gv8(tmp, x, acc)
            elif ws[0] == 'v':
                m_gv8(ws[1], x, acc)
            else:
                m_gv8(WB[j % 2] + 4 * k, x, acc)

def write_red(addr, acc=56):
    set_exec_lanes(60)
    a.lds(f'ds_write_b128 v{addr}, v[{acc}:{acc+3}]')
    a.lds(f'ds_write_b128 v{addr}, v[{acc+4}:{acc+7}] offset:16')
    set_exec_lanes(64)
    a.barrier()

def reduce3_publish(sreg):
    L = newlab('Lr3')
    a.ins('s_cmp_eq_u32 s3, 3')
    a.ins(f's_cbranch_scc1 {L}')
    M = newlab('Lr3m')
    a.ins('s_cmp_lg_u32 s3, 2')
    a.ins(f's_cbranch_scc1 {M}')
    set_exec_lanes(32)
    a.label(M)
    for r in range(3):
        a.lds(f'ds_read_b128 v[{16+4*r}:{19+4*r}], v15 offset:{RED + r*2560}')
    a.wait_lg_all()
    for e in range(4):
        a.ins(f'v_add_f32 v{16+e}, v{16+e}, v{20+e}')
    for e in range(4):
        a.ins(f'v_add_f32 v{16+e}, v{16+e}, v{24+e}')
    a.ins(f's_add_u32 s76, s70, s{sreg}')
    a.ins('buffer_store_dwordx4 v[16:19], v15, s[64:67], s76 offen sc1')
    set_exec_lanes(64)
    a.label(L)
    a.fence_hazards()

def combine_records(n, first_reg, Mv, Lv, out):
    for k in range(n):
        a.ins(f'v_readlane_b32 s{40+k}, v{first_reg+4*k}, 48')
        a.ins(f'v_readlane_b32 s{48+k}, v{first_reg+4*k+1}, 48')
    a.ins(f'v_mov_b32 v{Mv}, s40')
    for k in range(1, n):
        a.ins(f'v_max_f32 v{Mv}, s{40+k}, v{Mv}')
    E = 100
    for k in range(n):
        a.ins(f'v_sub_f32 v{E+k}, s{40+k}, v{Mv}')
    for k in range(n):
        a.ins(f'v_exp_f32 v{E+k}, v{E+k}')
    a.ins(f'v_mul_f32 v{Lv}, s48, v{E}')
    for k in range(1, n):
        a.ins(f'v_fma_f32 v{Lv}, v{E+k}, s{48+k}, v{Lv}')
    for e in range(4):
        a.ins(f'v_mul_f32 v{out+e}, v{E}, v{first_reg+e}')
    for k in range(1, n):
        for e in range(4):
            a.ins(f'v_fma_f32 v{out+e}, v{E+k}, v{first_reg+4*k+e}, v{out+e}')

def chain_common_init():
    a.ins('s_lshl_b32 s4, s3, 6')
    a.ins('v_add_u32 v15, s4, v0')
    a.ins('v_lshlrev_b32 v15, 4, v15')
    for k in range(4):
        a.ins(f'v_mov_b32 v{16+k}, -1')
    L1 = newlab('Lst1')
    a.ins('s_cmp_ge_u32 s2, 12')
    a.ins(f's_cbranch_scc1 {L1}')
    a.ins('s_lshl_b32 s76, s2, 12')
    a.ins(f's_add_u32 s76, s76, {hex(Q_OFF)}')
    a.ins('buffer_store_dwordx4 v[16:19], v15, s[64:67], s76 offen sc1')
    a.ins('s_waitcnt vmcnt(0)')
    a.ins('s_barrier')
    set_flag(1)
    a.label(L1)
    a.fence_hazards()
    startup1()
    startup2a()
    L0 = only_wave0_begin()
    startup2b()
    only_wave0_end(L0)
    a.barrier()
    a.ins(f's_mul_i32 s4, s2, {ARM_PER}')
    for k in range(ARM_N):
        LS = newlab('Lsa')
        a.ins(f's_add_u32 s76, s4, {k*4096}')
        a.ins(f's_sub_u32 s5, s76, {hex(Q_OFF)}')
        a.ins('s_cmp_lt_u32 s5, 49152')
        a.ins(f's_cbranch_scc1 {LS}')
        a.ins('buffer_store_dwordx4 v[16:19], v15, s[64:67], s76 offen sc1')
        a.label(LS)
    a.ins('s_waitcnt vmcnt(0)')
    a.ins('s_barrier')
    set_flag(2)
    a.vm = []
    a.ins('s_lshl_b32 s4, s3, 6')
    a.ins('v_add_u32 v1, s4, v0')
    a.ins('v_lshlrev_b32 v15, 4, v1')
    a.ins('v_min_u32 v2, 59, v0')
    a.ins('s_mul_i32 s4, s3, 60')
    a.ins('v_add_u32 v2, s4, v2')
    a.ins('v_lshlrev_b32 v14, 4, v2')
    a.ins(f'v_add_u32 v14, {WL}, v14')
    a.ins('v_add_u32 v120, 61440, v14')
    a.ins('s_lshl_b32 s4, s3, 3')
    a.ins('v_add_u32 v8, s4, v0')
    a.ins('v_mul_u32_u24 v8, 2560, v8')
    a.ins('v_add_u32 v8, 2556, v8')
    a.ins('s_mul_i32 s4, s3, 20480')
    a.ins('v_lshlrev_b32 v13, 4, v0')
    a.ins('v_add_u32 v9, s4, v13')
    a.ins(f's_mul_i32 s4, s3, 5120')
    a.ins(f's_add_u32 s4, s4, {RED}')
    a.ins('v_add_u32 v10, s4, v13')
    a.ins('v_lshlrev_b32 v12, 3, v0')
    a.ins('s_lshl_b32 s4, s2, 2')
    a.ins('s_add_u32 s4, s4, s3')
    a.ins('s_lshl_b32 s77, s4, 9')
    a.ins(f's_add_u32 s77, s77, {hex(STAMP_OFF + 832*256)}')
    stamp(120, 77, 122)

def arm_arrive():
    a.wait_vm('arm')
    a.ins('s_barrier')
    L = only_wave0_begin()
    a.ins('v_mov_b32 v124, 0')
    a.ins('v_mov_b32 v125, 1')
    set_exec_lanes(1)
    a.vmem('global_atomic_add v124, v125, s[28:29] sc1', None)
    set_exec_lanes(64)
    a.label(L)
    a.fence_hazards()

def load_xres():
    L = only_wave0_begin()
    srd(96, 8, 9, 4 * 1280)
    a.ins('v_lshlrev_b32 v127, 2, v0')
    for b in range(4):
        smov(76, b * 1280)
        for k in range(5):
            a.ins(f'buffer_load_dword v{16+b*5+k}, v127, s[96:99], s76 offen offset:{k*256}')
    a.ins('s_waitcnt vmcnt(0)')
    for b in range(4):
        for k in range(5):
            r = 16 + b * 5 + k
            d = 40 + 2 * (b * 5 + k)
            a.ins(f'v_lshlrev_b32 v{d}, 16, v{r}')
            a.ins(f'v_and_b32 v{d+1}, 0xffff0000, v{r}')
            a.lds(f'ds_write_b64 v12, v[{d}:{d+1}] offset:{XRES + b*2560 + k*512}')
    only_wave0_end(L)


def gen_acu():
    a.label('L_acu')
    chain_common_init()
    a.ins('v_mul_u32_u24 v3, 205, v2')
    a.ins('v_lshrrev_b32 v3, 14, v3')
    a.ins('v_mul_u32_u24 v4, 80, v3')
    a.ins('v_sub_u32 v4, v2, v4')
    a.ins('v_mul_u32_u24 v5, 171, v2')
    a.ins('v_lshrrev_b32 v5, 11, v5')
    a.ins('v_mul_u32_u24 v6, 12, v5')
    a.ins('v_sub_u32 v6, v2, v6')
    a.ins('s_mul_i32 s70, s2, 2560')
    a.ins('s_mul_i32 s4, s2, 245760')
    srd_off(96, 16, 17, 4, 245760)
    a.ins('v_mul_u32_u24 v126, 81920, v3')
    a.ins('v_lshl_add_u32 v126, v4, 4, v126')
    for i in range(64):
        if i % 3 == 0:
            smov(76, (i // 3) * 3840)
        off = f' offset:{(i % 3) * 1280}' if i % 3 else ''
        vm_auto(f'buffer_load_dwordx4 a[{4*i}:{4*i+3}], v126, s[96:99], s76 offen{off} nt')
    a.ins('s_mul_i32 s4, s2, 96')
    a.ins(f's_sub_u32 s5, {640*3072}, s4')
    srd_off(80, 20, 21, 4, 's5')
    srd_off(84, 22, 23, 4, 's5')
    a.ins(f'v_mul_u32_u24 v126, {32*3072}, v5')
    a.ins('v_subrev_u32 v127, 6, v6')
    a.ins('v_cmp_gt_u32 vcc, 6, v6')
    a.ins('v_cndmask_b32 v127, v127, v6, vcc')
    a.ins('v_lshl_add_u32 v126, v127, 4, v126')
    a.ins('s_mov_b64 s[88:89], vcc')
    a.ins('s_not_b64 s[90:91], vcc')
    for i in range(32):
        smov(76, i * 3072)
        a.ins('s_mov_b64 exec, s[88:89]')
        vm_auto(f'buffer_load_dwordx4 v[{W1+4*i}:{W1+4*i+3}], v126, s[80:83], s76 offen nt')
        a.ins('s_mov_b64 exec, s[90:91]')
        vm_auto(f'buffer_load_dwordx4 v[{W1+4*i}:{W1+4*i+3}], v126, s[84:87], s76 offen nt')
    a.ins('s_mov_b64 exec, -1')
    a.ins('s_mul_i32 s4, s2, 61440')
    srd_off(96, 24, 25, 4, 61440)
    a.ins('v_mul_u32_u24 v126, 20480, v3')
    a.ins('v_lshl_add_u32 v126, v4, 4, v126')
    for i in range(16):
        if i % 3 == 0:
            smov(76, (i // 3) * 3840)
        off = f' offset:{(i % 3) * 1280}' if i % 3 else ''
        vm_auto(f'buffer_load_dwordx4 v[{16+4*i}:{19+4*i}], v126, s[96:99], s76 offen{off} nt')
    a.wait_vm_all()
    for i in range(16):
        a.lds(f'ds_write_b128 v14, v[{16+4*i}:{19+4*i}] offset:{i*3840}')
    a.wait_lg_all()
    load_xres()
    a.ins(f'v_lshlrev_b32 v112, 9, v3')
    a.ins(f'v_add_u32 v112, {XS}, v112')
    a.ins(f'v_lshlrev_b32 v113, 8, v5')
    a.ins(f'v_add_u32 v113, {XS}, v113')
    a.ins(f'v_lshlrev_b32 v114, 7, v3')
    a.ins(f'v_add_u32 v114, {XS}, v114')
    a.ins('v_mul_u32_u24 v115, 2560, v3')
    a.ins('v_lshl_add_u32 v115, v4, 5, v115')
    a.ins(f'v_add_u32 v115, {RED}, v115')
    a.ins('v_mul_u32_u24 v116, 384, v5')
    a.ins('v_lshl_add_u32 v116, v6, 5, v116')
    a.ins(f'v_add_u32 v116, {RED}, v116')
    a.ins('v_lshlrev_b32 v117, 2, v0')
    a.ins('v_add_u32 v117, s3, v117')
    a.ins('v_min_u32 v117, 25, v117')
    a.ins(f'v_mul_u32_u24 v117, {REC}, v117')
    a.ins('v_add_u32 v117, 772, v117')
    a.ins(f's_mul_i32 s71, s2, {WPH*REC}')
    a.ins(f's_mul_i32 s72, s3, {REC}')
    a.ins('s_add_u32 s72, s72, s71')
    a.ins(f's_mul_i32 s4, s3, {REC}')
    a.ins(f's_add_u32 s4, s4, {RED}')
    a.ins('v_add_u32 v118, s4, v13')
    a.ins('v_add_u32 v117, s71, v117')
    srd(92, 26, 27, 4 * 1280)
    a.ins('v_lshlrev_b32 v119, 2, v0')
    wait_flags(2, 126)
    order = 0
    for i, (ly, b) in enumerate(CHAIN_ORDER):
        order |= (ly * 4 + b) << (4 * i)
    tab = 0
    for i, k in enumerate(CHAIN_ORDER):
        sg = CHAIN_SEGS[k]
        assert 2 <= len(sg) <= 3
        e = sg[0] | (sg[1] << 5) | ((sg[2] if len(sg) > 2 else 0) << 10) | ((1 if len(sg) > 2 else 0) << 15)
        tab |= e << (16 * i)
    for w in range(4):
        smov(56 + w, (tab >> (32 * w)) & 0xffffffff)
    a.ins('s_mov_b32 s78, 0')
    a.label('L_aloop')
    a.fence_hazards()
    if True:
        a.ins('s_lshl_b32 s4, s78, 2')
        a.ins(f's_lshr_b32 s79, {hex(order)}, s4')
        a.ins('s_and_b32 s79, s79, 15')
        a.ins(f's_mul_i32 s81, s79, {2*AR_SZ}')
        a.ins(f's_add_u32 s81, s81, {hex(AR_OFF)}')
        a.ins(f's_add_u32 s82, s81, {AR_SZ}')
        a.ins('s_and_b32 s83, s79, 3')
        a.ins('s_mul_i32 s84, s83, 1280')
        a.ins('s_mul_i32 s4, s83, 2560')
        a.ins('v_add_u32 v121, s4, v12')
        a.ins('s_lshr_b32 s85, s79, 2')
        a.ins(f's_add_u32 s4, s4, {X1A}')
        a.ins('v_add_u32 v124, s4, v12')
        LD = newlab('Ldf')
        a.ins('s_cmp_eq_u32 s85, 0')
        a.ins(f's_cbranch_scc1 {LD}')
        L0 = only_wave0_begin()
        a.ins('s_mul_i32 s90, s83, 2560')
        a.ins(f's_add_u32 s90, s90, {hex(X2_OFF)}')
        LX = newlab('Lx2'); LXD = newlab('Lx2d')
        smov(75, SPIN_MAX)
        a.label(LX)
        for k in range(5):
            a.ins(f'buffer_load_dwordx2 v[{16+2*k}:{17+2*k}], v12, s[64:67], s90 offen offset:{k*512} sc1')
        a.ins('s_waitcnt vmcnt(0)')
        check_regs(range(16, 26), 127)
        a.ins(f's_cbranch_vccz {LXD}')
        a.ins('s_sleep 2')
        a.ins('s_sub_u32 s75, s75, 1')
        a.ins('s_cmp_lg_u32 s75, 0')
        a.ins(f's_cbranch_scc1 {LX}')
        a.label(LXD)
        store_x(121, XRES)
        only_wave0_end(L0)
        a.label(LD)
        a.fence_hazards()
        a.ins('s_lshl_b32 s88, s78, 6')
        stamp(0, 77, 122, 88)
        a.ins('s_and_b32 s4, s78, 3')
        a.ins('s_lshl_b32 s4, s4, 4')
        a.ins('s_cmp_lt_u32 s78, 4')
        a.ins('s_cselect_b64 s[60:61], s[56:57], s[58:59]')
        a.ins('s_lshr_b64 s[60:61], s[60:61], s4')
        a.ins('s_and_b32 s87, s60, 0x7fff')
        a.ins('s_bfe_u32 s89, s60, 0x1000f')
        a.ins('s_add_u32 s89, s89, 2')
        a.ins('v_mov_b32 v44, 0xf149f2ca')
        for e in range(1, 4):
            a.ins(f'v_mov_b32 v{44+e}, 0')
        a.label('L_aseg')
        a.fence_hazards()
        a.ins('s_and_b32 s80, s87, 31')
        a.ins('s_lshr_b32 s87, s87, 5')
        a.ins(f's_mul_i32 s80, s80, {PART_C}')
        a.ins('s_add_u32 s86, s72, s80')
        poll_indicator(117, 7, 80)
        stamp(1, 77, 122, 88)
        L = newlab('Ls1'); D = newlab('Ls1d'); SK = newlab('Ls1k')
        smov(75, SPIN_MAX)
        a.label(L)
        a.ins('v_mov_b32 v40, 0xf149f2ca')
        for e in range(1, 4):
            a.ins(f'v_mov_b32 v{40+e}, 0')
        set_exec_lanes(49)
        for k in range(7):
            if k == 6:
                a.ins('s_cmp_ge_u32 s3, 2')
                a.ins(f's_cbranch_scc1 {SK}')
            a.ins(f's_add_u32 s76, s86, {k * 4 * REC}')
            a.ins(f'buffer_load_dwordx4 v[{16+4*k}:{19+4*k}], v13, s[64:67], s76 offen sc1')
        a.label(SK)
        a.ins('s_waitcnt vmcnt(0)')
        check_regs(range(16, 44), 127)
        set_exec_lanes(64)
        a.ins(f's_cbranch_vccz {D}')
        a.ins('s_sleep 1')
        a.ins('s_sub_u32 s75, s75, 1')
        a.ins('s_cmp_lg_u32 s75, 0')
        a.ins(f's_cbranch_scc1 {L}')
        a.label(D)
        combine_records(8, 16, 48, 49, 52)
        a.ins('s_mov_b32 exec_lo, 0', dst=[], src=[])
        a.ins('s_mov_b32 exec_hi, 0x10000', dst=[], src=[])
        a.ins('v_mov_b32 v52, v48')
        a.ins('v_mov_b32 v53, v49')
        set_exec_lanes(64)
        for e in range(4):
            a.ins(f'v_mov_b32 v{44+e}, v{52+e}')
        a.ins('s_sub_u32 s89, s89, 1')
        a.ins('s_cmp_lg_u32 s89, 0')
        a.ins('s_cbranch_scc1 L_aseg')
        set_exec_lanes(49)
        a.lds('ds_write_b128 v118, v[52:55]')
        set_exec_lanes(64)
        a.barrier()
        L0 = only_wave0_begin()
        for k in range(4):
            a.lds(f'ds_read_b128 v[{16+4*k}:{19+4*k}], v13 offset:{RED + k*REC}')
        a.wait_lg_all()
        combine_records(4, 16, 48, 49, 52)
        a.ins('v_rcp_f32 v50, v49')
        for e in range(4):
            a.ins(f'v_mul_f32 v{52+e}, v{52+e}, v50')
        for e in range(4):
            a.ins(f'v_cvt_pk_bf16_f32 v{56+2*e}, v{52+e}, 0')
            a.ins(f'v_cvt_pk_bf16_f32 v{57+2*e}, 0, v{52+e}')
        a.ins('v_lshlrev_b32 v127, 1, v13')
        set_exec_lanes(48)
        a.lds(f'ds_write_b128 v127, v[56:59] offset:{XS}')
        a.lds(f'ds_write_b128 v127, v[60:63] offset:{XS+16}')
        set_exec_lanes(64)
        only_wave0_end(L0)
        a.barrier()
        stamp(2, 77, 122, 88)
        gemv_rows(64, 112, lambda i: ('a', 4 * i))
        write_red(115)
        reduce3_publish(81)
        stamp(3, 77, 122, 88)
        gather_ar(81)
        stamp(4, 77, 122, 88)
        L0 = only_wave0_begin()
        ar_sum_wave0()
        residual(121, XRES)
        layernorm_to_xs()
        only_wave0_end(L0)
        a.barrier()
        stamp(5, 77, 122, 88)
        gemv_rows(32, 113, lambda i: ('v', W1 + 4 * i))
        write_red(116)
        L0 = only_wave0_begin()
        for r in range(20):
            a.lds(f'ds_read_b32 v{16+r}, v119 offset:{RED + r*384}')
            a.lds(f'ds_read_b32 v{36+r}, v119 offset:{RED + r*384 + 192}')
        a.wait_lg_all()
        for r in range(1, 20):
            a.ins(f'v_add_f32 v16, v16, v{16+r}')
            a.ins(f'v_add_f32 v36, v36, v{36+r}')
        bf16r(16, 16); bf16r(36, 36)
        a.ins('v_mul_f32 v17, v16, v16')
        a.ins('v_mul_f32 v17, v17, v16')
        a.ins(f'v_mov_b32 v18, {hex(f32(0.044715))}')
        a.ins('v_fma_f32 v17, v17, v18, v16')
        a.ins(f'v_mul_f32 v17, {hex(f32(2*0.7978845608028654*math.log2(math.e)))}, v17')
        a.ins('v_exp_f32 v17, v17')
        a.ins('v_add_f32 v17, 1.0, v17')
        a.ins('v_rcp_f32 v17, v17')
        a.ins('v_fma_f32 v17, v17, -2.0, 1.0')
        a.ins('v_add_f32 v17, 1.0, v17')
        a.ins('v_mul_f32 v17, v17, v16')
        a.ins('v_mul_f32 v17, 0.5, v17')
        bf16r(17, 17)
        a.ins('v_mul_f32 v17, v17, v36')
        a.ins('v_cvt_pk_bf16_f32 v18, v17, 0')
        a.ins('v_cvt_pk_bf16_f32 v19, 0, v17')
        set_exec_lanes(48)
        a.lds(f'ds_write_b64 v12, v[18:19] offset:{XS}')
        set_exec_lanes(64)
        only_wave0_end(L0)
        a.barrier()
        stamp(6, 77, 122, 88)
        gemv_rows(16, 114, lambda i: ('l', 14, i * 3840))
        write_red(115)
        reduce3_publish(82)
        stamp(7, 77, 122, 88)
        a.barrier()
    stamp(9, 77, 122, 88)
    a.ins('s_add_u32 s78, s78, 1')
    a.ins('s_cmp_lt_u32 s78, 8')
    a.ins('s_cbranch_scc1 L_aloop')
    a.ins('s_waitcnt vmcnt(0)')
    a.ins('s_endpgm')

def wait_armed_chain():
    L = newlab('Lar'); D = newlab('Lad')
    smov(75, SPIN_MAX)
    a.ins('v_mov_b32 v126, 0')
    a.label(L)
    a.ins('global_load_dword v127, v126, s[28:29] sc1')
    a.ins('s_waitcnt vmcnt(0)')
    a.vm = []
    a.ins(f'v_cmp_gt_u32 vcc, {NCH}, v127')
    a.ins(f's_cbranch_vccz {D}')
    a.ins('s_sleep 2')
    a.ins('s_sub_u32 s75, s75, 1')
    a.ins('s_cmp_lg_u32 s75, 0')
    a.ins(f's_cbranch_scc1 {L}')
    a.label(D)
    a.fence_hazards()

def q_gemv_publish():
    def wsrc(r):
        if r < 64:
            return ('a', 4 * r)
        if r < 96:
            return ('v', W1 + 4 * (r - 64))
        if r < 112:
            return ('l', 14, (r - 96) * 3840)
        return ('l', 120, (r - 112) * 3840)
    gemv_rows(128, 112, wsrc)
    write_red(115)
    L0 = only_wave0_begin()
    a.ins('v_lshlrev_b32 v127, 1, v13')
    for r in range(5):
        a.lds(f'ds_read_b128 v[{16+8*r}:{19+8*r}], v127 offset:{RED + r*1536}')
        a.lds(f'ds_read_b128 v[{20+8*r}:{23+8*r}], v127 offset:{RED + r*1536 + 16}')
    a.wait_lg_all()
    for r in range(1, 5):
        for e in range(8):
            a.ins(f'v_add_f32 v{16+e}, v{16+e}, v{16+8*r+e}')
    for e in range(4):
        a.ins(f'v_cvt_pk_bf16_f32 v{60+e}, v{16+2*e}, v{17+2*e}')
    a.ins('s_add_u32 s76, s70, s86')
    set_exec_lanes(48)
    a.ins('buffer_store_dwordx4 v[60:63], v13, s[64:67], s76 offen sc1')
    set_exec_lanes(64)
    only_wave0_end(L0)
    a.barrier()

def gen_qcu():
    a.label('L_qcu')
    chain_common_init()
    a.ins(f's_sub_u32 s5, s2, {NA}')
    a.ins('v_mul_u32_u24 v3, 171, v2')
    a.ins('v_lshrrev_b32 v3, 13, v3')
    a.ins('v_mul_u32_u24 v4, 48, v3')
    a.ins('v_sub_u32 v4, v2, v4')
    a.ins('s_mul_i32 s70, s5, 768')
    a.ins(f's_sub_u32 s6, {640*12288}, s70')
    srd_off(96, 14, 15, 70, 's6')
    a.ins(f'v_mul_u32_u24 v126, {128*12288}, v3')
    a.ins('v_lshl_add_u32 v126, v4, 4, v126')
    load_xres_done = False
    for r in range(128):
        smov(76, r * 12288)
        if r < 64:
            vm_auto(f'buffer_load_dwordx4 a[{4*r}:{4*r+3}], v126, s[96:99], s76 offen nt')
        elif r < 96:
            vm_auto(f'buffer_load_dwordx4 v[{W1+4*(r-64)}:{W1+4*(r-64)+3}], v126, s[96:99], s76 offen nt')
        else:
            k = (r - 96) % 16
            vm_auto(f'buffer_load_dwordx4 v[{16+4*k}:{19+4*k}], v126, s[96:99], s76 offen nt')
            if k == 15:
                a.wait_vm_all()
                for kk in range(16):
                    a.lds(f'ds_write_b128 v{14 if r < 112 else 120}, v[{16+4*kk}:{19+4*kk}] offset:{kk*3840}')
                a.wait_lg_all()
    load_xres()
    a.ins(f'v_lshlrev_b32 v112, 10, v3')
    a.ins(f'v_add_u32 v112, {XS}, v112')
    a.ins('v_mul_u32_u24 v115, 1536, v3')
    a.ins('v_lshl_add_u32 v115, v4, 5, v115')
    a.ins(f'v_add_u32 v115, {RED}, v115')
    wait_flags(2, 126)
    order = 0
    for i, (ly, b) in enumerate(CHAIN_ORDER):
        order |= (ly * 4 + b) << (4 * i)
    srd(92, 26, 27, 4 * 1280)
    a.ins('v_lshlrev_b32 v119, 2, v0')
    a.ins('s_mov_b32 s78, 0')
    a.label('L_qloop')
    a.fence_hazards()
    a.ins('s_lshl_b32 s4, s78, 2')
    a.ins(f's_lshr_b32 s79, {hex(order)}, s4')
    a.ins('s_and_b32 s79, s79, 15')
    a.ins('s_and_b32 s83, s79, 3')
    a.ins('s_lshr_b32 s85, s79, 2')
    a.ins('s_mul_i32 s84, s83, 1280')
    a.ins('s_mul_i32 s4, s83, 2560')
    a.ins('v_add_u32 v121, s4, v12')
    a.ins(f's_mul_i32 s86, s83, {32*384}')
    a.ins(f's_add_u32 s86, s86, {hex(Q_OFF + 4*32*384)}')
    a.ins(f's_mul_i32 s81, s79, {2*AR_SZ}')
    a.ins(f's_add_u32 s81, s81, {hex(AR_OFF)}')
    a.ins(f's_add_u32 s82, s81, {AR_SZ}')
    a.ins('s_lshl_b32 s88, s78, 6')
    stamp(0, 77, 122, 88)
    a.ins('s_cmp_eq_u32 s85, 0')
    a.ins('s_cbranch_scc1 L_qgo')
    a.ins(f's_cmp_lg_u32 s2, {NA}')
    a.ins('s_cbranch_scc1 L_qnext')
    a.label('L_qgo')
    a.fence_hazards()
    gather_ar(81)
    L0 = only_wave0_begin()
    ar_sum_wave0()
    residual(121, XRES)
    store_x(12, X1)
    only_wave0_end(L0)
    a.barrier()
    stamp(1, 77, 122, 88)
    gather_ar(82)
    stamp(2, 77, 122, 88)
    L0 = only_wave0_begin()
    ar_sum_wave0()
    residual(12, X1)
    store_x(121, XRES)
    LO = newlab('Lout'); LX = newlab('Lx2p')
    a.ins('s_cmp_eq_u32 s85, 0')
    a.ins(f's_cbranch_scc1 {LX}')
    for k in range(5):
        a.ins(f'v_cvt_pk_bf16_f32 v{32+k}, v{16+2*k}, v{17+2*k}')
        a.ins(f'buffer_store_dword v{32+k}, v119, s[92:95], s84 offen offset:{k*256}')
    a.ins(f's_branch {LO}')
    a.label(LX)
    a.ins(f's_cmp_lg_u32 s2, {NA}')
    a.ins(f's_cbranch_scc1 {LO}')
    a.ins('s_mul_i32 s90, s83, 2560')
    a.ins(f's_add_u32 s90, s90, {hex(X2_OFF)}')
    for k in range(5):
        a.ins(f'buffer_store_dwordx2 v[{16+2*k}:{17+2*k}], v12, s[64:67], s90 offen offset:{k*512} sc1')
    a.label(LO)
    a.fence_hazards()
    layernorm_to_xs()
    only_wave0_end(L0)
    a.barrier()
    stamp(3, 77, 122, 88)
    a.ins('s_cmp_lg_u32 s85, 0')
    a.ins('s_cbranch_scc1 L_qnext')
    q_gemv_publish()
    a.label('L_qnext')
    a.fence_hazards()
    stamp(4, 77, 122, 88)
    a.ins('s_add_u32 s78, s78, 1')
    a.ins('s_cmp_lt_u32 s78, 8')
    a.ins('s_cbranch_scc1 L_qloop')
    a.ins('s_waitcnt vmcnt(0)')
    a.ins('s_endpgm')

def main(outpath):
    hdr = open('cdna_kernels/' + NAME + '.s.ref').read().split('\n')
    top = [l for l in hdr if l.startswith(';') and '@launch' not in l]
    out = []
    out += top
    out.append('; @launch grid=(256,1,1) block=(256,1,1) lds=163840')
    out.append('.amdgcn_target "amdgcn-amd-amdhsa--gfx950"')
    out.append('.text')
    out.append(MACROS)
    out.append(f'.globl {KNAME}')
    out.append('.p2align 8')
    out.append(f'.type {KNAME},@function')
    out.append(f'{KNAME}:')
    a.ins('s_cmp_ge_u32 s2, 256')
    a.ins('s_cbranch_scc1 L_exit')
    a.ins('s_load_dwordx16 s[8:23], s[0:1], 0')
    a.ins('s_load_dwordx8 s[24:31], s[0:1], 64')
    a.ins('v_lshrrev_b32 v1, 6, v0')
    a.ins('v_and_b32 v0, 63, v0')
    a.ins('v_readfirstlane_b32 s3, v1')
    a.ins('s_waitcnt lgkmcnt(0)')
    srd(64, 30, 31, WS_SIZE)
    a.ins(f's_cmp_ge_u32 s2, {NCH}')
    a.ins('s_cbranch_scc0 L_chain')
    a.ins('s_branch L_stream')
    a.label('L_exit')
    a.ins('s_endpgm')
    a.label('L_chain')
    a.ins(f's_cmp_ge_u32 s2, {NA}')
    a.ins('s_cbranch_scc1 L_qcu')
    a.fence_hazards()
    gen_acu()
    a.hist = []; a.vm = []; a.lg = []
    a.fence_hazards()
    gen_qcu()
    a.hist = []; a.vm = []; a.lg = []
    a.fence_hazards()
    gen_stream()
    out.append(a.text())
    out.append('.section .rodata,"a"')
    out.append('.p2align 6')
    out.append(f'.amdhsa_kernel {KNAME}')
    out.append('  .amdhsa_next_free_vgpr 512')
    out.append('  .amdhsa_next_free_sgpr 102')
    out.append('  .amdhsa_accum_offset 256')
    out.append('  .amdhsa_group_segment_fixed_size 0')
    out.append('  .amdhsa_kernarg_size 96')
    out.append('  .amdhsa_user_sgpr_count 2')
    out.append('  .amdhsa_user_sgpr_kernarg_segment_ptr 1')
    out.append('  .amdhsa_system_sgpr_workgroup_id_x 1')
    out.append('.end_amdhsa_kernel')
    open(outpath, 'w').write('\n'.join(out) + '\n')
    print('instrs', a.ninstr, 'bytes', sum(len(x) + 1 for x in out))

if __name__ == '__main__':
    main(sys.argv[1] if len(sys.argv) > 1 else 'cdna_kernels/' + NAME + '.s')
```

```python
import re

def R(kind, base, n=1):
    return [(kind, base + i) for i in range(n)]

def vr(b, n=1):
    return f'v{b}' if n == 1 else f'v[{b}:{b+n-1}]'
def ar(b, n=1):
    return f'a{b}' if n == 1 else f'a[{b}:{b+n-1}]'
def sr(b, n=1):
    return f's{b}' if n == 1 else f's[{b}:{b+n-1}]'

_REG = re.compile(r'^(-|\|)?([vas])(\d+)$')
_RNG = re.compile(r'^([vas])\[(\d+):(\d+)\]$')

def parse_regs(tok):
    tok = tok.strip()
    if tok.startswith('-'):
        tok = tok[1:]
    if tok.startswith('abs(') and tok.endswith(')'):
        tok = tok[4:-1]
    if tok == 'vcc':
        return [('s', 106), ('s', 107)]
    if tok == 'exec':
        return [('s', 126), ('s', 127)]
    m = re.match(r'^([vas])(\d+)$', tok)
    if m:
        return [(m.group(1), int(m.group(2)))]
    m = _RNG.match(tok)
    if m:
        return [(m.group(1), i) for i in range(int(m.group(2)), int(m.group(3)) + 1)]
    return []

TRANS = ('v_exp_f32', 'v_log_f32', 'v_rcp_f32', 'v_rsq_f32', 'v_sqrt_f32', 'v_sin_f32', 'v_cos_f32')

class Asm:
    def __init__(self):
        self.lines = []
        self.hist = []
        self.vm = []
        self.lg = []
        self.ninstr = 0
        self._mac = None
        self._mf_ab = set(); self._mf_c = set()

    def raw(self, s):
        self.lines.append(s)

    def label(self, name):
        self.lines.append(f'{name}:')

    def comment(self, s):
        self.lines.append(f'; {s}')

    def _need(self, cls, op, dst, src, dppsrc, sgpr_src_valu, sgpr_src_vmem, lanesel):
        need = 0
        dist = 0
        dsts = set(dst); srcs = set(src)
        for h in reversed(self.hist):
            hd = h['dst']
            if h['cls'] in ('valu', 'trans', 'dot'):
                vd = {r for r in hd if r[0] == 'v'}
                sd = {r for r in hd if r[0] == 's'}
                if h['cls'] == 'dot' and vd:
                    if op == h['op']:
                        ab = srcs - dsts
                        if vd & ab:
                            need = max(need, 3 - dist)
                    else:
                        if vd & (srcs | dsts):
                            need = max(need, 3 - dist)
                if h['cls'] == 'trans' and cls != 'trans' and (vd & srcs):
                    need = max(need, 1 - dist)
                if dppsrc and (vd & set(dppsrc)):
                    need = max(need, 2 - dist)
                if cls == 'permlane' and (vd & (srcs | dsts)):
                    need = max(need, 2 - dist)
                if cls == 'readlane' and (vd & srcs):
                    need = max(need, 1 - dist)
                if sd:
                    if cls in ('valu', 'trans', 'dot', 'permlane', 'readlane') and (sd & srcs):
                        need = max(need, 2 - dist)
                    if lanesel and (sd & set(lanesel)):
                        need = max(need, 4 - dist)
                    if cls in ('vmem',) and (sd & srcs):
                        need = max(need, 5 - dist)
            if h['cls'] in ('permlane', 'readlane'):
                vd = {r for r in hd if r[0] == 'v'}
                sd = {r for r in hd if r[0] == 's'}
                if dppsrc and (vd & set(dppsrc)):
                    need = max(need, 2 - dist)
                if cls == 'permlane' and (vd & (srcs | dsts)):
                    need = max(need, 2 - dist)
                if cls == 'readlane' and (vd & srcs):
                    need = max(need, 1 - dist)
                if sd:
                    if cls in ('valu', 'trans', 'dot', 'permlane', 'readlane') and (sd & srcs):
                        need = max(need, 2 - dist)
                    if lanesel and (sd & set(lanesel)):
                        need = max(need, 4 - dist)
                    if cls in ('vmem',) and (sd & srcs):
                        need = max(need, 5 - dist)
            if cls == 'mfma' and h['cls'] in ('valu', 'trans', 'dot', 'permlane'):
                if set(hd) & srcs:
                    need = max(need, (3 if h['cls'] == 'dot' else 2) - dist)
            if h['cls'] == 'mfma':
                hD = set(hd)
                if cls == 'mfma':
                    if hD & self._mf_ab:
                        need = max(need, 8 - dist)
                    if (hD & self._mf_c) and hD != self._mf_c:
                        need = max(need, 6 - dist)
                else:
                    if hD & (srcs | dsts):
                        need = max(need, 8 - dist)
                    if cls in ('valu', 'trans', 'dot', 'permlane') and (set(h.get('c', [])) & dsts):
                        need = max(need, 3 - dist)
            if h['cls'] == 'widestore':
                if set(h['data']) & dsts:
                    need = max(need, 2 - dist)
            dist += h['states']
            if dist >= 9:
                break
        return need

    def _push(self, text, cls, op, dst, src, states=1, data=None):
        self.lines.append('  ' + text)
        self.hist.append({'cls': cls, 'op': op, 'dst': dst, 'src': src, 'states': states, 'data': data or [],
                          'c': list(self._mf_c) if cls == 'mfma' else []})
        if len(self.hist) > 12:
            self.hist.pop(0)
        self.ninstr += 1

    def nop(self, n):
        while n > 0:
            k = min(n, 16)
            self._push(f's_nop {k-1}', 'nop', 's_nop', [], [], states=k)
            n -= k
        if self._mac is not None:
            self._mac['dirty'] = True

    def ins(self, text, cls=None, dst=None, src=None, dppsrc=None, lanesel=None, data=None):
        parts = text.split(None, 1)
        op = parts[0]
        ops = []
        mo = re.search(r'offset:(\d+)', text)
        if mo:
            lim = 4095 if (op.startswith('buffer_') or op.startswith('global_')) else 65535
            assert int(mo.group(1)) <= lim, text
        if len(parts) > 1:
            body = parts[1]
            toks = []
            depth = 0; cur = ''
            for ch in body:
                if ch == '[': depth += 1
                if ch == ']': depth -= 1
                if ch == ',' and depth == 0:
                    toks.append(cur); cur = ''
                else:
                    cur += ch
            toks.append(cur)
            for t in toks:
                t = t.strip()
                ops.append(t.split()[0] if t else t)
        if cls is None:
            if op.startswith('v_mfma'):
                cls = 'mfma'
            elif op.startswith('v_dot2'):
                cls = 'dot'
            elif op in TRANS:
                cls = 'trans'
            elif op.startswith('v_permlane'):
                cls = 'permlane'
            elif op.startswith('v_readlane') or op.startswith('v_readfirstlane'):
                cls = 'readlane'
            elif op.startswith('v_'):
                cls = 'valu'
            elif op.startswith('buffer_') or op.startswith('global_'):
                cls = 'vmem'
            elif op.startswith('ds_'):
                cls = 'ds'
            else:
                cls = 'salu'
        if dst is None or src is None:
            regs = [parse_regs(o) for o in ops]
            if cls == 'mfma':
                d = regs[0]
                s = [r for x in regs[1:] for r in x]
                self._mf_ab = set(regs[1] + regs[2]); self._mf_c = set(regs[3])
            elif cls in ('valu', 'trans', 'dot', 'readlane'):
                d = regs[0] if regs else []
                s = [r for x in regs[1:] for r in x]
                if op.startswith('v_cmp'):
                    pass
                if op.startswith('v_dot2c') or op.startswith('v_fmac') or op.startswith('v_pk_fmac'):
                    s = s + d
                if op.startswith('v_cndmask') and len(ops) == 3:
                    s = s + parse_regs('vcc')
                if op.startswith('v_add_co') or op.startswith('v_addc_co') or op.startswith('v_sub_co'):
                    d = regs[0] + regs[1]
                    s = [r for x in regs[2:] for r in x]
                if op.startswith('v_swap'):
                    d = regs[0] + regs[1]; s = d
                if '_dpp' in op and dppsrc is None:
                    dppsrc = regs[1]
                    if not op.startswith('v_mov'):
                        pass
                if op.startswith('v_readlane') and len(regs) > 2:
                    lanesel = regs[2]
            elif cls == 'permlane':
                d = regs[0] + regs[1]; s = d
            elif cls == 'vmem':
                if 'store' in op or ('atomic' in op):
                    d = []
                    s = [r for x in regs for r in x]
                else:
                    d = regs[0]
                    s = [r for x in regs[1:] for r in x]
            elif cls == 'ds':
                if op.startswith('ds_read') or op.startswith('ds_bpermute'):
                    d = regs[0]; s = [r for x in regs[1:] for r in x]
                else:
                    d = []; s = [r for x in regs for r in x]
            else:
                d = regs[0] if regs else []
                s = [r for x in regs[1:] for r in x]
            dst = d if dst is None else dst
            src = s if src is None else src
        need = self._need(cls, op, dst, src, dppsrc, None, None, lanesel)
        if need > 0:
            self.nop(need)
        hcls = cls
        hdata = None
        if cls == 'vmem' and ('store_dwordx4' in op or 'store_dwordx3' in op):
            hcls = 'widestore'
            hdata = parse_regs(ops[0]) if op.startswith('buffer') else parse_regs(ops[1])
        self._push(text, hcls, op, dst, src, data=hdata)

    def mbegin(self, call):
        assert self._mac is None
        self._mac = {'call': call, 'start': len(self.lines), 'dirty': False}

    def mend(self):
        m = self._mac
        self._mac = None
        if not m['dirty']:
            del self.lines[m['start']:]
            self.lines.append('  ' + m['call'])

    def vmem(self, text, tag):
        self.ins(text)
        self.vm.append(tag)
        assert len(self.vm) <= 63, f'too many outstanding vmem ops {len(self.vm)}'

    def wait_vm(self, tag):
        idx = None
        for i, t in enumerate(self.vm):
            if t == tag:
                idx = i
        if idx is None:
            return
        n = len(self.vm) - 1 - idx
        self.ins(f's_waitcnt vmcnt({n})')
        self.vm = self.vm[idx + 1:]

    def wait_vm_all(self):
        self.ins('s_waitcnt vmcnt(0)')
        self.vm = []

    def lds(self, text, tag=None):
        self.ins(text)
        self.lg.append(tag)
        if len(self.lg) > 15:
            self.ins('s_waitcnt lgkmcnt(8)')
            self.lg = self.lg[-8:]

    def wait_lg(self, tag):
        idx = None
        for i, t in enumerate(self.lg):
            if t == tag:
                idx = i
        if idx is None:
            return
        n = len(self.lg) - 1 - idx
        self.ins(f's_waitcnt lgkmcnt({n})')
        self.lg = self.lg[idx + 1:]

    def wait_lg_all(self):
        self.ins('s_waitcnt lgkmcnt(0)')
        self.lg = []

    def barrier(self):
        self.wait_lg_all()
        self.ins('s_barrier')

    def fence_hazards(self, n=5):
        self.nop(n)

    def text(self):
        return '\n'.join(self.lines) + '\n'
```

```python
import struct, sys, math, os
from asmlib import *

NAME = 'interleave_layers__mha_block_cached__glu_gated_geglu__decode'
KNAME = NAME + '_kernel'

NA, NQ = 32, 16
NCH = NA + NQ
NST = 256 - NCH
WPH = NST * 4 // 32
REC = 784
PART_OFF = 0
PART_C = 32 * WPH * REC
NR = 21
NL = int(os.environ.get('NL', '0'))
LMODE = os.environ.get('LMODE', 'touch')
NN = 40 - NR - NL
NA_HALF = (NN + 1) // 2
NT_ALL = 40
R_T = list(range(NR + NL)); D_T = list(range(NR, NR + NL)) + list(range(NR)); N_T = list(range(NR + NL, NT_ALL)); NA_T = N_T[:NA_HALF]; NB_T = N_T[NA_HALF:]
SCHED = [('A', 0, 0, R_T), ('N', 0, 0, N_T), ('N', 0, 1, N_T), ('N', 0, 2, NA_T),
         ('D', 1, 0, D_T), ('A', 0, 1, R_T), ('N', 0, 2, NB_T), ('N', 1, 0, N_T),
         ('D', 1, 1, D_T), ('A', 0, 2, R_T), ('N', 0, 3, N_T), ('N', 1, 1, NA_T),
         ('D', 1, 2, D_T), ('A', 0, 3, R_T), ('N', 1, 1, NB_T), ('N', 1, 2, N_T),
         ('D', 1, 3, D_T), ('N', 1, 3, N_T)]
NSEG = len(SCHED)
_last = {}
for _i, (_t, _p, _b, _tl) in enumerate(SCHED):
    _last[(_p, _b)] = _i
CHAIN_ORDER = sorted(_last, key=lambda k: _last[k])
CHAIN_SEGS = {k: [i for i, (t, p, b, tl) in enumerate(SCHED) if (p, b) == k] for k in CHAIN_ORDER}
AR_OFF = ((NSEG * PART_C + 4095) // 4096) * 4096
AR_SZ = 32 * 2560
Q_OFF = AR_OFF + 16 * AR_SZ
X2_OFF = Q_OFF + 8 * 32 * 384
ARM_N = (X2_OFF + 4 * 2560 + 48 * 4096 - 1) // (48 * 4096)
COMM = ARM_N * 48 * 4096
assert Q_OFF % 4096 == 0
ARM_PER = COMM // NCH
BATCH_STRIDE = 32 * 8192 * 384
SPIN_MAX = 400000
import os
DIAG = int(os.environ.get('DIAG', '0'))
STAMP_OFF = COMM
WS_SIZE = COMM + (1 << 20 if DIAG else 0)

def f32(x):
    return struct.unpack('<I', struct.pack('<f', x))[0]

CSCALE = f32((192 ** -0.5) * math.log2(math.e))

a = Asm()
_lab = [0]
def newlab(p='L'):
    _lab[0] += 1
    return f'{p}{_lab[0]}'

MACROS = r'''
.macro QK2 ta, tb, q, s
  v_dot2_f32_bf16 v[\s+0], v[\ta+0], v[\q+0], 0
  v_dot2_f32_bf16 v[\s+1], v[\ta+4], v[\q+4], 0
  v_dot2_f32_bf16 v[\s+2], v[\ta+8], v[\q+8], 0
  v_dot2_f32_bf16 v[\s+3], v[\tb+0], v[\q+0], 0
  v_dot2_f32_bf16 v[\s+4], v[\tb+4], v[\q+4], 0
  v_dot2_f32_bf16 v[\s+5], v[\tb+8], v[\q+8], 0
  .irp k, 1, 2, 3
  v_dot2c_f32_bf16 v[\s+0], v[\ta+\k], v[\q+\k]
  v_dot2c_f32_bf16 v[\s+1], v[\ta+4+\k], v[\q+4+\k]
  v_dot2c_f32_bf16 v[\s+2], v[\ta+8+\k], v[\q+8+\k]
  v_dot2c_f32_bf16 v[\s+3], v[\tb+\k], v[\q+\k]
  v_dot2c_f32_bf16 v[\s+4], v[\tb+4+\k], v[\q+4+\k]
  v_dot2c_f32_bf16 v[\s+5], v[\tb+8+\k], v[\q+8+\k]
  .endr
.endm
.macro PV t, p, acc
  .irp k, 0, 1, 2, 3, 4, 5, 6, 7, 8, 9, 10, 11
  v_dot2c_f32_bf16 v[\acc+2*\k], v[\t+\k], v[\p]
  v_dot2c_f32_bf16 v[\acc+2*\k+1], v[\t+\k], v[\p+1]
  .endr
.endm
.macro ACR t, s
  .irp k, 0, 1, 2, 3, 4, 5, 6, 7, 8, 9, 10, 11
  v_accvgpr_read_b32 v[\t+\k], a[\s+\k]
  .endr
.endm
.macro LDT k, d, srd
  buffer_load_dwordx4 \k[\d:\d+3], v1, s[\srd:\srd+3], s76 offen nt
  buffer_load_dwordx4 \k[\d+4:\d+7], v1, s[\srd:\srd+3], s76 offen offset:128 nt
  buffer_load_dwordx4 \k[\d+8:\d+11], v1, s[\srd:\srd+3], s76 offen offset:256 nt
.endm
.macro LDC k, d, srd
  buffer_load_dwordx4 \k[\d:\d+3], v1, s[\srd:\srd+3], s76 offen
  buffer_load_dwordx4 \k[\d+4:\d+7], v1, s[\srd:\srd+3], s76 offen offset:128
  buffer_load_dwordx4 \k[\d+8:\d+11], v1, s[\srd:\srd+3], s76 offen offset:256
.endm
.macro RESC acc, al
  .irp k, 0, 1, 2, 3, 4, 5, 6, 7, 8, 9, 10, 11, 12, 13, 14, 15, 16, 17, 18, 19, 20, 21, 22, 23
  v_mul_f32 v[\acc+\k], v[\al], v[\acc+\k]
  .endr
.endm
.macro GV8 w, x, acc
  .irp k, 0, 1, 2, 3
  v_dot2c_f32_bf16 v[\acc+2*\k], v[\w+\k], v[\x]
  v_dot2c_f32_bf16 v[\acc+2*\k+1], v[\w+\k], v[\x+1]
  .endr
.endm
.macro AC4 t, s
  .irp k, 0, 1, 2, 3
  v_accvgpr_read_b32 v[\t+\k], a[\s+\k]
  .endr
.endm
'''

def m_qk2(ta, tb, q, s):
    a.mbegin(f'QK2 {ta}, {tb}, {q}, {s}')
    for i, (t, o) in enumerate([(ta, 0), (ta, 4), (ta, 8), (tb, 0), (tb, 4), (tb, 8)]):
        a.ins(f'v_dot2_f32_bf16 v{s+i}, v{t+o}, v{q+o}, 0')
    for k in (1, 2, 3):
        for i, (t, o) in enumerate([(ta, 0), (ta, 4), (ta, 8), (tb, 0), (tb, 4), (tb, 8)]):
            a.ins(f'v_dot2c_f32_bf16 v{s+i}, v{t+o+k}, v{q+o+k}')
    a.mend()

def m_pv(t, p, acc):
    a.mbegin(f'PV {t}, {p}, {acc}')
    for k in range(12):
        a.ins(f'v_dot2c_f32_bf16 v{acc+2*k}, v{t+k}, v{p}')
        a.ins(f'v_dot2c_f32_bf16 v{acc+2*k+1}, v{t+k}, v{p+1}')
    a.mend()

def m_acr(t, s):
    a.mbegin(f'ACR {t}, {s}')
    for k in range(12):
        a.ins(f'v_accvgpr_read_b32 v{t+k}, a{s+k}')
    a.mend()

def m_ldt(kind, d, srd, tag, pol='nt'):
    a.mbegin(f'{"LDT" if pol else "LDC"} {kind}, {d}, {srd}')
    for i in range(3):
        off = f' offset:{i*128}' if i else ''
        a.vmem(f'buffer_load_dwordx4 {kind}[{d+4*i}:{d+4*i+3}], v1, s[{srd}:{srd+3}], s76 offen{off} {pol}', tag)
    a.mend()

def m_resc(acc, al):
    a.mbegin(f'RESC {acc}, {al}')
    for k in range(24):
        a.ins(f'v_mul_f32 v{acc+k}, v{al}, v{acc+k}')
    a.mend()

def m_gv8(w, x, acc):
    a.mbegin(f'GV8 {w}, {x}, {acc}')
    for k in range(4):
        a.ins(f'v_dot2c_f32_bf16 v{acc+2*k}, v{w+k}, v{x}')
        a.ins(f'v_dot2c_f32_bf16 v{acc+2*k+1}, v{w+k}, v{x+1}')
    a.mend()

def m_ac4(t, s):
    a.mbegin(f'AC4 {t}, {s}')
    for k in range(4):
        a.ins(f'v_accvgpr_read_b32 v{t+k}, a{s+k}')
    a.mend()

DPP = 'row_mask:0xf bank_mask:0xf'

def smov(s, val):
    val &= 0xffffffff
    a.ins(f's_mov_b32 s{s}, {val if val <= 64 else hex(val)}')

def srd(d, lo, hi, nrec):
    a.ins(f's_mov_b32 s{d}, s{lo}')
    a.ins(f's_and_b32 s{d+1}, s{hi}, 0xffff')
    if isinstance(nrec, int):
        smov(d + 2, nrec)
    else:
        a.ins(f's_mov_b32 s{d+2}, {nrec}')
    a.ins(f's_mov_b32 s{d+3}, 0x20000')

def srd_off(d, lo, hi, offs, nrec):
    a.ins(f's_add_u32 s{d}, s{lo}, s{offs}')
    a.ins(f's_addc_u32 s{d+1}, s{hi}, 0')
    a.ins(f's_and_b32 s{d+1}, s{d+1}, 0xffff')
    if isinstance(nrec, int):
        smov(d + 2, nrec)
    else:
        a.ins(f's_mov_b32 s{d+2}, {nrec}')
    a.ins(f's_mov_b32 s{d+3}, 0x20000')

def set_exec_lanes(n):
    if n >= 64:
        a.ins('s_mov_b64 exec, -1')
    elif n <= 32:
        a.ins(f's_mov_b32 exec_lo, {hex((1 << n) - 1)}', dst=[], src=[])
        a.ins('s_mov_b32 exec_hi, 0', dst=[], src=[])
    else:
        a.ins('s_mov_b32 exec_lo, -1', dst=[], src=[])
        a.ins(f's_mov_b32 exec_hi, {hex((1 << (n - 32)) - 1)}', dst=[], src=[])

def stamp(idx, base_s, vt, dyn=None):
    if not DIAG:
        return
    a.ins('s_memrealtime s[100:101]')
    a.ins('s_waitcnt lgkmcnt(0)')
    a.lg = []
    a.ins(f'v_mov_b32 v{vt}, s100')
    a.ins(f'v_mov_b32 v{vt+1}, 0')
    if dyn is None:
        a.ins(f's_add_u32 s101, s{base_s}, {idx*4}')
    else:
        a.ins(f's_add_u32 s101, s{base_s}, s{dyn}')
        a.ins(f's_add_u32 s101, s101, {idx*4}')
    a.vmem(f'buffer_store_dword v{vt}, v{vt+1}, s[64:67], s101 offen', 'stamp')

def flags_addr(va, stage):
    if stage == 1:
        a.ins(f'v_min_u32 v{va}, 11, v0')
        a.ins(f'v_lshlrev_b32 v{va}, 2, v{va}')
    else:
        a.ins(f'v_min_u32 v{va}, 23, v0')
        a.ins(f'v_lshlrev_b32 v{va}, 2, v{va}')
        a.ins(f'v_add_u32 v{va}, 128, v{va}')

def flags_check(vreg, stage):
    a.ins(f'v_cmp_ne_u32 vcc, {1 if stage == 1 else "0x10001"}, v{vreg}')

def wait_flags(stage, va=254, plain_first=True):
    L = newlab('Lar'); D = newlab('Lad')
    smov(75, SPIN_MAX)
    flags_addr(va, stage)
    if plain_first:
        a.ins(f'global_load_dword v{va+1}, v{va}, s[28:29]')
        a.ins('s_waitcnt vmcnt(0)')
        flags_check(va + 1, stage)
        a.ins(f's_cbranch_vccz {D}')
    a.label(L)
    a.ins(f'global_load_dword v{va+1}, v{va}, s[28:29] sc1')
    a.ins('s_waitcnt vmcnt(0)')
    a.vm = []
    flags_check(va + 1, stage)
    a.ins(f's_cbranch_vccz {D}')
    a.ins('s_sleep 8')
    a.ins('s_sub_u32 s75, s75, 1')
    a.ins('s_cmp_lg_u32 s75, 0')
    a.ins(f's_cbranch_scc1 {L}')
    a.label(D)
    a.fence_hazards()

def set_flag(stage):
    L = only_wave0_begin()
    if stage == 1:
        a.ins('s_lshl_b32 s4, s2, 2')
    else:
        a.ins('s_lshl_b32 s4, s2, 1')
        a.ins('s_add_u32 s4, s4, 128')
    a.ins('v_mov_b32 v150, s4')
    a.ins('v_mov_b32 v151, 1')
    set_exec_lanes(1)
    a.ins(f'global_store_{"dword" if stage == 1 else "short"} v150, v151, s[28:29] sc1')
    set_exec_lanes(64)
    a.label(L)
    a.fence_hazards()

SU_W = 56
SU_ACC = 96
SU_X = 226
SU_RED = 20480

def startup1():
    srd(96, 8, 9, 4 * 1280)
    a.ins('v_lshlrev_b32 v254, 2, v0')
    a.ins('s_mul_i32 s76, s3, 1280')
    for k in range(5):
        a.vmem(f'buffer_load_dword v{SU_X+k}, v254, s[96:99], s76 offen offset:{k*256}', 'sux')
    a.ins('s_mul_i32 s4, s2, 48')
    a.ins(f's_sub_u32 s5, {640*12288}, s4')
    srd_off(92, 14, 15, 4, 's5')
    a.ins('v_and_b32 v255, 15, v0')
    a.ins(f'v_mul_u32_u24 v255, {10*12288}, v255')
    a.ins('v_lshrrev_b32 v128, 4, v0')
    a.ins('v_min_u32 v128, 2, v128')
    a.ins('v_lshl_add_u32 v255, v128, 4, v255')
    a.ins(f's_mul_i32 s4, s3, {160*12288}')
    for i in range(10):
        a.ins(f's_add_u32 s76, s4, {i*12288}')
        a.vmem(f'buffer_load_dwordx4 v[{SU_W+4*i}:{SU_W+4*i+3}], v255, s[92:95], s76 offen', 'suw')

def startup2a(topup=None, st=False, after_x=None):
    X = SU_X
    a.wait_vm('sux')
    if after_x:
        after_x()
    if st: stamp(56, 78, 252)
    xs = X + 5
    for k in range(5):
        a.ins(f'v_lshlrev_b32 v{xs+2*k}, 16, v{X+k}')
        a.ins(f'v_and_b32 v{xs+2*k+1}, 0xffff0000, v{X+k}')
    A = SU_ACC
    t, u, mean, var = A, A + 1, A + 2, A + 3
    d0, q0, e0 = A + 4, A + 14, X + 15
    a.ins(f'v_add_f32 v{t}, v{xs}, v{xs+1}')
    for i in range(2, 10):
        a.ins(f'v_add_f32 v{t}, v{t}, v{xs+i}')
    wave_sum(t, u)
    a.ins(f'v_mul_f32 v{mean}, {hex(f32(1.0/640))}, v{t}')
    for i in range(10):
        a.ins(f'v_sub_f32 v{d0+i}, v{xs+i}, v{mean}')
    a.ins(f'v_mul_f32 v{t}, v{d0}, v{d0}')
    for i in range(1, 10):
        a.ins(f'v_fmac_f32 v{t}, v{d0+i}, v{d0+i}')
    wave_sum(t, u)
    a.ins(f'v_mul_f32 v{var}, {hex(f32(1.0/640))}, v{t}')
    bf16r(mean, mean)
    bf16r(var, var)
    a.ins(f'v_add_f32 v{var}, {hex(f32(1e-5))}, v{var}')
    bf16r(var, var)
    a.ins(f'v_sqrt_f32 v{var}, v{var}')
    bf16r(var, var)
    a.ins(f'v_rcp_f32 v{u}, v{var}')
    for i in range(10):
        a.ins(f'v_sub_f32 v{d0+i}, v{xs+i}, v{mean}')
    for i in range(10):
        bf16r(d0 + i, d0 + i)
    for i in range(10):
        a.ins(f'v_mul_f32 v{q0+i}, v{d0+i}, v{u}')
    for i in range(10):
        a.ins(f'v_fma_f32 v{e0+i}, -v{q0+i}, v{var}, v{d0+i}')
    for i in range(10):
        a.ins(f'v_fma_f32 v{q0+i}, v{e0+i}, v{u}, v{q0+i}')
    a.ins('s_mul_i32 s4, s3, 5120')
    a.ins('v_lshlrev_b32 v254, 4, v0')
    a.ins('v_add_u32 v254, s4, v254')
    r = A + 24
    for k in range(5):
        a.ins(f'v_cvt_pk_bf16_f32 v{r}, v{q0+2*k}, 0')
        a.ins(f'v_cvt_pk_bf16_f32 v{r+1}, 0, v{q0+2*k}')
        a.ins(f'v_cvt_pk_bf16_f32 v{r+2}, v{q0+2*k+1}, 0')
        a.ins(f'v_cvt_pk_bf16_f32 v{r+3}, 0, v{q0+2*k+1}')
        a.lds(f'ds_write_b128 v254, v[{r}:{r+3}] offset:{k*1024}')
        a.wait_lg_all()
    a.barrier()
    if st: stamp(57, 78, 252)
    a.ins('v_and_b32 v254, 15, v0')
    a.ins('v_mul_u32_u24 v254, 80, v254')
    a.ins('s_mul_i32 s4, s3, 1280')
    a.ins('v_add_u32 v254, s4, v254')
    for k in range(32):
        a.ins(f'v_mov_b32 v{SU_ACC+k}, 0')
    a.wait_vm('suw')
    if st: stamp(58, 78, 252)
    for b in range(4):
        for k in range(5):
            a.lds(f'ds_read_b128 v[{X+4*k}:{X+4*k+3}], v254 offset:{b*5120 + k*16}')
        a.wait_lg_all()
        for i in range(10):
            m_gv8(SU_W + 4 * i, X + 2 * i, SU_ACC + 8 * b)
    for pat in ('quad_perm:[1,0,3,2]', 'quad_perm:[2,3,0,1]', 'row_half_mirror', 'row_mirror'):
        for k in range(32):
            a.ins(f'v_add_f32_dpp v{SU_ACC+k}, v{SU_ACC+k}, v{SU_ACC+k} {pat} {DPP}')
    a.ins('v_lshrrev_b32 v254, 4, v0')
    a.ins('v_lshlrev_b32 v254, 7, v254')
    a.ins('s_mul_i32 s4, s3, 384')
    a.ins(f's_add_u32 s4, s4, {SU_RED}')
    a.ins('v_add_u32 v254, s4, v254')
    a.ins('s_mov_b32 exec_lo, 0x10001', dst=[], src=[])
    a.ins('s_mov_b32 exec_hi, 1', dst=[], src=[])
    for k in range(8):
        a.lds(f'ds_write_b128 v254, v[{SU_ACC+4*k}:{SU_ACC+4*k+3}] offset:{k*16}')
    set_exec_lanes(64)
    if topup:
        topup()
    if st: stamp(59, 78, 252)
    a.barrier()
    if st: stamp(60, 78, 252)

def startup2b(st=False):
    a.ins('v_mul_u32_u24 v254, 171, v0')
    a.ins('v_lshrrev_b32 v254, 9, v254')
    a.ins('v_mul_u32_u24 v255, 3, v254')
    a.ins('v_sub_u32 v255, v0, v255')
    a.ins('v_lshlrev_b32 v128, 7, v255')
    a.ins('v_lshl_add_u32 v128, v254, 5, v128')
    a.ins('v_and_b32 v128, 0x1ff, v128')
    for wv in range(4):
        a.lds(f'ds_read_b128 v[{SU_W+8*wv}:{SU_W+8*wv+3}], v128 offset:{SU_RED + wv*384}')
        a.lds(f'ds_read_b128 v[{SU_W+8*wv+4}:{SU_W+8*wv+7}], v128 offset:{SU_RED + wv*384 + 16}')
    a.wait_lg_all()
    for wv in range(1, 4):
        for e in range(8):
            a.ins(f'v_add_f32 v{SU_W+e}, v{SU_W+e}, v{SU_W+8*wv+e}')
    for e in range(4):
        a.ins(f'v_cvt_pk_bf16_f32 v{SU_ACC+e}, v{SU_W+2*e}, v{SU_W+2*e+1}')
    a.ins('v_mul_u32_u24 v254, 12288, v254')
    a.ins('v_lshl_add_u32 v254, v255, 4, v254')
    if st: stamp(61, 78, 250)
    wait_flags(1, 252)
    if st: stamp(62, 78, 250)
    a.ins('s_mul_i32 s76, s2, 48')
    a.ins(f's_add_u32 s76, s76, {hex(Q_OFF)}')
    set_exec_lanes(12)
    a.vmem(f'buffer_store_dwordx4 v[{SU_ACC}:{SU_ACC+3}], v254, s[64:67], s76 offen sc1', 'q1pub')
    set_exec_lanes(64)

RING = [8, 20, 32, 44]
T0, T1 = 56, 68
Q, QS = 80, 92
ST = 104
VSLOT = 130
NVS = 8
WK = 226

def srd_k(b): return 32 + 8 * b
def srd_v(b): return 36 + 8 * b

def r_storage(kind, t):
    if t >= NR:
        return ('c',)
    if kind == 'K':
        return ('a', 12 * t)
    if t < NVS:
        return ('v', VSLOT + 12 * t)
    return ('l', t - NVS)

def groups_of(tiles):
    return [tiles[i:i + 2] for i in range(0, len(tiles), 2)]

class Stream:
    def __init__(self):
        self.P = SCHED
        self.LQ = []
        for pi, (ty, ps, b, tiles) in enumerate(self.P):
            for grp in groups_of(tiles):
                for kind in ('K', 'V'):
                    for t in grp:
                        pol = 'nt'
                        if ty == 'D':
                            if r_storage(kind, t)[0] != 'c':
                                continue
                            dest = ('r', None)
                        elif ty == 'A':
                            stg = r_storage(kind, t)
                            dest = stg if stg[0] in 'av' else ('r', None)
                            if stg[0] == 'c' and LMODE == 'def':
                                pol = ''
                        else:
                            dest = ('r', None)
                        self.LQ.append({'pi': pi, 'kind': kind, 't': t, 'b': b, 'dest': dest, 'pol': pol})
        self.lqi = 0
        self.nissued = 0
        self.ring_free = [True] * 4
        self.ring_next = 0
        self.ded_free = {}
        self.d_done = set()
        self.cur_pi = 0
        self.loc = {}
        self.last_A = max(i for i, p in enumerate(self.P) if p[0] == 'A')
        self.all_ded = [r_storage(k, t) for t in R_T for k in 'KV' if r_storage(k, t)[0] in 'av']

    def ring_alloc(self):
        s = self.ring_next
        if not self.ring_free[s]:
            return None
        self.ring_free[s] = False
        self.ring_next = (s + 1) % 4
        return s

    def _issue_one(self, e):
        if e['dest'][0] == 'r':
            s = self.ring_alloc()
            if s is not None:
                kind, base = 'v', RING[s]
                self.loc[(e['pi'], e['kind'], e['t'])] = ('r', s)
            else:
                key = None
                if self.cur_pi > self.last_A and e['pi'] == len(self.P) - 1:
                    for k in self.all_ded:
                        if self.ded_free.get(k, True):
                            key = k
                            break
                if key is None:
                    return False
                self.ded_free[key] = False
                kind, base = key
                self.loc[(e['pi'], e['kind'], e['t'])] = ('x', key)
        else:
            key = e['dest']
            if not self.ded_free.get(key, True):
                return False
            self.ded_free[key] = False
            kind, base = key
            self.loc[(e['pi'], e['kind'], e['t'])] = key
        smov(76, e['t'] * 3072)
        sd = srd_k(e['b']) if e['kind'] == 'K' else srd_v(e['b'])
        m_ldt(kind, base, sd, ('T', e['pi'], e['kind'], e['t']), e['pol'])
        if LMODE == 'touch' and self.P[e['pi']][0] == 'A' and r_storage(e['kind'], e['t'])[0] == 'c':
            a.vmem(f'buffer_load_dword v249, v248, s[{sd}:{sd+3}], s76 offen sc1', 'touch')
        e['done'] = True
        self.nissued += 1
        return True

    def try_issue(self, cap=None, limit=None):
        if cap is None:
            cap = int(os.environ.get('CAP', '54'))
        while True:
            if len(a.vm) + 4 > cap:
                return
            if limit is not None and self.nissued >= limit:
                return
            cand = []
            seen = set()
            for i in range(self.lqi, len(self.LQ)):
                e = self.LQ[i]
                if e.get('done'):
                    continue
                c = 'r' if e['dest'][0] == 'r' else 'd'
                if c not in seen:
                    seen.add(c)
                    cand.append(e)
                if len(seen) == 2:
                    break
            ok = False
            for e in cand:
                if self._issue_one(e):
                    ok = True
                    break
            while self.lqi < len(self.LQ) and self.LQ[self.lqi].get('done'):
                self.lqi += 1
            if not ok:
                return

    def q_issue(self, ps, b):
        a.ins(f's_add_u32 s76, s72, {hex((ps * 4 + b) * 32 * 384)}')
        for i in range(3):
            off = f' offset:{i*128}' if i else ''
            a.vmem(f'buffer_load_dwordx4 v[{QS+4*i}:{QS+4*i+3}], v2, s[64:67], s76 offen{off} sc1', ('Q', ps, b))

    def q_check(self):
        w = WK
        a.ins(f'v_max3_u32 v{w}, v{QS}, v{QS+1}, v{QS+2}')
        for k in range(3, 12, 2):
            k2 = min(k + 1, 11)
            a.ins(f'v_max3_u32 v{w}, v{w}, v{QS+k}, v{QS+k2}')
        a.ins(f'v_cmp_eq_u32 vcc, -1, v{w}')

    def q_take(self, ps, b):
        a.wait_vm(('Q', ps, b))
        OK = newlab('Lqo'); RT = newlab('Lqr')
        self.q_check()
        a.ins(f's_cbranch_vccz {OK}')
        smov(75, SPIN_MAX)
        a.label(RT)
        a.ins('s_sleep 2')
        a.ins(f's_add_u32 s77, s72, {hex((ps * 4 + b) * 32 * 384)}')
        for i in range(3):
            off = f' offset:{i*128}' if i else ''
            a.ins(f'buffer_load_dwordx4 v[{QS+4*i}:{QS+4*i+3}], v2, s[64:67], s77 offen{off} sc1')
        a.ins('s_waitcnt vmcnt(0)')
        self.q_check()
        a.ins(f's_cbranch_vccz {OK}')
        a.ins('s_sub_u32 s75, s75, 1')
        a.ins('s_cmp_lg_u32 s75, 0')
        a.ins(f's_cbranch_scc1 {RT}')
        a.label(OK)
        for k in range(12):
            a.ins(f'v_mov_b32 v{Q+k}, v{QS+k}')

    def get_tile(self, pi, ty, kind, t, tmp):
        if ty == 'D' and r_storage(kind, t)[0] != 'c':
            stg = r_storage(kind, t)
            if stg[0] == 'a':
                m_acr(tmp, stg[1])
                self.ded_free[stg] = True
                return tmp, None
            if stg[0] == 'v':
                return stg[1], ('ded', stg)
            a.wait_lg(('L', pi, t))
            return tmp, None
        a.wait_vm(('T', pi, kind, t))
        loc = self.loc[(pi, kind, t)]
        if loc[0] == 'x':
            key = loc[1]
            if key[0] == 'a':
                m_acr(tmp, key[1])
                self.ded_free[key] = True
                return tmp, None
            return key[1], ('ded', key)
        if loc[0] == 'a':
            m_acr(tmp, loc[1])
            return tmp, None
        if loc[0] == 'v':
            return loc[1], None
        return RING[loc[1]], ('ring', loc[1])

    def touch(self, pi, ty, kind, t):
        if ty != 'A' or r_storage(kind, t)[0] != 'c':
            return
        b = self.P[pi][2]
        sd = srd_k(b) if kind == 'K' else srd_v(b)
        smov(76, t * 3072)
        a.vmem(f'buffer_load_dword v249, v248, s[{sd}:{sd+3}], s76 offen sc1', 'touch')

    def release(self, rel):
        if rel is None:
            return
        if rel[0] == 'ring':
            self.ring_free[rel[1]] = True
        else:
            self.ded_free[rel[1]] = True

    def lds_prefetch(self, pi, t, tmp):
        slot = t - NVS
        for i in range(3):
            a.lds(f'ds_read_b128 v[{tmp+4*i}:{tmp+4*i+3}], v3 offset:{slot*3072+i*1024}', ('L', pi, t))

    def group(self, pi, ty, grp, last_group):
        st = ST
        acc, m, l = st, st + 24, st + 25
        s = WK
        sa, sb = WK, WK + 3
        mn, cm, al = WK + 6, WK + 7, WK + 8
        pa, pb = WK + 9, WK + 10
        PA, PB = WK + 12, WK + 14
        two = len(grp) == 2
        ta, ra = self.get_tile(pi, ty, 'K', grp[0], T0)
        if two:
            tb, rb = self.get_tile(pi, ty, 'K', grp[1], T1)
            m_qk2(ta, tb, Q, s)
            self.release(ra); self.release(rb)
        else:
            for i, o in enumerate((0, 4, 8)):
                a.ins(f'v_dot2_f32_bf16 v{s+i}, v{ta+o}, v{Q+o}, 0')
            for k in (1, 2, 3):
                for i, o in enumerate((0, 4, 8)):
                    a.ins(f'v_dot2c_f32_bf16 v{s+i}, v{ta+o+k}, v{Q+o+k}')
            self.release(ra)
        if ty == 'D':
            for t, tmp in zip(grp, (T0, T1)):
                if r_storage('V', t)[0] == 'l':
                    self.lds_prefetch(pi, t, tmp)
        self.try_issue()
        a.ins(f'v_add_f32 v{sa}, v{s}, v{s+1}')
        a.ins(f'v_add_f32 v{sa}, v{sa}, v{s+2}')
        if two:
            a.ins(f'v_add_f32 v{sb}, v{s+3}, v{s+4}')
            a.ins(f'v_add_f32 v{sb}, v{sb}, v{s+5}')
        for pat in ('quad_perm:[1,0,3,2]', 'quad_perm:[2,3,0,1]', 'row_half_mirror'):
            a.ins(f'v_add_f32_dpp v{sa}, v{sa}, v{sa} {pat} {DPP}')
            if two:
                a.ins(f'v_add_f32_dpp v{sb}, v{sb}, v{sb} {pat} {DPP}')
        if grp[-1] == NT_ALL - 1:
            x = sb if two else sa
            a.ins(f'v_add_f32 v{x}, s69, v{x}')
        if two:
            a.ins(f'v_max3_f32 v{mn}, v{m}, v{sa}, v{sb}')
        else:
            a.ins(f'v_max_f32 v{mn}, v{m}, v{sa}')
        a.ins(f'v_cmp_gt_f32 vcc, v{mn}, v{m}')
        SK = newlab('Lsk')
        a.ins(f's_cbranch_vccz {SK}')
        a.ins(f'v_sub_f32 v{al}, v{m}, v{mn}')
        a.ins(f'v_mul_f32 v{al}, s74, v{al}')
        a.ins(f'v_exp_f32 v{al}, v{al}')
        a.ins(f'v_mov_b32 v{m}, v{mn}')
        m_resc(acc, al)
        a.ins(f'v_mul_f32 v{l}, v{al}, v{l}')
        a.label(SK)
        a.ins(f'v_mul_f32 v{cm}, s74, v{m}')
        a.ins(f'v_fma_f32 v{pa}, v{sa}, s74, -v{cm}')
        if two:
            a.ins(f'v_fma_f32 v{pb}, v{sb}, s74, -v{cm}')
        a.ins(f'v_exp_f32 v{pa}, v{pa}')
        if two:
            a.ins(f'v_exp_f32 v{pb}, v{pb}')
        a.ins(f'v_cvt_pk_bf16_f32 v{PA}, v{pa}, 0')
        a.ins(f'v_cvt_pk_bf16_f32 v{PA+1}, 0, v{pa}')
        if two:
            a.ins(f'v_cvt_pk_bf16_f32 v{PB}, v{pb}, 0')
            a.ins(f'v_cvt_pk_bf16_f32 v{PB+1}, 0, v{pb}')
        a.ins(f'v_add_f32 v{l}, v{l}, v{PA+1}')
        if two:
            a.ins(f'v_add_f32 v{l}, v{l}, v{PB+1}')
        for (t, P, tmp) in list(zip(grp, (PA, PB), (T0, T1))):
            tv, rv = self.get_tile(pi, ty, 'V', t, tmp)
            m_pv(tv, P, acc)
            if ty == 'A' and r_storage('V', t)[0] == 'l':
                slot = t - NVS
                for i in range(3):
                    a.lds(f'ds_write_b128 v3, v[{tv+4*i}:{tv+4*i+3}] offset:{slot*3072+i*1024}', ('W', pi, t))
            self.release(rv)
            self.try_issue()

    def publish(self, st, c):
        acc, m, l = st, st + 24, st + 25
        M, u, sc = WK, WK + 1, WK + 2
        a.ins(f'v_max_f32_dpp v{M}, v{m}, v{m} row_ror:8 {DPP}')
        a.ins(f'v_mov_b32 v{u}, v{M}')
        a.ins(f'v_permlane16_swap_b32 v{M}, v{u}')
        a.ins(f'v_max_f32 v{M}, v{M}, v{u}')
        a.ins(f'v_mov_b32 v{u}, v{M}')
        a.ins(f'v_permlane32_swap_b32 v{M}, v{u}')
        a.ins(f'v_max_f32 v{M}, v{M}, v{u}')
        a.ins(f'v_sub_f32 v{sc}, v{m}, v{M}')
        a.ins(f'v_mul_f32 v{sc}, s74, v{sc}')
        a.ins(f'v_exp_f32 v{sc}, v{sc}')
        a.ins(f'v_mul_f32 v{M}, s74, v{M}')
        m_resc(acc, sc)
        a.ins(f'v_mul_f32 v{l}, v{sc}, v{l}')
        a.ins(f'v_add_f32_dpp v{l}, v{l}, v{l} row_ror:8 {DPP}')
        a.ins(f'v_mov_b32 v{u}, v{l}')
        a.ins(f'v_permlane16_swap_b32 v{l}, v{u}')
        a.ins(f'v_add_f32 v{l}, v{l}, v{u}')
        a.ins(f'v_mov_b32 v{u}, v{l}')
        a.ins(f'v_permlane32_swap_b32 v{l}, v{u}')
        a.ins(f'v_add_f32 v{l}, v{l}, v{u}')
        for k in range(12):
            a.ins(f'v_permlane32_swap_b32 v{acc+k}, v{acc+k+12}')
        for k in range(12):
            a.ins(f'v_add_f32 v{acc+k}, v{acc+k}, v{acc+k+12}')
        for k in range(6):
            a.ins(f'v_permlane16_swap_b32 v{acc+k}, v{acc+k+6}')
        for k in range(6):
            a.ins(f'v_add_f32 v{acc+k}, v{acc+k}, v{acc+k+6}')
        for k in range(6):
            a.ins(f'v_add_f32_dpp v{acc+k}, v{acc+k}, v{acc+k} row_ror:8 {DPP}')
        t1, t2 = WK + 3, WK + 4
        for k in range(6):
            a.ins(f'v_add_u32 v{t1}, {k}, v7')
            a.ins(f'v_lshrrev_b32 v{t2}, 3, v{t1}')
            a.ins(f'v_and_b32 v{t1}, 7, v{t1}')
            a.ins(f'v_lshlrev_b32 v{t2}, 6, v{t2}')
            a.ins(f'v_add_u32 v{t1}, v{t1}, v{t2}')
            a.ins(f'v_lshl_add_u32 v{t1}, v{t1}, 2, v4')
            a.lds(f'ds_write_b32 v{t1}, v{acc+k}')
        z = WK + 8
        a.ins(f'v_mov_b32 v{z}, v{M}')
        a.ins(f'v_mov_b32 v{z+1}, v{l}')
        a.ins(f'v_mov_b32 v{z+2}, 0')
        a.ins(f'v_mov_b32 v{z+3}, 0')
        a.ins(f'v_and_b32 v{t1}, 0xffffff1f, v4')
        a.lds(f'ds_write_b128 v{t1}, v[{z}:{z+3}] offset:768')
        a.wait_lg_all()
        a.lds(f'ds_read_b128 v[{z}:{z+3}], v5')
        a.wait_lg_all()
        a.ins(f's_add_u32 s76, s73, {hex(c * PART_C)}')
        set_exec_lanes(49)
        a.vmem(f'buffer_store_dwordx4 v[{z}:{z+3}], v6, s[64:67], s76 offen sc1', ('P', c))
        set_exec_lanes(64)

    def run(self):
        P = self.P
        stamp(0, 78, 252)
        SCAP = int(os.environ.get('SCAP', '24'))
        def fill(n_more):
            done = 0
            while done < n_more:
                before = self.nissued
                tags = [t for t in a.vm if isinstance(t, tuple) and t[0] == 'T']
                if len(tags) + 3 > SCAP:
                    a.wait_vm(tags[2])
                self.try_issue(cap=len(a.vm) + 4)
                if self.nissued == before:
                    break
                done += self.nissued - before
        def snapshot():
            return (self.lqi, self.nissued, list(self.ring_free), self.ring_next, dict(self.ded_free), dict(self.loc), list(a.vm), [e.get('done', False) for e in self.LQ])
        def restore(sn):
            self.lqi, self.nissued = sn[0], sn[1]
            self.ring_free, self.ring_next, self.ded_free, self.loc, a.vm = list(sn[2]), sn[3], dict(sn[4]), dict(sn[5]), list(sn[6])
            for e, d in zip(self.LQ, sn[7]):
                e['done'] = d
        FLAG_LDS = 3 * 40960 + 39936 + 1016
        a.ins(f'v_mov_b32 v250, {FLAG_LDS}')
        a.ins('v_mov_b32 v251, 0')
        a.lds('ds_write_b32 v250, v251')
        startup2a(after_x=lambda: self.try_issue(cap=len(a.vm) + SCAP), st=True)
        sv = list(a.vm)
        L0 = only_wave0_begin()
        startup2b(st=True)
        a.ins(f'v_mov_b32 v250, {FLAG_LDS}')
        a.ins('v_mov_b32 v251, 1')
        a.lds('ds_write_b32 v250, v251')
        only_wave0_end(L0)
        a.vm = sv
        fill(100)
        LF = newlab('Llf'); LD = newlab('Lld')
        smov(75, SPIN_MAX)
        a.ins(f'v_mov_b32 v250, {FLAG_LDS}')
        a.label(LF)
        a.ins('ds_read_b32 v251, v250')
        a.ins('s_waitcnt lgkmcnt(0)')
        a.ins('v_cmp_ne_u32 vcc, 1, v251')
        a.ins(f's_cbranch_vccz {LD}')
        a.ins('s_sleep 1')
        a.ins('s_sub_u32 s75, s75, 1')
        a.ins('s_cmp_lg_u32 s75, 0')
        a.ins(f's_cbranch_scc1 {LF}')
        a.label(LD)
        a.fence_hazards()
        stamp(1, 78, 252)
        a.ins('v_min_u32 v248, 23, v0')
        a.ins('v_lshlrev_b32 v248, 7, v248')
        self.q_issue(P[0][1], P[0][2])
        for pi, (ty, ps, b, tiles) in enumerate(P):
            a.comment(f'---- phase {pi}: {ty} pass{ps} b{b}')
            self.cur_pi = pi
            stamp(2 + 3 * pi, 78, 252)
            self.q_take(ps, b)
            stamp(3 + 3 * pi, 78, 252)
            for k in range(24):
                a.ins(f'v_mov_b32 v{ST+k}, 0')
            a.ins(f'v_mov_b32 v{ST+24}, 0xf149f2ca')
            a.ins(f'v_mov_b32 v{ST+25}, 0')
            gs = groups_of(tiles)
            for g, grp in enumerate(gs):
                if g == len(gs) - 3 and pi + 1 < len(P):
                    self.q_issue(P[pi + 1][1], P[pi + 1][2])
                if g == len(gs) - 4 and pi == 0:
                    flags_addr(250, 2)
                    a.vmem('global_load_dword v251, v250, s[28:29]', 'fl2')
                self.group(pi, ty, grp, g == len(gs) - 1)
            if pi == 0:
                a.wait_vm('fl2')
                FO = newlab('Lfo')
                flags_check(251, 2)
                a.ins(f's_cbranch_vccz {FO}')
                sv = list(a.vm)
                wait_flags(2, 250, plain_first=False)
                a.vm = sv
                a.label(FO)
                a.fence_hazards()
            self.publish(ST, pi)
            stamp(4 + 3 * pi, 78, 252)
            self.try_issue()
        a.ins('s_waitcnt vmcnt(0)')
        a.ins('s_endpgm')

def gen_stream():
    a.label('L_stream')
    startup1()
    a.ins(f's_sub_u32 s4, s2, {NCH}')
    a.ins('s_lshl_b32 s4, s4, 2')
    a.ins('s_add_u32 s4, s4, s3')
    a.ins('s_mul_i32 s5, s4, 2521')
    a.ins('s_lshr_b32 s5, s5, 16')
    a.ins(f's_mul_i32 s6, s5, {WPH}')
    a.ins('s_sub_u32 s6, s4, s6')
    a.ins('s_mul_i32 s7, s6, 39')
    a.ins('s_min_u32 s68, s6, 10')
    a.ins('s_add_u32 s7, s7, s68')
    a.ins('s_cmp_lt_u32 s6, 10')
    a.ins('s_cselect_b32 s68, 40, 39')
    a.ins('s_cselect_b32 s69, 0, 0xff800000')
    a.ins('s_mul_i32 s68, s68, 3072')
    a.ins('s_mul_i32 s70, s5, 3145728')
    a.ins('s_mul_i32 s71, s7, 3072')
    a.ins('s_add_u32 s70, s70, s71')
    for b in range(4):
        a.ins(f's_add_u32 s71, s70, {hex(b * BATCH_STRIDE)}')
        srd_off(srd_k(b), 10, 11, 71, 's68')
        srd_off(srd_v(b), 12, 13, 71, 's68')
    a.ins('s_mul_i32 s72, s5, 384')
    a.ins(f's_add_u32 s72, s72, {hex(Q_OFF)}')
    a.ins(f's_mul_i32 s73, s4, {REC}')
    smov(74, CSCALE)
    a.ins('s_lshl_b32 s78, s4, 8')
    a.ins(f's_add_u32 s78, s78, {hex(STAMP_OFF)}')
    a.ins('v_lshrrev_b32 v1, 3, v0')
    a.ins('v_mul_u32_u24 v1, 384, v1')
    a.ins('v_and_b32 v2, 7, v0')
    a.ins('v_lshlrev_b32 v2, 4, v2')
    a.ins('v_add_u32 v1, v1, v2')
    a.ins('s_mul_i32 s71, s3, 40960')
    a.ins('v_lshlrev_b32 v6, 4, v0')
    a.ins('v_add_u32 v3, s71, v6')
    a.ins('s_add_u32 s71, s71, 39936')
    a.ins('v_add_u32 v5, s71, v6')
    a.ins('v_lshlrev_b32 v4, 1, v2')
    a.ins('v_add_u32 v4, s71, v4')
    a.ins('v_bfe_u32 v7, v0, 4, 1')
    a.ins('v_mul_u32_u24 v7, 6, v7')
    a.ins('v_bfe_u32 v254, v0, 5, 1')
    a.ins('v_mul_u32_u24 v254, 12, v254')
    a.ins('v_add_u32 v7, v7, v254')
    Stream().run()

XS = 0
RED = 5120
XRES = 25600
X1 = 35840
WL = 38912
X1A = 100352
W1 = 128

def vm_auto(text):
    if len(a.vm) >= 60:
        a.ins('s_waitcnt vmcnt(30)')
        a.vm = a.vm[-30:]
    a.vmem(text, None)

def wave_sum(t, u):
    for pat in ('quad_perm:[1,0,3,2]', 'quad_perm:[2,3,0,1]', 'row_half_mirror', 'row_mirror'):
        a.ins(f'v_add_f32_dpp v{t}, v{t}, v{t} {pat} {DPP}')
    a.ins(f'v_mov_b32 v{u}, v{t}')
    a.ins(f'v_permlane16_swap_b32 v{t}, v{u}')
    a.ins(f'v_add_f32 v{t}, v{t}, v{u}')
    a.ins(f'v_mov_b32 v{u}, v{t}')
    a.ins(f'v_permlane32_swap_b32 v{t}, v{u}')
    a.ins(f'v_add_f32 v{t}, v{t}, v{u}')

def bf16r(d, s):
    a.ins(f'v_cvt_pk_bf16_f32 v{d}, 0, v{s}')

def poll_indicator(voff, nl, sreg):
    L = newlab('Lpi'); D = newlab('Lpd')
    smov(75, SPIN_MAX)
    set_exec_lanes(nl)
    a.label(L)
    a.ins(f'buffer_load_dword v127, v{voff}, s[64:67], s{sreg} offen sc1')
    a.ins('s_waitcnt vmcnt(0)')
    a.ins('v_cmp_ne_u32 vcc, -1, v127')
    a.ins(f's_cbranch_vccnz {D}')
    a.ins('s_sleep 3')
    a.ins('s_sub_u32 s75, s75, 1')
    a.ins('s_cmp_lg_u32 s75, 0')
    a.ins(f's_cbranch_scc1 {L}')
    a.label(D)
    set_exec_lanes(64)
    a.vm = []

def gather_sel(n, emit_load, reg_of, init_mask=None):
    L = newlab('Lgs'); D = newlab('Lgsd')
    if init_mask is None:
        smov(91, (1 << n) - 1)
    else:
        init_mask()
    smov(75, SPIN_MAX)
    a.label(L)
    for i in range(n):
        K = newlab('Lgk')
        a.ins(f's_bitcmp1_b32 s91, {i}')
        a.ins(f's_cbranch_scc0 {K}')
        emit_load(i)
        a.label(K)
    a.ins('s_waitcnt vmcnt(0)')
    for i in range(n):
        K = newlab('Lgc')
        r = reg_of(i)
        a.ins(f's_bitcmp1_b32 s91, {i}')
        a.ins(f's_cbranch_scc0 {K}')
        a.ins(f'v_max3_u32 v127, v{r}, v{r+1}, v{r+2}')
        a.ins(f'v_max_u32 v127, v127, v{r+3}')
        a.ins('v_cmp_eq_u32 vcc, -1, v127')
        a.ins(f's_cbranch_vccnz {K}')
        a.ins(f's_bitset0_b32 s91, {i}')
        a.label(K)
    a.ins('s_cmp_eq_u32 s91, 0')
    a.ins(f's_cbranch_scc1 {D}')
    a.ins('s_sub_u32 s75, s75, 1')
    a.ins('s_cmp_lg_u32 s75, 0')
    a.ins(f's_cbranch_scc1 {L}')
    a.label(D)
    a.fence_hazards()

def check_regs(regs, w):
    regs = list(regs)
    a.ins(f'v_max3_u32 v{w}, v{regs[0]}, v{regs[1]}, v{regs[2]}')
    k = 3
    while k < len(regs):
        k2 = min(k + 1, len(regs) - 1)
        a.ins(f'v_max3_u32 v{w}, v{w}, v{regs[k]}, v{regs[k2]}')
        k += 2
    a.ins(f'v_cmp_eq_u32 vcc, -1, v{w}')

def gather_ar(sreg):
    poll_indicator(8, 8, sreg)
    def ld(i):
        a.ins(f's_add_u32 s76, s{sreg}, {(i // 4) * 4096}')
        off = f' offset:{(i % 4) * 1024}' if i % 4 else ''
        a.ins(f'buffer_load_dwordx4 v[{16+4*i}:{19+4*i}], v9, s[64:67], s76 offen{off} sc1')
    gather_sel(20, ld, lambda i: 16 + 4 * i)
    for grp in range(5):
        for k in range(1, 4):
            for e in range(4):
                a.ins(f'v_add_f32 v{16+4*grp+e}, v{16+4*grp+e}, v{16+4*(grp+5*k)+e}')
    for grp in range(5):
        a.lds(f'ds_write_b128 v10, v[{16+4*grp}:{19+4*grp}] offset:{grp*1024}')
    a.barrier()

def ar_sum_wave0():
    for wv in range(8):
        for k in range(5):
            r = 32 + (wv * 5 + k) * 2
            a.lds(f'ds_read_b64 v[{r}:{r+1}], v12 offset:{RED + wv*2560 + k*512}')
    a.wait_lg_all()
    for k in range(5):
        for e in range(2):
            d = 16 + 2 * k + e
            a.ins(f'v_add_f32 v{d}, v{32+2*k+e}, v{32+(5+k)*2+e}')
    for p in range(2, 8):
        for k in range(5):
            for e in range(2):
                d = 16 + 2 * k + e
                a.ins(f'v_add_f32 v{d}, v{d}, v{32+(5*p+k)*2+e}')

def residual(areg, src_off):
    for k in range(5):
        a.lds(f'ds_read_b64 v[{32+2*k}:{33+2*k}], v{areg} offset:{src_off + k*512}')
    for i in range(10):
        bf16r(16 + i, 16 + i)
    a.wait_lg_all()
    for i in range(10):
        a.ins(f'v_add_f32 v{16+i}, v{16+i}, v{32+i}')
    for i in range(10):
        bf16r(16 + i, 16 + i)

def store_x(areg, dst_off):
    for k in range(5):
        a.lds(f'ds_write_b64 v{areg}, v[{16+2*k}:{17+2*k}] offset:{dst_off + k*512}')

def layernorm_to_xs():
    t, u, mean, var = 32, 33, 34, 35
    a.ins(f'v_add_f32 v{t}, v16, v17')
    for i in range(2, 10):
        a.ins(f'v_add_f32 v{t}, v{t}, v{16+i}')
    wave_sum(t, u)
    a.ins(f'v_mul_f32 v{mean}, {hex(f32(1.0/640))}, v{t}')
    for i in range(10):
        a.ins(f'v_sub_f32 v{40+i}, v{16+i}, v{mean}')
    a.ins(f'v_mul_f32 v{t}, v40, v40')
    for i in range(1, 10):
        a.ins(f'v_fmac_f32 v{t}, v{40+i}, v{40+i}')
    wave_sum(t, u)
    a.ins(f'v_mul_f32 v{var}, {hex(f32(1.0/640))}, v{t}')
    bf16r(mean, mean)
    bf16r(var, var)
    a.ins(f'v_add_f32 v{var}, {hex(f32(1e-5))}, v{var}')
    bf16r(var, var)
    a.ins(f'v_sqrt_f32 v{var}, v{var}')
    bf16r(var, var)
    a.ins(f'v_rcp_f32 v{u}, v{var}')
    for i in range(10):
        a.ins(f'v_sub_f32 v{40+i}, v{16+i}, v{mean}')
    for i in range(10):
        bf16r(40 + i, 40 + i)
    for i in range(10):
        a.ins(f'v_mul_f32 v{50+i}, v{40+i}, v{u}')
    for i in range(10):
        a.ins(f'v_fma_f32 v{60+i}, -v{50+i}, v{var}, v{40+i}')
    for i in range(10):
        a.ins(f'v_fma_f32 v{50+i}, v{60+i}, v{u}, v{50+i}')
    for k in range(5):
        a.ins(f'v_cvt_pk_bf16_f32 v{72+k}, v{50+2*k}, v{51+2*k}')
        a.lds(f'ds_write_b32 v119, v{72+k} offset:{XS + k*256}')

def only_wave0_begin():
    L = newlab('Lw0')
    a.ins('s_cmp_lg_u32 s3, 0')
    a.ins(f's_cbranch_scc1 {L}')
    return L

def only_wave0_end(L):
    a.wait_lg_all()
    a.label(L)
    a.fence_hazards()

def gemv_rows(nrows, xaddr, wsrc, acc=56):
    for k in range(8):
        a.ins(f'v_mov_b32 v{acc+k}, 0')
    B = 4
    XB = (16, 24); WB = (64, 80)
    nb = nrows // B
    def issue(j):
        r0 = j * B
        for k in range(B // 2):
            a.lds(f'ds_read_b128 v[{XB[j%2]+4*k}:{XB[j%2]+4*k+3}], v{xaddr} offset:{(r0+2*k)*8}', ('g', j))
        for k in range(B):
            ws = wsrc(r0 + k)
            if ws[0] == 'l':
                a.lds(f'ds_read_b128 v[{WB[j%2]+4*k}:{WB[j%2]+4*k+3}], v{ws[1]} offset:{ws[2]}', ('g', j))
    issue(0)
    for j in range(nb):
        if j + 1 < nb:
            issue(j + 1)
        a.wait_lg(('g', j))
        for k in range(B):
            ws = wsrc(j * B + k)
            x = XB[j % 2] + 2 * k
            if ws[0] == 'a':
                tmp = 48 + 4 * (k % 2)
                m_ac4(tmp, ws[1])
                m_gv8(tmp, x, acc)
            elif ws[0] == 'v':
                m_gv8(ws[1], x, acc)
            else:
                m_gv8(WB[j % 2] + 4 * k, x, acc)

def write_red(addr, acc=56):
    set_exec_lanes(60)
    a.lds(f'ds_write_b128 v{addr}, v[{acc}:{acc+3}]')
    a.lds(f'ds_write_b128 v{addr}, v[{acc+4}:{acc+7}] offset:16')
    set_exec_lanes(64)
    a.barrier()

def reduce3_publish(sreg):
    L = newlab('Lr3')
    a.ins('s_cmp_eq_u32 s3, 3')
    a.ins(f's_cbranch_scc1 {L}')
    M = newlab('Lr3m')
    a.ins('s_cmp_lg_u32 s3, 2')
    a.ins(f's_cbranch_scc1 {M}')
    set_exec_lanes(32)
    a.label(M)
    for r in range(3):
        a.lds(f'ds_read_b128 v[{16+4*r}:{19+4*r}], v15 offset:{RED + r*2560}')
    a.wait_lg_all()
    for e in range(4):
        a.ins(f'v_add_f32 v{16+e}, v{16+e}, v{20+e}')
    for e in range(4):
        a.ins(f'v_add_f32 v{16+e}, v{16+e}, v{24+e}')
    a.ins(f's_add_u32 s76, s70, s{sreg}')
    a.ins('buffer_store_dwordx4 v[16:19], v15, s[64:67], s76 offen sc1')
    set_exec_lanes(64)
    a.label(L)
    a.fence_hazards()


def prep_blocks(blocks):
    TB = (16, 48); U = 80
    def issue(i):
        blocks[i][0](TB[i % 2], ('blk', i))
    issue(0)
    for i, (em, dest) in enumerate(blocks):
        if i + 1 < len(blocks):
            issue(i + 1)
        a.wait_vm(('blk', i))
        T = TB[i % 2]
        out = dest[1] if dest[0] == 'v' else U
        for d in range(4):
            for h in range(2):
                c = 2 * d + h
                for p in range(4):
                    a.ins(f'v_perm_b32 v{out+4*c+p}, v{T+4*(2*p+1)+d}, v{T+4*(2*p)+d}, s{62+h}')
        if dest[0] == 'a':
            for k in range(32):
                a.ins(f'v_accvgpr_write_b32 a{dest[1]+k}, v{U+k}')
        elif dest[0] in ('l', 'l?'):
            LS = None
            if dest[0] == 'l?':
                LS = newlab('Lpb')
                a.ins('s_cmp_ge_u32 s3, 2')
                a.ins(f's_cbranch_scc1 {LS}')
            for c in range(8):
                a.lds(f'ds_write_b128 v{dest[1]}, v[{U+4*c}:{U+4*c+3}] offset:{dest[2]+c*1024}')
            a.wait_lg_all()
            if LS:
                a.label(LS)
                a.fence_hazards()
    a.wait_lg_all()

def stage_block(dst, areg, off, tag):
    for c in range(8):
        a.lds(f'ds_read_b128 v[{dst+4*c}:{dst+4*c+3}], v{areg} offset:{off+c*1024}', tag)

def mfma_block(acc, x, kind, base, first):
    for c in range(8):
        cc = '0' if first else f'v[{acc+4*c}:{acc+4*c+3}]'
        a.ins(f'v_mfma_f32_16x16x32_bf16 v[{acc+4*c}:{acc+4*c+3}], v[{x}:{x+3}], {kind}[{base+4*c}:{base+4*c+3}], {cc}')

def extract(acc, E):
    for c in range(8):
        a.ins(f'v_mov_b32 v{E+c}, v{acc+4*c}')

def xread(dst, areg, off, tag='x'):
    a.lds(f'ds_read_b128 v[{dst}:{dst+3}], v{areg} offset:{off}', tag)

def mfma_consts():
    smov(62, 0x05040100)
    smov(63, 0x07060302)
    a.ins('v_and_b32 v3, 15, v0')
    a.ins('v_lshrrev_b32 v4, 4, v0')
    a.ins('v_lshlrev_b32 v112, 4, v4')
    a.ins(f'v_add_u32 v112, {XS}, v112')
    a.ins('s_lshl_b32 s4, s3, 6')
    a.ins('v_add_u32 v113, s4, v112')
    a.ins('s_mul_i32 s4, s3, 320')
    a.ins('v_add_u32 v114, s4, v112')

def direct_and_cb4_publish(sreg):
    pass

def publish_own(E, sreg):
    a.ins(f's_add_u32 s76, s70, s{sreg}')
    set_exec_lanes(16)
    a.ins(f'buffer_store_dwordx4 v[{E}:{E+3}], v115, s[64:67], s76 offen sc1')
    a.ins(f'buffer_store_dwordx4 v[{E+4}:{E+7}], v115, s[64:67], s76 offen offset:16 sc1')
    set_exec_lanes(64)

def publish_cb4(E, sreg):
    set_exec_lanes(16)
    a.lds(f'ds_write_b128 v116, v[{E}:{E+3}]')
    a.lds(f'ds_write_b128 v116, v[{E+4}:{E+7}] offset:16')
    set_exec_lanes(64)
    a.barrier()
    L0 = only_wave0_begin()
    for w in range(4):
        a.lds(f'ds_read_b128 v[{16+4*w}:{19+4*w}], v13 offset:{RED + w*512}')
    a.wait_lg_all()
    for w in range(1, 4):
        for e in range(4):
            a.ins(f'v_add_f32 v{16+e}, v{16+e}, v{16+4*w+e}')
    a.ins(f's_add_u32 s76, s70, s{sreg}')
    set_exec_lanes(32)
    a.ins('buffer_store_dwordx4 v[16:19], v13, s[64:67], s76 offen offset:2048 sc1')
    set_exec_lanes(64)
    only_wave0_end(L0)

def combine_records(n, first_reg, Mv, Lv, out):
    for k in range(n):
        a.ins(f'v_readlane_b32 s{40+k}, v{first_reg+4*k}, 48')
        a.ins(f'v_readlane_b32 s{48+k}, v{first_reg+4*k+1}, 48')
    a.ins(f'v_mov_b32 v{Mv}, s40')
    for k in range(1, n):
        a.ins(f'v_max_f32 v{Mv}, s{40+k}, v{Mv}')
    E = 100
    for k in range(n):
        a.ins(f'v_sub_f32 v{E+k}, s{40+k}, v{Mv}')
    for k in range(n):
        a.ins(f'v_exp_f32 v{E+k}, v{E+k}')
    a.ins(f'v_mul_f32 v{Lv}, s48, v{E}')
    for k in range(1, n):
        a.ins(f'v_fma_f32 v{Lv}, v{E+k}, s{48+k}, v{Lv}')
    for e in range(4):
        a.ins(f'v_mul_f32 v{out+e}, v{E}, v{first_reg+e}')
    for k in range(1, n):
        for e in range(4):
            a.ins(f'v_fma_f32 v{out+e}, v{E+k}, v{first_reg+4*k+e}, v{out+e}')

def chain_common_init():
    a.ins('s_lshl_b32 s4, s3, 6')
    a.ins('v_add_u32 v15, s4, v0')
    a.ins('v_lshlrev_b32 v15, 4, v15')
    for k in range(4):
        a.ins(f'v_mov_b32 v{16+k}, -1')
    L1 = newlab('Lst1')
    a.ins('s_cmp_ge_u32 s2, 12')
    a.ins(f's_cbranch_scc1 {L1}')
    a.ins('s_lshl_b32 s76, s2, 12')
    a.ins(f's_add_u32 s76, s76, {hex(Q_OFF)}')
    a.ins('buffer_store_dwordx4 v[16:19], v15, s[64:67], s76 offen sc1')
    a.ins('s_waitcnt vmcnt(0)')
    a.ins('s_barrier')
    set_flag(1)
    a.label(L1)
    a.fence_hazards()
    startup1()
    startup2a()
    L0 = only_wave0_begin()
    startup2b()
    only_wave0_end(L0)
    a.barrier()
    a.ins(f's_mul_i32 s4, s2, {ARM_PER}')
    for k in range(ARM_N):
        LS = newlab('Lsa')
        a.ins(f's_add_u32 s76, s4, {k*4096}')
        a.ins(f's_sub_u32 s5, s76, {hex(Q_OFF)}')
        a.ins('s_cmp_lt_u32 s5, 49152')
        a.ins(f's_cbranch_scc1 {LS}')
        a.ins('buffer_store_dwordx4 v[16:19], v15, s[64:67], s76 offen sc1')
        a.label(LS)
    a.ins('s_waitcnt vmcnt(0)')
    a.ins('s_barrier')
    set_flag(2)
    a.vm = []
    a.ins('s_lshl_b32 s4, s3, 6')
    a.ins('v_add_u32 v1, s4, v0')
    a.ins('v_lshlrev_b32 v15, 4, v1')
    a.ins('v_min_u32 v2, 59, v0')
    a.ins('s_mul_i32 s4, s3, 60')
    a.ins('v_add_u32 v2, s4, v2')
    a.ins('v_lshlrev_b32 v14, 4, v2')
    a.ins(f'v_add_u32 v14, {WL}, v14')
    a.ins('v_add_u32 v120, 61440, v14')
    a.ins('s_lshl_b32 s4, s3, 3')
    a.ins('v_add_u32 v8, s4, v0')
    a.ins('v_mul_u32_u24 v8, 2560, v8')
    a.ins('v_add_u32 v8, 2556, v8')
    a.ins('s_mul_i32 s4, s3, 20480')
    a.ins('v_lshlrev_b32 v13, 4, v0')
    a.ins('v_add_u32 v9, s4, v13')
    a.ins(f's_mul_i32 s4, s3, 5120')
    a.ins(f's_add_u32 s4, s4, {RED}')
    a.ins('v_add_u32 v10, s4, v13')
    a.ins('v_lshlrev_b32 v12, 3, v0')
    a.ins('s_lshl_b32 s4, s2, 2')
    a.ins('s_add_u32 s4, s4, s3')
    a.ins('s_lshl_b32 s77, s4, 9')
    a.ins(f's_add_u32 s77, s77, {hex(STAMP_OFF + 832*256)}')
    stamp(120, 77, 122)

def arm_arrive():
    a.wait_vm('arm')
    a.ins('s_barrier')
    L = only_wave0_begin()
    a.ins('v_mov_b32 v124, 0')
    a.ins('v_mov_b32 v125, 1')
    set_exec_lanes(1)
    a.vmem('global_atomic_add v124, v125, s[28:29] sc1', None)
    set_exec_lanes(64)
    a.label(L)
    a.fence_hazards()

def load_xres():
    L = only_wave0_begin()
    srd(96, 8, 9, 4 * 1280)
    a.ins('v_lshlrev_b32 v127, 2, v0')
    for b in range(4):
        smov(76, b * 1280)
        for k in range(5):
            a.ins(f'buffer_load_dword v{16+b*5+k}, v127, s[96:99], s76 offen offset:{k*256}')
    a.ins('s_waitcnt vmcnt(0)')
    for b in range(4):
        for k in range(5):
            r = 16 + b * 5 + k
            d = 40 + 2 * (b * 5 + k)
            a.ins(f'v_lshlrev_b32 v{d}, 16, v{r}')
            a.ins(f'v_and_b32 v{d+1}, 0xffff0000, v{r}')
            a.lds(f'ds_write_b64 v12, v[{d}:{d+1}] offset:{XRES + b*2560 + k*512}')
    only_wave0_end(L)


def gen_acu():
    a.label('L_acu')
    chain_common_init()
    mfma_consts()
    a.ins('s_mul_i32 s70, s2, 2560')
    a.ins('v_lshlrev_b32 v119, 2, v0')
    a.ins('s_mul_i32 s4, s3, 24576')
    a.ins(f's_add_u32 s4, s4, {WL}')
    a.ins('v_add_u32 v14, s4, v13')
    a.ins('s_and_b32 s4, s3, 1')
    a.ins('s_lshl_b32 s4, s4, 13')
    a.ins(f's_add_u32 s4, s4, {WL + 4*24576}')
    a.ins('v_add_u32 v120, s4, v13')
    a.ins('v_mul_u32_u24 v125, 10240, v4')
    a.ins('v_lshl_add_u32 v125, v3, 4, v125')
    a.ins('v_subrev_u32 v127, 6, v3')
    a.ins('v_min_u32 v127, 5, v127')
    a.ins('v_cmp_gt_u32 vcc, 6, v3')
    a.ins('v_cndmask_b32 v127, v127, v3, vcc')
    a.ins('v_mul_u32_u24 v126, 24576, v4')
    a.ins('v_lshl_add_u32 v126, v127, 4, v126')
    a.ins('s_mov_b64 s[88:89], vcc')
    a.ins('s_not_b64 s[90:91], vcc')
    a.ins('s_mul_i32 s4, s2, 245760')
    srd_off(96, 16, 17, 4, 245760)
    a.ins('s_mul_i32 s4, s2, 96')
    a.ins(f's_sub_u32 s5, {640*3072}, s4')
    srd_off(80, 20, 21, 4, 's5')
    srd_off(84, 22, 23, 4, 's5')
    a.ins('s_mul_i32 s4, s2, 61440')
    srd_off(92, 24, 25, 4, 61440)
    a.ins('s_lshl_b32 s40, s3, 8')
    a.ins('s_mul_i32 s41, s3, 40960')
    a.ins('s_add_u32 s41, s41, 1024')
    a.ins(f's_mul_i32 s42, s3, {160*3072}')
    def ld1280(srd_, sbase, const):
        def em(T, tag):
            for e in range(8):
                if e % 3 == 0:
                    a.ins(f's_add_u32 s76, s{sbase}, {const + (e // 3) * 3840}')
                off = f' offset:{(e % 3) * 1280}' if e % 3 else ''
                a.vmem(f'buffer_load_dwordx4 v[{T+4*e}:{T+4*e+3}], v125, s[{srd_}:{srd_+3}], s76 offen{off} nt', tag)
        return em
    def ldgu(i):
        def em(T, tag):
            for e in range(8):
                a.ins(f's_add_u32 s76, s42, {(32 * i + e) * 3072}')
                a.ins('s_mov_b64 exec, s[88:89]')
                a.vmem(f'buffer_load_dwordx4 v[{T+4*e}:{T+4*e+3}], v126, s[80:83], s76 offen nt', tag)
                a.ins('s_mov_b64 exec, s[90:91]')
                a.vmem(f'buffer_load_dwordx4 v[{T+4*e}:{T+4*e+3}], v126, s[84:87], s76 offen nt', tag)
            a.ins('s_mov_b64 exec, -1')
        return em
    blocks = []
    for ks in range(6):
        blocks.append((ld1280(96, 40, ks * 40960), ('a', 32 * ks)))
    blocks.append((ld1280(96, 41, 0), ('a', 192)))
    blocks.append((ld1280(96, 41, 4 * 40960), ('a', 224)))
    for i in range(4):
        blocks.append((ldgu(i), ('v', W1 + 32 * i)))
    blocks.append((ldgu(4), ('l', 14, 0)))
    blocks.append((ld1280(92, 40, 0), ('l', 14, 8192)))
    blocks.append((ld1280(92, 40, 40960), ('l', 14, 16384)))
    blocks.append((ld1280(92, 41, 0), ('l?', 120, 0)))
    prep_blocks(blocks)
    load_xres()
    a.ins('s_lshl_b32 s4, s3, 9')
    a.ins('v_lshlrev_b32 v115, 5, v3')
    a.ins('v_add_u32 v115, s4, v115')
    a.ins(f'v_add_u32 v116, {RED}, v115')
    a.ins('s_mul_i32 s4, s3, 384')
    a.ins('v_lshlrev_b32 v11, 5, v3')
    a.ins('v_add_u32 v11, s4, v11')
    a.ins(f'v_add_u32 v11, {RED}, v11')
    a.barrier()
    a.ins('v_lshlrev_b32 v117, 2, v0')
    a.ins('v_add_u32 v117, s3, v117')
    a.ins('v_min_u32 v117, 25, v117')
    a.ins(f'v_mul_u32_u24 v117, {REC}, v117')
    a.ins('v_add_u32 v117, 772, v117')
    a.ins(f's_mul_i32 s71, s2, {WPH*REC}')
    a.ins(f's_mul_i32 s72, s3, {REC}')
    a.ins('s_add_u32 s72, s72, s71')
    a.ins(f's_mul_i32 s4, s3, {REC}')
    a.ins(f's_add_u32 s4, s4, {RED}')
    a.ins('v_add_u32 v118, s4, v13')
    a.ins('v_add_u32 v117, s71, v117')
    wait_flags(2, 126)
    order = 0
    for i, (ly, b) in enumerate(CHAIN_ORDER):
        order |= (ly * 4 + b) << (4 * i)
    tab = 0
    for i, k in enumerate(CHAIN_ORDER):
        sg = CHAIN_SEGS[k]
        assert 2 <= len(sg) <= 3
        e = sg[0] | (sg[1] << 5) | ((sg[2] if len(sg) > 2 else 0) << 10) | ((1 if len(sg) > 2 else 0) << 15)
        tab |= e << (16 * i)
    for w in range(4):
        smov(56 + w, (tab >> (32 * w)) & 0xffffffff)
    a.ins('s_mov_b32 s78, 0')
    a.label('L_aloop')
    a.fence_hazards()
    if True:
        a.ins('s_lshl_b32 s4, s78, 2')
        a.ins(f's_lshr_b32 s79, {hex(order)}, s4')
        a.ins('s_and_b32 s79, s79, 15')
        a.ins(f's_mul_i32 s81, s79, {2*AR_SZ}')
        a.ins(f's_add_u32 s81, s81, {hex(AR_OFF)}')
        a.ins(f's_add_u32 s82, s81, {AR_SZ}')
        a.ins('s_and_b32 s83, s79, 3')
        a.ins('s_mul_i32 s84, s83, 1280')
        a.ins('s_mul_i32 s4, s83, 2560')
        a.ins('v_add_u32 v121, s4, v12')
        a.ins('s_lshr_b32 s85, s79, 2')
        a.ins(f's_add_u32 s4, s4, {X1A}')
        a.ins('v_add_u32 v124, s4, v12')
        LD = newlab('Ldf')
        a.ins('s_cmp_eq_u32 s85, 0')
        a.ins(f's_cbranch_scc1 {LD}')
        L0 = only_wave0_begin()
        a.ins('s_mul_i32 s90, s83, 2560')
        a.ins(f's_add_u32 s90, s90, {hex(X2_OFF)}')
        LX = newlab('Lx2'); LXD = newlab('Lx2d')
        smov(75, SPIN_MAX)
        a.label(LX)
        for k in range(5):
            a.ins(f'buffer_load_dwordx2 v[{16+2*k}:{17+2*k}], v12, s[64:67], s90 offen offset:{k*512} sc1')
        a.ins('s_waitcnt vmcnt(0)')
        check_regs(range(16, 26), 127)
        a.ins(f's_cbranch_vccz {LXD}')
        a.ins('s_sleep 2')
        a.ins('s_sub_u32 s75, s75, 1')
        a.ins('s_cmp_lg_u32 s75, 0')
        a.ins(f's_cbranch_scc1 {LX}')
        a.label(LXD)
        store_x(121, XRES)
        only_wave0_end(L0)
        a.label(LD)
        a.fence_hazards()
        a.ins('s_lshl_b32 s88, s78, 6')
        stamp(0, 77, 122, 88)
        a.ins('s_and_b32 s4, s78, 3')
        a.ins('s_lshl_b32 s4, s4, 4')
        a.ins('s_cmp_lt_u32 s78, 4')
        a.ins('s_cselect_b64 s[60:61], s[56:57], s[58:59]')
        a.ins('s_lshr_b64 s[60:61], s[60:61], s4')
        a.ins('s_and_b32 s87, s60, 0x7fff')
        a.ins('s_bfe_u32 s89, s60, 0x1000f')
        a.ins('s_add_u32 s89, s89, 2')
        a.ins('v_mov_b32 v44, 0xf149f2ca')
        for e in range(1, 4):
            a.ins(f'v_mov_b32 v{44+e}, 0')
        a.label('L_aseg')
        a.fence_hazards()
        a.ins('s_and_b32 s80, s87, 31')
        a.ins('s_lshr_b32 s87, s87, 5')
        a.ins(f's_mul_i32 s80, s80, {PART_C}')
        a.ins('s_add_u32 s86, s72, s80')
        poll_indicator(117, 7, 80)
        stamp(1, 77, 122, 88)
        a.ins('v_mov_b32 v40, 0xf149f2ca')
        for e in range(1, 4):
            a.ins(f'v_mov_b32 v{40+e}, 0')
        set_exec_lanes(49)
        def ld1(k):
            a.ins(f's_add_u32 s76, s86, {k * 4 * REC}')
            a.ins(f'buffer_load_dwordx4 v[{16+4*k}:{19+4*k}], v13, s[64:67], s76 offen sc1')
        def im():
            a.ins('s_cmp_ge_u32 s3, 2')
            a.ins('s_cselect_b32 s91, 63, 127')
        gather_sel(7, ld1, lambda k: 16 + 4 * k, im)
        set_exec_lanes(64)
        combine_records(8, 16, 48, 49, 52)
        a.ins('s_mov_b32 exec_lo, 0', dst=[], src=[])
        a.ins('s_mov_b32 exec_hi, 0x10000', dst=[], src=[])
        a.ins('v_mov_b32 v52, v48')
        a.ins('v_mov_b32 v53, v49')
        set_exec_lanes(64)
        for e in range(4):
            a.ins(f'v_mov_b32 v{44+e}, v{52+e}')
        a.ins('s_sub_u32 s89, s89, 1')
        a.ins('s_cmp_lg_u32 s89, 0')
        a.ins('s_cbranch_scc1 L_aseg')
        set_exec_lanes(49)
        a.lds('ds_write_b128 v118, v[52:55]')
        set_exec_lanes(64)
        a.barrier()
        L0 = only_wave0_begin()
        for k in range(4):
            a.lds(f'ds_read_b128 v[{16+4*k}:{19+4*k}], v13 offset:{RED + k*REC}')
        a.wait_lg_all()
        combine_records(4, 16, 48, 49, 52)
        a.ins('v_rcp_f32 v50, v49')
        for e in range(4):
            a.ins(f'v_mul_f32 v{52+e}, v{52+e}, v50')
        a.ins('v_cvt_pk_bf16_f32 v56, v52, v53')
        a.ins('v_cvt_pk_bf16_f32 v57, v54, v55')
        a.ins('s_mov_b32 exec_lo, 0', dst=[], src=[])
        a.ins('s_mov_b32 exec_hi, 0xffff0000', dst=[], src=[])
        a.ins('v_mov_b32 v56, 0')
        a.ins('v_mov_b32 v57, 0')
        set_exec_lanes(64)
        a.lds(f'ds_write_b64 v12, v[56:57] offset:{XS}')
        only_wave0_end(L0)
        a.barrier()
        stamp(2, 77, 122, 88)
        for ks in range(6):
            xread(80 + 4 * ks, 112, 64 * ks)
        xread(104, 113, 0)
        xread(108, 113, 256)
        a.wait_lg_all()
        mfma_block(48, 104, 'a', 192, True)
        mfma_block(48, 108, 'a', 224, False)
        for ks in range(6):
            mfma_block(16, 80 + 4 * ks, 'a', 32 * ks, ks == 0)
        extract(48, 100)
        extract(16, 92)
        publish_own(92, 81)
        publish_cb4(100, 81)
        stamp(3, 77, 122, 88)
        gather_ar(81)
        stamp(4, 77, 122, 88)
        L0 = only_wave0_begin()
        ar_sum_wave0()
        residual(121, XRES)
        layernorm_to_xs()
        only_wave0_end(L0)
        a.barrier()
        stamp(5, 77, 122, 88)
        stage_block(48, 14, 0, 'st')
        for i in range(5):
            xread(80 + 4 * i, 114, 64 * i)
        a.wait_lg_all()
        for i in range(4):
            mfma_block(16, 80 + 4 * i, 'v', W1 + 32 * i, i == 0)
        mfma_block(16, 96, 'v', 48, False)
        stage_block(48, 14, 8192, 'st5')
        extract(16, 100)
        set_exec_lanes(12)
        a.lds('ds_write_b128 v11, v[100:103]')
        a.lds('ds_write_b128 v11, v[104:107] offset:16')
        set_exec_lanes(64)
        a.barrier()
        L0 = only_wave0_begin()
        for r in range(4):
            a.lds(f'ds_read_b32 v{16+r}, v119 offset:{RED + r*384}')
            a.lds(f'ds_read_b32 v{36+r}, v119 offset:{RED + r*384 + 192}')
        a.wait_lg_all()
        for r in range(1, 4):
            a.ins(f'v_add_f32 v16, v16, v{16+r}')
            a.ins(f'v_add_f32 v36, v36, v{36+r}')
        bf16r(16, 16); bf16r(36, 36)
        a.ins('v_mul_f32 v17, v16, v16')
        a.ins('v_mul_f32 v17, v17, v16')
        a.ins(f'v_mov_b32 v18, {hex(f32(0.044715))}')
        a.ins('v_fma_f32 v17, v17, v18, v16')
        a.ins(f'v_mul_f32 v17, {hex(f32(2*0.7978845608028654*math.log2(math.e)))}, v17')
        a.ins('v_exp_f32 v17, v17')
        a.ins('v_add_f32 v17, 1.0, v17')
        a.ins('v_rcp_f32 v17, v17')
        a.ins('v_fma_f32 v17, v17, -2.0, 1.0')
        a.ins('v_add_f32 v17, 1.0, v17')
        a.ins('v_mul_f32 v17, v17, v16')
        a.ins('v_mul_f32 v17, 0.5, v17')
        bf16r(17, 17)
        a.ins('v_mul_f32 v17, v17, v36')
        a.ins('v_cvt_pk_bf16_f32 v18, v17, 0')
        a.ins('v_mov_b32 v19, 0')
        a.ins('s_mov_b32 exec_lo, 0', dst=[], src=[])
        a.ins('s_mov_b32 exec_hi, 0xffff0000', dst=[], src=[])
        a.ins('v_mov_b32 v18, 0')
        set_exec_lanes(64)
        a.ins('v_lshlrev_b32 v20, 1, v0')
        a.lds(f'ds_write_b16 v20, v18 offset:{XS}')
        a.lds(f'ds_write_b16 v20, v19 offset:{XS + 128}')
        only_wave0_end(L0)
        a.barrier()
        stamp(6, 77, 122, 88)
        xread(80, 112, 0)
        xread(84, 112, 64)
        xread(88, 113, 0)
        a.wait_lg_all()
        mfma_block(16, 80, 'v', 48, True)
        stage_block(48, 14, 16384, 'st5b')
        a.wait_lg_all()
        mfma_block(16, 84, 'v', 48, False)
        stage_block(48, 120, 0, 'st5c')
        extract(16, 92)
        publish_own(92, 82)
        a.wait_lg_all()
        mfma_block(16, 88, 'v', 48, True)
        extract(16, 100)
        publish_cb4(100, 82)
        stamp(7, 77, 122, 88)
        a.barrier()
    stamp(9, 77, 122, 88)
    a.ins('s_add_u32 s78, s78, 1')
    a.ins('s_cmp_lt_u32 s78, 8')
    a.ins('s_cbranch_scc1 L_aloop')
    a.ins('s_waitcnt vmcnt(0)')
    a.ins('s_endpgm')

def wait_armed_chain():
    L = newlab('Lar'); D = newlab('Lad')
    smov(75, SPIN_MAX)
    a.ins('v_mov_b32 v126, 0')
    a.label(L)
    a.ins('global_load_dword v127, v126, s[28:29] sc1')
    a.ins('s_waitcnt vmcnt(0)')
    a.vm = []
    a.ins(f'v_cmp_gt_u32 vcc, {NCH}, v127')
    a.ins(f's_cbranch_vccz {D}')
    a.ins('s_sleep 2')
    a.ins('s_sub_u32 s75, s75, 1')
    a.ins('s_cmp_lg_u32 s75, 0')
    a.ins(f's_cbranch_scc1 {L}')
    a.label(D)
    a.fence_hazards()

def q_gemv_publish():
    stage_block(48, 14, 0, 'st')
    for i in range(5):
        xread(80 + 4 * i, 114, 64 * i)
    a.wait_lg_all()
    for cb in range(3):
        for i in range(4):
            kind, base = (('a', 128 * cb + 32 * i) if cb < 2 else ('v', W1 + 32 * i))
            mfma_block(16, 80 + 4 * i, kind, base, i == 0)
        a.wait_lg_all()
        mfma_block(16, 96, 'v', 48, False)
        if cb < 2:
            stage_block(48, 14, (cb + 1) * 8192, 'st')
        extract(16, 100)
        set_exec_lanes(16)
        a.lds(f'ds_write_b128 v115, v[100:103] offset:{cb*512}')
        a.lds(f'ds_write_b128 v115, v[104:107] offset:{cb*512+16}')
        set_exec_lanes(64)
    a.barrier()
    L0 = only_wave0_begin()
    a.ins('v_lshlrev_b32 v127, 1, v13')
    for r in range(4):
        a.lds(f'ds_read_b128 v[{16+8*r}:{19+8*r}], v127 offset:{RED + r*1536}')
        a.lds(f'ds_read_b128 v[{20+8*r}:{23+8*r}], v127 offset:{RED + r*1536 + 16}')
    a.wait_lg_all()
    for r in range(1, 4):
        for e in range(8):
            a.ins(f'v_add_f32 v{16+e}, v{16+e}, v{16+8*r+e}')
    for e in range(4):
        a.ins(f'v_cvt_pk_bf16_f32 v{60+e}, v{16+2*e}, v{17+2*e}')
    a.ins('s_add_u32 s76, s70, s86')
    set_exec_lanes(48)
    a.ins('buffer_store_dwordx4 v[60:63], v13, s[64:67], s76 offen sc1')
    set_exec_lanes(64)
    only_wave0_end(L0)
    a.barrier()

def gen_qcu():
    a.label('L_qcu')
    chain_common_init()
    a.ins(f's_sub_u32 s5, s2, {NA}')
    mfma_consts()
    a.ins('s_mul_i32 s70, s5, 768')
    a.ins(f's_sub_u32 s6, {640*12288}, s70')
    srd_off(96, 14, 15, 70, 's6')
    a.ins(f'v_mul_u32_u24 v126, {8*12288}, v4')
    a.ins('v_lshl_add_u32 v126, v3, 4, v126')
    a.ins('s_mul_i32 s4, s3, 24576')
    a.ins(f's_add_u32 s4, s4, {WL}')
    a.ins('v_add_u32 v14, s4, v13')
    a.ins(f's_mul_i32 s42, s3, {160*12288}')
    def ldq(i, cb):
        def em(T, tag):
            for e in range(8):
                a.ins(f's_add_u32 s76, s42, {(32 * i + e) * 12288 + cb * 256}')
                a.vmem(f'buffer_load_dwordx4 v[{T+4*e}:{T+4*e+3}], v126, s[96:99], s76 offen nt', tag)
        return em
    blocks = []
    for cb in range(3):
        for i in range(4):
            blocks.append((ldq(i, cb), ('a', 128 * cb + 32 * i) if cb < 2 else ('v', W1 + 32 * i)))
        blocks.append((ldq(4, cb), ('l', 14, cb * 8192)))
    prep_blocks(blocks)
    load_xres()
    a.ins('s_mul_i32 s4, s3, 1536')
    a.ins('v_lshlrev_b32 v115, 5, v3')
    a.ins('v_add_u32 v115, s4, v115')
    a.ins(f'v_add_u32 v115, {RED}, v115')
    a.barrier()
    wait_flags(2, 126)
    order = 0
    for i, (ly, b) in enumerate(CHAIN_ORDER):
        order |= (ly * 4 + b) << (4 * i)
    srd(92, 26, 27, 4 * 1280)
    a.ins('v_lshlrev_b32 v119, 2, v0')
    a.ins('s_mov_b32 s78, 0')
    a.label('L_qloop')
    a.fence_hazards()
    a.ins('s_lshl_b32 s4, s78, 2')
    a.ins(f's_lshr_b32 s79, {hex(order)}, s4')
    a.ins('s_and_b32 s79, s79, 15')
    a.ins('s_and_b32 s83, s79, 3')
    a.ins('s_lshr_b32 s85, s79, 2')
    a.ins('s_mul_i32 s84, s83, 1280')
    a.ins('s_mul_i32 s4, s83, 2560')
    a.ins('v_add_u32 v121, s4, v12')
    a.ins(f's_mul_i32 s86, s83, {32*384}')
    a.ins(f's_add_u32 s86, s86, {hex(Q_OFF + 4*32*384)}')
    a.ins(f's_mul_i32 s81, s79, {2*AR_SZ}')
    a.ins(f's_add_u32 s81, s81, {hex(AR_OFF)}')
    a.ins(f's_add_u32 s82, s81, {AR_SZ}')
    a.ins('s_lshl_b32 s88, s78, 6')
    stamp(0, 77, 122, 88)
    a.ins('s_cmp_eq_u32 s85, 0')
    a.ins('s_cbranch_scc1 L_qgo')
    a.ins(f's_cmp_lg_u32 s2, {NA}')
    a.ins('s_cbranch_scc1 L_qnext')
    a.label('L_qgo')
    a.fence_hazards()
    gather_ar(81)
    L0 = only_wave0_begin()
    ar_sum_wave0()
    residual(121, XRES)
    store_x(12, X1)
    only_wave0_end(L0)
    a.barrier()
    stamp(1, 77, 122, 88)
    gather_ar(82)
    stamp(2, 77, 122, 88)
    L0 = only_wave0_begin()
    ar_sum_wave0()
    residual(12, X1)
    store_x(121, XRES)
    LO = newlab('Lout'); LX = newlab('Lx2p')
    a.ins('s_cmp_eq_u32 s85, 0')
    a.ins(f's_cbranch_scc1 {LX}')
    for k in range(5):
        a.ins(f'v_cvt_pk_bf16_f32 v{32+k}, v{16+2*k}, v{17+2*k}')
        a.ins(f'buffer_store_dword v{32+k}, v119, s[92:95], s84 offen offset:{k*256}')
    a.ins(f's_branch {LO}')
    a.label(LX)
    a.ins(f's_cmp_lg_u32 s2, {NA}')
    a.ins(f's_cbranch_scc1 {LO}')
    a.ins('s_mul_i32 s90, s83, 2560')
    a.ins(f's_add_u32 s90, s90, {hex(X2_OFF)}')
    for k in range(5):
        a.ins(f'buffer_store_dwordx2 v[{16+2*k}:{17+2*k}], v12, s[64:67], s90 offen offset:{k*512} sc1')
    a.label(LO)
    a.fence_hazards()
    layernorm_to_xs()
    only_wave0_end(L0)
    a.barrier()
    stamp(3, 77, 122, 88)
    a.ins('s_cmp_lg_u32 s85, 0')
    a.ins('s_cbranch_scc1 L_qnext')
    q_gemv_publish()
    a.label('L_qnext')
    a.fence_hazards()
    stamp(4, 77, 122, 88)
    a.ins('s_add_u32 s78, s78, 1')
    a.ins('s_cmp_lt_u32 s78, 8')
    a.ins('s_cbranch_scc1 L_qloop')
    a.ins('s_waitcnt vmcnt(0)')
    a.ins('s_endpgm')

def main(outpath):
    hdr = open('cdna_kernels/' + NAME + '.s.ref').read().split('\n')
    top = [l for l in hdr if l.startswith(';') and '@launch' not in l]
    out = []
    out += top
    out.append('; @launch grid=(256,1,1) block=(256,1,1) lds=163840')
    out.append('.amdgcn_target "amdgcn-amd-amdhsa--gfx950"')
    out.append('.text')
    out.append(MACROS)
    out.append(f'.globl {KNAME}')
    out.append('.p2align 8')
    out.append(f'.type {KNAME},@function')
    out.append(f'{KNAME}:')
    a.ins('s_cmp_ge_u32 s2, 256')
    a.ins('s_cbranch_scc1 L_exit')
    a.ins('s_load_dwordx16 s[8:23], s[0:1], 0')
    a.ins('s_load_dwordx8 s[24:31], s[0:1], 64')
    a.ins('v_lshrrev_b32 v1, 6, v0')
    a.ins('v_and_b32 v0, 63, v0')
    a.ins('v_readfirstlane_b32 s3, v1')
    a.ins('s_waitcnt lgkmcnt(0)')
    srd(64, 30, 31, WS_SIZE)
    a.ins(f's_cmp_ge_u32 s2, {NCH}')
    a.ins('s_cbranch_scc0 L_chain')
    a.ins('s_branch L_stream')
    a.label('L_exit')
    a.ins('s_endpgm')
    a.label('L_chain')
    a.ins(f's_cmp_ge_u32 s2, {NA}')
    a.ins('s_cbranch_scc1 L_qcu')
    a.fence_hazards()
    gen_acu()
    a.hist = []; a.vm = []; a.lg = []
    a.fence_hazards()
    gen_qcu()
    a.hist = []; a.vm = []; a.lg = []
    a.fence_hazards()
    gen_stream()
    out.append(a.text())
    out.append('.section .rodata,"a"')
    out.append('.p2align 6')
    out.append(f'.amdhsa_kernel {KNAME}')
    out.append('  .amdhsa_next_free_vgpr 512')
    out.append('  .amdhsa_next_free_sgpr 102')
    out.append('  .amdhsa_accum_offset 256')
    out.append('  .amdhsa_group_segment_fixed_size 0')
    out.append('  .amdhsa_kernarg_size 96')
    out.append('  .amdhsa_user_sgpr_count 2')
    out.append('  .amdhsa_user_sgpr_kernarg_segment_ptr 1')
    out.append('  .amdhsa_system_sgpr_workgroup_id_x 1')
    out.append('.end_amdhsa_kernel')
    open(outpath, 'w').write('\n'.join(out) + '\n')
    print('instrs', a.ninstr, 'bytes', sum(len(x) + 1 for x in out))

if __name__ == '__main__':
    main(sys.argv[1] if len(sys.argv) > 1 else 'cdna_kernels/' + NAME + '.s')
```

```python
import struct, sys, math, os
from asmlib import *

NAME = 'interleave_layers__mha_block_cached__glu_gated_geglu__decode'
KNAME = NAME + '_kernel'

NA, NQ = 32, 16
NCH = NA + NQ
NST = 256 - NCH
WPH = NST * 4 // 32
REC = 784
PART_OFF = 0
PART_C = 32 * WPH * REC
NR = 21
NL = int(os.environ.get('NL', '4'))
LMODE = os.environ.get('LMODE', 'def')
NN = 40 - NR - NL
NA_HALF = (NN + 1) // 2
NT_ALL = 40
R_T = list(range(NR + NL)); D_T = list(range(NR, NR + NL)) + list(range(NR)); N_T = list(range(NR + NL, NT_ALL)); NA_T = N_T[:NA_HALF]; NB_T = N_T[NA_HALF:]
SCHED = [('A', 0, 0, R_T), ('N', 0, 0, N_T), ('N', 0, 1, N_T), ('N', 0, 2, NA_T),
         ('D', 1, 0, D_T), ('A', 0, 1, R_T), ('N', 0, 2, NB_T), ('N', 1, 0, N_T),
         ('D', 1, 1, D_T), ('A', 0, 2, R_T), ('N', 0, 3, N_T), ('N', 1, 1, NA_T),
         ('D', 1, 2, D_T), ('A', 0, 3, R_T), ('N', 1, 1, NB_T), ('N', 1, 2, N_T),
         ('D', 1, 3, D_T), ('N', 1, 3, N_T)]
NSEG = len(SCHED)
_last = {}
for _i, (_t, _p, _b, _tl) in enumerate(SCHED):
    _last[(_p, _b)] = _i
CHAIN_ORDER = sorted(_last, key=lambda k: _last[k])
CHAIN_SEGS = {k: [i for i, (t, p, b, tl) in enumerate(SCHED) if (p, b) == k] for k in CHAIN_ORDER}
AR_OFF = ((NSEG * PART_C + 4095) // 4096) * 4096
AR_SZ = 32 * 2560
Q_OFF = AR_OFF + 16 * AR_SZ
X2_OFF = Q_OFF + 8 * 32 * 384
ARM_N = (X2_OFF + 4 * 2560 + 48 * 4096 - 1) // (48 * 4096)
COMM = ARM_N * 48 * 4096
assert Q_OFF % 4096 == 0
ARM_PER = COMM // NCH
BATCH_STRIDE = 32 * 8192 * 384
SPIN_MAX = 400000
import os
DIAG = int(os.environ.get('DIAG', '0'))
STAMP_OFF = COMM
WS_SIZE = COMM + (1 << 20 if DIAG else 0)

def f32(x):
    return struct.unpack('<I', struct.pack('<f', x))[0]

CSCALE = f32((192 ** -0.5) * math.log2(math.e))

a = Asm()
_lab = [0]
def newlab(p='L'):
    _lab[0] += 1
    return f'{p}{_lab[0]}'

MACROS = r'''
.macro QK2 ta, tb, q, s
  v_dot2_f32_bf16 v[\s+0], v[\ta+0], v[\q+0], 0
  v_dot2_f32_bf16 v[\s+1], v[\ta+4], v[\q+4], 0
  v_dot2_f32_bf16 v[\s+2], v[\ta+8], v[\q+8], 0
  v_dot2_f32_bf16 v[\s+3], v[\tb+0], v[\q+0], 0
  v_dot2_f32_bf16 v[\s+4], v[\tb+4], v[\q+4], 0
  v_dot2_f32_bf16 v[\s+5], v[\tb+8], v[\q+8], 0
  .irp k, 1, 2, 3
  v_dot2c_f32_bf16 v[\s+0], v[\ta+\k], v[\q+\k]
  v_dot2c_f32_bf16 v[\s+1], v[\ta+4+\k], v[\q+4+\k]
  v_dot2c_f32_bf16 v[\s+2], v[\ta+8+\k], v[\q+8+\k]
  v_dot2c_f32_bf16 v[\s+3], v[\tb+\k], v[\q+\k]
  v_dot2c_f32_bf16 v[\s+4], v[\tb+4+\k], v[\q+4+\k]
  v_dot2c_f32_bf16 v[\s+5], v[\tb+8+\k], v[\q+8+\k]
  .endr
.endm
.macro PV t, p, acc
  .irp k, 0, 1, 2, 3, 4, 5, 6, 7, 8, 9, 10, 11
  v_dot2c_f32_bf16 v[\acc+2*\k], v[\t+\k], v[\p]
  v_dot2c_f32_bf16 v[\acc+2*\k+1], v[\t+\k], v[\p+1]
  .endr
.endm
.macro ACR t, s
  .irp k, 0, 1, 2, 3, 4, 5, 6, 7, 8, 9, 10, 11
  v_accvgpr_read_b32 v[\t+\k], a[\s+\k]
  .endr
.endm
.macro LDT k, d, srd
  buffer_load_dwordx4 \k[\d:\d+3], v1, s[\srd:\srd+3], s76 offen nt
  buffer_load_dwordx4 \k[\d+4:\d+7], v1, s[\srd:\srd+3], s76 offen offset:128 nt
  buffer_load_dwordx4 \k[\d+8:\d+11], v1, s[\srd:\srd+3], s76 offen offset:256 nt
.endm
.macro LDC k, d, srd
  buffer_load_dwordx4 \k[\d:\d+3], v1, s[\srd:\srd+3], s76 offen
  buffer_load_dwordx4 \k[\d+4:\d+7], v1, s[\srd:\srd+3], s76 offen offset:128
  buffer_load_dwordx4 \k[\d+8:\d+11], v1, s[\srd:\srd+3], s76 offen offset:256
.endm
.macro RESC acc, al
  .irp k, 0, 1, 2, 3, 4, 5, 6, 7, 8, 9, 10, 11, 12, 13, 14, 15, 16, 17, 18, 19, 20, 21, 22, 23
  v_mul_f32 v[\acc+\k], v[\al], v[\acc+\k]
  .endr
.endm
.macro GV8 w, x, acc
  .irp k, 0, 1, 2, 3
  v_dot2c_f32_bf16 v[\acc+2*\k], v[\w+\k], v[\x]
  v_dot2c_f32_bf16 v[\acc+2*\k+1], v[\w+\k], v[\x+1]
  .endr
.endm
.macro AC4 t, s
  .irp k, 0, 1, 2, 3
  v_accvgpr_read_b32 v[\t+\k], a[\s+\k]
  .endr
.endm
'''

def m_qk2(ta, tb, q, s):
    a.mbegin(f'QK2 {ta}, {tb}, {q}, {s}')
    for i, (t, o) in enumerate([(ta, 0), (ta, 4), (ta, 8), (tb, 0), (tb, 4), (tb, 8)]):
        a.ins(f'v_dot2_f32_bf16 v{s+i}, v{t+o}, v{q+o}, 0')
    for k in (1, 2, 3):
        for i, (t, o) in enumerate([(ta, 0), (ta, 4), (ta, 8), (tb, 0), (tb, 4), (tb, 8)]):
            a.ins(f'v_dot2c_f32_bf16 v{s+i}, v{t+o+k}, v{q+o+k}')
    a.mend()

def m_pv(t, p, acc):
    a.mbegin(f'PV {t}, {p}, {acc}')
    for k in range(12):
        a.ins(f'v_dot2c_f32_bf16 v{acc+2*k}, v{t+k}, v{p}')
        a.ins(f'v_dot2c_f32_bf16 v{acc+2*k+1}, v{t+k}, v{p+1}')
    a.mend()

def m_acr(t, s):
    a.mbegin(f'ACR {t}, {s}')
    for k in range(12):
        a.ins(f'v_accvgpr_read_b32 v{t+k}, a{s+k}')
    a.mend()

def m_ldt(kind, d, srd, tag, pol='nt'):
    a.mbegin(f'{"LDT" if pol else "LDC"} {kind}, {d}, {srd}')
    for i in range(3):
        off = f' offset:{i*128}' if i else ''
        a.vmem(f'buffer_load_dwordx4 {kind}[{d+4*i}:{d+4*i+3}], v1, s[{srd}:{srd+3}], s76 offen{off} {pol}', tag)
    a.mend()

def m_resc(acc, al):
    a.mbegin(f'RESC {acc}, {al}')
    for k in range(24):
        a.ins(f'v_mul_f32 v{acc+k}, v{al}, v{acc+k}')
    a.mend()

def m_gv8(w, x, acc):
    a.mbegin(f'GV8 {w}, {x}, {acc}')
    for k in range(4):
        a.ins(f'v_dot2c_f32_bf16 v{acc+2*k}, v{w+k}, v{x}')
        a.ins(f'v_dot2c_f32_bf16 v{acc+2*k+1}, v{w+k}, v{x+1}')
    a.mend()

def m_ac4(t, s):
    a.mbegin(f'AC4 {t}, {s}')
    for k in range(4):
        a.ins(f'v_accvgpr_read_b32 v{t+k}, a{s+k}')
    a.mend()

DPP = 'row_mask:0xf bank_mask:0xf'

def smov(s, val):
    val &= 0xffffffff
    a.ins(f's_mov_b32 s{s}, {val if val <= 64 else hex(val)}')

def srd(d, lo, hi, nrec):
    a.ins(f's_mov_b32 s{d}, s{lo}')
    a.ins(f's_and_b32 s{d+1}, s{hi}, 0xffff')
    if isinstance(nrec, int):
        smov(d + 2, nrec)
    else:
        a.ins(f's_mov_b32 s{d+2}, {nrec}')
    a.ins(f's_mov_b32 s{d+3}, 0x20000')

def srd_off(d, lo, hi, offs, nrec):
    a.ins(f's_add_u32 s{d}, s{lo}, s{offs}')
    a.ins(f's_addc_u32 s{d+1}, s{hi}, 0')
    a.ins(f's_and_b32 s{d+1}, s{d+1}, 0xffff')
    if isinstance(nrec, int):
        smov(d + 2, nrec)
    else:
        a.ins(f's_mov_b32 s{d+2}, {nrec}')
    a.ins(f's_mov_b32 s{d+3}, 0x20000')

def set_exec_lanes(n):
    if n >= 64:
        a.ins('s_mov_b64 exec, -1')
    elif n <= 32:
        a.ins(f's_mov_b32 exec_lo, {hex((1 << n) - 1)}', dst=[], src=[])
        a.ins('s_mov_b32 exec_hi, 0', dst=[], src=[])
    else:
        a.ins('s_mov_b32 exec_lo, -1', dst=[], src=[])
        a.ins(f's_mov_b32 exec_hi, {hex((1 << (n - 32)) - 1)}', dst=[], src=[])

def stamp(idx, base_s, vt, dyn=None):
    if not DIAG:
        return
    a.ins('s_memrealtime s[100:101]')
    a.ins('s_waitcnt lgkmcnt(0)')
    a.lg = []
    a.ins(f'v_mov_b32 v{vt}, s100')
    a.ins(f'v_mov_b32 v{vt+1}, 0')
    if dyn is None:
        a.ins(f's_add_u32 s101, s{base_s}, {idx*4}')
    else:
        a.ins(f's_add_u32 s101, s{base_s}, s{dyn}')
        a.ins(f's_add_u32 s101, s101, {idx*4}')
    a.vmem(f'buffer_store_dword v{vt}, v{vt+1}, s[64:67], s101 offen', 'stamp')

def flags_addr(va, stage):
    if stage == 1:
        a.ins(f'v_min_u32 v{va}, 11, v0')
        a.ins(f'v_lshlrev_b32 v{va}, 2, v{va}')
    else:
        a.ins(f'v_min_u32 v{va}, 23, v0')
        a.ins(f'v_lshlrev_b32 v{va}, 2, v{va}')
        a.ins(f'v_add_u32 v{va}, 128, v{va}')

def flags_check(vreg, stage):
    a.ins(f'v_cmp_ne_u32 vcc, {1 if stage == 1 else "0x10001"}, v{vreg}')

def wait_flags(stage, va=254, plain_first=True):
    L = newlab('Lar'); D = newlab('Lad')
    smov(75, SPIN_MAX)
    flags_addr(va, stage)
    if plain_first:
        a.ins(f'global_load_dword v{va+1}, v{va}, s[28:29]')
        a.ins('s_waitcnt vmcnt(0)')
        flags_check(va + 1, stage)
        a.ins(f's_cbranch_vccz {D}')
    a.label(L)
    a.ins(f'global_load_dword v{va+1}, v{va}, s[28:29] sc1')
    a.ins('s_waitcnt vmcnt(0)')
    a.vm = []
    flags_check(va + 1, stage)
    a.ins(f's_cbranch_vccz {D}')
    a.ins('s_sleep 8')
    a.ins('s_sub_u32 s75, s75, 1')
    a.ins('s_cmp_lg_u32 s75, 0')
    a.ins(f's_cbranch_scc1 {L}')
    a.label(D)
    a.fence_hazards()

def set_flag(stage):
    L = only_wave0_begin()
    if stage == 1:
        a.ins('s_lshl_b32 s4, s2, 2')
    else:
        a.ins('s_lshl_b32 s4, s2, 1')
        a.ins('s_add_u32 s4, s4, 128')
    a.ins('v_mov_b32 v150, s4')
    a.ins('v_mov_b32 v151, 1')
    set_exec_lanes(1)
    a.ins(f'global_store_{"dword" if stage == 1 else "short"} v150, v151, s[28:29] sc1')
    set_exec_lanes(64)
    a.label(L)
    a.fence_hazards()

SU_W = 56
SU_ACC = 96
SU_X = 226
SU_RED = 20480

def startup1():
    srd(96, 8, 9, 4 * 1280)
    a.ins('v_lshlrev_b32 v254, 2, v0')
    a.ins('s_mul_i32 s76, s3, 1280')
    for k in range(5):
        a.vmem(f'buffer_load_dword v{SU_X+k}, v254, s[96:99], s76 offen offset:{k*256}', 'sux')
    a.ins('s_mul_i32 s4, s2, 48')
    a.ins(f's_sub_u32 s5, {640*12288}, s4')
    srd_off(92, 14, 15, 4, 's5')
    a.ins('v_and_b32 v255, 15, v0')
    a.ins(f'v_mul_u32_u24 v255, {10*12288}, v255')
    a.ins('v_lshrrev_b32 v128, 4, v0')
    a.ins('v_min_u32 v128, 2, v128')
    a.ins('v_lshl_add_u32 v255, v128, 4, v255')
    a.ins(f's_mul_i32 s4, s3, {160*12288}')
    for i in range(10):
        a.ins(f's_add_u32 s76, s4, {i*12288}')
        a.vmem(f'buffer_load_dwordx4 v[{SU_W+4*i}:{SU_W+4*i+3}], v255, s[92:95], s76 offen', 'suw')

def startup2a(topup=None, st=False, after_x=None):
    X = SU_X
    a.wait_vm('sux')
    if after_x:
        after_x()
    if st: stamp(56, 78, 252)
    xs = X + 5
    for k in range(5):
        a.ins(f'v_lshlrev_b32 v{xs+2*k}, 16, v{X+k}')
        a.ins(f'v_and_b32 v{xs+2*k+1}, 0xffff0000, v{X+k}')
    A = SU_ACC
    t, u, mean, var = A, A + 1, A + 2, A + 3
    d0, q0, e0 = A + 4, A + 14, X + 15
    a.ins(f'v_add_f32 v{t}, v{xs}, v{xs+1}')
    for i in range(2, 10):
        a.ins(f'v_add_f32 v{t}, v{t}, v{xs+i}')
    wave_sum(t, u)
    a.ins(f'v_mul_f32 v{mean}, {hex(f32(1.0/640))}, v{t}')
    for i in range(10):
        a.ins(f'v_sub_f32 v{d0+i}, v{xs+i}, v{mean}')
    a.ins(f'v_mul_f32 v{t}, v{d0}, v{d0}')
    for i in range(1, 10):
        a.ins(f'v_fmac_f32 v{t}, v{d0+i}, v{d0+i}')
    wave_sum(t, u)
    a.ins(f'v_mul_f32 v{var}, {hex(f32(1.0/640))}, v{t}')
    bf16r(mean, mean)
    bf16r(var, var)
    a.ins(f'v_add_f32 v{var}, {hex(f32(1e-5))}, v{var}')
    bf16r(var, var)
    a.ins(f'v_sqrt_f32 v{var}, v{var}')
    bf16r(var, var)
    a.ins(f'v_rcp_f32 v{u}, v{var}')
    for i in range(10):
        a.ins(f'v_sub_f32 v{d0+i}, v{xs+i}, v{mean}')
    for i in range(10):
        bf16r(d0 + i, d0 + i)
    for i in range(10):
        a.ins(f'v_mul_f32 v{q0+i}, v{d0+i}, v{u}')
    for i in range(10):
        a.ins(f'v_fma_f32 v{e0+i}, -v{q0+i}, v{var}, v{d0+i}')
    for i in range(10):
        a.ins(f'v_fma_f32 v{q0+i}, v{e0+i}, v{u}, v{q0+i}')
    a.ins('s_mul_i32 s4, s3, 5120')
    a.ins('v_lshlrev_b32 v254, 4, v0')
    a.ins('v_add_u32 v254, s4, v254')
    r = A + 24
    for k in range(5):
        a.ins(f'v_cvt_pk_bf16_f32 v{r}, v{q0+2*k}, 0')
        a.ins(f'v_cvt_pk_bf16_f32 v{r+1}, 0, v{q0+2*k}')
        a.ins(f'v_cvt_pk_bf16_f32 v{r+2}, v{q0+2*k+1}, 0')
        a.ins(f'v_cvt_pk_bf16_f32 v{r+3}, 0, v{q0+2*k+1}')
        a.lds(f'ds_write_b128 v254, v[{r}:{r+3}] offset:{k*1024}')
        a.wait_lg_all()
    a.barrier()
    if st: stamp(57, 78, 252)
    a.ins('v_and_b32 v254, 15, v0')
    a.ins('v_mul_u32_u24 v254, 80, v254')
    a.ins('s_mul_i32 s4, s3, 1280')
    a.ins('v_add_u32 v254, s4, v254')
    for k in range(32):
        a.ins(f'v_mov_b32 v{SU_ACC+k}, 0')
    a.wait_vm('suw')
    if st: stamp(58, 78, 252)
    for b in range(4):
        for k in range(5):
            a.lds(f'ds_read_b128 v[{X+4*k}:{X+4*k+3}], v254 offset:{b*5120 + k*16}')
        a.wait_lg_all()
        for i in range(10):
            m_gv8(SU_W + 4 * i, X + 2 * i, SU_ACC + 8 * b)
    for pat in ('quad_perm:[1,0,3,2]', 'quad_perm:[2,3,0,1]', 'row_half_mirror', 'row_mirror'):
        for k in range(32):
            a.ins(f'v_add_f32_dpp v{SU_ACC+k}, v{SU_ACC+k}, v{SU_ACC+k} {pat} {DPP}')
    a.ins('v_lshrrev_b32 v254, 4, v0')
    a.ins('v_lshlrev_b32 v254, 7, v254')
    a.ins('s_mul_i32 s4, s3, 384')
    a.ins(f's_add_u32 s4, s4, {SU_RED}')
    a.ins('v_add_u32 v254, s4, v254')
    a.ins('s_mov_b32 exec_lo, 0x10001', dst=[], src=[])
    a.ins('s_mov_b32 exec_hi, 1', dst=[], src=[])
    for k in range(8):
        a.lds(f'ds_write_b128 v254, v[{SU_ACC+4*k}:{SU_ACC+4*k+3}] offset:{k*16}')
    set_exec_lanes(64)
    if topup:
        topup()
    if st: stamp(59, 78, 252)
    a.barrier()
    if st: stamp(60, 78, 252)

def startup2b(st=False):
    a.ins('v_mul_u32_u24 v254, 171, v0')
    a.ins('v_lshrrev_b32 v254, 9, v254')
    a.ins('v_mul_u32_u24 v255, 3, v254')
    a.ins('v_sub_u32 v255, v0, v255')
    a.ins('v_lshlrev_b32 v128, 7, v255')
    a.ins('v_lshl_add_u32 v128, v254, 5, v128')
    a.ins('v_and_b32 v128, 0x1ff, v128')
    for wv in range(4):
        a.lds(f'ds_read_b128 v[{SU_W+8*wv}:{SU_W+8*wv+3}], v128 offset:{SU_RED + wv*384}')
        a.lds(f'ds_read_b128 v[{SU_W+8*wv+4}:{SU_W+8*wv+7}], v128 offset:{SU_RED + wv*384 + 16}')
    a.wait_lg_all()
    for wv in range(1, 4):
        for e in range(8):
            a.ins(f'v_add_f32 v{SU_W+e}, v{SU_W+e}, v{SU_W+8*wv+e}')
    for e in range(4):
        a.ins(f'v_cvt_pk_bf16_f32 v{SU_ACC+e}, v{SU_W+2*e}, v{SU_W+2*e+1}')
    a.ins('v_mul_u32_u24 v254, 12288, v254')
    a.ins('v_lshl_add_u32 v254, v255, 4, v254')
    if st: stamp(61, 78, 250)
    wait_flags(1, 252)
    if st: stamp(62, 78, 250)
    a.ins('s_mul_i32 s76, s2, 48')
    a.ins(f's_add_u32 s76, s76, {hex(Q_OFF)}')
    set_exec_lanes(12)
    a.vmem(f'buffer_store_dwordx4 v[{SU_ACC}:{SU_ACC+3}], v254, s[64:67], s76 offen sc1', 'q1pub')
    set_exec_lanes(64)

RING = [8, 20, 32, 44]
T0, T1 = 56, 68
Q, QS = 80, 92
ST = 104
VSLOT = 130
NVS = 8
WK = 226

def srd_k(b): return 32 + 8 * b
def srd_v(b): return 36 + 8 * b

def r_storage(kind, t):
    if t >= NR:
        return ('c',)
    if kind == 'K':
        return ('a', 12 * t)
    if t < NVS:
        return ('v', VSLOT + 12 * t)
    return ('l', t - NVS)

def groups_of(tiles):
    return [tiles[i:i + 2] for i in range(0, len(tiles), 2)]

class Stream:
    def __init__(self):
        self.P = SCHED
        self.LQ = []
        for pi, (ty, ps, b, tiles) in enumerate(self.P):
            for grp in groups_of(tiles):
                for kind in ('K', 'V'):
                    for t in grp:
                        pol = 'nt'
                        if ty == 'D':
                            if r_storage(kind, t)[0] != 'c':
                                continue
                            dest = ('r', None)
                        elif ty == 'A':
                            stg = r_storage(kind, t)
                            dest = stg if stg[0] in 'av' else ('r', None)
                            if stg[0] == 'c' and LMODE == 'def':
                                pol = ''
                        else:
                            dest = ('r', None)
                        self.LQ.append({'pi': pi, 'kind': kind, 't': t, 'b': b, 'dest': dest, 'pol': pol})
        self.lqi = 0
        self.nissued = 0
        self.ring_free = [True] * 4
        self.ring_next = 0
        self.ded_free = {}
        self.d_done = set()
        self.cur_pi = 0
        self.loc = {}
        self.last_A = max(i for i, p in enumerate(self.P) if p[0] == 'A')
        self.all_ded = [r_storage(k, t) for t in R_T for k in 'KV' if r_storage(k, t)[0] in 'av']

    def ring_alloc(self):
        s = self.ring_next
        if not self.ring_free[s]:
            return None
        self.ring_free[s] = False
        self.ring_next = (s + 1) % 4
        return s

    def _issue_one(self, e):
        if e['dest'][0] == 'r':
            s = self.ring_alloc()
            if s is not None:
                kind, base = 'v', RING[s]
                self.loc[(e['pi'], e['kind'], e['t'])] = ('r', s)
            else:
                key = None
                if self.cur_pi > self.last_A and e['pi'] == len(self.P) - 1:
                    for k in self.all_ded:
                        if self.ded_free.get(k, True):
                            key = k
                            break
                if key is None:
                    return False
                self.ded_free[key] = False
                kind, base = key
                self.loc[(e['pi'], e['kind'], e['t'])] = ('x', key)
        else:
            key = e['dest']
            if not self.ded_free.get(key, True):
                return False
            self.ded_free[key] = False
            kind, base = key
            self.loc[(e['pi'], e['kind'], e['t'])] = key
        smov(76, e['t'] * 3072)
        sd = srd_k(e['b']) if e['kind'] == 'K' else srd_v(e['b'])
        m_ldt(kind, base, sd, ('T', e['pi'], e['kind'], e['t']), e['pol'])
        if LMODE == 'touch' and self.P[e['pi']][0] == 'A' and r_storage(e['kind'], e['t'])[0] == 'c':
            a.vmem(f'buffer_load_dword v249, v248, s[{sd}:{sd+3}], s76 offen sc1', 'touch')
        e['done'] = True
        self.nissued += 1
        return True

    def try_issue(self, cap=None, limit=None):
        if cap is None:
            cap = int(os.environ.get('CAP', '54'))
        while True:
            if len(a.vm) + 4 > cap:
                return
            if limit is not None and self.nissued >= limit:
                return
            cand = []
            seen = set()
            for i in range(self.lqi, len(self.LQ)):
                e = self.LQ[i]
                if e.get('done'):
                    continue
                c = 'r' if e['dest'][0] == 'r' else 'd'
                if c not in seen:
                    seen.add(c)
                    cand.append(e)
                if len(seen) == 2:
                    break
            ok = False
            for e in cand:
                if self._issue_one(e):
                    ok = True
                    break
            while self.lqi < len(self.LQ) and self.LQ[self.lqi].get('done'):
                self.lqi += 1
            if not ok:
                return

    def q_issue(self, ps, b):
        a.ins(f's_add_u32 s76, s72, {hex((ps * 4 + b) * 32 * 384)}')
        for i in range(3):
            off = f' offset:{i*128}' if i else ''
            a.vmem(f'buffer_load_dwordx4 v[{QS+4*i}:{QS+4*i+3}], v2, s[64:67], s76 offen{off} sc1', ('Q', ps, b))

    def q_check(self):
        w = WK
        a.ins(f'v_max3_u32 v{w}, v{QS}, v{QS+1}, v{QS+2}')
        for k in range(3, 12, 2):
            k2 = min(k + 1, 11)
            a.ins(f'v_max3_u32 v{w}, v{w}, v{QS+k}, v{QS+k2}')
        a.ins(f'v_cmp_eq_u32 vcc, -1, v{w}')

    def q_take(self, ps, b):
        a.wait_vm(('Q', ps, b))
        OK = newlab('Lqo'); RT = newlab('Lqr')
        self.q_check()
        a.ins(f's_cbranch_vccz {OK}')
        smov(75, SPIN_MAX)
        a.label(RT)
        a.ins('s_sleep 2')
        a.ins(f's_add_u32 s77, s72, {hex((ps * 4 + b) * 32 * 384)}')
        for i in range(3):
            off = f' offset:{i*128}' if i else ''
            a.ins(f'buffer_load_dwordx4 v[{QS+4*i}:{QS+4*i+3}], v2, s[64:67], s77 offen{off} sc1')
        a.ins('s_waitcnt vmcnt(0)')
        self.q_check()
        a.ins(f's_cbranch_vccz {OK}')
        a.ins('s_sub_u32 s75, s75, 1')
        a.ins('s_cmp_lg_u32 s75, 0')
        a.ins(f's_cbranch_scc1 {RT}')
        a.label(OK)
        for k in range(12):
            a.ins(f'v_mov_b32 v{Q+k}, v{QS+k}')

    def get_tile(self, pi, ty, kind, t, tmp):
        if ty == 'D' and r_storage(kind, t)[0] != 'c':
            stg = r_storage(kind, t)
            if stg[0] == 'a':
                m_acr(tmp, stg[1])
                self.ded_free[stg] = True
                return tmp, None
            if stg[0] == 'v':
                return stg[1], ('ded', stg)
            a.wait_lg(('L', pi, t))
            return tmp, None
        a.wait_vm(('T', pi, kind, t))
        loc = self.loc[(pi, kind, t)]
        if loc[0] == 'x':
            key = loc[1]
            if key[0] == 'a':
                m_acr(tmp, key[1])
                self.ded_free[key] = True
                return tmp, None
            return key[1], ('ded', key)
        if loc[0] == 'a':
            m_acr(tmp, loc[1])
            return tmp, None
        if loc[0] == 'v':
            return loc[1], None
        return RING[loc[1]], ('ring', loc[1])

    def touch(self, pi, ty, kind, t):
        if ty != 'A' or r_storage(kind, t)[0] != 'c':
            return
        b = self.P[pi][2]
        sd = srd_k(b) if kind == 'K' else srd_v(b)
        smov(76, t * 3072)
        a.vmem(f'buffer_load_dword v249, v248, s[{sd}:{sd+3}], s76 offen sc1', 'touch')

    def release(self, rel):
        if rel is None:
            return
        if rel[0] == 'ring':
            self.ring_free[rel[1]] = True
        else:
            self.ded_free[rel[1]] = True

    def lds_prefetch(self, pi, t, tmp):
        slot = t - NVS
        for i in range(3):
            a.lds(f'ds_read_b128 v[{tmp+4*i}:{tmp+4*i+3}], v3 offset:{slot*3072+i*1024}', ('L', pi, t))

    def group(self, pi, ty, grp, last_group):
        st = ST
        acc, m, l = st, st + 24, st + 25
        s = WK
        sa, sb = WK, WK + 3
        mn, cm, al = WK + 6, WK + 7, WK + 8
        pa, pb = WK + 9, WK + 10
        PA, PB = WK + 12, WK + 14
        two = len(grp) == 2
        ta, ra = self.get_tile(pi, ty, 'K', grp[0], T0)
        if two:
            tb, rb = self.get_tile(pi, ty, 'K', grp[1], T1)
            m_qk2(ta, tb, Q, s)
            self.release(ra); self.release(rb)
        else:
            for i, o in enumerate((0, 4, 8)):
                a.ins(f'v_dot2_f32_bf16 v{s+i}, v{ta+o}, v{Q+o}, 0')
            for k in (1, 2, 3):
                for i, o in enumerate((0, 4, 8)):
                    a.ins(f'v_dot2c_f32_bf16 v{s+i}, v{ta+o+k}, v{Q+o+k}')
            self.release(ra)
        if ty == 'D':
            for t, tmp in zip(grp, (T0, T1)):
                if r_storage('V', t)[0] == 'l':
                    self.lds_prefetch(pi, t, tmp)
        self.try_issue()
        a.ins(f'v_add_f32 v{sa}, v{s}, v{s+1}')
        a.ins(f'v_add_f32 v{sa}, v{sa}, v{s+2}')
        if two:
            a.ins(f'v_add_f32 v{sb}, v{s+3}, v{s+4}')
            a.ins(f'v_add_f32 v{sb}, v{sb}, v{s+5}')
        for pat in ('quad_perm:[1,0,3,2]', 'quad_perm:[2,3,0,1]', 'row_half_mirror'):
            a.ins(f'v_add_f32_dpp v{sa}, v{sa}, v{sa} {pat} {DPP}')
            if two:
                a.ins(f'v_add_f32_dpp v{sb}, v{sb}, v{sb} {pat} {DPP}')
        if grp[-1] == NT_ALL - 1:
            x = sb if two else sa
            a.ins(f'v_add_f32 v{x}, s69, v{x}')
        if two:
            a.ins(f'v_max3_f32 v{mn}, v{m}, v{sa}, v{sb}')
        else:
            a.ins(f'v_max_f32 v{mn}, v{m}, v{sa}')
        a.ins(f'v_cmp_gt_f32 vcc, v{mn}, v{m}')
        SK = newlab('Lsk')
        a.ins(f's_cbranch_vccz {SK}')
        a.ins(f'v_sub_f32 v{al}, v{m}, v{mn}')
        a.ins(f'v_mul_f32 v{al}, s74, v{al}')
        a.ins(f'v_exp_f32 v{al}, v{al}')
        a.ins(f'v_mov_b32 v{m}, v{mn}')
        m_resc(acc, al)
        a.ins(f'v_mul_f32 v{l}, v{al}, v{l}')
        a.label(SK)
        a.ins(f'v_mul_f32 v{cm}, s74, v{m}')
        a.ins(f'v_fma_f32 v{pa}, v{sa}, s74, -v{cm}')
        if two:
            a.ins(f'v_fma_f32 v{pb}, v{sb}, s74, -v{cm}')
        a.ins(f'v_exp_f32 v{pa}, v{pa}')
        if two:
            a.ins(f'v_exp_f32 v{pb}, v{pb}')
        a.ins(f'v_cvt_pk_bf16_f32 v{PA}, v{pa}, 0')
        a.ins(f'v_cvt_pk_bf16_f32 v{PA+1}, 0, v{pa}')
        if two:
            a.ins(f'v_cvt_pk_bf16_f32 v{PB}, v{pb}, 0')
            a.ins(f'v_cvt_pk_bf16_f32 v{PB+1}, 0, v{pb}')
        a.ins(f'v_add_f32 v{l}, v{l}, v{PA+1}')
        if two:
            a.ins(f'v_add_f32 v{l}, v{l}, v{PB+1}')
        for (t, P, tmp) in list(zip(grp, (PA, PB), (T0, T1))):
            tv, rv = self.get_tile(pi, ty, 'V', t, tmp)
            m_pv(tv, P, acc)
            if ty == 'A' and r_storage('V', t)[0] == 'l':
                slot = t - NVS
                for i in range(3):
                    a.lds(f'ds_write_b128 v3, v[{tv+4*i}:{tv+4*i+3}] offset:{slot*3072+i*1024}', ('W', pi, t))
            self.release(rv)
            self.try_issue()

    def publish(self, st, c):
        acc, m, l = st, st + 24, st + 25
        M, u, sc = WK, WK + 1, WK + 2
        a.ins(f'v_max_f32_dpp v{M}, v{m}, v{m} row_ror:8 {DPP}')
        a.ins(f'v_mov_b32 v{u}, v{M}')
        a.ins(f'v_permlane16_swap_b32 v{M}, v{u}')
        a.ins(f'v_max_f32 v{M}, v{M}, v{u}')
        a.ins(f'v_mov_b32 v{u}, v{M}')
        a.ins(f'v_permlane32_swap_b32 v{M}, v{u}')
        a.ins(f'v_max_f32 v{M}, v{M}, v{u}')
        a.ins(f'v_sub_f32 v{sc}, v{m}, v{M}')
        a.ins(f'v_mul_f32 v{sc}, s74, v{sc}')
        a.ins(f'v_exp_f32 v{sc}, v{sc}')
        a.ins(f'v_mul_f32 v{M}, s74, v{M}')
        m_resc(acc, sc)
        a.ins(f'v_mul_f32 v{l}, v{sc}, v{l}')
        a.ins(f'v_add_f32_dpp v{l}, v{l}, v{l} row_ror:8 {DPP}')
        a.ins(f'v_mov_b32 v{u}, v{l}')
        a.ins(f'v_permlane16_swap_b32 v{l}, v{u}')
        a.ins(f'v_add_f32 v{l}, v{l}, v{u}')
        a.ins(f'v_mov_b32 v{u}, v{l}')
        a.ins(f'v_permlane32_swap_b32 v{l}, v{u}')
        a.ins(f'v_add_f32 v{l}, v{l}, v{u}')
        for k in range(12):
            a.ins(f'v_permlane32_swap_b32 v{acc+k}, v{acc+k+12}')
        for k in range(12):
            a.ins(f'v_add_f32 v{acc+k}, v{acc+k}, v{acc+k+12}')
        for k in range(6):
            a.ins(f'v_permlane16_swap_b32 v{acc+k}, v{acc+k+6}')
        for k in range(6):
            a.ins(f'v_add_f32 v{acc+k}, v{acc+k}, v{acc+k+6}')
        for k in range(6):
            a.ins(f'v_add_f32_dpp v{acc+k}, v{acc+k}, v{acc+k} row_ror:8 {DPP}')
        t1, t2 = WK + 3, WK + 4
        for k in range(6):
            a.ins(f'v_add_u32 v{t1}, {k}, v7')
            a.ins(f'v_lshrrev_b32 v{t2}, 3, v{t1}')
            a.ins(f'v_and_b32 v{t1}, 7, v{t1}')
            a.ins(f'v_lshlrev_b32 v{t2}, 6, v{t2}')
            a.ins(f'v_add_u32 v{t1}, v{t1}, v{t2}')
            a.ins(f'v_lshl_add_u32 v{t1}, v{t1}, 2, v4')
            a.lds(f'ds_write_b32 v{t1}, v{acc+k}')
        z = WK + 8
        a.ins(f'v_mov_b32 v{z}, v{M}')
        a.ins(f'v_mov_b32 v{z+1}, v{l}')
        a.ins(f'v_mov_b32 v{z+2}, 0')
        a.ins(f'v_mov_b32 v{z+3}, 0')
        a.ins(f'v_and_b32 v{t1}, 0xffffff1f, v4')
        a.lds(f'ds_write_b128 v{t1}, v[{z}:{z+3}] offset:768')
        a.wait_lg_all()
        a.lds(f'ds_read_b128 v[{z}:{z+3}], v5')
        a.wait_lg_all()
        a.ins(f's_add_u32 s76, s73, {hex(c * PART_C)}')
        set_exec_lanes(49)
        a.vmem(f'buffer_store_dwordx4 v[{z}:{z+3}], v6, s[64:67], s76 offen sc1', ('P', c))
        set_exec_lanes(64)

    def run(self):
        P = self.P
        stamp(0, 78, 252)
        SCAP = int(os.environ.get('SCAP', '24'))
        def fill(n_more):
            done = 0
            while done < n_more:
                before = self.nissued
                tags = [t for t in a.vm if isinstance(t, tuple) and t[0] == 'T']
                if len(tags) + 3 > SCAP:
                    a.wait_vm(tags[2])
                self.try_issue(cap=len(a.vm) + 4)
                if self.nissued == before:
                    break
                done += self.nissued - before
        def snapshot():
            return (self.lqi, self.nissued, list(self.ring_free), self.ring_next, dict(self.ded_free), dict(self.loc), list(a.vm), [e.get('done', False) for e in self.LQ])
        def restore(sn):
            self.lqi, self.nissued = sn[0], sn[1]
            self.ring_free, self.ring_next, self.ded_free, self.loc, a.vm = list(sn[2]), sn[3], dict(sn[4]), dict(sn[5]), list(sn[6])
            for e, d in zip(self.LQ, sn[7]):
                e['done'] = d
        FLAG_LDS = 3 * 40960 + 39936 + 1016
        a.ins(f'v_mov_b32 v250, {FLAG_LDS}')
        a.ins('v_mov_b32 v251, 0')
        a.lds('ds_write_b32 v250, v251')
        startup2a(after_x=lambda: self.try_issue(cap=len(a.vm) + SCAP), st=True)
        sv = list(a.vm)
        L0 = only_wave0_begin()
        startup2b(st=True)
        a.ins(f'v_mov_b32 v250, {FLAG_LDS}')
        a.ins('v_mov_b32 v251, 1')
        a.lds('ds_write_b32 v250, v251')
        only_wave0_end(L0)
        a.vm = sv
        fill(100)
        LF = newlab('Llf'); LD = newlab('Lld')
        smov(75, SPIN_MAX)
        a.ins(f'v_mov_b32 v250, {FLAG_LDS}')
        a.label(LF)
        a.ins('ds_read_b32 v251, v250')
        a.ins('s_waitcnt lgkmcnt(0)')
        a.ins('v_cmp_ne_u32 vcc, 1, v251')
        a.ins(f's_cbranch_vccz {LD}')
        a.ins('s_sleep 1')
        a.ins('s_sub_u32 s75, s75, 1')
        a.ins('s_cmp_lg_u32 s75, 0')
        a.ins(f's_cbranch_scc1 {LF}')
        a.label(LD)
        a.fence_hazards()
        stamp(1, 78, 252)
        a.ins('v_min_u32 v248, 23, v0')
        a.ins('v_lshlrev_b32 v248, 7, v248')
        self.q_issue(P[0][1], P[0][2])
        for pi, (ty, ps, b, tiles) in enumerate(P):
            a.comment(f'---- phase {pi}: {ty} pass{ps} b{b}')
            self.cur_pi = pi
            stamp(2 + 3 * pi, 78, 252)
            self.q_take(ps, b)
            stamp(3 + 3 * pi, 78, 252)
            for k in range(24):
                a.ins(f'v_mov_b32 v{ST+k}, 0')
            a.ins(f'v_mov_b32 v{ST+24}, 0xf149f2ca')
            a.ins(f'v_mov_b32 v{ST+25}, 0')
            gs = groups_of(tiles)
            for g, grp in enumerate(gs):
                if g == len(gs) - 3 and pi + 1 < len(P):
                    self.q_issue(P[pi + 1][1], P[pi + 1][2])
                if g == len(gs) - 4 and pi == 0:
                    flags_addr(250, 2)
                    a.vmem('global_load_dword v251, v250, s[28:29]', 'fl2')
                self.group(pi, ty, grp, g == len(gs) - 1)
            if pi == 0:
                a.wait_vm('fl2')
                FO = newlab('Lfo')
                flags_check(251, 2)
                a.ins(f's_cbranch_vccz {FO}')
                sv = list(a.vm)
                wait_flags(2, 250, plain_first=False)
                a.vm = sv
                a.label(FO)
                a.fence_hazards()
            self.publish(ST, pi)
            stamp(4 + 3 * pi, 78, 252)
            self.try_issue()
        a.ins('s_waitcnt vmcnt(0)')
        a.ins('s_endpgm')

def gen_stream():
    a.label('L_stream')
    startup1()
    a.ins(f's_sub_u32 s4, s2, {NCH}')
    a.ins('s_lshl_b32 s4, s4, 2')
    a.ins('s_add_u32 s4, s4, s3')
    a.ins('s_mul_i32 s5, s4, 2521')
    a.ins('s_lshr_b32 s5, s5, 16')
    a.ins(f's_mul_i32 s6, s5, {WPH}')
    a.ins('s_sub_u32 s6, s4, s6')
    a.ins('s_mul_i32 s7, s6, 39')
    a.ins('s_min_u32 s68, s6, 10')
    a.ins('s_add_u32 s7, s7, s68')
    a.ins('s_cmp_lt_u32 s6, 10')
    a.ins('s_cselect_b32 s68, 40, 39')
    a.ins('s_cselect_b32 s69, 0, 0xff800000')
    a.ins('s_mul_i32 s68, s68, 3072')
    a.ins('s_mul_i32 s70, s5, 3145728')
    a.ins('s_mul_i32 s71, s7, 3072')
    a.ins('s_add_u32 s70, s70, s71')
    for b in range(4):
        a.ins(f's_add_u32 s71, s70, {hex(b * BATCH_STRIDE)}')
        srd_off(srd_k(b), 10, 11, 71, 's68')
        srd_off(srd_v(b), 12, 13, 71, 's68')
    a.ins('s_mul_i32 s72, s5, 384')
    a.ins(f's_add_u32 s72, s72, {hex(Q_OFF)}')
    a.ins(f's_mul_i32 s73, s4, {REC}')
    smov(74, CSCALE)
    a.ins('s_lshl_b32 s78, s4, 8')
    a.ins(f's_add_u32 s78, s78, {hex(STAMP_OFF)}')
    a.ins('v_lshrrev_b32 v1, 3, v0')
    a.ins('v_mul_u32_u24 v1, 384, v1')
    a.ins('v_and_b32 v2, 7, v0')
    a.ins('v_lshlrev_b32 v2, 4, v2')
    a.ins('v_add_u32 v1, v1, v2')
    a.ins('s_mul_i32 s71, s3, 40960')
    a.ins('v_lshlrev_b32 v6, 4, v0')
    a.ins('v_add_u32 v3, s71, v6')
    a.ins('s_add_u32 s71, s71, 39936')
    a.ins('v_add_u32 v5, s71, v6')
    a.ins('v_lshlrev_b32 v4, 1, v2')
    a.ins('v_add_u32 v4, s71, v4')
    a.ins('v_bfe_u32 v7, v0, 4, 1')
    a.ins('v_mul_u32_u24 v7, 6, v7')
    a.ins('v_bfe_u32 v254, v0, 5, 1')
    a.ins('v_mul_u32_u24 v254, 12, v254')
    a.ins('v_add_u32 v7, v7, v254')
    Stream().run()

XS = 0
RED = 5120
XRES = 25600
X1 = 35840
WL = 38912
X1A = 100352
W1 = 128

def vm_auto(text):
    if len(a.vm) >= 60:
        a.ins('s_waitcnt vmcnt(30)')
        a.vm = a.vm[-30:]
    a.vmem(text, None)

def wave_sum(t, u):
    for pat in ('quad_perm:[1,0,3,2]', 'quad_perm:[2,3,0,1]', 'row_half_mirror', 'row_mirror'):
        a.ins(f'v_add_f32_dpp v{t}, v{t}, v{t} {pat} {DPP}')
    a.ins(f'v_mov_b32 v{u}, v{t}')
    a.ins(f'v_permlane16_swap_b32 v{t}, v{u}')
    a.ins(f'v_add_f32 v{t}, v{t}, v{u}')
    a.ins(f'v_mov_b32 v{u}, v{t}')
    a.ins(f'v_permlane32_swap_b32 v{t}, v{u}')
    a.ins(f'v_add_f32 v{t}, v{t}, v{u}')

def bf16r(d, s):
    a.ins(f'v_cvt_pk_bf16_f32 v{d}, 0, v{s}')

def poll_indicator(voff, nl, sreg):
    L = newlab('Lpi'); D = newlab('Lpd')
    smov(75, SPIN_MAX)
    set_exec_lanes(nl)
    a.label(L)
    a.ins(f'buffer_load_dword v127, v{voff}, s[64:67], s{sreg} offen sc1')
    a.ins('s_waitcnt vmcnt(0)')
    if os.environ.get('POLL', 'all') == 'any':
        a.ins('v_cmp_ne_u32 vcc, -1, v127')
        a.ins(f's_cbranch_vccnz {D}')
    else:
        a.ins('v_cmp_eq_u32 vcc, -1, v127')
        a.ins(f's_cbranch_vccz {D}')
    a.ins(f's_sleep {os.environ.get("PSLEEP", "3")}')
    a.ins('s_sub_u32 s75, s75, 1')
    a.ins('s_cmp_lg_u32 s75, 0')
    a.ins(f's_cbranch_scc1 {L}')
    a.label(D)
    set_exec_lanes(64)
    a.vm = []

def gather_sel(n, emit_load, reg_of, init_mask=None):
    L = newlab('Lgs'); D = newlab('Lgsd')
    if init_mask is None:
        smov(91, (1 << n) - 1)
    else:
        init_mask()
    smov(75, SPIN_MAX)
    a.label(L)
    for i in range(n):
        K = newlab('Lgk')
        a.ins(f's_bitcmp1_b32 s91, {i}')
        a.ins(f's_cbranch_scc0 {K}')
        emit_load(i)
        a.label(K)
    a.ins('s_waitcnt vmcnt(0)')
    for i in range(n):
        K = newlab('Lgc')
        r = reg_of(i)
        a.ins(f's_bitcmp1_b32 s91, {i}')
        a.ins(f's_cbranch_scc0 {K}')
        a.ins(f'v_max3_u32 v127, v{r}, v{r+1}, v{r+2}')
        a.ins(f'v_max_u32 v127, v127, v{r+3}')
        a.ins('v_cmp_eq_u32 vcc, -1, v127')
        a.ins(f's_cbranch_vccnz {K}')
        a.ins(f's_bitset0_b32 s91, {i}')
        a.label(K)
    a.ins('s_cmp_eq_u32 s91, 0')
    a.ins(f's_cbranch_scc1 {D}')
    a.ins('s_sub_u32 s75, s75, 1')
    a.ins('s_cmp_lg_u32 s75, 0')
    a.ins(f's_cbranch_scc1 {L}')
    a.label(D)
    a.fence_hazards()

def check_regs(regs, w):
    regs = list(regs)
    a.ins(f'v_max3_u32 v{w}, v{regs[0]}, v{regs[1]}, v{regs[2]}')
    k = 3
    while k < len(regs):
        k2 = min(k + 1, len(regs) - 1)
        a.ins(f'v_max3_u32 v{w}, v{w}, v{regs[k]}, v{regs[k2]}')
        k += 2
    a.ins(f'v_cmp_eq_u32 vcc, -1, v{w}')

def gather_ar(sreg):
    poll_indicator(8, 8, sreg)
    def ld(i):
        a.ins(f's_add_u32 s76, s{sreg}, {(i // 4) * 4096}')
        off = f' offset:{(i % 4) * 1024}' if i % 4 else ''
        a.ins(f'buffer_load_dwordx4 v[{16+4*i}:{19+4*i}], v9, s[64:67], s76 offen{off} sc1')
    gather_sel(20, ld, lambda i: 16 + 4 * i)
    for grp in range(5):
        for k in range(1, 4):
            for e in range(4):
                a.ins(f'v_add_f32 v{16+4*grp+e}, v{16+4*grp+e}, v{16+4*(grp+5*k)+e}')
    for grp in range(5):
        a.lds(f'ds_write_b128 v10, v[{16+4*grp}:{19+4*grp}] offset:{grp*1024}')
    a.barrier()

def ar_sum_wave0():
    for wv in range(8):
        for k in range(5):
            r = 32 + (wv * 5 + k) * 2
            a.lds(f'ds_read_b64 v[{r}:{r+1}], v12 offset:{RED + wv*2560 + k*512}')
    a.wait_lg_all()
    for k in range(5):
        for e in range(2):
            d = 16 + 2 * k + e
            a.ins(f'v_add_f32 v{d}, v{32+2*k+e}, v{32+(5+k)*2+e}')
    for p in range(2, 8):
        for k in range(5):
            for e in range(2):
                d = 16 + 2 * k + e
                a.ins(f'v_add_f32 v{d}, v{d}, v{32+(5*p+k)*2+e}')

def residual(areg, src_off):
    for k in range(5):
        a.lds(f'ds_read_b64 v[{32+2*k}:{33+2*k}], v{areg} offset:{src_off + k*512}')
    for i in range(10):
        bf16r(16 + i, 16 + i)
    a.wait_lg_all()
    for i in range(10):
        a.ins(f'v_add_f32 v{16+i}, v{16+i}, v{32+i}')
    for i in range(10):
        bf16r(16 + i, 16 + i)

def store_x(areg, dst_off):
    for k in range(5):
        a.lds(f'ds_write_b64 v{areg}, v[{16+2*k}:{17+2*k}] offset:{dst_off + k*512}')

def layernorm_to_xs():
    t, u, mean, var = 32, 33, 34, 35
    a.ins(f'v_add_f32 v{t}, v16, v17')
    for i in range(2, 10):
        a.ins(f'v_add_f32 v{t}, v{t}, v{16+i}')
    wave_sum(t, u)
    a.ins(f'v_mul_f32 v{mean}, {hex(f32(1.0/640))}, v{t}')
    for i in range(10):
        a.ins(f'v_sub_f32 v{40+i}, v{16+i}, v{mean}')
    a.ins(f'v_mul_f32 v{t}, v40, v40')
    for i in range(1, 10):
        a.ins(f'v_fmac_f32 v{t}, v{40+i}, v{40+i}')
    wave_sum(t, u)
    a.ins(f'v_mul_f32 v{var}, {hex(f32(1.0/640))}, v{t}')
    bf16r(mean, mean)
    bf16r(var, var)
    a.ins(f'v_add_f32 v{var}, {hex(f32(1e-5))}, v{var}')
    bf16r(var, var)
    a.ins(f'v_sqrt_f32 v{var}, v{var}')
    bf16r(var, var)
    a.ins(f'v_rcp_f32 v{u}, v{var}')
    for i in range(10):
        a.ins(f'v_sub_f32 v{40+i}, v{16+i}, v{mean}')
    for i in range(10):
        bf16r(40 + i, 40 + i)
    for i in range(10):
        a.ins(f'v_mul_f32 v{50+i}, v{40+i}, v{u}')
    for i in range(10):
        a.ins(f'v_fma_f32 v{60+i}, -v{50+i}, v{var}, v{40+i}')
    for i in range(10):
        a.ins(f'v_fma_f32 v{50+i}, v{60+i}, v{u}, v{50+i}')
    for k in range(5):
        a.ins(f'v_cvt_pk_bf16_f32 v{72+k}, v{50+2*k}, v{51+2*k}')
        a.lds(f'ds_write_b32 v119, v{72+k} offset:{XS + k*256}')

def only_wave0_begin():
    L = newlab('Lw0')
    a.ins('s_cmp_lg_u32 s3, 0')
    a.ins(f's_cbranch_scc1 {L}')
    return L

def only_wave0_end(L):
    a.wait_lg_all()
    a.label(L)
    a.fence_hazards()

def gemv_rows(nrows, xaddr, wsrc, acc=56):
    for k in range(8):
        a.ins(f'v_mov_b32 v{acc+k}, 0')
    B = 4
    XB = (16, 24); WB = (64, 80)
    nb = nrows // B
    def issue(j):
        r0 = j * B
        for k in range(B // 2):
            a.lds(f'ds_read_b128 v[{XB[j%2]+4*k}:{XB[j%2]+4*k+3}], v{xaddr} offset:{(r0+2*k)*8}', ('g', j))
        for k in range(B):
            ws = wsrc(r0 + k)
            if ws[0] == 'l':
                a.lds(f'ds_read_b128 v[{WB[j%2]+4*k}:{WB[j%2]+4*k+3}], v{ws[1]} offset:{ws[2]}', ('g', j))
    issue(0)
    for j in range(nb):
        if j + 1 < nb:
            issue(j + 1)
        a.wait_lg(('g', j))
        for k in range(B):
            ws = wsrc(j * B + k)
            x = XB[j % 2] + 2 * k
            if ws[0] == 'a':
                tmp = 48 + 4 * (k % 2)
                m_ac4(tmp, ws[1])
                m_gv8(tmp, x, acc)
            elif ws[0] == 'v':
                m_gv8(ws[1], x, acc)
            else:
                m_gv8(WB[j % 2] + 4 * k, x, acc)

def write_red(addr, acc=56):
    set_exec_lanes(60)
    a.lds(f'ds_write_b128 v{addr}, v[{acc}:{acc+3}]')
    a.lds(f'ds_write_b128 v{addr}, v[{acc+4}:{acc+7}] offset:16')
    set_exec_lanes(64)
    a.barrier()

def reduce3_publish(sreg):
    L = newlab('Lr3')
    a.ins('s_cmp_eq_u32 s3, 3')
    a.ins(f's_cbranch_scc1 {L}')
    M = newlab('Lr3m')
    a.ins('s_cmp_lg_u32 s3, 2')
    a.ins(f's_cbranch_scc1 {M}')
    set_exec_lanes(32)
    a.label(M)
    for r in range(3):
        a.lds(f'ds_read_b128 v[{16+4*r}:{19+4*r}], v15 offset:{RED + r*2560}')
    a.wait_lg_all()
    for e in range(4):
        a.ins(f'v_add_f32 v{16+e}, v{16+e}, v{20+e}')
    for e in range(4):
        a.ins(f'v_add_f32 v{16+e}, v{16+e}, v{24+e}')
    a.ins(f's_add_u32 s76, s70, s{sreg}')
    a.ins('buffer_store_dwordx4 v[16:19], v15, s[64:67], s76 offen sc1')
    set_exec_lanes(64)
    a.label(L)
    a.fence_hazards()


def prep_blocks(blocks):
    TB = (16, 48); U = 80
    def issue(i):
        blocks[i][0](TB[i % 2], ('blk', i))
    issue(0)
    for i, (em, dest) in enumerate(blocks):
        if i + 1 < len(blocks):
            issue(i + 1)
        a.wait_vm(('blk', i))
        T = TB[i % 2]
        out = dest[1] if dest[0] == 'v' else U
        for d in range(4):
            for h in range(2):
                c = 2 * d + h
                for p in range(4):
                    a.ins(f'v_perm_b32 v{out+4*c+p}, v{T+4*(2*p+1)+d}, v{T+4*(2*p)+d}, s{62+h}')
        if dest[0] == 'a':
            for k in range(32):
                a.ins(f'v_accvgpr_write_b32 a{dest[1]+k}, v{U+k}')
        elif dest[0] in ('l', 'l?'):
            LS = None
            if dest[0] == 'l?':
                LS = newlab('Lpb')
                a.ins('s_cmp_ge_u32 s3, 2')
                a.ins(f's_cbranch_scc1 {LS}')
            for c in range(8):
                a.lds(f'ds_write_b128 v{dest[1]}, v[{U+4*c}:{U+4*c+3}] offset:{dest[2]+c*1024}')
            a.wait_lg_all()
            if LS:
                a.label(LS)
                a.fence_hazards()
    a.wait_lg_all()

def stage_block(dst, areg, off, tag):
    for c in range(8):
        a.lds(f'ds_read_b128 v[{dst+4*c}:{dst+4*c+3}], v{areg} offset:{off+c*1024}', tag)

def mfma_block(acc, x, kind, base, first):
    for c in range(8):
        cc = '0' if first else f'v[{acc+4*c}:{acc+4*c+3}]'
        a.ins(f'v_mfma_f32_16x16x32_bf16 v[{acc+4*c}:{acc+4*c+3}], v[{x}:{x+3}], {kind}[{base+4*c}:{base+4*c+3}], {cc}')

def extract(acc, E):
    for c in range(8):
        a.ins(f'v_mov_b32 v{E+c}, v{acc+4*c}')

def xread(dst, areg, off, tag='x'):
    a.lds(f'ds_read_b128 v[{dst}:{dst+3}], v{areg} offset:{off}', tag)

def mfma_consts():
    smov(62, 0x05040100)
    smov(63, 0x07060302)
    a.ins('v_and_b32 v3, 15, v0')
    a.ins('v_lshrrev_b32 v4, 4, v0')
    a.ins('v_lshlrev_b32 v112, 4, v4')
    a.ins(f'v_add_u32 v112, {XS}, v112')
    a.ins('s_lshl_b32 s4, s3, 6')
    a.ins('v_add_u32 v113, s4, v112')
    a.ins('s_mul_i32 s4, s3, 320')
    a.ins('v_add_u32 v114, s4, v112')

def direct_and_cb4_publish(sreg):
    pass

def publish_own(E, sreg):
    a.ins(f's_add_u32 s76, s70, s{sreg}')
    set_exec_lanes(16)
    a.ins(f'buffer_store_dwordx4 v[{E}:{E+3}], v115, s[64:67], s76 offen sc1')
    a.ins(f'buffer_store_dwordx4 v[{E+4}:{E+7}], v115, s[64:67], s76 offen offset:16 sc1')
    set_exec_lanes(64)

def publish_cb4(E, sreg):
    set_exec_lanes(16)
    a.lds(f'ds_write_b128 v116, v[{E}:{E+3}]')
    a.lds(f'ds_write_b128 v116, v[{E+4}:{E+7}] offset:16')
    set_exec_lanes(64)
    a.barrier()
    L0 = only_wave0_begin()
    for w in range(4):
        a.lds(f'ds_read_b128 v[{16+4*w}:{19+4*w}], v13 offset:{RED + w*512}')
    a.wait_lg_all()
    for w in range(1, 4):
        for e in range(4):
            a.ins(f'v_add_f32 v{16+e}, v{16+e}, v{16+4*w+e}')
    a.ins(f's_add_u32 s76, s70, s{sreg}')
    set_exec_lanes(32)
    a.ins('buffer_store_dwordx4 v[16:19], v13, s[64:67], s76 offen offset:2048 sc1')
    set_exec_lanes(64)
    only_wave0_end(L0)

def combine_records(n, first_reg, Mv, Lv, out):
    for k in range(n):
        a.ins(f'v_readlane_b32 s{40+k}, v{first_reg+4*k}, 48')
        a.ins(f'v_readlane_b32 s{48+k}, v{first_reg+4*k+1}, 48')
    a.ins(f'v_mov_b32 v{Mv}, s40')
    for k in range(1, n):
        a.ins(f'v_max_f32 v{Mv}, s{40+k}, v{Mv}')
    E = 100
    for k in range(n):
        a.ins(f'v_sub_f32 v{E+k}, s{40+k}, v{Mv}')
    for k in range(n):
        a.ins(f'v_exp_f32 v{E+k}, v{E+k}')
    a.ins(f'v_mul_f32 v{Lv}, s48, v{E}')
    for k in range(1, n):
        a.ins(f'v_fma_f32 v{Lv}, v{E+k}, s{48+k}, v{Lv}')
    for e in range(4):
        a.ins(f'v_mul_f32 v{out+e}, v{E}, v{first_reg+e}')
    for k in range(1, n):
        for e in range(4):
            a.ins(f'v_fma_f32 v{out+e}, v{E+k}, v{first_reg+4*k+e}, v{out+e}')

def chain_common_init():
    a.ins('s_lshl_b32 s4, s3, 6')
    a.ins('v_add_u32 v15, s4, v0')
    a.ins('v_lshlrev_b32 v15, 4, v15')
    for k in range(4):
        a.ins(f'v_mov_b32 v{16+k}, -1')
    L1 = newlab('Lst1')
    a.ins('s_cmp_ge_u32 s2, 12')
    a.ins(f's_cbranch_scc1 {L1}')
    a.ins('s_lshl_b32 s76, s2, 12')
    a.ins(f's_add_u32 s76, s76, {hex(Q_OFF)}')
    a.ins('buffer_store_dwordx4 v[16:19], v15, s[64:67], s76 offen sc1')
    a.ins('s_waitcnt vmcnt(0)')
    a.ins('s_barrier')
    set_flag(1)
    a.label(L1)
    a.fence_hazards()
    startup1()
    startup2a()
    L0 = only_wave0_begin()
    startup2b()
    only_wave0_end(L0)
    a.barrier()
    a.ins(f's_mul_i32 s4, s2, {ARM_PER}')
    for k in range(ARM_N):
        LS = newlab('Lsa')
        a.ins(f's_add_u32 s76, s4, {k*4096}')
        a.ins(f's_sub_u32 s5, s76, {hex(Q_OFF)}')
        a.ins('s_cmp_lt_u32 s5, 49152')
        a.ins(f's_cbranch_scc1 {LS}')
        a.ins('buffer_store_dwordx4 v[16:19], v15, s[64:67], s76 offen sc1')
        a.label(LS)
    a.ins('s_waitcnt vmcnt(0)')
    a.ins('s_barrier')
    set_flag(2)
    a.vm = []
    a.ins('s_lshl_b32 s4, s3, 6')
    a.ins('v_add_u32 v1, s4, v0')
    a.ins('v_lshlrev_b32 v15, 4, v1')
    a.ins('v_min_u32 v2, 59, v0')
    a.ins('s_mul_i32 s4, s3, 60')
    a.ins('v_add_u32 v2, s4, v2')
    a.ins('v_lshlrev_b32 v14, 4, v2')
    a.ins(f'v_add_u32 v14, {WL}, v14')
    a.ins('v_add_u32 v120, 61440, v14')
    a.ins('s_lshl_b32 s4, s3, 3')
    a.ins('v_add_u32 v8, s4, v0')
    a.ins('v_mul_u32_u24 v8, 2560, v8')
    a.ins('v_add_u32 v8, 2556, v8')
    a.ins('s_mul_i32 s4, s3, 20480')
    a.ins('v_lshlrev_b32 v13, 4, v0')
    a.ins('v_add_u32 v9, s4, v13')
    a.ins(f's_mul_i32 s4, s3, 5120')
    a.ins(f's_add_u32 s4, s4, {RED}')
    a.ins('v_add_u32 v10, s4, v13')
    a.ins('v_lshlrev_b32 v12, 3, v0')
    a.ins('s_lshl_b32 s4, s2, 2')
    a.ins('s_add_u32 s4, s4, s3')
    a.ins('s_lshl_b32 s77, s4, 9')
    a.ins(f's_add_u32 s77, s77, {hex(STAMP_OFF + 832*256)}')
    stamp(120, 77, 122)

def arm_arrive():
    a.wait_vm('arm')
    a.ins('s_barrier')
    L = only_wave0_begin()
    a.ins('v_mov_b32 v124, 0')
    a.ins('v_mov_b32 v125, 1')
    set_exec_lanes(1)
    a.vmem('global_atomic_add v124, v125, s[28:29] sc1', None)
    set_exec_lanes(64)
    a.label(L)
    a.fence_hazards()

def load_xres():
    L = only_wave0_begin()
    srd(96, 8, 9, 4 * 1280)
    a.ins('v_lshlrev_b32 v127, 2, v0')
    for b in range(4):
        smov(76, b * 1280)
        for k in range(5):
            a.ins(f'buffer_load_dword v{16+b*5+k}, v127, s[96:99], s76 offen offset:{k*256}')
    a.ins('s_waitcnt vmcnt(0)')
    for b in range(4):
        for k in range(5):
            r = 16 + b * 5 + k
            d = 40 + 2 * (b * 5 + k)
            a.ins(f'v_lshlrev_b32 v{d}, 16, v{r}')
            a.ins(f'v_and_b32 v{d+1}, 0xffff0000, v{r}')
            a.lds(f'ds_write_b64 v12, v[{d}:{d+1}] offset:{XRES + b*2560 + k*512}')
    only_wave0_end(L)


def gen_acu():
    a.label('L_acu')
    chain_common_init()
    mfma_consts()
    a.ins('s_mul_i32 s70, s2, 2560')
    a.ins('v_lshlrev_b32 v119, 2, v0')
    a.ins('s_mul_i32 s4, s3, 24576')
    a.ins(f's_add_u32 s4, s4, {WL}')
    a.ins('v_add_u32 v14, s4, v13')
    a.ins('s_and_b32 s4, s3, 1')
    a.ins('s_lshl_b32 s4, s4, 13')
    a.ins(f's_add_u32 s4, s4, {WL + 4*24576}')
    a.ins('v_add_u32 v120, s4, v13')
    a.ins('v_mul_u32_u24 v125, 10240, v4')
    a.ins('v_lshl_add_u32 v125, v3, 4, v125')
    a.ins('v_subrev_u32 v127, 6, v3')
    a.ins('v_min_u32 v127, 5, v127')
    a.ins('v_cmp_gt_u32 vcc, 6, v3')
    a.ins('v_cndmask_b32 v127, v127, v3, vcc')
    a.ins('v_mul_u32_u24 v126, 24576, v4')
    a.ins('v_lshl_add_u32 v126, v127, 4, v126')
    a.ins('s_mov_b64 s[88:89], vcc')
    a.ins('s_not_b64 s[90:91], vcc')
    a.ins('s_mul_i32 s4, s2, 245760')
    srd_off(96, 16, 17, 4, 245760)
    a.ins('s_mul_i32 s4, s2, 96')
    a.ins(f's_sub_u32 s5, {640*3072}, s4')
    srd_off(80, 20, 21, 4, 's5')
    srd_off(84, 22, 23, 4, 's5')
    a.ins('s_mul_i32 s4, s2, 61440')
    srd_off(92, 24, 25, 4, 61440)
    a.ins('s_lshl_b32 s40, s3, 8')
    a.ins('s_mul_i32 s41, s3, 40960')
    a.ins('s_add_u32 s41, s41, 1024')
    a.ins(f's_mul_i32 s42, s3, {160*3072}')
    def ld1280(srd_, sbase, const):
        def em(T, tag):
            for e in range(8):
                if e % 3 == 0:
                    a.ins(f's_add_u32 s76, s{sbase}, {const + (e // 3) * 3840}')
                off = f' offset:{(e % 3) * 1280}' if e % 3 else ''
                a.vmem(f'buffer_load_dwordx4 v[{T+4*e}:{T+4*e+3}], v125, s[{srd_}:{srd_+3}], s76 offen{off} nt', tag)
        return em
    def ldgu(i):
        def em(T, tag):
            for e in range(8):
                a.ins(f's_add_u32 s76, s42, {(32 * i + e) * 3072}')
                a.ins('s_mov_b64 exec, s[88:89]')
                a.vmem(f'buffer_load_dwordx4 v[{T+4*e}:{T+4*e+3}], v126, s[80:83], s76 offen nt', tag)
                a.ins('s_mov_b64 exec, s[90:91]')
                a.vmem(f'buffer_load_dwordx4 v[{T+4*e}:{T+4*e+3}], v126, s[84:87], s76 offen nt', tag)
            a.ins('s_mov_b64 exec, -1')
        return em
    blocks = []
    for ks in range(6):
        blocks.append((ld1280(96, 40, ks * 40960), ('a', 32 * ks)))
    blocks.append((ld1280(96, 41, 0), ('a', 192)))
    blocks.append((ld1280(96, 41, 4 * 40960), ('a', 224)))
    for i in range(4):
        blocks.append((ldgu(i), ('v', W1 + 32 * i)))
    blocks.append((ldgu(4), ('l', 14, 0)))
    blocks.append((ld1280(92, 40, 0), ('l', 14, 8192)))
    blocks.append((ld1280(92, 40, 40960), ('l', 14, 16384)))
    blocks.append((ld1280(92, 41, 0), ('l?', 120, 0)))
    prep_blocks(blocks)
    load_xres()
    a.ins('s_lshl_b32 s4, s3, 9')
    a.ins('v_lshlrev_b32 v115, 5, v3')
    a.ins('v_add_u32 v115, s4, v115')
    a.ins(f'v_add_u32 v116, {RED}, v115')
    a.ins('s_mul_i32 s4, s3, 384')
    a.ins('v_lshlrev_b32 v11, 5, v3')
    a.ins('v_add_u32 v11, s4, v11')
    a.ins(f'v_add_u32 v11, {RED}, v11')
    a.barrier()
    a.ins('v_lshlrev_b32 v117, 2, v0')
    a.ins('v_add_u32 v117, s3, v117')
    a.ins('v_min_u32 v117, 25, v117')
    a.ins(f'v_mul_u32_u24 v117, {REC}, v117')
    a.ins('v_add_u32 v117, 772, v117')
    a.ins(f's_mul_i32 s71, s2, {WPH*REC}')
    a.ins(f's_mul_i32 s72, s3, {REC}')
    a.ins('s_add_u32 s72, s72, s71')
    a.ins(f's_mul_i32 s4, s3, {REC}')
    a.ins(f's_add_u32 s4, s4, {RED}')
    a.ins('v_add_u32 v118, s4, v13')
    a.ins('v_add_u32 v117, s71, v117')
    wait_flags(2, 126)
    order = 0
    for i, (ly, b) in enumerate(CHAIN_ORDER):
        order |= (ly * 4 + b) << (4 * i)
    tab = 0
    for i, k in enumerate(CHAIN_ORDER):
        sg = CHAIN_SEGS[k]
        assert 2 <= len(sg) <= 3
        e = sg[0] | (sg[1] << 5) | ((sg[2] if len(sg) > 2 else 0) << 10) | ((1 if len(sg) > 2 else 0) << 15)
        tab |= e << (16 * i)
    for w in range(4):
        smov(56 + w, (tab >> (32 * w)) & 0xffffffff)
    a.ins('s_mov_b32 s78, 0')
    a.label('L_aloop')
    a.fence_hazards()
    if True:
        a.ins('s_lshl_b32 s4, s78, 2')
        a.ins(f's_lshr_b32 s79, {hex(order)}, s4')
        a.ins('s_and_b32 s79, s79, 15')
        a.ins(f's_mul_i32 s81, s79, {2*AR_SZ}')
        a.ins(f's_add_u32 s81, s81, {hex(AR_OFF)}')
        a.ins(f's_add_u32 s82, s81, {AR_SZ}')
        a.ins('s_and_b32 s83, s79, 3')
        a.ins('s_mul_i32 s84, s83, 1280')
        a.ins('s_mul_i32 s4, s83, 2560')
        a.ins('v_add_u32 v121, s4, v12')
        a.ins('s_lshr_b32 s85, s79, 2')
        a.ins(f's_add_u32 s4, s4, {X1A}')
        a.ins('v_add_u32 v124, s4, v12')
        LD = newlab('Ldf')
        a.ins('s_cmp_eq_u32 s85, 0')
        a.ins(f's_cbranch_scc1 {LD}')
        L0 = only_wave0_begin()
        a.ins('s_mul_i32 s90, s83, 2560')
        a.ins(f's_add_u32 s90, s90, {hex(X2_OFF)}')
        LX = newlab('Lx2'); LXD = newlab('Lx2d')
        smov(75, SPIN_MAX)
        a.label(LX)
        for k in range(5):
            a.ins(f'buffer_load_dwordx2 v[{16+2*k}:{17+2*k}], v12, s[64:67], s90 offen offset:{k*512} sc1')
        a.ins('s_waitcnt vmcnt(0)')
        check_regs(range(16, 26), 127)
        a.ins(f's_cbranch_vccz {LXD}')
        a.ins('s_sleep 2')
        a.ins('s_sub_u32 s75, s75, 1')
        a.ins('s_cmp_lg_u32 s75, 0')
        a.ins(f's_cbranch_scc1 {LX}')
        a.label(LXD)
        store_x(121, XRES)
        only_wave0_end(L0)
        a.label(LD)
        a.fence_hazards()
        a.ins('s_lshl_b32 s88, s78, 6')
        stamp(0, 77, 122, 88)
        a.ins('s_and_b32 s4, s78, 3')
        a.ins('s_lshl_b32 s4, s4, 4')
        a.ins('s_cmp_lt_u32 s78, 4')
        a.ins('s_cselect_b64 s[60:61], s[56:57], s[58:59]')
        a.ins('s_lshr_b64 s[60:61], s[60:61], s4')
        a.ins('s_and_b32 s87, s60, 0x7fff')
        a.ins('s_bfe_u32 s89, s60, 0x1000f')
        a.ins('s_add_u32 s89, s89, 2')
        a.ins('v_mov_b32 v44, 0xf149f2ca')
        for e in range(1, 4):
            a.ins(f'v_mov_b32 v{44+e}, 0')
        a.label('L_aseg')
        a.fence_hazards()
        a.ins('s_and_b32 s80, s87, 31')
        a.ins('s_lshr_b32 s87, s87, 5')
        a.ins(f's_mul_i32 s80, s80, {PART_C}')
        a.ins('s_add_u32 s86, s72, s80')
        poll_indicator(117, 7, 80)
        stamp(1, 77, 122, 88)
        a.ins('v_mov_b32 v40, 0xf149f2ca')
        for e in range(1, 4):
            a.ins(f'v_mov_b32 v{40+e}, 0')
        set_exec_lanes(49)
        def ld1(k):
            a.ins(f's_add_u32 s76, s86, {k * 4 * REC}')
            a.ins(f'buffer_load_dwordx4 v[{16+4*k}:{19+4*k}], v13, s[64:67], s76 offen sc1')
        def im():
            a.ins('s_cmp_ge_u32 s3, 2')
            a.ins('s_cselect_b32 s91, 63, 127')
        gather_sel(7, ld1, lambda k: 16 + 4 * k, im)
        set_exec_lanes(64)
        combine_records(8, 16, 48, 49, 52)
        a.ins('s_mov_b32 exec_lo, 0', dst=[], src=[])
        a.ins('s_mov_b32 exec_hi, 0x10000', dst=[], src=[])
        a.ins('v_mov_b32 v52, v48')
        a.ins('v_mov_b32 v53, v49')
        set_exec_lanes(64)
        for e in range(4):
            a.ins(f'v_mov_b32 v{44+e}, v{52+e}')
        a.ins('s_sub_u32 s89, s89, 1')
        a.ins('s_cmp_lg_u32 s89, 0')
        a.ins('s_cbranch_scc1 L_aseg')
        set_exec_lanes(49)
        a.lds('ds_write_b128 v118, v[52:55]')
        set_exec_lanes(64)
        a.barrier()
        L0 = only_wave0_begin()
        for k in range(4):
            a.lds(f'ds_read_b128 v[{16+4*k}:{19+4*k}], v13 offset:{RED + k*REC}')
        a.wait_lg_all()
        combine_records(4, 16, 48, 49, 52)
        a.ins('v_rcp_f32 v50, v49')
        for e in range(4):
            a.ins(f'v_mul_f32 v{52+e}, v{52+e}, v50')
        a.ins('v_cvt_pk_bf16_f32 v56, v52, v53')
        a.ins('v_cvt_pk_bf16_f32 v57, v54, v55')
        a.ins('s_mov_b32 exec_lo, 0', dst=[], src=[])
        a.ins('s_mov_b32 exec_hi, 0xffff0000', dst=[], src=[])
        a.ins('v_mov_b32 v56, 0')
        a.ins('v_mov_b32 v57, 0')
        set_exec_lanes(64)
        a.lds(f'ds_write_b64 v12, v[56:57] offset:{XS}')
        only_wave0_end(L0)
        a.barrier()
        stamp(2, 77, 122, 88)
        for ks in range(6):
            xread(80 + 4 * ks, 112, 64 * ks)
        xread(104, 113, 0)
        xread(108, 113, 256)
        a.wait_lg_all()
        mfma_block(48, 104, 'a', 192, True)
        mfma_block(48, 108, 'a', 224, False)
        for ks in range(6):
            mfma_block(16, 80 + 4 * ks, 'a', 32 * ks, ks == 0)
        extract(48, 100)
        extract(16, 92)
        publish_own(92, 81)
        publish_cb4(100, 81)
        stamp(3, 77, 122, 88)
        gather_ar(81)
        stamp(4, 77, 122, 88)
        L0 = only_wave0_begin()
        ar_sum_wave0()
        residual(121, XRES)
        layernorm_to_xs()
        only_wave0_end(L0)
        a.barrier()
        stamp(5, 77, 122, 88)
        stage_block(48, 14, 0, 'st')
        for i in range(5):
            xread(80 + 4 * i, 114, 64 * i)
        a.wait_lg_all()
        for i in range(4):
            mfma_block(16, 80 + 4 * i, 'v', W1 + 32 * i, i == 0)
        mfma_block(16, 96, 'v', 48, False)
        stage_block(48, 14, 8192, 'st5')
        extract(16, 100)
        set_exec_lanes(12)
        a.lds('ds_write_b128 v11, v[100:103]')
        a.lds('ds_write_b128 v11, v[104:107] offset:16')
        set_exec_lanes(64)
        a.barrier()
        L0 = only_wave0_begin()
        for r in range(4):
            a.lds(f'ds_read_b32 v{16+r}, v119 offset:{RED + r*384}')
            a.lds(f'ds_read_b32 v{36+r}, v119 offset:{RED + r*384 + 192}')
        a.wait_lg_all()
        for r in range(1, 4):
            a.ins(f'v_add_f32 v16, v16, v{16+r}')
            a.ins(f'v_add_f32 v36, v36, v{36+r}')
        bf16r(16, 16); bf16r(36, 36)
        a.ins('v_mul_f32 v17, v16, v16')
        a.ins('v_mul_f32 v17, v17, v16')
        a.ins(f'v_mov_b32 v18, {hex(f32(0.044715))}')
        a.ins('v_fma_f32 v17, v17, v18, v16')
        a.ins(f'v_mul_f32 v17, {hex(f32(2*0.7978845608028654*math.log2(math.e)))}, v17')
        a.ins('v_exp_f32 v17, v17')
        a.ins('v_add_f32 v17, 1.0, v17')
        a.ins('v_rcp_f32 v17, v17')
        a.ins('v_fma_f32 v17, v17, -2.0, 1.0')
        a.ins('v_add_f32 v17, 1.0, v17')
        a.ins('v_mul_f32 v17, v17, v16')
        a.ins('v_mul_f32 v17, 0.5, v17')
        bf16r(17, 17)
        a.ins('v_mul_f32 v17, v17, v36')
        a.ins('v_cvt_pk_bf16_f32 v18, v17, 0')
        a.ins('v_mov_b32 v19, 0')
        a.ins('s_mov_b32 exec_lo, 0', dst=[], src=[])
        a.ins('s_mov_b32 exec_hi, 0xffff0000', dst=[], src=[])
        a.ins('v_mov_b32 v18, 0')
        set_exec_lanes(64)
        a.ins('v_lshlrev_b32 v20, 1, v0')
        a.lds(f'ds_write_b16 v20, v18 offset:{XS}')
        a.lds(f'ds_write_b16 v20, v19 offset:{XS + 128}')
        only_wave0_end(L0)
        a.barrier()
        stamp(6, 77, 122, 88)
        xread(80, 112, 0)
        xread(84, 112, 64)
        xread(88, 113, 0)
        a.wait_lg_all()
        mfma_block(16, 80, 'v', 48, True)
        stage_block(48, 14, 16384, 'st5b')
        a.wait_lg_all()
        mfma_block(16, 84, 'v', 48, False)
        stage_block(48, 120, 0, 'st5c')
        extract(16, 92)
        publish_own(92, 82)
        a.wait_lg_all()
        mfma_block(16, 88, 'v', 48, True)
        extract(16, 100)
        publish_cb4(100, 82)
        stamp(7, 77, 122, 88)
        a.barrier()
    stamp(9, 77, 122, 88)
    a.ins('s_add_u32 s78, s78, 1')
    a.ins('s_cmp_lt_u32 s78, 8')
    a.ins('s_cbranch_scc1 L_aloop')
    a.ins('s_waitcnt vmcnt(0)')
    a.ins('s_endpgm')

def wait_armed_chain():
    L = newlab('Lar'); D = newlab('Lad')
    smov(75, SPIN_MAX)
    a.ins('v_mov_b32 v126, 0')
    a.label(L)
    a.ins('global_load_dword v127, v126, s[28:29] sc1')
    a.ins('s_waitcnt vmcnt(0)')
    a.vm = []
    a.ins(f'v_cmp_gt_u32 vcc, {NCH}, v127')
    a.ins(f's_cbranch_vccz {D}')
    a.ins('s_sleep 2')
    a.ins('s_sub_u32 s75, s75, 1')
    a.ins('s_cmp_lg_u32 s75, 0')
    a.ins(f's_cbranch_scc1 {L}')
    a.label(D)
    a.fence_hazards()

def q_gemv_publish():
    stage_block(48, 14, 0, 'st')
    for i in range(5):
        xread(80 + 4 * i, 114, 64 * i)
    a.wait_lg_all()
    for cb in range(3):
        for i in range(4):
            kind, base = (('a', 128 * cb + 32 * i) if cb < 2 else ('v', W1 + 32 * i))
            mfma_block(16, 80 + 4 * i, kind, base, i == 0)
        a.wait_lg_all()
        mfma_block(16, 96, 'v', 48, False)
        if cb < 2:
            stage_block(48, 14, (cb + 1) * 8192, 'st')
        extract(16, 100)
        set_exec_lanes(16)
        a.lds(f'ds_write_b128 v115, v[100:103] offset:{cb*512}')
        a.lds(f'ds_write_b128 v115, v[104:107] offset:{cb*512+16}')
        set_exec_lanes(64)
    a.barrier()
    L0 = only_wave0_begin()
    a.ins('v_lshlrev_b32 v127, 1, v13')
    for r in range(4):
        a.lds(f'ds_read_b128 v[{16+8*r}:{19+8*r}], v127 offset:{RED + r*1536}')
        a.lds(f'ds_read_b128 v[{20+8*r}:{23+8*r}], v127 offset:{RED + r*1536 + 16}')
    a.wait_lg_all()
    for r in range(1, 4):
        for e in range(8):
            a.ins(f'v_add_f32 v{16+e}, v{16+e}, v{16+8*r+e}')
    for e in range(4):
        a.ins(f'v_cvt_pk_bf16_f32 v{60+e}, v{16+2*e}, v{17+2*e}')
    a.ins('s_add_u32 s76, s70, s86')
    set_exec_lanes(48)
    a.ins('buffer_store_dwordx4 v[60:63], v13, s[64:67], s76 offen sc1')
    set_exec_lanes(64)
    only_wave0_end(L0)
    a.barrier()

def gen_qcu():
    a.label('L_qcu')
    chain_common_init()
    a.ins(f's_sub_u32 s5, s2, {NA}')
    mfma_consts()
    a.ins('s_mul_i32 s70, s5, 768')
    a.ins(f's_sub_u32 s6, {640*12288}, s70')
    srd_off(96, 14, 15, 70, 's6')
    a.ins(f'v_mul_u32_u24 v126, {8*12288}, v4')
    a.ins('v_lshl_add_u32 v126, v3, 4, v126')
    a.ins('s_mul_i32 s4, s3, 24576')
    a.ins(f's_add_u32 s4, s4, {WL}')
    a.ins('v_add_u32 v14, s4, v13')
    a.ins(f's_mul_i32 s42, s3, {160*12288}')
    def ldq(i, cb):
        def em(T, tag):
            for e in range(8):
                a.ins(f's_add_u32 s76, s42, {(32 * i + e) * 12288 + cb * 256}')
                a.vmem(f'buffer_load_dwordx4 v[{T+4*e}:{T+4*e+3}], v126, s[96:99], s76 offen nt', tag)
        return em
    blocks = []
    for cb in range(3):
        for i in range(4):
            blocks.append((ldq(i, cb), ('a', 128 * cb + 32 * i) if cb < 2 else ('v', W1 + 32 * i)))
        blocks.append((ldq(4, cb), ('l', 14, cb * 8192)))
    prep_blocks(blocks)
    load_xres()
    a.ins('s_mul_i32 s4, s3, 1536')
    a.ins('v_lshlrev_b32 v115, 5, v3')
    a.ins('v_add_u32 v115, s4, v115')
    a.ins(f'v_add_u32 v115, {RED}, v115')
    a.barrier()
    wait_flags(2, 126)
    order = 0
    for i, (ly, b) in enumerate(CHAIN_ORDER):
        order |= (ly * 4 + b) << (4 * i)
    srd(92, 26, 27, 4 * 1280)
    a.ins('v_lshlrev_b32 v119, 2, v0')
    a.ins('s_mov_b32 s78, 0')
    a.label('L_qloop')
    a.fence_hazards()
    a.ins('s_lshl_b32 s4, s78, 2')
    a.ins(f's_lshr_b32 s79, {hex(order)}, s4')
    a.ins('s_and_b32 s79, s79, 15')
    a.ins('s_and_b32 s83, s79, 3')
    a.ins('s_lshr_b32 s85, s79, 2')
    a.ins('s_mul_i32 s84, s83, 1280')
    a.ins('s_mul_i32 s4, s83, 2560')
    a.ins('v_add_u32 v121, s4, v12')
    a.ins(f's_mul_i32 s86, s83, {32*384}')
    a.ins(f's_add_u32 s86, s86, {hex(Q_OFF + 4*32*384)}')
    a.ins(f's_mul_i32 s81, s79, {2*AR_SZ}')
    a.ins(f's_add_u32 s81, s81, {hex(AR_OFF)}')
    a.ins(f's_add_u32 s82, s81, {AR_SZ}')
    a.ins('s_lshl_b32 s88, s78, 6')
    stamp(0, 77, 122, 88)
    a.ins('s_cmp_eq_u32 s85, 0')
    a.ins('s_cbranch_scc1 L_qgo')
    a.ins(f's_cmp_lg_u32 s2, {NA}')
    a.ins('s_cbranch_scc1 L_qnext')
    a.label('L_qgo')
    a.fence_hazards()
    gather_ar(81)
    L0 = only_wave0_begin()
    ar_sum_wave0()
    residual(121, XRES)
    store_x(12, X1)
    only_wave0_end(L0)
    a.barrier()
    stamp(1, 77, 122, 88)
    gather_ar(82)
    stamp(2, 77, 122, 88)
    L0 = only_wave0_begin()
    ar_sum_wave0()
    residual(12, X1)
    store_x(121, XRES)
    LO = newlab('Lout'); LX = newlab('Lx2p')
    a.ins('s_cmp_eq_u32 s85, 0')
    a.ins(f's_cbranch_scc1 {LX}')
    for k in range(5):
        a.ins(f'v_cvt_pk_bf16_f32 v{32+k}, v{16+2*k}, v{17+2*k}')
        a.ins(f'buffer_store_dword v{32+k}, v119, s[92:95], s84 offen offset:{k*256}')
    a.ins(f's_branch {LO}')
    a.label(LX)
    a.ins(f's_cmp_lg_u32 s2, {NA}')
    a.ins(f's_cbranch_scc1 {LO}')
    a.ins('s_mul_i32 s90, s83, 2560')
    a.ins(f's_add_u32 s90, s90, {hex(X2_OFF)}')
    for k in range(5):
        a.ins(f'buffer_store_dwordx2 v[{16+2*k}:{17+2*k}], v12, s[64:67], s90 offen offset:{k*512} sc1')
    a.label(LO)
    a.fence_hazards()
    layernorm_to_xs()
    only_wave0_end(L0)
    a.barrier()
    stamp(3, 77, 122, 88)
    a.ins('s_cmp_lg_u32 s85, 0')
    a.ins('s_cbranch_scc1 L_qnext')
    q_gemv_publish()
    a.label('L_qnext')
    a.fence_hazards()
    stamp(4, 77, 122, 88)
    a.ins('s_add_u32 s78, s78, 1')
    a.ins('s_cmp_lt_u32 s78, 8')
    a.ins('s_cbranch_scc1 L_qloop')
    a.ins('s_waitcnt vmcnt(0)')
    a.ins('s_endpgm')

def main(outpath):
    hdr = open('cdna_kernels/' + NAME + '.s.ref').read().split('\n')
    top = [l for l in hdr if l.startswith(';') and '@launch' not in l]
    out = []
    out += top
    out.append('; @launch grid=(256,1,1) block=(256,1,1) lds=163840')
    out.append('.amdgcn_target "amdgcn-amd-amdhsa--gfx950"')
    out.append('.text')
    out.append(MACROS)
    out.append(f'.globl {KNAME}')
    out.append('.p2align 8')
    out.append(f'.type {KNAME},@function')
    out.append(f'{KNAME}:')
    a.ins('s_cmp_ge_u32 s2, 256')
    a.ins('s_cbranch_scc1 L_exit')
    a.ins('s_load_dwordx16 s[8:23], s[0:1], 0')
    a.ins('s_load_dwordx8 s[24:31], s[0:1], 64')
    a.ins('v_lshrrev_b32 v1, 6, v0')
    a.ins('v_and_b32 v0, 63, v0')
    a.ins('v_readfirstlane_b32 s3, v1')
    a.ins('s_waitcnt lgkmcnt(0)')
    srd(64, 30, 31, WS_SIZE)
    a.ins(f's_cmp_ge_u32 s2, {NCH}')
    a.ins('s_cbranch_scc0 L_chain')
    a.ins('s_branch L_stream')
    a.label('L_exit')
    a.ins('s_endpgm')
    a.label('L_chain')
    a.ins(f's_cmp_ge_u32 s2, {NA}')
    a.ins('s_cbranch_scc1 L_qcu')
    a.fence_hazards()
    gen_acu()
    a.hist = []; a.vm = []; a.lg = []
    a.fence_hazards()
    gen_qcu()
    a.hist = []; a.vm = []; a.lg = []
    a.fence_hazards()
    gen_stream()
    out.append(a.text())
    out.append('.section .rodata,"a"')
    out.append('.p2align 6')
    out.append(f'.amdhsa_kernel {KNAME}')
    out.append('  .amdhsa_next_free_vgpr 512')
    out.append('  .amdhsa_next_free_sgpr 102')
    out.append('  .amdhsa_accum_offset 256')
    out.append('  .amdhsa_group_segment_fixed_size 0')
    out.append('  .amdhsa_kernarg_size 96')
    out.append('  .amdhsa_user_sgpr_count 2')
    out.append('  .amdhsa_user_sgpr_kernarg_segment_ptr 1')
    out.append('  .amdhsa_system_sgpr_workgroup_id_x 1')
    out.append('.end_amdhsa_kernel')
    open(outpath, 'w').write('\n'.join(out) + '\n')
    print('instrs', a.ninstr, 'bytes', sum(len(x) + 1 for x in out))

if __name__ == '__main__':
    main(sys.argv[1] if len(sys.argv) > 1 else 'cdna_kernels/' + NAME + '.s')
```

```python
import struct, sys, math, os
from asmlib import *

NAME = 'interleave_layers__mha_block_cached__glu_gated_geglu__decode'
KNAME = NAME + '_kernel'

NA, NQ = 32, 16
NCH = NA + NQ
NST = 256 - NCH
WPH = NST * 4 // 32
REC = 784
PART_OFF = 0
PART_C = 32 * WPH * REC
NR = 21
NL = int(os.environ.get('NL', '4'))
LMODE = os.environ.get('LMODE', 'def')
NN = 40 - NR - NL
NA_HALF = (NN + 1) // 2
NT_ALL = 40
def _d_order():
    L = list(range(NR, NR + NL)); R = list(range(NR))
    if os.environ.get('DORD', '1') == '0' or NL <= 2:
        return L + R
    return L[:2] + R[:4] + L[2:] + R[4:]
NPOL = os.environ.get('NPOL', 'nt')
R_T = list(range(NR + NL)); D_T = _d_order(); N_T = list(range(NR + NL, NT_ALL)); NA_T = N_T[:NA_HALF]; NB_T = N_T[NA_HALF:]
SCHED = [('A', 0, 0, R_T), ('N', 0, 0, N_T), ('N', 0, 1, N_T), ('N', 0, 2, NA_T),
         ('D', 1, 0, D_T), ('A', 0, 1, R_T), ('N', 0, 2, NB_T), ('N', 1, 0, N_T),
         ('D', 1, 1, D_T), ('A', 0, 2, R_T), ('N', 0, 3, N_T), ('N', 1, 1, NA_T),
         ('D', 1, 2, D_T), ('A', 0, 3, R_T), ('N', 1, 1, NB_T), ('N', 1, 2, N_T),
         ('D', 1, 3, D_T), ('N', 1, 3, N_T)]
NSEG = len(SCHED)
_last = {}
for _i, (_t, _p, _b, _tl) in enumerate(SCHED):
    _last[(_p, _b)] = _i
CHAIN_ORDER = sorted(_last, key=lambda k: _last[k])
CHAIN_SEGS = {k: [i for i, (t, p, b, tl) in enumerate(SCHED) if (p, b) == k] for k in CHAIN_ORDER}
AR_OFF = ((NSEG * PART_C + 4095) // 4096) * 4096
AR_SZ = 32 * 2560
Q_OFF = AR_OFF + 16 * AR_SZ
X2_OFF = Q_OFF + 8 * 32 * 384
ARM_N = (X2_OFF + 4 * 2560 + 48 * 4096 - 1) // (48 * 4096)
COMM = ARM_N * 48 * 4096
assert Q_OFF % 4096 == 0
ARM_PER = COMM // NCH
BATCH_STRIDE = 32 * 8192 * 384
SPIN_MAX = 400000
import os
DIAG = int(os.environ.get('DIAG', '0'))
STAMP_OFF = COMM
WS_SIZE = COMM + (1 << 20 if DIAG else 0)

def f32(x):
    return struct.unpack('<I', struct.pack('<f', x))[0]

CSCALE = f32((192 ** -0.5) * math.log2(math.e))

a = Asm()
_lab = [0]
def newlab(p='L'):
    _lab[0] += 1
    return f'{p}{_lab[0]}'

MACROS = r'''
.macro QK2 ta, tb, q, s
  v_dot2_f32_bf16 v[\s+0], v[\ta+0], v[\q+0], 0
  v_dot2_f32_bf16 v[\s+1], v[\ta+4], v[\q+4], 0
  v_dot2_f32_bf16 v[\s+2], v[\ta+8], v[\q+8], 0
  v_dot2_f32_bf16 v[\s+3], v[\tb+0], v[\q+0], 0
  v_dot2_f32_bf16 v[\s+4], v[\tb+4], v[\q+4], 0
  v_dot2_f32_bf16 v[\s+5], v[\tb+8], v[\q+8], 0
  .irp k, 1, 2, 3
  v_dot2c_f32_bf16 v[\s+0], v[\ta+\k], v[\q+\k]
  v_dot2c_f32_bf16 v[\s+1], v[\ta+4+\k], v[\q+4+\k]
  v_dot2c_f32_bf16 v[\s+2], v[\ta+8+\k], v[\q+8+\k]
  v_dot2c_f32_bf16 v[\s+3], v[\tb+\k], v[\q+\k]
  v_dot2c_f32_bf16 v[\s+4], v[\tb+4+\k], v[\q+4+\k]
  v_dot2c_f32_bf16 v[\s+5], v[\tb+8+\k], v[\q+8+\k]
  .endr
.endm
.macro PV t, p, acc
  .irp k, 0, 1, 2, 3, 4, 5, 6, 7, 8, 9, 10, 11
  v_dot2c_f32_bf16 v[\acc+2*\k], v[\t+\k], v[\p]
  v_dot2c_f32_bf16 v[\acc+2*\k+1], v[\t+\k], v[\p+1]
  .endr
.endm
.macro ACR t, s
  .irp k, 0, 1, 2, 3, 4, 5, 6, 7, 8, 9, 10, 11
  v_accvgpr_read_b32 v[\t+\k], a[\s+\k]
  .endr
.endm
.macro LDT k, d, srd
  buffer_load_dwordx4 \k[\d:\d+3], v1, s[\srd:\srd+3], s76 offen nt
  buffer_load_dwordx4 \k[\d+4:\d+7], v1, s[\srd:\srd+3], s76 offen offset:128 nt
  buffer_load_dwordx4 \k[\d+8:\d+11], v1, s[\srd:\srd+3], s76 offen offset:256 nt
.endm
.macro LDC k, d, srd
  buffer_load_dwordx4 \k[\d:\d+3], v1, s[\srd:\srd+3], s76 offen
  buffer_load_dwordx4 \k[\d+4:\d+7], v1, s[\srd:\srd+3], s76 offen offset:128
  buffer_load_dwordx4 \k[\d+8:\d+11], v1, s[\srd:\srd+3], s76 offen offset:256
.endm
.macro RESC acc, al
  .irp k, 0, 1, 2, 3, 4, 5, 6, 7, 8, 9, 10, 11, 12, 13, 14, 15, 16, 17, 18, 19, 20, 21, 22, 23
  v_mul_f32 v[\acc+\k], v[\al], v[\acc+\k]
  .endr
.endm
.macro GV8 w, x, acc
  .irp k, 0, 1, 2, 3
  v_dot2c_f32_bf16 v[\acc+2*\k], v[\w+\k], v[\x]
  v_dot2c_f32_bf16 v[\acc+2*\k+1], v[\w+\k], v[\x+1]
  .endr
.endm
.macro AC4 t, s
  .irp k, 0, 1, 2, 3
  v_accvgpr_read_b32 v[\t+\k], a[\s+\k]
  .endr
.endm
'''

def m_qk2(ta, tb, q, s):
    a.mbegin(f'QK2 {ta}, {tb}, {q}, {s}')
    for i, (t, o) in enumerate([(ta, 0), (ta, 4), (ta, 8), (tb, 0), (tb, 4), (tb, 8)]):
        a.ins(f'v_dot2_f32_bf16 v{s+i}, v{t+o}, v{q+o}, 0')
    for k in (1, 2, 3):
        for i, (t, o) in enumerate([(ta, 0), (ta, 4), (ta, 8), (tb, 0), (tb, 4), (tb, 8)]):
            a.ins(f'v_dot2c_f32_bf16 v{s+i}, v{t+o+k}, v{q+o+k}')
    a.mend()

def m_pv(t, p, acc):
    a.mbegin(f'PV {t}, {p}, {acc}')
    for k in range(12):
        a.ins(f'v_dot2c_f32_bf16 v{acc+2*k}, v{t+k}, v{p}')
        a.ins(f'v_dot2c_f32_bf16 v{acc+2*k+1}, v{t+k}, v{p+1}')
    a.mend()

def m_acr(t, s):
    a.mbegin(f'ACR {t}, {s}')
    for k in range(12):
        a.ins(f'v_accvgpr_read_b32 v{t+k}, a{s+k}')
    a.mend()

def m_ldt(kind, d, srd, tag, pol='nt'):
    mac = {'nt': 'LDT', '': 'LDC'}.get(pol)
    if mac:
        a.mbegin(f'{mac} {kind}, {d}, {srd}')
    for i in range(3):
        off = f' offset:{i*128}' if i else ''
        a.vmem(f'buffer_load_dwordx4 {kind}[{d+4*i}:{d+4*i+3}], v1, s[{srd}:{srd+3}], s76 offen{off} {pol}', tag)
    if mac:
        a.mend()

def m_resc(acc, al):
    a.mbegin(f'RESC {acc}, {al}')
    for k in range(24):
        a.ins(f'v_mul_f32 v{acc+k}, v{al}, v{acc+k}')
    a.mend()

def m_gv8(w, x, acc):
    a.mbegin(f'GV8 {w}, {x}, {acc}')
    for k in range(4):
        a.ins(f'v_dot2c_f32_bf16 v{acc+2*k}, v{w+k}, v{x}')
        a.ins(f'v_dot2c_f32_bf16 v{acc+2*k+1}, v{w+k}, v{x+1}')
    a.mend()

def m_ac4(t, s):
    a.mbegin(f'AC4 {t}, {s}')
    for k in range(4):
        a.ins(f'v_accvgpr_read_b32 v{t+k}, a{s+k}')
    a.mend()

DPP = 'row_mask:0xf bank_mask:0xf'

def smov(s, val):
    val &= 0xffffffff
    a.ins(f's_mov_b32 s{s}, {val if val <= 64 else hex(val)}')

def srd(d, lo, hi, nrec):
    a.ins(f's_mov_b32 s{d}, s{lo}')
    a.ins(f's_and_b32 s{d+1}, s{hi}, 0xffff')
    if isinstance(nrec, int):
        smov(d + 2, nrec)
    else:
        a.ins(f's_mov_b32 s{d+2}, {nrec}')
    a.ins(f's_mov_b32 s{d+3}, 0x20000')

def srd_off(d, lo, hi, offs, nrec):
    a.ins(f's_add_u32 s{d}, s{lo}, s{offs}')
    a.ins(f's_addc_u32 s{d+1}, s{hi}, 0')
    a.ins(f's_and_b32 s{d+1}, s{d+1}, 0xffff')
    if isinstance(nrec, int):
        smov(d + 2, nrec)
    else:
        a.ins(f's_mov_b32 s{d+2}, {nrec}')
    a.ins(f's_mov_b32 s{d+3}, 0x20000')

def set_exec_lanes(n):
    if n >= 64:
        a.ins('s_mov_b64 exec, -1')
    elif n <= 32:
        a.ins(f's_mov_b32 exec_lo, {hex((1 << n) - 1)}', dst=[], src=[])
        a.ins('s_mov_b32 exec_hi, 0', dst=[], src=[])
    else:
        a.ins('s_mov_b32 exec_lo, -1', dst=[], src=[])
        a.ins(f's_mov_b32 exec_hi, {hex((1 << (n - 32)) - 1)}', dst=[], src=[])

def stamp(idx, base_s, vt, dyn=None):
    if not DIAG:
        return
    a.ins('s_memrealtime s[100:101]')
    a.ins('s_waitcnt lgkmcnt(0)')
    a.lg = []
    a.ins(f'v_mov_b32 v{vt}, s100')
    a.ins(f'v_mov_b32 v{vt+1}, 0')
    if dyn is None:
        a.ins(f's_add_u32 s101, s{base_s}, {idx*4}')
    else:
        a.ins(f's_add_u32 s101, s{base_s}, s{dyn}')
        a.ins(f's_add_u32 s101, s101, {idx*4}')
    a.vmem(f'buffer_store_dword v{vt}, v{vt+1}, s[64:67], s101 offen', 'stamp')

def flags_addr(va, stage):
    if stage == 1:
        a.ins(f'v_min_u32 v{va}, 11, v0')
        a.ins(f'v_lshlrev_b32 v{va}, 2, v{va}')
    else:
        a.ins(f'v_min_u32 v{va}, 23, v0')
        a.ins(f'v_lshlrev_b32 v{va}, 2, v{va}')
        a.ins(f'v_add_u32 v{va}, 128, v{va}')

def flags_check(vreg, stage):
    a.ins(f'v_cmp_ne_u32 vcc, {1 if stage == 1 else "0x10001"}, v{vreg}')

def wait_flags(stage, va=254, plain_first=True):
    L = newlab('Lar'); D = newlab('Lad')
    smov(75, SPIN_MAX)
    flags_addr(va, stage)
    if plain_first:
        a.ins(f'global_load_dword v{va+1}, v{va}, s[28:29]')
        a.ins('s_waitcnt vmcnt(0)')
        flags_check(va + 1, stage)
        a.ins(f's_cbranch_vccz {D}')
    a.label(L)
    a.ins(f'global_load_dword v{va+1}, v{va}, s[28:29] sc1')
    a.ins('s_waitcnt vmcnt(0)')
    a.vm = []
    flags_check(va + 1, stage)
    a.ins(f's_cbranch_vccz {D}')
    a.ins('s_sleep 8')
    a.ins('s_sub_u32 s75, s75, 1')
    a.ins('s_cmp_lg_u32 s75, 0')
    a.ins(f's_cbranch_scc1 {L}')
    a.label(D)
    a.fence_hazards()

def set_flag(stage):
    L = only_wave0_begin()
    if stage == 1:
        a.ins('s_lshl_b32 s4, s2, 2')
    else:
        a.ins('s_lshl_b32 s4, s2, 1')
        a.ins('s_add_u32 s4, s4, 128')
    a.ins('v_mov_b32 v150, s4')
    a.ins('v_mov_b32 v151, 1')
    set_exec_lanes(1)
    a.ins(f'global_store_{"dword" if stage == 1 else "short"} v150, v151, s[28:29] sc1')
    set_exec_lanes(64)
    a.label(L)
    a.fence_hazards()

SU_W = 56
SU_ACC = 96
SU_X = 226
SU_RED = 20480

def startup1():
    srd(96, 8, 9, 4 * 1280)
    a.ins('v_lshlrev_b32 v254, 2, v0')
    a.ins('s_mul_i32 s76, s3, 1280')
    for k in range(5):
        a.vmem(f'buffer_load_dword v{SU_X+k}, v254, s[96:99], s76 offen offset:{k*256}', 'sux')
    a.ins('s_mul_i32 s4, s2, 48')
    a.ins(f's_sub_u32 s5, {640*12288}, s4')
    srd_off(92, 14, 15, 4, 's5')
    a.ins('v_and_b32 v255, 15, v0')
    a.ins(f'v_mul_u32_u24 v255, {10*12288}, v255')
    a.ins('v_lshrrev_b32 v128, 4, v0')
    a.ins('v_min_u32 v128, 2, v128')
    a.ins('v_lshl_add_u32 v255, v128, 4, v255')
    a.ins(f's_mul_i32 s4, s3, {160*12288}')
    for i in range(10):
        a.ins(f's_add_u32 s76, s4, {i*12288}')
        a.vmem(f'buffer_load_dwordx4 v[{SU_W+4*i}:{SU_W+4*i+3}], v255, s[92:95], s76 offen', 'suw')

def startup2a(topup=None, st=False, after_x=None):
    X = SU_X
    a.wait_vm('sux')
    if after_x:
        after_x()
    if st: stamp(56, 78, 252)
    xs = X + 5
    for k in range(5):
        a.ins(f'v_lshlrev_b32 v{xs+2*k}, 16, v{X+k}')
        a.ins(f'v_and_b32 v{xs+2*k+1}, 0xffff0000, v{X+k}')
    A = SU_ACC
    t, u, mean, var = A, A + 1, A + 2, A + 3
    d0, q0, e0 = A + 4, A + 14, X + 15
    a.ins(f'v_add_f32 v{t}, v{xs}, v{xs+1}')
    for i in range(2, 10):
        a.ins(f'v_add_f32 v{t}, v{t}, v{xs+i}')
    wave_sum(t, u)
    a.ins(f'v_mul_f32 v{mean}, {hex(f32(1.0/640))}, v{t}')
    for i in range(10):
        a.ins(f'v_sub_f32 v{d0+i}, v{xs+i}, v{mean}')
    a.ins(f'v_mul_f32 v{t}, v{d0}, v{d0}')
    for i in range(1, 10):
        a.ins(f'v_fmac_f32 v{t}, v{d0+i}, v{d0+i}')
    wave_sum(t, u)
    a.ins(f'v_mul_f32 v{var}, {hex(f32(1.0/640))}, v{t}')
    bf16r(mean, mean)
    bf16r(var, var)
    a.ins(f'v_add_f32 v{var}, {hex(f32(1e-5))}, v{var}')
    bf16r(var, var)
    a.ins(f'v_sqrt_f32 v{var}, v{var}')
    bf16r(var, var)
    a.ins(f'v_rcp_f32 v{u}, v{var}')
    for i in range(10):
        a.ins(f'v_sub_f32 v{d0+i}, v{xs+i}, v{mean}')
    for i in range(10):
        bf16r(d0 + i, d0 + i)
    for i in range(10):
        a.ins(f'v_mul_f32 v{q0+i}, v{d0+i}, v{u}')
    for i in range(10):
        a.ins(f'v_fma_f32 v{e0+i}, -v{q0+i}, v{var}, v{d0+i}')
    for i in range(10):
        a.ins(f'v_fma_f32 v{q0+i}, v{e0+i}, v{u}, v{q0+i}')
    a.ins('s_mul_i32 s4, s3, 5120')
    a.ins('v_lshlrev_b32 v254, 4, v0')
    a.ins('v_add_u32 v254, s4, v254')
    r = A + 24
    for k in range(5):
        a.ins(f'v_cvt_pk_bf16_f32 v{r}, v{q0+2*k}, 0')
        a.ins(f'v_cvt_pk_bf16_f32 v{r+1}, 0, v{q0+2*k}')
        a.ins(f'v_cvt_pk_bf16_f32 v{r+2}, v{q0+2*k+1}, 0')
        a.ins(f'v_cvt_pk_bf16_f32 v{r+3}, 0, v{q0+2*k+1}')
        a.lds(f'ds_write_b128 v254, v[{r}:{r+3}] offset:{k*1024}')
        a.wait_lg_all()
    a.barrier()
    if st: stamp(57, 78, 252)
    a.ins('v_and_b32 v254, 15, v0')
    a.ins('v_mul_u32_u24 v254, 80, v254')
    a.ins('s_mul_i32 s4, s3, 1280')
    a.ins('v_add_u32 v254, s4, v254')
    for k in range(32):
        a.ins(f'v_mov_b32 v{SU_ACC+k}, 0')
    a.wait_vm('suw')
    if st: stamp(58, 78, 252)
    for b in range(4):
        for k in range(5):
            a.lds(f'ds_read_b128 v[{X+4*k}:{X+4*k+3}], v254 offset:{b*5120 + k*16}')
        a.wait_lg_all()
        for i in range(10):
            m_gv8(SU_W + 4 * i, X + 2 * i, SU_ACC + 8 * b)
    for pat in ('quad_perm:[1,0,3,2]', 'quad_perm:[2,3,0,1]', 'row_half_mirror', 'row_mirror'):
        for k in range(32):
            a.ins(f'v_add_f32_dpp v{SU_ACC+k}, v{SU_ACC+k}, v{SU_ACC+k} {pat} {DPP}')
    a.ins('v_lshrrev_b32 v254, 4, v0')
    a.ins('v_lshlrev_b32 v254, 7, v254')
    a.ins('s_mul_i32 s4, s3, 384')
    a.ins(f's_add_u32 s4, s4, {SU_RED}')
    a.ins('v_add_u32 v254, s4, v254')
    a.ins('s_mov_b32 exec_lo, 0x10001', dst=[], src=[])
    a.ins('s_mov_b32 exec_hi, 1', dst=[], src=[])
    for k in range(8):
        a.lds(f'ds_write_b128 v254, v[{SU_ACC+4*k}:{SU_ACC+4*k+3}] offset:{k*16}')
    set_exec_lanes(64)
    if topup:
        topup()
    if st: stamp(59, 78, 252)
    a.barrier()
    if st: stamp(60, 78, 252)

def startup2b(st=False):
    a.ins('v_mul_u32_u24 v254, 171, v0')
    a.ins('v_lshrrev_b32 v254, 9, v254')
    a.ins('v_mul_u32_u24 v255, 3, v254')
    a.ins('v_sub_u32 v255, v0, v255')
    a.ins('v_lshlrev_b32 v128, 7, v255')
    a.ins('v_lshl_add_u32 v128, v254, 5, v128')
    a.ins('v_and_b32 v128, 0x1ff, v128')
    for wv in range(4):
        a.lds(f'ds_read_b128 v[{SU_W+8*wv}:{SU_W+8*wv+3}], v128 offset:{SU_RED + wv*384}')
        a.lds(f'ds_read_b128 v[{SU_W+8*wv+4}:{SU_W+8*wv+7}], v128 offset:{SU_RED + wv*384 + 16}')
    a.wait_lg_all()
    for wv in range(1, 4):
        for e in range(8):
            a.ins(f'v_add_f32 v{SU_W+e}, v{SU_W+e}, v{SU_W+8*wv+e}')
    for e in range(4):
        a.ins(f'v_cvt_pk_bf16_f32 v{SU_ACC+e}, v{SU_W+2*e}, v{SU_W+2*e+1}')
    a.ins('v_mul_u32_u24 v254, 12288, v254')
    a.ins('v_lshl_add_u32 v254, v255, 4, v254')
    if st: stamp(61, 78, 250)
    wait_flags(1, 252)
    if st: stamp(62, 78, 250)
    a.ins('s_mul_i32 s76, s2, 48')
    a.ins(f's_add_u32 s76, s76, {hex(Q_OFF)}')
    set_exec_lanes(12)
    a.vmem(f'buffer_store_dwordx4 v[{SU_ACC}:{SU_ACC+3}], v254, s[64:67], s76 offen sc1', 'q1pub')
    set_exec_lanes(64)

RING = [8, 20, 32, 44]
T0, T1 = 56, 68
Q, QS = 80, 92
ST = 104
VSLOT = 130
NVS = 8
WK = 226

def srd_k(b): return 32 + 8 * b
def srd_v(b): return 36 + 8 * b

def r_storage(kind, t):
    if t >= NR:
        return ('c',)
    if kind == 'K':
        return ('a', 12 * t)
    if t < NVS:
        return ('v', VSLOT + 12 * t)
    return ('l', t - NVS)

def groups_of(tiles):
    return [tiles[i:i + 2] for i in range(0, len(tiles), 2)]

class Stream:
    def __init__(self):
        self.P = SCHED
        self.LQ = []
        for pi, (ty, ps, b, tiles) in enumerate(self.P):
            for grp in groups_of(tiles):
                for kind in ('K', 'V'):
                    for t in grp:
                        pol = 'nt'
                        if ty == 'D':
                            if r_storage(kind, t)[0] != 'c':
                                continue
                            dest = ('r', None)
                        elif ty == 'A':
                            stg = r_storage(kind, t)
                            dest = stg if stg[0] in 'av' else ('r', None)
                            if stg[0] == 'c' and LMODE == 'def':
                                pol = ''
                        else:
                            dest = ('r', None)
                            if ps == 0:
                                pol = NPOL
                        self.LQ.append({'pi': pi, 'kind': kind, 't': t, 'b': b, 'dest': dest, 'pol': pol})
        self.lqi = 0
        self.nissued = 0
        self.ring_free = [True] * 4
        self.ring_next = 0
        self.ded_free = {}
        self.d_done = set()
        self.cur_pi = 0
        self.loc = {}
        self.last_A = max(i for i, p in enumerate(self.P) if p[0] == 'A')
        self.all_ded = [r_storage(k, t) for t in R_T for k in 'KV' if r_storage(k, t)[0] in 'av']

    def ring_alloc(self):
        s = self.ring_next
        if not self.ring_free[s]:
            return None
        self.ring_free[s] = False
        self.ring_next = (s + 1) % 4
        return s

    def _issue_one(self, e):
        if e['dest'][0] == 'r':
            s = self.ring_alloc()
            if s is not None:
                kind, base = 'v', RING[s]
                self.loc[(e['pi'], e['kind'], e['t'])] = ('r', s)
            else:
                key = None
                if self.cur_pi > self.last_A and e['pi'] == len(self.P) - 1:
                    for k in self.all_ded:
                        if self.ded_free.get(k, True):
                            key = k
                            break
                if key is None:
                    return False
                self.ded_free[key] = False
                kind, base = key
                self.loc[(e['pi'], e['kind'], e['t'])] = ('x', key)
        else:
            key = e['dest']
            if not self.ded_free.get(key, True):
                return False
            self.ded_free[key] = False
            kind, base = key
            self.loc[(e['pi'], e['kind'], e['t'])] = key
        smov(76, e['t'] * 3072)
        sd = srd_k(e['b']) if e['kind'] == 'K' else srd_v(e['b'])
        m_ldt(kind, base, sd, ('T', e['pi'], e['kind'], e['t']), e['pol'])
        if LMODE == 'touch' and self.P[e['pi']][0] == 'A' and r_storage(e['kind'], e['t'])[0] == 'c':
            a.vmem(f'buffer_load_dword v249, v248, s[{sd}:{sd+3}], s76 offen sc1', 'touch')
        e['done'] = True
        self.nissued += 1
        return True

    def try_issue(self, cap=None, limit=None):
        if cap is None:
            cap = int(os.environ.get('CAP', '54'))
        while True:
            if len(a.vm) + 4 > cap:
                return
            if limit is not None and self.nissued >= limit:
                return
            cand = []
            seen = set()
            for i in range(self.lqi, len(self.LQ)):
                e = self.LQ[i]
                if e.get('done'):
                    continue
                c = 'r' if e['dest'][0] == 'r' else 'd'
                if c not in seen:
                    seen.add(c)
                    cand.append(e)
                if len(seen) == 2:
                    break
            ok = False
            for e in cand:
                if self._issue_one(e):
                    ok = True
                    break
            while self.lqi < len(self.LQ) and self.LQ[self.lqi].get('done'):
                self.lqi += 1
            if not ok:
                return

    def q_issue(self, ps, b):
        a.ins(f's_add_u32 s76, s72, {hex((ps * 4 + b) * 32 * 384)}')
        for i in range(3):
            off = f' offset:{i*128}' if i else ''
            a.vmem(f'buffer_load_dwordx4 v[{QS+4*i}:{QS+4*i+3}], v2, s[64:67], s76 offen{off} sc1', ('Q', ps, b))

    def q_check(self):
        w = WK
        a.ins(f'v_max3_u32 v{w}, v{QS}, v{QS+1}, v{QS+2}')
        for k in range(3, 12, 2):
            k2 = min(k + 1, 11)
            a.ins(f'v_max3_u32 v{w}, v{w}, v{QS+k}, v{QS+k2}')
        a.ins(f'v_cmp_eq_u32 vcc, -1, v{w}')

    def q_take(self, ps, b):
        a.wait_vm(('Q', ps, b))
        OK = newlab('Lqo'); RT = newlab('Lqr')
        self.q_check()
        a.ins(f's_cbranch_vccz {OK}')
        smov(75, SPIN_MAX)
        a.label(RT)
        a.ins('s_sleep 2')
        a.ins(f's_add_u32 s77, s72, {hex((ps * 4 + b) * 32 * 384)}')
        for i in range(3):
            off = f' offset:{i*128}' if i else ''
            a.ins(f'buffer_load_dwordx4 v[{QS+4*i}:{QS+4*i+3}], v2, s[64:67], s77 offen{off} sc1')
        a.ins('s_waitcnt vmcnt(0)')
        self.q_check()
        a.ins(f's_cbranch_vccz {OK}')
        a.ins('s_sub_u32 s75, s75, 1')
        a.ins('s_cmp_lg_u32 s75, 0')
        a.ins(f's_cbranch_scc1 {RT}')
        a.label(OK)
        for k in range(12):
            a.ins(f'v_mov_b32 v{Q+k}, v{QS+k}')

    def get_tile(self, pi, ty, kind, t, tmp):
        if ty == 'D' and r_storage(kind, t)[0] != 'c':
            stg = r_storage(kind, t)
            if stg[0] == 'a':
                m_acr(tmp, stg[1])
                self.ded_free[stg] = True
                return tmp, None
            if stg[0] == 'v':
                return stg[1], ('ded', stg)
            a.wait_lg(('L', pi, t))
            return tmp, None
        a.wait_vm(('T', pi, kind, t))
        loc = self.loc[(pi, kind, t)]
        if loc[0] == 'x':
            key = loc[1]
            if key[0] == 'a':
                m_acr(tmp, key[1])
                self.ded_free[key] = True
                return tmp, None
            return key[1], ('ded', key)
        if loc[0] == 'a':
            m_acr(tmp, loc[1])
            return tmp, None
        if loc[0] == 'v':
            return loc[1], None
        return RING[loc[1]], ('ring', loc[1])

    def touch(self, pi, ty, kind, t):
        if ty != 'A' or r_storage(kind, t)[0] != 'c':
            return
        b = self.P[pi][2]
        sd = srd_k(b) if kind == 'K' else srd_v(b)
        smov(76, t * 3072)
        a.vmem(f'buffer_load_dword v249, v248, s[{sd}:{sd+3}], s76 offen sc1', 'touch')

    def release(self, rel):
        if rel is None:
            return
        if rel[0] == 'ring':
            self.ring_free[rel[1]] = True
        else:
            self.ded_free[rel[1]] = True

    def lds_prefetch(self, pi, t, tmp):
        slot = t - NVS
        for i in range(3):
            a.lds(f'ds_read_b128 v[{tmp+4*i}:{tmp+4*i+3}], v3 offset:{slot*3072+i*1024}', ('L', pi, t))

    def group(self, pi, ty, grp, last_group):
        st = ST
        acc, m, l = st, st + 24, st + 25
        s = WK
        sa, sb = WK, WK + 3
        mn, cm, al = WK + 6, WK + 7, WK + 8
        pa, pb = WK + 9, WK + 10
        PA, PB = WK + 12, WK + 14
        two = len(grp) == 2
        ta, ra = self.get_tile(pi, ty, 'K', grp[0], T0)
        if two:
            tb, rb = self.get_tile(pi, ty, 'K', grp[1], T1)
            m_qk2(ta, tb, Q, s)
            self.release(ra); self.release(rb)
        else:
            for i, o in enumerate((0, 4, 8)):
                a.ins(f'v_dot2_f32_bf16 v{s+i}, v{ta+o}, v{Q+o}, 0')
            for k in (1, 2, 3):
                for i, o in enumerate((0, 4, 8)):
                    a.ins(f'v_dot2c_f32_bf16 v{s+i}, v{ta+o+k}, v{Q+o+k}')
            self.release(ra)
        if ty == 'D':
            for t, tmp in zip(grp, (T0, T1)):
                if r_storage('V', t)[0] == 'l':
                    self.lds_prefetch(pi, t, tmp)
        self.try_issue()
        a.ins(f'v_add_f32 v{sa}, v{s}, v{s+1}')
        a.ins(f'v_add_f32 v{sa}, v{sa}, v{s+2}')
        if two:
            a.ins(f'v_add_f32 v{sb}, v{s+3}, v{s+4}')
            a.ins(f'v_add_f32 v{sb}, v{sb}, v{s+5}')
        for pat in ('quad_perm:[1,0,3,2]', 'quad_perm:[2,3,0,1]', 'row_half_mirror'):
            a.ins(f'v_add_f32_dpp v{sa}, v{sa}, v{sa} {pat} {DPP}')
            if two:
                a.ins(f'v_add_f32_dpp v{sb}, v{sb}, v{sb} {pat} {DPP}')
        if grp[-1] == NT_ALL - 1:
            x = sb if two else sa
            a.ins(f'v_add_f32 v{x}, s69, v{x}')
        if two:
            a.ins(f'v_max3_f32 v{mn}, v{m}, v{sa}, v{sb}')
        else:
            a.ins(f'v_max_f32 v{mn}, v{m}, v{sa}')
        a.ins(f'v_cmp_gt_f32 vcc, v{mn}, v{m}')
        SK = newlab('Lsk')
        a.ins(f's_cbranch_vccz {SK}')
        a.ins(f'v_sub_f32 v{al}, v{m}, v{mn}')
        a.ins(f'v_mul_f32 v{al}, s74, v{al}')
        a.ins(f'v_exp_f32 v{al}, v{al}')
        a.ins(f'v_mov_b32 v{m}, v{mn}')
        m_resc(acc, al)
        a.ins(f'v_mul_f32 v{l}, v{al}, v{l}')
        a.label(SK)
        a.ins(f'v_mul_f32 v{cm}, s74, v{m}')
        a.ins(f'v_fma_f32 v{pa}, v{sa}, s74, -v{cm}')
        if two:
            a.ins(f'v_fma_f32 v{pb}, v{sb}, s74, -v{cm}')
        a.ins(f'v_exp_f32 v{pa}, v{pa}')
        if two:
            a.ins(f'v_exp_f32 v{pb}, v{pb}')
        a.ins(f'v_cvt_pk_bf16_f32 v{PA}, v{pa}, 0')
        a.ins(f'v_cvt_pk_bf16_f32 v{PA+1}, 0, v{pa}')
        if two:
            a.ins(f'v_cvt_pk_bf16_f32 v{PB}, v{pb}, 0')
            a.ins(f'v_cvt_pk_bf16_f32 v{PB+1}, 0, v{pb}')
        a.ins(f'v_add_f32 v{l}, v{l}, v{PA+1}')
        if two:
            a.ins(f'v_add_f32 v{l}, v{l}, v{PB+1}')
        for (t, P, tmp) in list(zip(grp, (PA, PB), (T0, T1))):
            tv, rv = self.get_tile(pi, ty, 'V', t, tmp)
            m_pv(tv, P, acc)
            if ty == 'A' and r_storage('V', t)[0] == 'l':
                slot = t - NVS
                for i in range(3):
                    a.lds(f'ds_write_b128 v3, v[{tv+4*i}:{tv+4*i+3}] offset:{slot*3072+i*1024}', ('W', pi, t))
            self.release(rv)
            self.try_issue()

    def publish(self, st, c):
        acc, m, l = st, st + 24, st + 25
        M, u, sc = WK, WK + 1, WK + 2
        a.ins(f'v_max_f32_dpp v{M}, v{m}, v{m} row_ror:8 {DPP}')
        a.ins(f'v_mov_b32 v{u}, v{M}')
        a.ins(f'v_permlane16_swap_b32 v{M}, v{u}')
        a.ins(f'v_max_f32 v{M}, v{M}, v{u}')
        a.ins(f'v_mov_b32 v{u}, v{M}')
        a.ins(f'v_permlane32_swap_b32 v{M}, v{u}')
        a.ins(f'v_max_f32 v{M}, v{M}, v{u}')
        a.ins(f'v_sub_f32 v{sc}, v{m}, v{M}')
        a.ins(f'v_mul_f32 v{sc}, s74, v{sc}')
        a.ins(f'v_exp_f32 v{sc}, v{sc}')
        a.ins(f'v_mul_f32 v{M}, s74, v{M}')
        m_resc(acc, sc)
        a.ins(f'v_mul_f32 v{l}, v{sc}, v{l}')
        a.ins(f'v_add_f32_dpp v{l}, v{l}, v{l} row_ror:8 {DPP}')
        a.ins(f'v_mov_b32 v{u}, v{l}')
        a.ins(f'v_permlane16_swap_b32 v{l}, v{u}')
        a.ins(f'v_add_f32 v{l}, v{l}, v{u}')
        a.ins(f'v_mov_b32 v{u}, v{l}')
        a.ins(f'v_permlane32_swap_b32 v{l}, v{u}')
        a.ins(f'v_add_f32 v{l}, v{l}, v{u}')
        for k in range(12):
            a.ins(f'v_permlane32_swap_b32 v{acc+k}, v{acc+k+12}')
        for k in range(12):
            a.ins(f'v_add_f32 v{acc+k}, v{acc+k}, v{acc+k+12}')
        for k in range(6):
            a.ins(f'v_permlane16_swap_b32 v{acc+k}, v{acc+k+6}')
        for k in range(6):
            a.ins(f'v_add_f32 v{acc+k}, v{acc+k}, v{acc+k+6}')
        for k in range(6):
            a.ins(f'v_add_f32_dpp v{acc+k}, v{acc+k}, v{acc+k} row_ror:8 {DPP}')
        t1, t2 = WK + 3, WK + 4
        for k in range(6):
            a.ins(f'v_add_u32 v{t1}, {k}, v7')
            a.ins(f'v_lshrrev_b32 v{t2}, 3, v{t1}')
            a.ins(f'v_and_b32 v{t1}, 7, v{t1}')
            a.ins(f'v_lshlrev_b32 v{t2}, 6, v{t2}')
            a.ins(f'v_add_u32 v{t1}, v{t1}, v{t2}')
            a.ins(f'v_lshl_add_u32 v{t1}, v{t1}, 2, v4')
            a.lds(f'ds_write_b32 v{t1}, v{acc+k}')
        z = WK + 8
        a.ins(f'v_mov_b32 v{z}, v{M}')
        a.ins(f'v_mov_b32 v{z+1}, v{l}')
        a.ins(f'v_mov_b32 v{z+2}, 0')
        a.ins(f'v_mov_b32 v{z+3}, 0')
        a.ins(f'v_and_b32 v{t1}, 0xffffff1f, v4')
        a.lds(f'ds_write_b128 v{t1}, v[{z}:{z+3}] offset:768')
        a.wait_lg_all()
        a.lds(f'ds_read_b128 v[{z}:{z+3}], v5')
        a.wait_lg_all()
        a.ins(f's_add_u32 s76, s73, {hex(c * PART_C)}')
        set_exec_lanes(49)
        a.vmem(f'buffer_store_dwordx4 v[{z}:{z+3}], v6, s[64:67], s76 offen sc1', ('P', c))
        set_exec_lanes(64)

    def run(self):
        P = self.P
        stamp(0, 78, 252)
        SCAP = int(os.environ.get('SCAP', '24'))
        def fill(n_more):
            done = 0
            while done < n_more:
                before = self.nissued
                tags = [t for t in a.vm if isinstance(t, tuple) and t[0] == 'T']
                if len(tags) + 3 > SCAP:
                    a.wait_vm(tags[2])
                self.try_issue(cap=len(a.vm) + 4)
                if self.nissued == before:
                    break
                done += self.nissued - before
        def snapshot():
            return (self.lqi, self.nissued, list(self.ring_free), self.ring_next, dict(self.ded_free), dict(self.loc), list(a.vm), [e.get('done', False) for e in self.LQ])
        def restore(sn):
            self.lqi, self.nissued = sn[0], sn[1]
            self.ring_free, self.ring_next, self.ded_free, self.loc, a.vm = list(sn[2]), sn[3], dict(sn[4]), dict(sn[5]), list(sn[6])
            for e, d in zip(self.LQ, sn[7]):
                e['done'] = d
        FLAG_LDS = 3 * 40960 + 39936 + 1016
        a.ins(f'v_mov_b32 v250, {FLAG_LDS}')
        a.ins('v_mov_b32 v251, 0')
        a.lds('ds_write_b32 v250, v251')
        startup2a(after_x=lambda: self.try_issue(cap=len(a.vm) + SCAP), st=True)
        sv = list(a.vm)
        L0 = only_wave0_begin()
        startup2b(st=True)
        a.ins(f'v_mov_b32 v250, {FLAG_LDS}')
        a.ins('v_mov_b32 v251, 1')
        a.lds('ds_write_b32 v250, v251')
        only_wave0_end(L0)
        a.vm = sv
        fill(100)
        LF = newlab('Llf'); LD = newlab('Lld')
        smov(75, SPIN_MAX)
        a.ins(f'v_mov_b32 v250, {FLAG_LDS}')
        a.label(LF)
        a.ins('ds_read_b32 v251, v250')
        a.ins('s_waitcnt lgkmcnt(0)')
        a.ins('v_cmp_ne_u32 vcc, 1, v251')
        a.ins(f's_cbranch_vccz {LD}')
        a.ins('s_sleep 1')
        a.ins('s_sub_u32 s75, s75, 1')
        a.ins('s_cmp_lg_u32 s75, 0')
        a.ins(f's_cbranch_scc1 {LF}')
        a.label(LD)
        a.fence_hazards()
        stamp(1, 78, 252)
        a.ins('v_min_u32 v248, 23, v0')
        a.ins('v_lshlrev_b32 v248, 7, v248')
        self.q_issue(P[0][1], P[0][2])
        for pi, (ty, ps, b, tiles) in enumerate(P):
            a.comment(f'---- phase {pi}: {ty} pass{ps} b{b}')
            self.cur_pi = pi
            stamp(2 + 3 * pi, 78, 252)
            self.q_take(ps, b)
            stamp(3 + 3 * pi, 78, 252)
            for k in range(24):
                a.ins(f'v_mov_b32 v{ST+k}, 0')
            a.ins(f'v_mov_b32 v{ST+24}, 0xf149f2ca')
            a.ins(f'v_mov_b32 v{ST+25}, 0')
            gs = groups_of(tiles)
            for g, grp in enumerate(gs):
                if g == len(gs) - 3 and pi + 1 < len(P):
                    self.q_issue(P[pi + 1][1], P[pi + 1][2])
                if g == len(gs) - 4 and pi == 0:
                    flags_addr(250, 2)
                    a.vmem('global_load_dword v251, v250, s[28:29]', 'fl2')
                self.group(pi, ty, grp, g == len(gs) - 1)
            if pi == 0:
                a.wait_vm('fl2')
                FO = newlab('Lfo')
                flags_check(251, 2)
                a.ins(f's_cbranch_vccz {FO}')
                sv = list(a.vm)
                wait_flags(2, 250, plain_first=False)
                a.vm = sv
                a.label(FO)
                a.fence_hazards()
            self.publish(ST, pi)
            stamp(4 + 3 * pi, 78, 252)
            self.try_issue()
        a.ins('s_waitcnt vmcnt(0)')
        a.ins('s_endpgm')

def gen_stream():
    a.label('L_stream')
    startup1()
    a.ins(f's_sub_u32 s4, s2, {NCH}')
    a.ins('s_lshl_b32 s4, s4, 2')
    a.ins('s_add_u32 s4, s4, s3')
    a.ins('s_mul_i32 s5, s4, 2521')
    a.ins('s_lshr_b32 s5, s5, 16')
    a.ins(f's_mul_i32 s6, s5, {WPH}')
    a.ins('s_sub_u32 s6, s4, s6')
    a.ins('s_mul_i32 s7, s6, 39')
    a.ins('s_min_u32 s68, s6, 10')
    a.ins('s_add_u32 s7, s7, s68')
    a.ins('s_cmp_lt_u32 s6, 10')
    a.ins('s_cselect_b32 s68, 40, 39')
    a.ins('s_cselect_b32 s69, 0, 0xff800000')
    a.ins('s_mul_i32 s68, s68, 3072')
    a.ins('s_mul_i32 s70, s5, 3145728')
    a.ins('s_mul_i32 s71, s7, 3072')
    a.ins('s_add_u32 s70, s70, s71')
    for b in range(4):
        a.ins(f's_add_u32 s71, s70, {hex(b * BATCH_STRIDE)}')
        srd_off(srd_k(b), 10, 11, 71, 's68')
        srd_off(srd_v(b), 12, 13, 71, 's68')
    a.ins('s_mul_i32 s72, s5, 384')
    a.ins(f's_add_u32 s72, s72, {hex(Q_OFF)}')
    a.ins(f's_mul_i32 s73, s4, {REC}')
    smov(74, CSCALE)
    a.ins('s_lshl_b32 s78, s4, 8')
    a.ins(f's_add_u32 s78, s78, {hex(STAMP_OFF)}')
    a.ins('v_lshrrev_b32 v1, 3, v0')
    a.ins('v_mul_u32_u24 v1, 384, v1')
    a.ins('v_and_b32 v2, 7, v0')
    a.ins('v_lshlrev_b32 v2, 4, v2')
    a.ins('v_add_u32 v1, v1, v2')
    a.ins('s_mul_i32 s71, s3, 40960')
    a.ins('v_lshlrev_b32 v6, 4, v0')
    a.ins('v_add_u32 v3, s71, v6')
    a.ins('s_add_u32 s71, s71, 39936')
    a.ins('v_add_u32 v5, s71, v6')
    a.ins('v_lshlrev_b32 v4, 1, v2')
    a.ins('v_add_u32 v4, s71, v4')
    a.ins('v_bfe_u32 v7, v0, 4, 1')
    a.ins('v_mul_u32_u24 v7, 6, v7')
    a.ins('v_bfe_u32 v254, v0, 5, 1')
    a.ins('v_mul_u32_u24 v254, 12, v254')
    a.ins('v_add_u32 v7, v7, v254')
    Stream().run()

XS = 0
RED = 5120
XRES = 25600
X1 = 35840
WL = 38912
X1A = 100352
W1 = 128

def vm_auto(text):
    if len(a.vm) >= 60:
        a.ins('s_waitcnt vmcnt(30)')
        a.vm = a.vm[-30:]
    a.vmem(text, None)

def wave_sum(t, u):
    for pat in ('quad_perm:[1,0,3,2]', 'quad_perm:[2,3,0,1]', 'row_half_mirror', 'row_mirror'):
        a.ins(f'v_add_f32_dpp v{t}, v{t}, v{t} {pat} {DPP}')
    a.ins(f'v_mov_b32 v{u}, v{t}')
    a.ins(f'v_permlane16_swap_b32 v{t}, v{u}')
    a.ins(f'v_add_f32 v{t}, v{t}, v{u}')
    a.ins(f'v_mov_b32 v{u}, v{t}')
    a.ins(f'v_permlane32_swap_b32 v{t}, v{u}')
    a.ins(f'v_add_f32 v{t}, v{t}, v{u}')

def bf16r(d, s):
    a.ins(f'v_cvt_pk_bf16_f32 v{d}, 0, v{s}')

def poll_indicator(voff, nl, sreg):
    L = newlab('Lpi'); D = newlab('Lpd')
    smov(75, SPIN_MAX)
    set_exec_lanes(nl)
    a.label(L)
    a.ins(f'buffer_load_dword v127, v{voff}, s[64:67], s{sreg} offen sc1')
    a.ins('s_waitcnt vmcnt(0)')
    if os.environ.get('POLL', 'any') == 'any':
        a.ins('v_cmp_ne_u32 vcc, -1, v127')
        a.ins(f's_cbranch_vccnz {D}')
    else:
        a.ins('v_cmp_eq_u32 vcc, -1, v127')
        a.ins(f's_cbranch_vccz {D}')
    a.ins(f's_sleep {os.environ.get("PSLEEP", "3")}')
    a.ins('s_sub_u32 s75, s75, 1')
    a.ins('s_cmp_lg_u32 s75, 0')
    a.ins(f's_cbranch_scc1 {L}')
    a.label(D)
    set_exec_lanes(64)
    a.vm = []

def gather_sel(n, emit_load, reg_of, init_mask=None):
    L = newlab('Lgs'); D = newlab('Lgsd')
    if init_mask is None:
        smov(91, (1 << n) - 1)
    else:
        init_mask()
    smov(75, SPIN_MAX)
    a.label(L)
    for i in range(n):
        K = newlab('Lgk')
        a.ins(f's_bitcmp1_b32 s91, {i}')
        a.ins(f's_cbranch_scc0 {K}')
        emit_load(i)
        a.label(K)
    a.ins('s_waitcnt vmcnt(0)')
    for i in range(n):
        K = newlab('Lgc')
        r = reg_of(i)
        a.ins(f's_bitcmp1_b32 s91, {i}')
        a.ins(f's_cbranch_scc0 {K}')
        a.ins(f'v_max3_u32 v127, v{r}, v{r+1}, v{r+2}')
        a.ins(f'v_max_u32 v127, v127, v{r+3}')
        a.ins('v_cmp_eq_u32 vcc, -1, v127')
        a.ins(f's_cbranch_vccnz {K}')
        a.ins(f's_bitset0_b32 s91, {i}')
        a.label(K)
    a.ins('s_cmp_eq_u32 s91, 0')
    a.ins(f's_cbranch_scc1 {D}')
    a.ins('s_sub_u32 s75, s75, 1')
    a.ins('s_cmp_lg_u32 s75, 0')
    a.ins(f's_cbranch_scc1 {L}')
    a.label(D)
    a.fence_hazards()

def check_regs(regs, w):
    regs = list(regs)
    a.ins(f'v_max3_u32 v{w}, v{regs[0]}, v{regs[1]}, v{regs[2]}')
    k = 3
    while k < len(regs):
        k2 = min(k + 1, len(regs) - 1)
        a.ins(f'v_max3_u32 v{w}, v{w}, v{regs[k]}, v{regs[k2]}')
        k += 2
    a.ins(f'v_cmp_eq_u32 vcc, -1, v{w}')

def gather_ar(sreg):
    poll_indicator(8, 8, sreg)
    def ld(i):
        a.ins(f's_add_u32 s76, s{sreg}, {(i // 4) * 4096}')
        off = f' offset:{(i % 4) * 1024}' if i % 4 else ''
        a.ins(f'buffer_load_dwordx4 v[{16+4*i}:{19+4*i}], v9, s[64:67], s76 offen{off} sc1')
    gather_sel(20, ld, lambda i: 16 + 4 * i)
    for grp in range(5):
        for k in range(1, 4):
            for e in range(4):
                a.ins(f'v_add_f32 v{16+4*grp+e}, v{16+4*grp+e}, v{16+4*(grp+5*k)+e}')
    for grp in range(5):
        a.lds(f'ds_write_b128 v10, v[{16+4*grp}:{19+4*grp}] offset:{grp*1024}')
    a.barrier()

def ar_sum_wave0():
    for wv in range(8):
        for k in range(5):
            r = 32 + (wv * 5 + k) * 2
            a.lds(f'ds_read_b64 v[{r}:{r+1}], v12 offset:{RED + wv*2560 + k*512}')
    a.wait_lg_all()
    for k in range(5):
        for e in range(2):
            d = 16 + 2 * k + e
            a.ins(f'v_add_f32 v{d}, v{32+2*k+e}, v{32+(5+k)*2+e}')
    for p in range(2, 8):
        for k in range(5):
            for e in range(2):
                d = 16 + 2 * k + e
                a.ins(f'v_add_f32 v{d}, v{d}, v{32+(5*p+k)*2+e}')

def residual(areg, src_off):
    for k in range(5):
        a.lds(f'ds_read_b64 v[{32+2*k}:{33+2*k}], v{areg} offset:{src_off + k*512}')
    for i in range(10):
        bf16r(16 + i, 16 + i)
    a.wait_lg_all()
    for i in range(10):
        a.ins(f'v_add_f32 v{16+i}, v{16+i}, v{32+i}')
    for i in range(10):
        bf16r(16 + i, 16 + i)

def store_x(areg, dst_off):
    for k in range(5):
        a.lds(f'ds_write_b64 v{areg}, v[{16+2*k}:{17+2*k}] offset:{dst_off + k*512}')

def layernorm_to_xs():
    t, u, mean, var = 32, 33, 34, 35
    a.ins(f'v_add_f32 v{t}, v16, v17')
    for i in range(2, 10):
        a.ins(f'v_add_f32 v{t}, v{t}, v{16+i}')
    wave_sum(t, u)
    a.ins(f'v_mul_f32 v{mean}, {hex(f32(1.0/640))}, v{t}')
    for i in range(10):
        a.ins(f'v_sub_f32 v{40+i}, v{16+i}, v{mean}')
    a.ins(f'v_mul_f32 v{t}, v40, v40')
    for i in range(1, 10):
        a.ins(f'v_fmac_f32 v{t}, v{40+i}, v{40+i}')
    wave_sum(t, u)
    a.ins(f'v_mul_f32 v{var}, {hex(f32(1.0/640))}, v{t}')
    bf16r(mean, mean)
    bf16r(var, var)
    a.ins(f'v_add_f32 v{var}, {hex(f32(1e-5))}, v{var}')
    bf16r(var, var)
    a.ins(f'v_sqrt_f32 v{var}, v{var}')
    bf16r(var, var)
    a.ins(f'v_rcp_f32 v{u}, v{var}')
    for i in range(10):
        a.ins(f'v_sub_f32 v{40+i}, v{16+i}, v{mean}')
    for i in range(10):
        bf16r(40 + i, 40 + i)
    for i in range(10):
        a.ins(f'v_mul_f32 v{50+i}, v{40+i}, v{u}')
    for i in range(10):
        a.ins(f'v_fma_f32 v{60+i}, -v{50+i}, v{var}, v{40+i}')
    for i in range(10):
        a.ins(f'v_fma_f32 v{50+i}, v{60+i}, v{u}, v{50+i}')
    for k in range(5):
        a.ins(f'v_cvt_pk_bf16_f32 v{72+k}, v{50+2*k}, v{51+2*k}')
        a.lds(f'ds_write_b32 v119, v{72+k} offset:{XS + k*256}')

def only_wave0_begin():
    L = newlab('Lw0')
    a.ins('s_cmp_lg_u32 s3, 0')
    a.ins(f's_cbranch_scc1 {L}')
    return L

def only_wave0_end(L):
    a.wait_lg_all()
    a.label(L)
    a.fence_hazards()

def gemv_rows(nrows, xaddr, wsrc, acc=56):
    for k in range(8):
        a.ins(f'v_mov_b32 v{acc+k}, 0')
    B = 4
    XB = (16, 24); WB = (64, 80)
    nb = nrows // B
    def issue(j):
        r0 = j * B
        for k in range(B // 2):
            a.lds(f'ds_read_b128 v[{XB[j%2]+4*k}:{XB[j%2]+4*k+3}], v{xaddr} offset:{(r0+2*k)*8}', ('g', j))
        for k in range(B):
            ws = wsrc(r0 + k)
            if ws[0] == 'l':
                a.lds(f'ds_read_b128 v[{WB[j%2]+4*k}:{WB[j%2]+4*k+3}], v{ws[1]} offset:{ws[2]}', ('g', j))
    issue(0)
    for j in range(nb):
        if j + 1 < nb:
            issue(j + 1)
        a.wait_lg(('g', j))
        for k in range(B):
            ws = wsrc(j * B + k)
            x = XB[j % 2] + 2 * k
            if ws[0] == 'a':
                tmp = 48 + 4 * (k % 2)
                m_ac4(tmp, ws[1])
                m_gv8(tmp, x, acc)
            elif ws[0] == 'v':
                m_gv8(ws[1], x, acc)
            else:
                m_gv8(WB[j % 2] + 4 * k, x, acc)

def write_red(addr, acc=56):
    set_exec_lanes(60)
    a.lds(f'ds_write_b128 v{addr}, v[{acc}:{acc+3}]')
    a.lds(f'ds_write_b128 v{addr}, v[{acc+4}:{acc+7}] offset:16')
    set_exec_lanes(64)
    a.barrier()

def reduce3_publish(sreg):
    L = newlab('Lr3')
    a.ins('s_cmp_eq_u32 s3, 3')
    a.ins(f's_cbranch_scc1 {L}')
    M = newlab('Lr3m')
    a.ins('s_cmp_lg_u32 s3, 2')
    a.ins(f's_cbranch_scc1 {M}')
    set_exec_lanes(32)
    a.label(M)
    for r in range(3):
        a.lds(f'ds_read_b128 v[{16+4*r}:{19+4*r}], v15 offset:{RED + r*2560}')
    a.wait_lg_all()
    for e in range(4):
        a.ins(f'v_add_f32 v{16+e}, v{16+e}, v{20+e}')
    for e in range(4):
        a.ins(f'v_add_f32 v{16+e}, v{16+e}, v{24+e}')
    a.ins(f's_add_u32 s76, s70, s{sreg}')
    a.ins('buffer_store_dwordx4 v[16:19], v15, s[64:67], s76 offen sc1')
    set_exec_lanes(64)
    a.label(L)
    a.fence_hazards()


def prep_blocks(blocks):
    TB = (16, 48); U = 80
    def issue(i):
        blocks[i][0](TB[i % 2], ('blk', i))
    issue(0)
    for i, (em, dest) in enumerate(blocks):
        if i + 1 < len(blocks):
            issue(i + 1)
        a.wait_vm(('blk', i))
        T = TB[i % 2]
        out = dest[1] if dest[0] == 'v' else U
        for d in range(4):
            for h in range(2):
                c = 2 * d + h
                for p in range(4):
                    a.ins(f'v_perm_b32 v{out+4*c+p}, v{T+4*(2*p+1)+d}, v{T+4*(2*p)+d}, s{62+h}')
        if dest[0] == 'a':
            for k in range(32):
                a.ins(f'v_accvgpr_write_b32 a{dest[1]+k}, v{U+k}')
        elif dest[0] in ('l', 'l?'):
            LS = None
            if dest[0] == 'l?':
                LS = newlab('Lpb')
                a.ins('s_cmp_ge_u32 s3, 2')
                a.ins(f's_cbranch_scc1 {LS}')
            for c in range(8):
                a.lds(f'ds_write_b128 v{dest[1]}, v[{U+4*c}:{U+4*c+3}] offset:{dest[2]+c*1024}')
            a.wait_lg_all()
            if LS:
                a.label(LS)
                a.fence_hazards()
    a.wait_lg_all()

def stage_block(dst, areg, off, tag):
    for c in range(8):
        a.lds(f'ds_read_b128 v[{dst+4*c}:{dst+4*c+3}], v{areg} offset:{off+c*1024}', tag)

def mfma_block(acc, x, kind, base, first):
    for c in range(8):
        cc = '0' if first else f'v[{acc+4*c}:{acc+4*c+3}]'
        a.ins(f'v_mfma_f32_16x16x32_bf16 v[{acc+4*c}:{acc+4*c+3}], v[{x}:{x+3}], {kind}[{base+4*c}:{base+4*c+3}], {cc}')

def extract(acc, E):
    for c in range(8):
        a.ins(f'v_mov_b32 v{E+c}, v{acc+4*c}')

def xread(dst, areg, off, tag='x'):
    a.lds(f'ds_read_b128 v[{dst}:{dst+3}], v{areg} offset:{off}', tag)

def mfma_consts():
    smov(62, 0x05040100)
    smov(63, 0x07060302)
    a.ins('v_and_b32 v3, 15, v0')
    a.ins('v_lshrrev_b32 v4, 4, v0')
    a.ins('v_lshlrev_b32 v112, 4, v4')
    a.ins(f'v_add_u32 v112, {XS}, v112')
    a.ins('s_lshl_b32 s4, s3, 6')
    a.ins('v_add_u32 v113, s4, v112')
    a.ins('s_mul_i32 s4, s3, 320')
    a.ins('v_add_u32 v114, s4, v112')

def direct_and_cb4_publish(sreg):
    pass

def publish_own(E, sreg):
    a.ins(f's_add_u32 s76, s70, s{sreg}')
    set_exec_lanes(16)
    a.ins(f'buffer_store_dwordx4 v[{E}:{E+3}], v115, s[64:67], s76 offen sc1')
    a.ins(f'buffer_store_dwordx4 v[{E+4}:{E+7}], v115, s[64:67], s76 offen offset:16 sc1')
    set_exec_lanes(64)

def publish_cb4(E, sreg):
    set_exec_lanes(16)
    a.lds(f'ds_write_b128 v116, v[{E}:{E+3}]')
    a.lds(f'ds_write_b128 v116, v[{E+4}:{E+7}] offset:16')
    set_exec_lanes(64)
    a.barrier()
    L0 = only_wave0_begin()
    for w in range(4):
        a.lds(f'ds_read_b128 v[{16+4*w}:{19+4*w}], v13 offset:{RED + w*512}')
    a.wait_lg_all()
    for w in range(1, 4):
        for e in range(4):
            a.ins(f'v_add_f32 v{16+e}, v{16+e}, v{16+4*w+e}')
    a.ins(f's_add_u32 s76, s70, s{sreg}')
    set_exec_lanes(32)
    a.ins('buffer_store_dwordx4 v[16:19], v13, s[64:67], s76 offen offset:2048 sc1')
    set_exec_lanes(64)
    only_wave0_end(L0)

def combine_records(n, first_reg, Mv, Lv, out):
    for k in range(n):
        a.ins(f'v_readlane_b32 s{40+k}, v{first_reg+4*k}, 48')
        a.ins(f'v_readlane_b32 s{48+k}, v{first_reg+4*k+1}, 48')
    a.ins(f'v_mov_b32 v{Mv}, s40')
    for k in range(1, n):
        a.ins(f'v_max_f32 v{Mv}, s{40+k}, v{Mv}')
    E = 100
    for k in range(n):
        a.ins(f'v_sub_f32 v{E+k}, s{40+k}, v{Mv}')
    for k in range(n):
        a.ins(f'v_exp_f32 v{E+k}, v{E+k}')
    a.ins(f'v_mul_f32 v{Lv}, s48, v{E}')
    for k in range(1, n):
        a.ins(f'v_fma_f32 v{Lv}, v{E+k}, s{48+k}, v{Lv}')
    for e in range(4):
        a.ins(f'v_mul_f32 v{out+e}, v{E}, v{first_reg+e}')
    for k in range(1, n):
        for e in range(4):
            a.ins(f'v_fma_f32 v{out+e}, v{E+k}, v{first_reg+4*k+e}, v{out+e}')

def chain_common_init():
    a.ins('s_lshl_b32 s4, s3, 6')
    a.ins('v_add_u32 v15, s4, v0')
    a.ins('v_lshlrev_b32 v15, 4, v15')
    for k in range(4):
        a.ins(f'v_mov_b32 v{16+k}, -1')
    L1 = newlab('Lst1')
    a.ins('s_cmp_ge_u32 s2, 12')
    a.ins(f's_cbranch_scc1 {L1}')
    a.ins('s_lshl_b32 s76, s2, 12')
    a.ins(f's_add_u32 s76, s76, {hex(Q_OFF)}')
    a.ins('buffer_store_dwordx4 v[16:19], v15, s[64:67], s76 offen sc1')
    a.ins('s_waitcnt vmcnt(0)')
    a.ins('s_barrier')
    set_flag(1)
    a.label(L1)
    a.fence_hazards()
    startup1()
    startup2a()
    L0 = only_wave0_begin()
    startup2b()
    only_wave0_end(L0)
    a.barrier()
    a.ins(f's_mul_i32 s4, s2, {ARM_PER}')
    for k in range(ARM_N):
        LS = newlab('Lsa')
        a.ins(f's_add_u32 s76, s4, {k*4096}')
        a.ins(f's_sub_u32 s5, s76, {hex(Q_OFF)}')
        a.ins('s_cmp_lt_u32 s5, 49152')
        a.ins(f's_cbranch_scc1 {LS}')
        a.ins('buffer_store_dwordx4 v[16:19], v15, s[64:67], s76 offen sc1')
        a.label(LS)
    a.ins('s_waitcnt vmcnt(0)')
    a.ins('s_barrier')
    set_flag(2)
    a.vm = []
    a.ins('s_lshl_b32 s4, s3, 6')
    a.ins('v_add_u32 v1, s4, v0')
    a.ins('v_lshlrev_b32 v15, 4, v1')
    a.ins('v_min_u32 v2, 59, v0')
    a.ins('s_mul_i32 s4, s3, 60')
    a.ins('v_add_u32 v2, s4, v2')
    a.ins('v_lshlrev_b32 v14, 4, v2')
    a.ins(f'v_add_u32 v14, {WL}, v14')
    a.ins('v_add_u32 v120, 61440, v14')
    a.ins('s_lshl_b32 s4, s3, 3')
    a.ins('v_add_u32 v8, s4, v0')
    a.ins('v_mul_u32_u24 v8, 2560, v8')
    a.ins('v_add_u32 v8, 2556, v8')
    a.ins('s_mul_i32 s4, s3, 20480')
    a.ins('v_lshlrev_b32 v13, 4, v0')
    a.ins('v_add_u32 v9, s4, v13')
    a.ins(f's_mul_i32 s4, s3, 5120')
    a.ins(f's_add_u32 s4, s4, {RED}')
    a.ins('v_add_u32 v10, s4, v13')
    a.ins('v_lshlrev_b32 v12, 3, v0')
    a.ins('s_lshl_b32 s4, s2, 2')
    a.ins('s_add_u32 s4, s4, s3')
    a.ins('s_lshl_b32 s77, s4, 9')
    a.ins(f's_add_u32 s77, s77, {hex(STAMP_OFF + 832*256)}')
    stamp(120, 77, 122)

def arm_arrive():
    a.wait_vm('arm')
    a.ins('s_barrier')
    L = only_wave0_begin()
    a.ins('v_mov_b32 v124, 0')
    a.ins('v_mov_b32 v125, 1')
    set_exec_lanes(1)
    a.vmem('global_atomic_add v124, v125, s[28:29] sc1', None)
    set_exec_lanes(64)
    a.label(L)
    a.fence_hazards()

def load_xres():
    L = only_wave0_begin()
    srd(96, 8, 9, 4 * 1280)
    a.ins('v_lshlrev_b32 v127, 2, v0')
    for b in range(4):
        smov(76, b * 1280)
        for k in range(5):
            a.ins(f'buffer_load_dword v{16+b*5+k}, v127, s[96:99], s76 offen offset:{k*256}')
    a.ins('s_waitcnt vmcnt(0)')
    for b in range(4):
        for k in range(5):
            r = 16 + b * 5 + k
            d = 40 + 2 * (b * 5 + k)
            a.ins(f'v_lshlrev_b32 v{d}, 16, v{r}')
            a.ins(f'v_and_b32 v{d+1}, 0xffff0000, v{r}')
            a.lds(f'ds_write_b64 v12, v[{d}:{d+1}] offset:{XRES + b*2560 + k*512}')
    only_wave0_end(L)


def gen_acu():
    a.label('L_acu')
    chain_common_init()
    mfma_consts()
    a.ins('s_mul_i32 s70, s2, 2560')
    a.ins('v_lshlrev_b32 v119, 2, v0')
    a.ins('s_mul_i32 s4, s3, 24576')
    a.ins(f's_add_u32 s4, s4, {WL}')
    a.ins('v_add_u32 v14, s4, v13')
    a.ins('s_and_b32 s4, s3, 1')
    a.ins('s_lshl_b32 s4, s4, 13')
    a.ins(f's_add_u32 s4, s4, {WL + 4*24576}')
    a.ins('v_add_u32 v120, s4, v13')
    a.ins('v_mul_u32_u24 v125, 10240, v4')
    a.ins('v_lshl_add_u32 v125, v3, 4, v125')
    a.ins('v_subrev_u32 v127, 6, v3')
    a.ins('v_min_u32 v127, 5, v127')
    a.ins('v_cmp_gt_u32 vcc, 6, v3')
    a.ins('v_cndmask_b32 v127, v127, v3, vcc')
    a.ins('v_mul_u32_u24 v126, 24576, v4')
    a.ins('v_lshl_add_u32 v126, v127, 4, v126')
    a.ins('s_mov_b64 s[88:89], vcc')
    a.ins('s_not_b64 s[90:91], vcc')
    a.ins('s_mul_i32 s4, s2, 245760')
    srd_off(96, 16, 17, 4, 245760)
    a.ins('s_mul_i32 s4, s2, 96')
    a.ins(f's_sub_u32 s5, {640*3072}, s4')
    srd_off(80, 20, 21, 4, 's5')
    srd_off(84, 22, 23, 4, 's5')
    a.ins('s_mul_i32 s4, s2, 61440')
    srd_off(92, 24, 25, 4, 61440)
    a.ins('s_lshl_b32 s40, s3, 8')
    a.ins('s_mul_i32 s41, s3, 40960')
    a.ins('s_add_u32 s41, s41, 1024')
    a.ins(f's_mul_i32 s42, s3, {160*3072}')
    def ld1280(srd_, sbase, const):
        def em(T, tag):
            for e in range(8):
                if e % 3 == 0:
                    a.ins(f's_add_u32 s76, s{sbase}, {const + (e // 3) * 3840}')
                off = f' offset:{(e % 3) * 1280}' if e % 3 else ''
                a.vmem(f'buffer_load_dwordx4 v[{T+4*e}:{T+4*e+3}], v125, s[{srd_}:{srd_+3}], s76 offen{off} nt', tag)
        return em
    def ldgu(i):
        def em(T, tag):
            for e in range(8):
                a.ins(f's_add_u32 s76, s42, {(32 * i + e) * 3072}')
                a.ins('s_mov_b64 exec, s[88:89]')
                a.vmem(f'buffer_load_dwordx4 v[{T+4*e}:{T+4*e+3}], v126, s[80:83], s76 offen nt', tag)
                a.ins('s_mov_b64 exec, s[90:91]')
                a.vmem(f'buffer_load_dwordx4 v[{T+4*e}:{T+4*e+3}], v126, s[84:87], s76 offen nt', tag)
            a.ins('s_mov_b64 exec, -1')
        return em
    blocks = []
    for ks in range(6):
        blocks.append((ld1280(96, 40, ks * 40960), ('a', 32 * ks)))
    blocks.append((ld1280(96, 41, 0), ('a', 192)))
    blocks.append((ld1280(96, 41, 4 * 40960), ('a', 224)))
    for i in range(4):
        blocks.append((ldgu(i), ('v', W1 + 32 * i)))
    blocks.append((ldgu(4), ('l', 14, 0)))
    blocks.append((ld1280(92, 40, 0), ('l', 14, 8192)))
    blocks.append((ld1280(92, 40, 40960), ('l', 14, 16384)))
    blocks.append((ld1280(92, 41, 0), ('l?', 120, 0)))
    prep_blocks(blocks)
    load_xres()
    a.ins('s_lshl_b32 s4, s3, 9')
    a.ins('v_lshlrev_b32 v115, 5, v3')
    a.ins('v_add_u32 v115, s4, v115')
    a.ins(f'v_add_u32 v116, {RED}, v115')
    a.ins('s_mul_i32 s4, s3, 384')
    a.ins('v_lshlrev_b32 v11, 5, v3')
    a.ins('v_add_u32 v11, s4, v11')
    a.ins(f'v_add_u32 v11, {RED}, v11')
    a.barrier()
    a.ins('v_lshlrev_b32 v117, 2, v0')
    a.ins('v_add_u32 v117, s3, v117')
    a.ins('v_min_u32 v117, 25, v117')
    a.ins(f'v_mul_u32_u24 v117, {REC}, v117')
    a.ins('v_add_u32 v117, 772, v117')
    a.ins(f's_mul_i32 s71, s2, {WPH*REC}')
    a.ins(f's_mul_i32 s72, s3, {REC}')
    a.ins('s_add_u32 s72, s72, s71')
    a.ins(f's_mul_i32 s4, s3, {REC}')
    a.ins(f's_add_u32 s4, s4, {RED}')
    a.ins('v_add_u32 v118, s4, v13')
    a.ins('v_add_u32 v117, s71, v117')
    wait_flags(2, 126)
    order = 0
    for i, (ly, b) in enumerate(CHAIN_ORDER):
        order |= (ly * 4 + b) << (4 * i)
    tab = 0
    for i, k in enumerate(CHAIN_ORDER):
        sg = CHAIN_SEGS[k]
        assert 2 <= len(sg) <= 3
        e = sg[0] | (sg[1] << 5) | ((sg[2] if len(sg) > 2 else 0) << 10) | ((1 if len(sg) > 2 else 0) << 15)
        tab |= e << (16 * i)
    for w in range(4):
        smov(56 + w, (tab >> (32 * w)) & 0xffffffff)
    a.ins('s_mov_b32 s78, 0')
    a.label('L_aloop')
    a.fence_hazards()
    if True:
        a.ins('s_lshl_b32 s4, s78, 2')
        a.ins(f's_lshr_b32 s79, {hex(order)}, s4')
        a.ins('s_and_b32 s79, s79, 15')
        a.ins(f's_mul_i32 s81, s79, {2*AR_SZ}')
        a.ins(f's_add_u32 s81, s81, {hex(AR_OFF)}')
        a.ins(f's_add_u32 s82, s81, {AR_SZ}')
        a.ins('s_and_b32 s83, s79, 3')
        a.ins('s_mul_i32 s84, s83, 1280')
        a.ins('s_mul_i32 s4, s83, 2560')
        a.ins('v_add_u32 v121, s4, v12')
        a.ins('s_lshr_b32 s85, s79, 2')
        a.ins(f's_add_u32 s4, s4, {X1A}')
        a.ins('v_add_u32 v124, s4, v12')
        LD = newlab('Ldf')
        a.ins('s_cmp_eq_u32 s85, 0')
        a.ins(f's_cbranch_scc1 {LD}')
        L0 = only_wave0_begin()
        a.ins('s_mul_i32 s90, s83, 2560')
        a.ins(f's_add_u32 s90, s90, {hex(X2_OFF)}')
        LX = newlab('Lx2'); LXD = newlab('Lx2d')
        smov(75, SPIN_MAX)
        a.label(LX)
        for k in range(5):
            a.ins(f'buffer_load_dwordx2 v[{16+2*k}:{17+2*k}], v12, s[64:67], s90 offen offset:{k*512} sc1')
        a.ins('s_waitcnt vmcnt(0)')
        check_regs(range(16, 26), 127)
        a.ins(f's_cbranch_vccz {LXD}')
        a.ins('s_sleep 2')
        a.ins('s_sub_u32 s75, s75, 1')
        a.ins('s_cmp_lg_u32 s75, 0')
        a.ins(f's_cbranch_scc1 {LX}')
        a.label(LXD)
        store_x(121, XRES)
        only_wave0_end(L0)
        a.label(LD)
        a.fence_hazards()
        a.ins('s_lshl_b32 s88, s78, 6')
        stamp(0, 77, 122, 88)
        a.ins('s_and_b32 s4, s78, 3')
        a.ins('s_lshl_b32 s4, s4, 4')
        a.ins('s_cmp_lt_u32 s78, 4')
        a.ins('s_cselect_b64 s[60:61], s[56:57], s[58:59]')
        a.ins('s_lshr_b64 s[60:61], s[60:61], s4')
        a.ins('s_and_b32 s87, s60, 0x7fff')
        a.ins('s_bfe_u32 s89, s60, 0x1000f')
        a.ins('s_add_u32 s89, s89, 2')
        a.ins('v_mov_b32 v44, 0xf149f2ca')
        for e in range(1, 4):
            a.ins(f'v_mov_b32 v{44+e}, 0')
        a.label('L_aseg')
        a.fence_hazards()
        a.ins('s_and_b32 s80, s87, 31')
        a.ins('s_lshr_b32 s87, s87, 5')
        a.ins(f's_mul_i32 s80, s80, {PART_C}')
        a.ins('s_add_u32 s86, s72, s80')
        poll_indicator(117, 7, 80)
        stamp(1, 77, 122, 88)
        a.ins('v_mov_b32 v40, 0xf149f2ca')
        for e in range(1, 4):
            a.ins(f'v_mov_b32 v{40+e}, 0')
        set_exec_lanes(49)
        def ld1(k):
            a.ins(f's_add_u32 s76, s86, {k * 4 * REC}')
            a.ins(f'buffer_load_dwordx4 v[{16+4*k}:{19+4*k}], v13, s[64:67], s76 offen sc1')
        def im():
            a.ins('s_cmp_ge_u32 s3, 2')
            a.ins('s_cselect_b32 s91, 63, 127')
        gather_sel(7, ld1, lambda k: 16 + 4 * k, im)
        set_exec_lanes(64)
        combine_records(8, 16, 48, 49, 52)
        a.ins('s_mov_b32 exec_lo, 0', dst=[], src=[])
        a.ins('s_mov_b32 exec_hi, 0x10000', dst=[], src=[])
        a.ins('v_mov_b32 v52, v48')
        a.ins('v_mov_b32 v53, v49')
        set_exec_lanes(64)
        for e in range(4):
            a.ins(f'v_mov_b32 v{44+e}, v{52+e}')
        a.ins('s_sub_u32 s89, s89, 1')
        a.ins('s_cmp_lg_u32 s89, 0')
        a.ins('s_cbranch_scc1 L_aseg')
        set_exec_lanes(49)
        a.lds('ds_write_b128 v118, v[52:55]')
        set_exec_lanes(64)
        a.barrier()
        L0 = only_wave0_begin()
        for k in range(4):
            a.lds(f'ds_read_b128 v[{16+4*k}:{19+4*k}], v13 offset:{RED + k*REC}')
        a.wait_lg_all()
        combine_records(4, 16, 48, 49, 52)
        a.ins('v_rcp_f32 v50, v49')
        for e in range(4):
            a.ins(f'v_mul_f32 v{52+e}, v{52+e}, v50')
        a.ins('v_cvt_pk_bf16_f32 v56, v52, v53')
        a.ins('v_cvt_pk_bf16_f32 v57, v54, v55')
        a.ins('s_mov_b32 exec_lo, 0', dst=[], src=[])
        a.ins('s_mov_b32 exec_hi, 0xffff0000', dst=[], src=[])
        a.ins('v_mov_b32 v56, 0')
        a.ins('v_mov_b32 v57, 0')
        set_exec_lanes(64)
        a.lds(f'ds_write_b64 v12, v[56:57] offset:{XS}')
        only_wave0_end(L0)
        a.barrier()
        stamp(2, 77, 122, 88)
        for ks in range(6):
            xread(80 + 4 * ks, 112, 64 * ks)
        xread(104, 113, 0)
        xread(108, 113, 256)
        a.wait_lg_all()
        mfma_block(48, 104, 'a', 192, True)
        mfma_block(48, 108, 'a', 224, False)
        for ks in range(6):
            mfma_block(16, 80 + 4 * ks, 'a', 32 * ks, ks == 0)
        extract(48, 100)
        extract(16, 92)
        publish_own(92, 81)
        publish_cb4(100, 81)
        stamp(3, 77, 122, 88)
        gather_ar(81)
        stamp(4, 77, 122, 88)
        L0 = only_wave0_begin()
        ar_sum_wave0()
        residual(121, XRES)
        layernorm_to_xs()
        only_wave0_end(L0)
        a.barrier()
        stamp(5, 77, 122, 88)
        stage_block(48, 14, 0, 'st')
        for i in range(5):
            xread(80 + 4 * i, 114, 64 * i)
        a.wait_lg_all()
        for i in range(4):
            mfma_block(16, 80 + 4 * i, 'v', W1 + 32 * i, i == 0)
        mfma_block(16, 96, 'v', 48, False)
        stage_block(48, 14, 8192, 'st5')
        extract(16, 100)
        set_exec_lanes(12)
        a.lds('ds_write_b128 v11, v[100:103]')
        a.lds('ds_write_b128 v11, v[104:107] offset:16')
        set_exec_lanes(64)
        a.barrier()
        L0 = only_wave0_begin()
        for r in range(4):
            a.lds(f'ds_read_b32 v{16+r}, v119 offset:{RED + r*384}')
            a.lds(f'ds_read_b32 v{36+r}, v119 offset:{RED + r*384 + 192}')
        a.wait_lg_all()
        for r in range(1, 4):
            a.ins(f'v_add_f32 v16, v16, v{16+r}')
            a.ins(f'v_add_f32 v36, v36, v{36+r}')
        bf16r(16, 16); bf16r(36, 36)
        a.ins('v_mul_f32 v17, v16, v16')
        a.ins('v_mul_f32 v17, v17, v16')
        a.ins(f'v_mov_b32 v18, {hex(f32(0.044715))}')
        a.ins('v_fma_f32 v17, v17, v18, v16')
        a.ins(f'v_mul_f32 v17, {hex(f32(2*0.7978845608028654*math.log2(math.e)))}, v17')
        a.ins('v_exp_f32 v17, v17')
        a.ins('v_add_f32 v17, 1.0, v17')
        a.ins('v_rcp_f32 v17, v17')
        a.ins('v_fma_f32 v17, v17, -2.0, 1.0')
        a.ins('v_add_f32 v17, 1.0, v17')
        a.ins('v_mul_f32 v17, v17, v16')
        a.ins('v_mul_f32 v17, 0.5, v17')
        bf16r(17, 17)
        a.ins('v_mul_f32 v17, v17, v36')
        a.ins('v_cvt_pk_bf16_f32 v18, v17, 0')
        a.ins('v_mov_b32 v19, 0')
        a.ins('s_mov_b32 exec_lo, 0', dst=[], src=[])
        a.ins('s_mov_b32 exec_hi, 0xffff0000', dst=[], src=[])
        a.ins('v_mov_b32 v18, 0')
        set_exec_lanes(64)
        a.ins('v_lshlrev_b32 v20, 1, v0')
        a.lds(f'ds_write_b16 v20, v18 offset:{XS}')
        a.lds(f'ds_write_b16 v20, v19 offset:{XS + 128}')
        only_wave0_end(L0)
        a.barrier()
        stamp(6, 77, 122, 88)
        xread(80, 112, 0)
        xread(84, 112, 64)
        xread(88, 113, 0)
        a.wait_lg_all()
        mfma_block(16, 80, 'v', 48, True)
        stage_block(48, 14, 16384, 'st5b')
        a.wait_lg_all()
        mfma_block(16, 84, 'v', 48, False)
        stage_block(48, 120, 0, 'st5c')
        extract(16, 92)
        publish_own(92, 82)
        a.wait_lg_all()
        mfma_block(16, 88, 'v', 48, True)
        extract(16, 100)
        publish_cb4(100, 82)
        stamp(7, 77, 122, 88)
        a.barrier()
    stamp(9, 77, 122, 88)
    a.ins('s_add_u32 s78, s78, 1')
    a.ins('s_cmp_lt_u32 s78, 8')
    a.ins('s_cbranch_scc1 L_aloop')
    a.ins('s_waitcnt vmcnt(0)')
    a.ins('s_endpgm')

def wait_armed_chain():
    L = newlab('Lar'); D = newlab('Lad')
    smov(75, SPIN_MAX)
    a.ins('v_mov_b32 v126, 0')
    a.label(L)
    a.ins('global_load_dword v127, v126, s[28:29] sc1')
    a.ins('s_waitcnt vmcnt(0)')
    a.vm = []
    a.ins(f'v_cmp_gt_u32 vcc, {NCH}, v127')
    a.ins(f's_cbranch_vccz {D}')
    a.ins('s_sleep 2')
    a.ins('s_sub_u32 s75, s75, 1')
    a.ins('s_cmp_lg_u32 s75, 0')
    a.ins(f's_cbranch_scc1 {L}')
    a.label(D)
    a.fence_hazards()

def q_gemv_publish():
    stage_block(48, 14, 0, 'st')
    for i in range(5):
        xread(80 + 4 * i, 114, 64 * i)
    a.wait_lg_all()
    for cb in range(3):
        for i in range(4):
            kind, base = (('a', 128 * cb + 32 * i) if cb < 2 else ('v', W1 + 32 * i))
            mfma_block(16, 80 + 4 * i, kind, base, i == 0)
        a.wait_lg_all()
        mfma_block(16, 96, 'v', 48, False)
        if cb < 2:
            stage_block(48, 14, (cb + 1) * 8192, 'st')
        extract(16, 100)
        set_exec_lanes(16)
        a.lds(f'ds_write_b128 v115, v[100:103] offset:{cb*512}')
        a.lds(f'ds_write_b128 v115, v[104:107] offset:{cb*512+16}')
        set_exec_lanes(64)
    a.barrier()
    L0 = only_wave0_begin()
    a.ins('v_lshlrev_b32 v127, 1, v13')
    for r in range(4):
        a.lds(f'ds_read_b128 v[{16+8*r}:{19+8*r}], v127 offset:{RED + r*1536}')
        a.lds(f'ds_read_b128 v[{20+8*r}:{23+8*r}], v127 offset:{RED + r*1536 + 16}')
    a.wait_lg_all()
    for r in range(1, 4):
        for e in range(8):
            a.ins(f'v_add_f32 v{16+e}, v{16+e}, v{16+8*r+e}')
    for e in range(4):
        a.ins(f'v_cvt_pk_bf16_f32 v{60+e}, v{16+2*e}, v{17+2*e}')
    a.ins('s_add_u32 s76, s70, s86')
    set_exec_lanes(48)
    a.ins('buffer_store_dwordx4 v[60:63], v13, s[64:67], s76 offen sc1')
    set_exec_lanes(64)
    only_wave0_end(L0)
    a.barrier()

def gen_qcu():
    a.label('L_qcu')
    chain_common_init()
    a.ins(f's_sub_u32 s5, s2, {NA}')
    mfma_consts()
    a.ins('s_mul_i32 s70, s5, 768')
    a.ins(f's_sub_u32 s6, {640*12288}, s70')
    srd_off(96, 14, 15, 70, 's6')
    a.ins(f'v_mul_u32_u24 v126, {8*12288}, v4')
    a.ins('v_lshl_add_u32 v126, v3, 4, v126')
    a.ins('s_mul_i32 s4, s3, 24576')
    a.ins(f's_add_u32 s4, s4, {WL}')
    a.ins('v_add_u32 v14, s4, v13')
    a.ins(f's_mul_i32 s42, s3, {160*12288}')
    def ldq(i, cb):
        def em(T, tag):
            for e in range(8):
                a.ins(f's_add_u32 s76, s42, {(32 * i + e) * 12288 + cb * 256}')
                a.vmem(f'buffer_load_dwordx4 v[{T+4*e}:{T+4*e+3}], v126, s[96:99], s76 offen nt', tag)
        return em
    blocks = []
    for cb in range(3):
        for i in range(4):
            blocks.append((ldq(i, cb), ('a', 128 * cb + 32 * i) if cb < 2 else ('v', W1 + 32 * i)))
        blocks.append((ldq(4, cb), ('l', 14, cb * 8192)))
    prep_blocks(blocks)
    load_xres()
    a.ins('s_mul_i32 s4, s3, 1536')
    a.ins('v_lshlrev_b32 v115, 5, v3')
    a.ins('v_add_u32 v115, s4, v115')
    a.ins(f'v_add_u32 v115, {RED}, v115')
    a.barrier()
    wait_flags(2, 126)
    order = 0
    for i, (ly, b) in enumerate(CHAIN_ORDER):
        order |= (ly * 4 + b) << (4 * i)
    srd(92, 26, 27, 4 * 1280)
    a.ins('v_lshlrev_b32 v119, 2, v0')
    a.ins('s_mov_b32 s78, 0')
    a.label('L_qloop')
    a.fence_hazards()
    a.ins('s_lshl_b32 s4, s78, 2')
    a.ins(f's_lshr_b32 s79, {hex(order)}, s4')
    a.ins('s_and_b32 s79, s79, 15')
    a.ins('s_and_b32 s83, s79, 3')
    a.ins('s_lshr_b32 s85, s79, 2')
    a.ins('s_mul_i32 s84, s83, 1280')
    a.ins('s_mul_i32 s4, s83, 2560')
    a.ins('v_add_u32 v121, s4, v12')
    a.ins(f's_mul_i32 s86, s83, {32*384}')
    a.ins(f's_add_u32 s86, s86, {hex(Q_OFF + 4*32*384)}')
    a.ins(f's_mul_i32 s81, s79, {2*AR_SZ}')
    a.ins(f's_add_u32 s81, s81, {hex(AR_OFF)}')
    a.ins(f's_add_u32 s82, s81, {AR_SZ}')
    a.ins('s_lshl_b32 s88, s78, 6')
    stamp(0, 77, 122, 88)
    a.ins('s_cmp_eq_u32 s85, 0')
    a.ins('s_cbranch_scc1 L_qgo')
    a.ins(f's_cmp_lg_u32 s2, {NA}')
    a.ins('s_cbranch_scc1 L_qnext')
    a.label('L_qgo')
    a.fence_hazards()
    gather_ar(81)
    L0 = only_wave0_begin()
    ar_sum_wave0()
    residual(121, XRES)
    store_x(12, X1)
    only_wave0_end(L0)
    a.barrier()
    stamp(1, 77, 122, 88)
    gather_ar(82)
    stamp(2, 77, 122, 88)
    L0 = only_wave0_begin()
    ar_sum_wave0()
    residual(12, X1)
    store_x(121, XRES)
    LO = newlab('Lout'); LX = newlab('Lx2p')
    a.ins('s_cmp_eq_u32 s85, 0')
    a.ins(f's_cbranch_scc1 {LX}')
    for k in range(5):
        a.ins(f'v_cvt_pk_bf16_f32 v{32+k}, v{16+2*k}, v{17+2*k}')
        a.ins(f'buffer_store_dword v{32+k}, v119, s[92:95], s84 offen offset:{k*256}')
    a.ins(f's_branch {LO}')
    a.label(LX)
    a.ins(f's_cmp_lg_u32 s2, {NA}')
    a.ins(f's_cbranch_scc1 {LO}')
    a.ins('s_mul_i32 s90, s83, 2560')
    a.ins(f's_add_u32 s90, s90, {hex(X2_OFF)}')
    for k in range(5):
        a.ins(f'buffer_store_dwordx2 v[{16+2*k}:{17+2*k}], v12, s[64:67], s90 offen offset:{k*512} sc1')
    a.label(LO)
    a.fence_hazards()
    layernorm_to_xs()
    only_wave0_end(L0)
    a.barrier()
    stamp(3, 77, 122, 88)
    a.ins('s_cmp_lg_u32 s85, 0')
    a.ins('s_cbranch_scc1 L_qnext')
    q_gemv_publish()
    a.label('L_qnext')
    a.fence_hazards()
    stamp(4, 77, 122, 88)
    a.ins('s_add_u32 s78, s78, 1')
    a.ins('s_cmp_lt_u32 s78, 8')
    a.ins('s_cbranch_scc1 L_qloop')
    a.ins('s_waitcnt vmcnt(0)')
    a.ins('s_endpgm')

def main(outpath):
    hdr = open('cdna_kernels/' + NAME + '.s.ref').read().split('\n')
    top = [l for l in hdr if l.startswith(';') and '@launch' not in l]
    out = []
    out += top
    out.append('; @launch grid=(256,1,1) block=(256,1,1) lds=163840')
    out.append('.amdgcn_target "amdgcn-amd-amdhsa--gfx950"')
    out.append('.text')
    out.append(MACROS)
    out.append(f'.globl {KNAME}')
    out.append('.p2align 8')
    out.append(f'.type {KNAME},@function')
    out.append(f'{KNAME}:')
    a.ins('s_cmp_ge_u32 s2, 256')
    a.ins('s_cbranch_scc1 L_exit')
    a.ins('s_load_dwordx16 s[8:23], s[0:1], 0')
    a.ins('s_load_dwordx8 s[24:31], s[0:1], 64')
    a.ins('v_lshrrev_b32 v1, 6, v0')
    a.ins('v_and_b32 v0, 63, v0')
    a.ins('v_readfirstlane_b32 s3, v1')
    a.ins('s_waitcnt lgkmcnt(0)')
    srd(64, 30, 31, WS_SIZE)
    a.ins(f's_cmp_ge_u32 s2, {NCH}')
    a.ins('s_cbranch_scc0 L_chain')
    a.ins('s_branch L_stream')
    a.label('L_exit')
    a.ins('s_endpgm')
    a.label('L_chain')
    a.ins(f's_cmp_ge_u32 s2, {NA}')
    a.ins('s_cbranch_scc1 L_qcu')
    a.fence_hazards()
    gen_acu()
    a.hist = []; a.vm = []; a.lg = []
    a.fence_hazards()
    gen_qcu()
    a.hist = []; a.vm = []; a.lg = []
    a.fence_hazards()
    gen_stream()
    out.append(a.text())
    out.append('.section .rodata,"a"')
    out.append('.p2align 6')
    out.append(f'.amdhsa_kernel {KNAME}')
    out.append('  .amdhsa_next_free_vgpr 512')
    out.append('  .amdhsa_next_free_sgpr 102')
    out.append('  .amdhsa_accum_offset 256')
    out.append('  .amdhsa_group_segment_fixed_size 0')
    out.append('  .amdhsa_kernarg_size 96')
    out.append('  .amdhsa_user_sgpr_count 2')
    out.append('  .amdhsa_user_sgpr_kernarg_segment_ptr 1')
    out.append('  .amdhsa_system_sgpr_workgroup_id_x 1')
    out.append('.end_amdhsa_kernel')
    open(outpath, 'w').write('\n'.join(out) + '\n')
    print('instrs', a.ninstr, 'bytes', sum(len(x) + 1 for x in out))

if __name__ == '__main__':
    main(sys.argv[1] if len(sys.argv) > 1 else 'cdna_kernels/' + NAME + '.s')
```

```python
import struct, sys, math, os
from asmlib import *

NAME = 'interleave_layers__mha_block_cached__glu_gated_geglu__decode'
KNAME = NAME + '_kernel'

NA, NQ = 32, 16
NCH = NA + NQ
NST = 256 - NCH
WPH = NST * 4 // 32
REC = 784
PART_OFF = 0
PART_C = 32 * WPH * REC
NR = 21
NL = int(os.environ.get('NL', '4'))
LMODE = os.environ.get('LMODE', 'def')
NN = 40 - NR - NL
NA_HALF = (NN + 1) // 2
NT_ALL = 40
def _d_order():
    L = list(range(NR, NR + NL)); R = list(range(NR))
    if os.environ.get('DORD', '0') == '0' or NL <= 2:
        return L + R
    return L[:2] + R[:4] + L[2:] + R[4:]
NPOL = os.environ.get('NPOL', 'nt')
R_T = list(range(NR + NL)); D_T = _d_order(); N_T = list(range(NR + NL, NT_ALL)); NA_T = N_T[:NA_HALF]; NB_T = N_T[NA_HALF:]
if os.environ.get('SCH', '1') == '0':
    SCHED = [('A', 0, 0, R_T), ('N', 0, 0, N_T), ('N', 0, 1, N_T), ('N', 0, 2, NA_T),
             ('D', 1, 0, D_T), ('A', 0, 1, R_T), ('N', 0, 2, NB_T), ('N', 1, 0, N_T),
             ('D', 1, 1, D_T), ('A', 0, 2, R_T), ('N', 0, 3, N_T), ('N', 1, 1, NA_T),
             ('D', 1, 2, D_T), ('A', 0, 3, R_T), ('N', 1, 1, NB_T), ('N', 1, 2, N_T),
             ('D', 1, 3, D_T), ('N', 1, 3, N_T)]
else:
    SCHED = [('A', 0, 0, R_T), ('N', 0, 0, N_T), ('N', 0, 1, N_T), ('N', 0, 2, NA_T),
             ('D', 1, 0, D_T), ('A', 0, 1, R_T), ('N', 1, 0, N_T), ('N', 0, 2, NB_T),
             ('D', 1, 1, D_T), ('A', 0, 2, R_T), ('N', 1, 1, NA_T), ('N', 0, 3, N_T),
             ('D', 1, 2, D_T), ('A', 0, 3, R_T), ('N', 1, 1, NB_T), ('N', 1, 2, N_T),
             ('D', 1, 3, D_T), ('N', 1, 3, N_T)]
NSEG = len(SCHED)
_last = {}
for _i, (_t, _p, _b, _tl) in enumerate(SCHED):
    _last[(_p, _b)] = _i
CHAIN_ORDER = sorted(_last, key=lambda k: _last[k])
CHAIN_SEGS = {k: [i for i, (t, p, b, tl) in enumerate(SCHED) if (p, b) == k] for k in CHAIN_ORDER}
AR_OFF = ((NSEG * PART_C + 4095) // 4096) * 4096
AR_SZ = 32 * 2560
Q_OFF = AR_OFF + 16 * AR_SZ
X2_OFF = Q_OFF + 8 * 32 * 384
ARM_N = (X2_OFF + 4 * 2560 + 48 * 4096 - 1) // (48 * 4096)
COMM = ARM_N * 48 * 4096
assert Q_OFF % 4096 == 0
ARM_PER = COMM // NCH
BATCH_STRIDE = 32 * 8192 * 384
SPIN_MAX = 400000
import os
DIAG = int(os.environ.get('DIAG', '0'))
STAMP_OFF = COMM
WS_SIZE = COMM + (1 << 20 if DIAG else 0)

def f32(x):
    return struct.unpack('<I', struct.pack('<f', x))[0]

CSCALE = f32((192 ** -0.5) * math.log2(math.e))

a = Asm()
_lab = [0]
def newlab(p='L'):
    _lab[0] += 1
    return f'{p}{_lab[0]}'

MACROS = r'''
.macro QK2 ta, tb, q, s
  v_dot2_f32_bf16 v[\s+0], v[\ta+0], v[\q+0], 0
  v_dot2_f32_bf16 v[\s+1], v[\ta+4], v[\q+4], 0
  v_dot2_f32_bf16 v[\s+2], v[\ta+8], v[\q+8], 0
  v_dot2_f32_bf16 v[\s+3], v[\tb+0], v[\q+0], 0
  v_dot2_f32_bf16 v[\s+4], v[\tb+4], v[\q+4], 0
  v_dot2_f32_bf16 v[\s+5], v[\tb+8], v[\q+8], 0
  .irp k, 1, 2, 3
  v_dot2c_f32_bf16 v[\s+0], v[\ta+\k], v[\q+\k]
  v_dot2c_f32_bf16 v[\s+1], v[\ta+4+\k], v[\q+4+\k]
  v_dot2c_f32_bf16 v[\s+2], v[\ta+8+\k], v[\q+8+\k]
  v_dot2c_f32_bf16 v[\s+3], v[\tb+\k], v[\q+\k]
  v_dot2c_f32_bf16 v[\s+4], v[\tb+4+\k], v[\q+4+\k]
  v_dot2c_f32_bf16 v[\s+5], v[\tb+8+\k], v[\q+8+\k]
  .endr
.endm
.macro PV t, p, acc
  .irp k, 0, 1, 2, 3, 4, 5, 6, 7, 8, 9, 10, 11
  v_dot2c_f32_bf16 v[\acc+2*\k], v[\t+\k], v[\p]
  v_dot2c_f32_bf16 v[\acc+2*\k+1], v[\t+\k], v[\p+1]
  .endr
.endm
.macro ACR t, s
  .irp k, 0, 1, 2, 3, 4, 5, 6, 7, 8, 9, 10, 11
  v_accvgpr_read_b32 v[\t+\k], a[\s+\k]
  .endr
.endm
.macro LDT k, d, srd
  buffer_load_dwordx4 \k[\d:\d+3], v1, s[\srd:\srd+3], s76 offen nt
  buffer_load_dwordx4 \k[\d+4:\d+7], v1, s[\srd:\srd+3], s76 offen offset:128 nt
  buffer_load_dwordx4 \k[\d+8:\d+11], v1, s[\srd:\srd+3], s76 offen offset:256 nt
.endm
.macro LDC k, d, srd
  buffer_load_dwordx4 \k[\d:\d+3], v1, s[\srd:\srd+3], s76 offen
  buffer_load_dwordx4 \k[\d+4:\d+7], v1, s[\srd:\srd+3], s76 offen offset:128
  buffer_load_dwordx4 \k[\d+8:\d+11], v1, s[\srd:\srd+3], s76 offen offset:256
.endm
.macro RESC acc, al
  .irp k, 0, 1, 2, 3, 4, 5, 6, 7, 8, 9, 10, 11, 12, 13, 14, 15, 16, 17, 18, 19, 20, 21, 22, 23
  v_mul_f32 v[\acc+\k], v[\al], v[\acc+\k]
  .endr
.endm
.macro GV8 w, x, acc
  .irp k, 0, 1, 2, 3
  v_dot2c_f32_bf16 v[\acc+2*\k], v[\w+\k], v[\x]
  v_dot2c_f32_bf16 v[\acc+2*\k+1], v[\w+\k], v[\x+1]
  .endr
.endm
.macro AC4 t, s
  .irp k, 0, 1, 2, 3
  v_accvgpr_read_b32 v[\t+\k], a[\s+\k]
  .endr
.endm
'''

def m_qk2(ta, tb, q, s):
    a.mbegin(f'QK2 {ta}, {tb}, {q}, {s}')
    for i, (t, o) in enumerate([(ta, 0), (ta, 4), (ta, 8), (tb, 0), (tb, 4), (tb, 8)]):
        a.ins(f'v_dot2_f32_bf16 v{s+i}, v{t+o}, v{q+o}, 0')
    for k in (1, 2, 3):
        for i, (t, o) in enumerate([(ta, 0), (ta, 4), (ta, 8), (tb, 0), (tb, 4), (tb, 8)]):
            a.ins(f'v_dot2c_f32_bf16 v{s+i}, v{t+o+k}, v{q+o+k}')
    a.mend()

def m_pv(t, p, acc):
    a.mbegin(f'PV {t}, {p}, {acc}')
    for k in range(12):
        a.ins(f'v_dot2c_f32_bf16 v{acc+2*k}, v{t+k}, v{p}')
        a.ins(f'v_dot2c_f32_bf16 v{acc+2*k+1}, v{t+k}, v{p+1}')
    a.mend()

def m_acr(t, s):
    a.mbegin(f'ACR {t}, {s}')
    for k in range(12):
        a.ins(f'v_accvgpr_read_b32 v{t+k}, a{s+k}')
    a.mend()

def m_ldt(kind, d, srd, tag, pol='nt'):
    mac = {'nt': 'LDT', '': 'LDC'}.get(pol)
    if mac:
        a.mbegin(f'{mac} {kind}, {d}, {srd}')
    for i in range(3):
        off = f' offset:{i*128}' if i else ''
        a.vmem(f'buffer_load_dwordx4 {kind}[{d+4*i}:{d+4*i+3}], v1, s[{srd}:{srd+3}], s76 offen{off} {pol}', tag)
    if mac:
        a.mend()

def m_resc(acc, al):
    a.mbegin(f'RESC {acc}, {al}')
    for k in range(24):
        a.ins(f'v_mul_f32 v{acc+k}, v{al}, v{acc+k}')
    a.mend()

def m_gv8(w, x, acc):
    a.mbegin(f'GV8 {w}, {x}, {acc}')
    for k in range(4):
        a.ins(f'v_dot2c_f32_bf16 v{acc+2*k}, v{w+k}, v{x}')
        a.ins(f'v_dot2c_f32_bf16 v{acc+2*k+1}, v{w+k}, v{x+1}')
    a.mend()

def m_ac4(t, s):
    a.mbegin(f'AC4 {t}, {s}')
    for k in range(4):
        a.ins(f'v_accvgpr_read_b32 v{t+k}, a{s+k}')
    a.mend()

DPP = 'row_mask:0xf bank_mask:0xf'

def smov(s, val):
    val &= 0xffffffff
    a.ins(f's_mov_b32 s{s}, {val if val <= 64 else hex(val)}')

def srd(d, lo, hi, nrec):
    a.ins(f's_mov_b32 s{d}, s{lo}')
    a.ins(f's_and_b32 s{d+1}, s{hi}, 0xffff')
    if isinstance(nrec, int):
        smov(d + 2, nrec)
    else:
        a.ins(f's_mov_b32 s{d+2}, {nrec}')
    a.ins(f's_mov_b32 s{d+3}, 0x20000')

def srd_off(d, lo, hi, offs, nrec):
    a.ins(f's_add_u32 s{d}, s{lo}, s{offs}')
    a.ins(f's_addc_u32 s{d+1}, s{hi}, 0')
    a.ins(f's_and_b32 s{d+1}, s{d+1}, 0xffff')
    if isinstance(nrec, int):
        smov(d + 2, nrec)
    else:
        a.ins(f's_mov_b32 s{d+2}, {nrec}')
    a.ins(f's_mov_b32 s{d+3}, 0x20000')

def set_exec_lanes(n):
    if n >= 64:
        a.ins('s_mov_b64 exec, -1')
    elif n <= 32:
        a.ins(f's_mov_b32 exec_lo, {hex((1 << n) - 1)}', dst=[], src=[])
        a.ins('s_mov_b32 exec_hi, 0', dst=[], src=[])
    else:
        a.ins('s_mov_b32 exec_lo, -1', dst=[], src=[])
        a.ins(f's_mov_b32 exec_hi, {hex((1 << (n - 32)) - 1)}', dst=[], src=[])

def stamp(idx, base_s, vt, dyn=None):
    if not DIAG:
        return
    a.ins('s_memrealtime s[100:101]')
    a.ins('s_waitcnt lgkmcnt(0)')
    a.lg = []
    a.ins(f'v_mov_b32 v{vt}, s100')
    a.ins(f'v_mov_b32 v{vt+1}, 0')
    if dyn is None:
        a.ins(f's_add_u32 s101, s{base_s}, {idx*4}')
    else:
        a.ins(f's_add_u32 s101, s{base_s}, s{dyn}')
        a.ins(f's_add_u32 s101, s101, {idx*4}')
    a.vmem(f'buffer_store_dword v{vt}, v{vt+1}, s[64:67], s101 offen', 'stamp')

def flags_addr(va, stage):
    if stage == 1:
        a.ins(f'v_min_u32 v{va}, 11, v0')
        a.ins(f'v_lshlrev_b32 v{va}, 2, v{va}')
    else:
        a.ins(f'v_min_u32 v{va}, 23, v0')
        a.ins(f'v_lshlrev_b32 v{va}, 2, v{va}')
        a.ins(f'v_add_u32 v{va}, 128, v{va}')

def flags_check(vreg, stage):
    a.ins(f'v_cmp_ne_u32 vcc, {1 if stage == 1 else "0x10001"}, v{vreg}')

def wait_flags(stage, va=254, plain_first=True):
    L = newlab('Lar'); D = newlab('Lad')
    smov(75, SPIN_MAX)
    flags_addr(va, stage)
    if plain_first:
        a.ins(f'global_load_dword v{va+1}, v{va}, s[28:29]')
        a.ins('s_waitcnt vmcnt(0)')
        flags_check(va + 1, stage)
        a.ins(f's_cbranch_vccz {D}')
    a.label(L)
    a.ins(f'global_load_dword v{va+1}, v{va}, s[28:29] sc1')
    a.ins('s_waitcnt vmcnt(0)')
    a.vm = []
    flags_check(va + 1, stage)
    a.ins(f's_cbranch_vccz {D}')
    a.ins('s_sleep 8')
    a.ins('s_sub_u32 s75, s75, 1')
    a.ins('s_cmp_lg_u32 s75, 0')
    a.ins(f's_cbranch_scc1 {L}')
    a.label(D)
    a.fence_hazards()

def set_flag(stage):
    L = only_wave0_begin()
    if stage == 1:
        a.ins('s_lshl_b32 s4, s2, 2')
    else:
        a.ins('s_lshl_b32 s4, s2, 1')
        a.ins('s_add_u32 s4, s4, 128')
    a.ins('v_mov_b32 v150, s4')
    a.ins('v_mov_b32 v151, 1')
    set_exec_lanes(1)
    a.ins(f'global_store_{"dword" if stage == 1 else "short"} v150, v151, s[28:29] sc1')
    set_exec_lanes(64)
    a.label(L)
    a.fence_hazards()

SU_W = 56
SU_ACC = 96
SU_X = 226
SU_RED = 20480

def startup1():
    srd(96, 8, 9, 4 * 1280)
    a.ins('v_lshlrev_b32 v254, 2, v0')
    a.ins('s_mul_i32 s76, s3, 1280')
    for k in range(5):
        a.vmem(f'buffer_load_dword v{SU_X+k}, v254, s[96:99], s76 offen offset:{k*256}', 'sux')
    a.ins('s_mul_i32 s4, s2, 48')
    a.ins(f's_sub_u32 s5, {640*12288}, s4')
    srd_off(92, 14, 15, 4, 's5')
    a.ins('v_and_b32 v255, 15, v0')
    a.ins(f'v_mul_u32_u24 v255, {10*12288}, v255')
    a.ins('v_lshrrev_b32 v128, 4, v0')
    a.ins('v_min_u32 v128, 2, v128')
    a.ins('v_lshl_add_u32 v255, v128, 4, v255')
    a.ins(f's_mul_i32 s4, s3, {160*12288}')
    for i in range(10):
        a.ins(f's_add_u32 s76, s4, {i*12288}')
        a.vmem(f'buffer_load_dwordx4 v[{SU_W+4*i}:{SU_W+4*i+3}], v255, s[92:95], s76 offen', 'suw')

def startup2a(topup=None, st=False, after_x=None):
    X = SU_X
    a.wait_vm('sux')
    if after_x:
        after_x()
    if st: stamp(56, 78, 252)
    xs = X + 5
    for k in range(5):
        a.ins(f'v_lshlrev_b32 v{xs+2*k}, 16, v{X+k}')
        a.ins(f'v_and_b32 v{xs+2*k+1}, 0xffff0000, v{X+k}')
    A = SU_ACC
    t, u, mean, var = A, A + 1, A + 2, A + 3
    d0, q0, e0 = A + 4, A + 14, X + 15
    a.ins(f'v_add_f32 v{t}, v{xs}, v{xs+1}')
    for i in range(2, 10):
        a.ins(f'v_add_f32 v{t}, v{t}, v{xs+i}')
    wave_sum(t, u)
    a.ins(f'v_mul_f32 v{mean}, {hex(f32(1.0/640))}, v{t}')
    for i in range(10):
        a.ins(f'v_sub_f32 v{d0+i}, v{xs+i}, v{mean}')
    a.ins(f'v_mul_f32 v{t}, v{d0}, v{d0}')
    for i in range(1, 10):
        a.ins(f'v_fmac_f32 v{t}, v{d0+i}, v{d0+i}')
    wave_sum(t, u)
    a.ins(f'v_mul_f32 v{var}, {hex(f32(1.0/640))}, v{t}')
    bf16r(mean, mean)
    bf16r(var, var)
    a.ins(f'v_add_f32 v{var}, {hex(f32(1e-5))}, v{var}')
    bf16r(var, var)
    a.ins(f'v_sqrt_f32 v{var}, v{var}')
    bf16r(var, var)
    a.ins(f'v_rcp_f32 v{u}, v{var}')
    for i in range(10):
        a.ins(f'v_sub_f32 v{d0+i}, v{xs+i}, v{mean}')
    for i in range(10):
        bf16r(d0 + i, d0 + i)
    for i in range(10):
        a.ins(f'v_mul_f32 v{q0+i}, v{d0+i}, v{u}')
    for i in range(10):
        a.ins(f'v_fma_f32 v{e0+i}, -v{q0+i}, v{var}, v{d0+i}')
    for i in range(10):
        a.ins(f'v_fma_f32 v{q0+i}, v{e0+i}, v{u}, v{q0+i}')
    a.ins('s_mul_i32 s4, s3, 5120')
    a.ins('v_lshlrev_b32 v254, 4, v0')
    a.ins('v_add_u32 v254, s4, v254')
    r = A + 24
    for k in range(5):
        a.ins(f'v_cvt_pk_bf16_f32 v{r}, v{q0+2*k}, 0')
        a.ins(f'v_cvt_pk_bf16_f32 v{r+1}, 0, v{q0+2*k}')
        a.ins(f'v_cvt_pk_bf16_f32 v{r+2}, v{q0+2*k+1}, 0')
        a.ins(f'v_cvt_pk_bf16_f32 v{r+3}, 0, v{q0+2*k+1}')
        a.lds(f'ds_write_b128 v254, v[{r}:{r+3}] offset:{k*1024}')
        a.wait_lg_all()
    a.barrier()
    if st: stamp(57, 78, 252)
    a.ins('v_and_b32 v254, 15, v0')
    a.ins('v_mul_u32_u24 v254, 80, v254')
    a.ins('s_mul_i32 s4, s3, 1280')
    a.ins('v_add_u32 v254, s4, v254')
    for k in range(32):
        a.ins(f'v_mov_b32 v{SU_ACC+k}, 0')
    a.wait_vm('suw')
    if st: stamp(58, 78, 252)
    for b in range(4):
        for k in range(5):
            a.lds(f'ds_read_b128 v[{X+4*k}:{X+4*k+3}], v254 offset:{b*5120 + k*16}')
        a.wait_lg_all()
        for i in range(10):
            m_gv8(SU_W + 4 * i, X + 2 * i, SU_ACC + 8 * b)
    for pat in ('quad_perm:[1,0,3,2]', 'quad_perm:[2,3,0,1]', 'row_half_mirror', 'row_mirror'):
        for k in range(32):
            a.ins(f'v_add_f32_dpp v{SU_ACC+k}, v{SU_ACC+k}, v{SU_ACC+k} {pat} {DPP}')
    a.ins('v_lshrrev_b32 v254, 4, v0')
    a.ins('v_lshlrev_b32 v254, 7, v254')
    a.ins('s_mul_i32 s4, s3, 384')
    a.ins(f's_add_u32 s4, s4, {SU_RED}')
    a.ins('v_add_u32 v254, s4, v254')
    a.ins('s_mov_b32 exec_lo, 0x10001', dst=[], src=[])
    a.ins('s_mov_b32 exec_hi, 1', dst=[], src=[])
    for k in range(8):
        a.lds(f'ds_write_b128 v254, v[{SU_ACC+4*k}:{SU_ACC+4*k+3}] offset:{k*16}')
    set_exec_lanes(64)
    if topup:
        topup()
    if st: stamp(59, 78, 252)
    a.barrier()
    if st: stamp(60, 78, 252)

def startup2b(st=False):
    a.ins('v_mul_u32_u24 v254, 171, v0')
    a.ins('v_lshrrev_b32 v254, 9, v254')
    a.ins('v_mul_u32_u24 v255, 3, v254')
    a.ins('v_sub_u32 v255, v0, v255')
    a.ins('v_lshlrev_b32 v128, 7, v255')
    a.ins('v_lshl_add_u32 v128, v254, 5, v128')
    a.ins('v_and_b32 v128, 0x1ff, v128')
    for wv in range(4):
        a.lds(f'ds_read_b128 v[{SU_W+8*wv}:{SU_W+8*wv+3}], v128 offset:{SU_RED + wv*384}')
        a.lds(f'ds_read_b128 v[{SU_W+8*wv+4}:{SU_W+8*wv+7}], v128 offset:{SU_RED + wv*384 + 16}')
    a.wait_lg_all()
    for wv in range(1, 4):
        for e in range(8):
            a.ins(f'v_add_f32 v{SU_W+e}, v{SU_W+e}, v{SU_W+8*wv+e}')
    for e in range(4):
        a.ins(f'v_cvt_pk_bf16_f32 v{SU_ACC+e}, v{SU_W+2*e}, v{SU_W+2*e+1}')
    a.ins('v_mul_u32_u24 v254, 12288, v254')
    a.ins('v_lshl_add_u32 v254, v255, 4, v254')
    if st: stamp(61, 78, 250)
    wait_flags(1, 252)
    if st: stamp(62, 78, 250)
    a.ins('s_mul_i32 s76, s2, 48')
    a.ins(f's_add_u32 s76, s76, {hex(Q_OFF)}')
    set_exec_lanes(12)
    a.vmem(f'buffer_store_dwordx4 v[{SU_ACC}:{SU_ACC+3}], v254, s[64:67], s76 offen sc1', 'q1pub')
    set_exec_lanes(64)

RING = [8, 20, 32, 44]
T0, T1 = 56, 68
Q, QS = 80, 92
ST = 104
VSLOT = 130
NVS = 8
WK = 226

def srd_k(b): return 32 + 8 * b
def srd_v(b): return 36 + 8 * b

def r_storage(kind, t):
    if t >= NR:
        return ('c',)
    if kind == 'K':
        return ('a', 12 * t)
    if t < NVS:
        return ('v', VSLOT + 12 * t)
    return ('l', t - NVS)

def groups_of(tiles):
    return [tiles[i:i + 2] for i in range(0, len(tiles), 2)]

class Stream:
    def __init__(self):
        self.P = SCHED
        self.LQ = []
        for pi, (ty, ps, b, tiles) in enumerate(self.P):
            for grp in groups_of(tiles):
                for kind in ('K', 'V'):
                    for t in grp:
                        pol = 'nt'
                        if ty == 'D':
                            if r_storage(kind, t)[0] != 'c':
                                continue
                            dest = ('r', None)
                        elif ty == 'A':
                            stg = r_storage(kind, t)
                            dest = stg if stg[0] in 'av' else ('r', None)
                            if stg[0] == 'c' and LMODE == 'def':
                                pol = ''
                        else:
                            dest = ('r', None)
                            if ps == 0:
                                pol = NPOL
                        self.LQ.append({'pi': pi, 'kind': kind, 't': t, 'b': b, 'dest': dest, 'pol': pol})
        self.lqi = 0
        self.nissued = 0
        self.ring_free = [True] * 4
        self.ring_next = 0
        self.ded_free = {}
        self.d_done = set()
        self.cur_pi = 0
        self.loc = {}
        self.last_A = max(i for i, p in enumerate(self.P) if p[0] == 'A')
        self.all_ded = [r_storage(k, t) for t in R_T for k in 'KV' if r_storage(k, t)[0] in 'av']

    def ring_alloc(self):
        s = self.ring_next
        if not self.ring_free[s]:
            return None
        self.ring_free[s] = False
        self.ring_next = (s + 1) % 4
        return s

    def _issue_one(self, e):
        if e['dest'][0] == 'r':
            s = self.ring_alloc()
            if s is not None:
                kind, base = 'v', RING[s]
                self.loc[(e['pi'], e['kind'], e['t'])] = ('r', s)
            else:
                key = None
                if self.cur_pi > self.last_A and e['pi'] == len(self.P) - 1:
                    for k in self.all_ded:
                        if self.ded_free.get(k, True):
                            key = k
                            break
                if key is None:
                    return False
                self.ded_free[key] = False
                kind, base = key
                self.loc[(e['pi'], e['kind'], e['t'])] = ('x', key)
        else:
            key = e['dest']
            if not self.ded_free.get(key, True):
                return False
            self.ded_free[key] = False
            kind, base = key
            self.loc[(e['pi'], e['kind'], e['t'])] = key
        smov(76, e['t'] * 3072)
        sd = srd_k(e['b']) if e['kind'] == 'K' else srd_v(e['b'])
        m_ldt(kind, base, sd, ('T', e['pi'], e['kind'], e['t']), e['pol'])
        if LMODE == 'touch' and self.P[e['pi']][0] == 'A' and r_storage(e['kind'], e['t'])[0] == 'c':
            a.vmem(f'buffer_load_dword v249, v248, s[{sd}:{sd+3}], s76 offen sc1', 'touch')
        e['done'] = True
        self.nissued += 1
        return True

    def try_issue(self, cap=None, limit=None):
        if cap is None:
            cap = int(os.environ.get('CAP', '54'))
        while True:
            if len(a.vm) + 4 > cap:
                return
            if limit is not None and self.nissued >= limit:
                return
            cand = []
            seen = set()
            for i in range(self.lqi, len(self.LQ)):
                e = self.LQ[i]
                if e.get('done'):
                    continue
                c = 'r' if e['dest'][0] == 'r' else 'd'
                if c not in seen:
                    seen.add(c)
                    cand.append(e)
                if len(seen) == 2:
                    break
            ok = False
            for e in cand:
                if self._issue_one(e):
                    ok = True
                    break
            while self.lqi < len(self.LQ) and self.LQ[self.lqi].get('done'):
                self.lqi += 1
            if not ok:
                return

    def q_issue(self, ps, b):
        a.ins(f's_add_u32 s76, s72, {hex((ps * 4 + b) * 32 * 384)}')
        for i in range(3):
            off = f' offset:{i*128}' if i else ''
            a.vmem(f'buffer_load_dwordx4 v[{QS+4*i}:{QS+4*i+3}], v2, s[64:67], s76 offen{off} sc1', ('Q', ps, b))

    def q_check(self):
        w = WK
        a.ins(f'v_max3_u32 v{w}, v{QS}, v{QS+1}, v{QS+2}')
        for k in range(3, 12, 2):
            k2 = min(k + 1, 11)
            a.ins(f'v_max3_u32 v{w}, v{w}, v{QS+k}, v{QS+k2}')
        a.ins(f'v_cmp_eq_u32 vcc, -1, v{w}')

    def q_take(self, ps, b):
        a.wait_vm(('Q', ps, b))
        OK = newlab('Lqo'); RT = newlab('Lqr')
        self.q_check()
        a.ins(f's_cbranch_vccz {OK}')
        smov(75, SPIN_MAX)
        a.label(RT)
        a.ins('s_sleep 2')
        a.ins(f's_add_u32 s77, s72, {hex((ps * 4 + b) * 32 * 384)}')
        for i in range(3):
            off = f' offset:{i*128}' if i else ''
            a.ins(f'buffer_load_dwordx4 v[{QS+4*i}:{QS+4*i+3}], v2, s[64:67], s77 offen{off} sc1')
        a.ins('s_waitcnt vmcnt(0)')
        self.q_check()
        a.ins(f's_cbranch_vccz {OK}')
        a.ins('s_sub_u32 s75, s75, 1')
        a.ins('s_cmp_lg_u32 s75, 0')
        a.ins(f's_cbranch_scc1 {RT}')
        a.label(OK)
        for k in range(12):
            a.ins(f'v_mov_b32 v{Q+k}, v{QS+k}')

    def get_tile(self, pi, ty, kind, t, tmp):
        if ty == 'D' and r_storage(kind, t)[0] != 'c':
            stg = r_storage(kind, t)
            if stg[0] == 'a':
                m_acr(tmp, stg[1])
                self.ded_free[stg] = True
                return tmp, None
            if stg[0] == 'v':
                return stg[1], ('ded', stg)
            a.wait_lg(('L', pi, t))
            return tmp, None
        a.wait_vm(('T', pi, kind, t))
        loc = self.loc[(pi, kind, t)]
        if loc[0] == 'x':
            key = loc[1]
            if key[0] == 'a':
                m_acr(tmp, key[1])
                self.ded_free[key] = True
                return tmp, None
            return key[1], ('ded', key)
        if loc[0] == 'a':
            m_acr(tmp, loc[1])
            return tmp, None
        if loc[0] == 'v':
            return loc[1], None
        return RING[loc[1]], ('ring', loc[1])

    def touch(self, pi, ty, kind, t):
        if ty != 'A' or r_storage(kind, t)[0] != 'c':
            return
        b = self.P[pi][2]
        sd = srd_k(b) if kind == 'K' else srd_v(b)
        smov(76, t * 3072)
        a.vmem(f'buffer_load_dword v249, v248, s[{sd}:{sd+3}], s76 offen sc1', 'touch')

    def release(self, rel):
        if rel is None:
            return
        if rel[0] == 'ring':
            self.ring_free[rel[1]] = True
        else:
            self.ded_free[rel[1]] = True

    def lds_prefetch(self, pi, t, tmp):
        slot = t - NVS
        for i in range(3):
            a.lds(f'ds_read_b128 v[{tmp+4*i}:{tmp+4*i+3}], v3 offset:{slot*3072+i*1024}', ('L', pi, t))

    def group(self, pi, ty, grp, last_group):
        st = ST
        acc, m, l = st, st + 24, st + 25
        s = WK
        sa, sb = WK, WK + 3
        mn, cm, al = WK + 6, WK + 7, WK + 8
        pa, pb = WK + 9, WK + 10
        PA, PB = WK + 12, WK + 14
        two = len(grp) == 2
        ta, ra = self.get_tile(pi, ty, 'K', grp[0], T0)
        if two:
            tb, rb = self.get_tile(pi, ty, 'K', grp[1], T1)
            m_qk2(ta, tb, Q, s)
            self.release(ra); self.release(rb)
        else:
            for i, o in enumerate((0, 4, 8)):
                a.ins(f'v_dot2_f32_bf16 v{s+i}, v{ta+o}, v{Q+o}, 0')
            for k in (1, 2, 3):
                for i, o in enumerate((0, 4, 8)):
                    a.ins(f'v_dot2c_f32_bf16 v{s+i}, v{ta+o+k}, v{Q+o+k}')
            self.release(ra)
        if ty == 'D':
            for t, tmp in zip(grp, (T0, T1)):
                if r_storage('V', t)[0] == 'l':
                    self.lds_prefetch(pi, t, tmp)
        self.try_issue()
        a.ins(f'v_add_f32 v{sa}, v{s}, v{s+1}')
        a.ins(f'v_add_f32 v{sa}, v{sa}, v{s+2}')
        if two:
            a.ins(f'v_add_f32 v{sb}, v{s+3}, v{s+4}')
            a.ins(f'v_add_f32 v{sb}, v{sb}, v{s+5}')
        for pat in ('quad_perm:[1,0,3,2]', 'quad_perm:[2,3,0,1]', 'row_half_mirror'):
            a.ins(f'v_add_f32_dpp v{sa}, v{sa}, v{sa} {pat} {DPP}')
            if two:
                a.ins(f'v_add_f32_dpp v{sb}, v{sb}, v{sb} {pat} {DPP}')
        if grp[-1] == NT_ALL - 1:
            x = sb if two else sa
            a.ins(f'v_add_f32 v{x}, s69, v{x}')
        if two:
            a.ins(f'v_max3_f32 v{mn}, v{m}, v{sa}, v{sb}')
        else:
            a.ins(f'v_max_f32 v{mn}, v{m}, v{sa}')
        a.ins(f'v_cmp_gt_f32 vcc, v{mn}, v{m}')
        SK = newlab('Lsk')
        a.ins(f's_cbranch_vccz {SK}')
        a.ins(f'v_sub_f32 v{al}, v{m}, v{mn}')
        a.ins(f'v_mul_f32 v{al}, s74, v{al}')
        a.ins(f'v_exp_f32 v{al}, v{al}')
        a.ins(f'v_mov_b32 v{m}, v{mn}')
        m_resc(acc, al)
        a.ins(f'v_mul_f32 v{l}, v{al}, v{l}')
        a.label(SK)
        a.ins(f'v_mul_f32 v{cm}, s74, v{m}')
        a.ins(f'v_fma_f32 v{pa}, v{sa}, s74, -v{cm}')
        if two:
            a.ins(f'v_fma_f32 v{pb}, v{sb}, s74, -v{cm}')
        a.ins(f'v_exp_f32 v{pa}, v{pa}')
        if two:
            a.ins(f'v_exp_f32 v{pb}, v{pb}')
        a.ins(f'v_cvt_pk_bf16_f32 v{PA}, v{pa}, 0')
        a.ins(f'v_cvt_pk_bf16_f32 v{PA+1}, 0, v{pa}')
        if two:
            a.ins(f'v_cvt_pk_bf16_f32 v{PB}, v{pb}, 0')
            a.ins(f'v_cvt_pk_bf16_f32 v{PB+1}, 0, v{pb}')
        a.ins(f'v_add_f32 v{l}, v{l}, v{PA+1}')
        if two:
            a.ins(f'v_add_f32 v{l}, v{l}, v{PB+1}')
        for (t, P, tmp) in list(zip(grp, (PA, PB), (T0, T1))):
            tv, rv = self.get_tile(pi, ty, 'V', t, tmp)
            m_pv(tv, P, acc)
            if ty == 'A' and r_storage('V', t)[0] == 'l':
                slot = t - NVS
                for i in range(3):
                    a.lds(f'ds_write_b128 v3, v[{tv+4*i}:{tv+4*i+3}] offset:{slot*3072+i*1024}', ('W', pi, t))
            self.release(rv)
            self.try_issue()

    def publish(self, st, c):
        acc, m, l = st, st + 24, st + 25
        M, u, sc = WK, WK + 1, WK + 2
        a.ins(f'v_max_f32_dpp v{M}, v{m}, v{m} row_ror:8 {DPP}')
        a.ins(f'v_mov_b32 v{u}, v{M}')
        a.ins(f'v_permlane16_swap_b32 v{M}, v{u}')
        a.ins(f'v_max_f32 v{M}, v{M}, v{u}')
        a.ins(f'v_mov_b32 v{u}, v{M}')
        a.ins(f'v_permlane32_swap_b32 v{M}, v{u}')
        a.ins(f'v_max_f32 v{M}, v{M}, v{u}')
        a.ins(f'v_sub_f32 v{sc}, v{m}, v{M}')
        a.ins(f'v_mul_f32 v{sc}, s74, v{sc}')
        a.ins(f'v_exp_f32 v{sc}, v{sc}')
        a.ins(f'v_mul_f32 v{M}, s74, v{M}')
        m_resc(acc, sc)
        a.ins(f'v_mul_f32 v{l}, v{sc}, v{l}')
        a.ins(f'v_add_f32_dpp v{l}, v{l}, v{l} row_ror:8 {DPP}')
        a.ins(f'v_mov_b32 v{u}, v{l}')
        a.ins(f'v_permlane16_swap_b32 v{l}, v{u}')
        a.ins(f'v_add_f32 v{l}, v{l}, v{u}')
        a.ins(f'v_mov_b32 v{u}, v{l}')
        a.ins(f'v_permlane32_swap_b32 v{l}, v{u}')
        a.ins(f'v_add_f32 v{l}, v{l}, v{u}')
        for k in range(12):
            a.ins(f'v_permlane32_swap_b32 v{acc+k}, v{acc+k+12}')
        for k in range(12):
            a.ins(f'v_add_f32 v{acc+k}, v{acc+k}, v{acc+k+12}')
        for k in range(6):
            a.ins(f'v_permlane16_swap_b32 v{acc+k}, v{acc+k+6}')
        for k in range(6):
            a.ins(f'v_add_f32 v{acc+k}, v{acc+k}, v{acc+k+6}')
        for k in range(6):
            a.ins(f'v_add_f32_dpp v{acc+k}, v{acc+k}, v{acc+k} row_ror:8 {DPP}')
        t1, t2 = WK + 3, WK + 4
        for k in range(6):
            a.ins(f'v_add_u32 v{t1}, {k}, v7')
            a.ins(f'v_lshrrev_b32 v{t2}, 3, v{t1}')
            a.ins(f'v_and_b32 v{t1}, 7, v{t1}')
            a.ins(f'v_lshlrev_b32 v{t2}, 6, v{t2}')
            a.ins(f'v_add_u32 v{t1}, v{t1}, v{t2}')
            a.ins(f'v_lshl_add_u32 v{t1}, v{t1}, 2, v4')
            a.lds(f'ds_write_b32 v{t1}, v{acc+k}')
        z = WK + 8
        a.ins(f'v_mov_b32 v{z}, v{M}')
        a.ins(f'v_mov_b32 v{z+1}, v{l}')
        a.ins(f'v_mov_b32 v{z+2}, 0')
        a.ins(f'v_mov_b32 v{z+3}, 0')
        a.ins(f'v_and_b32 v{t1}, 0xffffff1f, v4')
        a.lds(f'ds_write_b128 v{t1}, v[{z}:{z+3}] offset:768')
        a.wait_lg_all()
        a.lds(f'ds_read_b128 v[{z}:{z+3}], v5')
        a.wait_lg_all()
        a.ins(f's_add_u32 s76, s73, {hex(c * PART_C)}')
        set_exec_lanes(49)
        a.vmem(f'buffer_store_dwordx4 v[{z}:{z+3}], v6, s[64:67], s76 offen sc1', ('P', c))
        set_exec_lanes(64)

    def run(self):
        P = self.P
        stamp(0, 78, 252)
        SCAP = int(os.environ.get('SCAP', '24'))
        def fill(n_more):
            done = 0
            while done < n_more:
                before = self.nissued
                tags = [t for t in a.vm if isinstance(t, tuple) and t[0] == 'T']
                if len(tags) + 3 > SCAP:
                    a.wait_vm(tags[2])
                self.try_issue(cap=len(a.vm) + 4)
                if self.nissued == before:
                    break
                done += self.nissued - before
        def snapshot():
            return (self.lqi, self.nissued, list(self.ring_free), self.ring_next, dict(self.ded_free), dict(self.loc), list(a.vm), [e.get('done', False) for e in self.LQ])
        def restore(sn):
            self.lqi, self.nissued = sn[0], sn[1]
            self.ring_free, self.ring_next, self.ded_free, self.loc, a.vm = list(sn[2]), sn[3], dict(sn[4]), dict(sn[5]), list(sn[6])
            for e, d in zip(self.LQ, sn[7]):
                e['done'] = d
        FLAG_LDS = 3 * 40960 + 39936 + 1016
        a.ins(f'v_mov_b32 v250, {FLAG_LDS}')
        a.ins('v_mov_b32 v251, 0')
        a.lds('ds_write_b32 v250, v251')
        startup2a(after_x=lambda: self.try_issue(cap=len(a.vm) + SCAP), st=True)
        sv = list(a.vm)
        L0 = only_wave0_begin()
        startup2b(st=True)
        a.ins(f'v_mov_b32 v250, {FLAG_LDS}')
        a.ins('v_mov_b32 v251, 1')
        a.lds('ds_write_b32 v250, v251')
        only_wave0_end(L0)
        a.vm = sv
        fill(100)
        LF = newlab('Llf'); LD = newlab('Lld')
        smov(75, SPIN_MAX)
        a.ins(f'v_mov_b32 v250, {FLAG_LDS}')
        a.label(LF)
        a.ins('ds_read_b32 v251, v250')
        a.ins('s_waitcnt lgkmcnt(0)')
        a.ins('v_cmp_ne_u32 vcc, 1, v251')
        a.ins(f's_cbranch_vccz {LD}')
        a.ins('s_sleep 1')
        a.ins('s_sub_u32 s75, s75, 1')
        a.ins('s_cmp_lg_u32 s75, 0')
        a.ins(f's_cbranch_scc1 {LF}')
        a.label(LD)
        a.fence_hazards()
        stamp(1, 78, 252)
        a.ins('v_min_u32 v248, 23, v0')
        a.ins('v_lshlrev_b32 v248, 7, v248')
        self.q_issue(P[0][1], P[0][2])
        for pi, (ty, ps, b, tiles) in enumerate(P):
            a.comment(f'---- phase {pi}: {ty} pass{ps} b{b}')
            self.cur_pi = pi
            stamp(2 + 3 * pi, 78, 252)
            self.q_take(ps, b)
            stamp(3 + 3 * pi, 78, 252)
            for k in range(24):
                a.ins(f'v_mov_b32 v{ST+k}, 0')
            a.ins(f'v_mov_b32 v{ST+24}, 0xf149f2ca')
            a.ins(f'v_mov_b32 v{ST+25}, 0')
            gs = groups_of(tiles)
            for g, grp in enumerate(gs):
                if g == len(gs) - 3 and pi + 1 < len(P):
                    self.q_issue(P[pi + 1][1], P[pi + 1][2])
                if g == len(gs) - 4 and pi == 0:
                    flags_addr(250, 2)
                    a.vmem('global_load_dword v251, v250, s[28:29]', 'fl2')
                self.group(pi, ty, grp, g == len(gs) - 1)
            if pi == 0:
                a.wait_vm('fl2')
                FO = newlab('Lfo')
                flags_check(251, 2)
                a.ins(f's_cbranch_vccz {FO}')
                sv = list(a.vm)
                wait_flags(2, 250, plain_first=False)
                a.vm = sv
                a.label(FO)
                a.fence_hazards()
            self.publish(ST, pi)
            stamp(4 + 3 * pi, 78, 252)
            self.try_issue()
        a.ins('s_waitcnt vmcnt(0)')
        a.ins('s_endpgm')

def gen_stream():
    a.label('L_stream')
    startup1()
    a.ins(f's_sub_u32 s4, s2, {NCH}')
    a.ins('s_lshl_b32 s4, s4, 2')
    a.ins('s_add_u32 s4, s4, s3')
    a.ins('s_mul_i32 s5, s4, 2521')
    a.ins('s_lshr_b32 s5, s5, 16')
    a.ins(f's_mul_i32 s6, s5, {WPH}')
    a.ins('s_sub_u32 s6, s4, s6')
    a.ins('s_mul_i32 s7, s6, 39')
    a.ins('s_min_u32 s68, s6, 10')
    a.ins('s_add_u32 s7, s7, s68')
    a.ins('s_cmp_lt_u32 s6, 10')
    a.ins('s_cselect_b32 s68, 40, 39')
    a.ins('s_cselect_b32 s69, 0, 0xff800000')
    a.ins('s_mul_i32 s68, s68, 3072')
    a.ins('s_mul_i32 s70, s5, 3145728')
    a.ins('s_mul_i32 s71, s7, 3072')
    a.ins('s_add_u32 s70, s70, s71')
    for b in range(4):
        a.ins(f's_add_u32 s71, s70, {hex(b * BATCH_STRIDE)}')
        srd_off(srd_k(b), 10, 11, 71, 's68')
        srd_off(srd_v(b), 12, 13, 71, 's68')
    a.ins('s_mul_i32 s72, s5, 384')
    a.ins(f's_add_u32 s72, s72, {hex(Q_OFF)}')
    a.ins(f's_mul_i32 s73, s4, {REC}')
    smov(74, CSCALE)
    a.ins('s_lshl_b32 s78, s4, 8')
    a.ins(f's_add_u32 s78, s78, {hex(STAMP_OFF)}')
    a.ins('v_lshrrev_b32 v1, 3, v0')
    a.ins('v_mul_u32_u24 v1, 384, v1')
    a.ins('v_and_b32 v2, 7, v0')
    a.ins('v_lshlrev_b32 v2, 4, v2')
    a.ins('v_add_u32 v1, v1, v2')
    a.ins('s_mul_i32 s71, s3, 40960')
    a.ins('v_lshlrev_b32 v6, 4, v0')
    a.ins('v_add_u32 v3, s71, v6')
    a.ins('s_add_u32 s71, s71, 39936')
    a.ins('v_add_u32 v5, s71, v6')
    a.ins('v_lshlrev_b32 v4, 1, v2')
    a.ins('v_add_u32 v4, s71, v4')
    a.ins('v_bfe_u32 v7, v0, 4, 1')
    a.ins('v_mul_u32_u24 v7, 6, v7')
    a.ins('v_bfe_u32 v254, v0, 5, 1')
    a.ins('v_mul_u32_u24 v254, 12, v254')
    a.ins('v_add_u32 v7, v7, v254')
    Stream().run()

XS = 0
RED = 5120
XRES = 25600
X1 = 35840
WL = 38912
X1A = 100352
W1 = 128

def vm_auto(text):
    if len(a.vm) >= 60:
        a.ins('s_waitcnt vmcnt(30)')
        a.vm = a.vm[-30:]
    a.vmem(text, None)

def wave_sum(t, u):
    for pat in ('quad_perm:[1,0,3,2]', 'quad_perm:[2,3,0,1]', 'row_half_mirror', 'row_mirror'):
        a.ins(f'v_add_f32_dpp v{t}, v{t}, v{t} {pat} {DPP}')
    a.ins(f'v_mov_b32 v{u}, v{t}')
    a.ins(f'v_permlane16_swap_b32 v{t}, v{u}')
    a.ins(f'v_add_f32 v{t}, v{t}, v{u}')
    a.ins(f'v_mov_b32 v{u}, v{t}')
    a.ins(f'v_permlane32_swap_b32 v{t}, v{u}')
    a.ins(f'v_add_f32 v{t}, v{t}, v{u}')

def bf16r(d, s):
    a.ins(f'v_cvt_pk_bf16_f32 v{d}, 0, v{s}')

def poll_indicator(voff, nl, sreg):
    L = newlab('Lpi'); D = newlab('Lpd')
    smov(75, SPIN_MAX)
    set_exec_lanes(nl)
    a.label(L)
    a.ins(f'buffer_load_dword v127, v{voff}, s[64:67], s{sreg} offen sc1')
    a.ins('s_waitcnt vmcnt(0)')
    if os.environ.get('POLL', 'any') == 'any':
        a.ins('v_cmp_ne_u32 vcc, -1, v127')
        a.ins(f's_cbranch_vccnz {D}')
    else:
        a.ins('v_cmp_eq_u32 vcc, -1, v127')
        a.ins(f's_cbranch_vccz {D}')
    a.ins(f's_sleep {os.environ.get("PSLEEP", "3")}')
    a.ins('s_sub_u32 s75, s75, 1')
    a.ins('s_cmp_lg_u32 s75, 0')
    a.ins(f's_cbranch_scc1 {L}')
    a.label(D)
    set_exec_lanes(64)
    a.vm = []

def gather_sel(n, emit_load, reg_of, init_mask=None):
    L = newlab('Lgs'); D = newlab('Lgsd')
    if init_mask is None:
        smov(91, (1 << n) - 1)
    else:
        init_mask()
    smov(75, SPIN_MAX)
    a.label(L)
    for i in range(n):
        K = newlab('Lgk')
        a.ins(f's_bitcmp1_b32 s91, {i}')
        a.ins(f's_cbranch_scc0 {K}')
        emit_load(i)
        a.label(K)
    a.ins('s_waitcnt vmcnt(0)')
    for i in range(n):
        K = newlab('Lgc')
        r = reg_of(i)
        a.ins(f's_bitcmp1_b32 s91, {i}')
        a.ins(f's_cbranch_scc0 {K}')
        a.ins(f'v_max3_u32 v127, v{r}, v{r+1}, v{r+2}')
        a.ins(f'v_max_u32 v127, v127, v{r+3}')
        a.ins('v_cmp_eq_u32 vcc, -1, v127')
        a.ins(f's_cbranch_vccnz {K}')
        a.ins(f's_bitset0_b32 s91, {i}')
        a.label(K)
    a.ins('s_cmp_eq_u32 s91, 0')
    a.ins(f's_cbranch_scc1 {D}')
    a.ins('s_sub_u32 s75, s75, 1')
    a.ins('s_cmp_lg_u32 s75, 0')
    a.ins(f's_cbranch_scc1 {L}')
    a.label(D)
    a.fence_hazards()

def check_regs(regs, w):
    regs = list(regs)
    a.ins(f'v_max3_u32 v{w}, v{regs[0]}, v{regs[1]}, v{regs[2]}')
    k = 3
    while k < len(regs):
        k2 = min(k + 1, len(regs) - 1)
        a.ins(f'v_max3_u32 v{w}, v{w}, v{regs[k]}, v{regs[k2]}')
        k += 2
    a.ins(f'v_cmp_eq_u32 vcc, -1, v{w}')

def gather_ar(sreg):
    poll_indicator(8, 8, sreg)
    def ld(i):
        a.ins(f's_add_u32 s76, s{sreg}, {(i // 4) * 4096}')
        off = f' offset:{(i % 4) * 1024}' if i % 4 else ''
        a.ins(f'buffer_load_dwordx4 v[{16+4*i}:{19+4*i}], v9, s[64:67], s76 offen{off} sc1')
    gather_sel(20, ld, lambda i: 16 + 4 * i)
    for grp in range(5):
        for k in range(1, 4):
            for e in range(4):
                a.ins(f'v_add_f32 v{16+4*grp+e}, v{16+4*grp+e}, v{16+4*(grp+5*k)+e}')
    for grp in range(5):
        a.lds(f'ds_write_b128 v10, v[{16+4*grp}:{19+4*grp}] offset:{grp*1024}')
    a.barrier()

def ar_sum_wave0():
    for wv in range(8):
        for k in range(5):
            r = 32 + (wv * 5 + k) * 2
            a.lds(f'ds_read_b64 v[{r}:{r+1}], v12 offset:{RED + wv*2560 + k*512}')
    a.wait_lg_all()
    for k in range(5):
        for e in range(2):
            d = 16 + 2 * k + e
            a.ins(f'v_add_f32 v{d}, v{32+2*k+e}, v{32+(5+k)*2+e}')
    for p in range(2, 8):
        for k in range(5):
            for e in range(2):
                d = 16 + 2 * k + e
                a.ins(f'v_add_f32 v{d}, v{d}, v{32+(5*p+k)*2+e}')

def residual(areg, src_off):
    for k in range(5):
        a.lds(f'ds_read_b64 v[{32+2*k}:{33+2*k}], v{areg} offset:{src_off + k*512}')
    for i in range(10):
        bf16r(16 + i, 16 + i)
    a.wait_lg_all()
    for i in range(10):
        a.ins(f'v_add_f32 v{16+i}, v{16+i}, v{32+i}')
    for i in range(10):
        bf16r(16 + i, 16 + i)

def store_x(areg, dst_off):
    for k in range(5):
        a.lds(f'ds_write_b64 v{areg}, v[{16+2*k}:{17+2*k}] offset:{dst_off + k*512}')

def layernorm_to_xs():
    t, u, mean, var = 32, 33, 34, 35
    a.ins(f'v_add_f32 v{t}, v16, v17')
    for i in range(2, 10):
        a.ins(f'v_add_f32 v{t}, v{t}, v{16+i}')
    wave_sum(t, u)
    a.ins(f'v_mul_f32 v{mean}, {hex(f32(1.0/640))}, v{t}')
    for i in range(10):
        a.ins(f'v_sub_f32 v{40+i}, v{16+i}, v{mean}')
    a.ins(f'v_mul_f32 v{t}, v40, v40')
    for i in range(1, 10):
        a.ins(f'v_fmac_f32 v{t}, v{40+i}, v{40+i}')
    wave_sum(t, u)
    a.ins(f'v_mul_f32 v{var}, {hex(f32(1.0/640))}, v{t}')
    bf16r(mean, mean)
    bf16r(var, var)
    a.ins(f'v_add_f32 v{var}, {hex(f32(1e-5))}, v{var}')
    bf16r(var, var)
    a.ins(f'v_sqrt_f32 v{var}, v{var}')
    bf16r(var, var)
    a.ins(f'v_rcp_f32 v{u}, v{var}')
    for i in range(10):
        a.ins(f'v_sub_f32 v{40+i}, v{16+i}, v{mean}')
    for i in range(10):
        bf16r(40 + i, 40 + i)
    for i in range(10):
        a.ins(f'v_mul_f32 v{50+i}, v{40+i}, v{u}')
    for i in range(10):
        a.ins(f'v_fma_f32 v{60+i}, -v{50+i}, v{var}, v{40+i}')
    for i in range(10):
        a.ins(f'v_fma_f32 v{50+i}, v{60+i}, v{u}, v{50+i}')
    for k in range(5):
        a.ins(f'v_cvt_pk_bf16_f32 v{72+k}, v{50+2*k}, v{51+2*k}')
        a.lds(f'ds_write_b32 v119, v{72+k} offset:{XS + k*256}')

def only_wave0_begin():
    L = newlab('Lw0')
    a.ins('s_cmp_lg_u32 s3, 0')
    a.ins(f's_cbranch_scc1 {L}')
    return L

def only_wave0_end(L):
    a.wait_lg_all()
    a.label(L)
    a.fence_hazards()

def gemv_rows(nrows, xaddr, wsrc, acc=56):
    for k in range(8):
        a.ins(f'v_mov_b32 v{acc+k}, 0')
    B = 4
    XB = (16, 24); WB = (64, 80)
    nb = nrows // B
    def issue(j):
        r0 = j * B
        for k in range(B // 2):
            a.lds(f'ds_read_b128 v[{XB[j%2]+4*k}:{XB[j%2]+4*k+3}], v{xaddr} offset:{(r0+2*k)*8}', ('g', j))
        for k in range(B):
            ws = wsrc(r0 + k)
            if ws[0] == 'l':
                a.lds(f'ds_read_b128 v[{WB[j%2]+4*k}:{WB[j%2]+4*k+3}], v{ws[1]} offset:{ws[2]}', ('g', j))
    issue(0)
    for j in range(nb):
        if j + 1 < nb:
            issue(j + 1)
        a.wait_lg(('g', j))
        for k in range(B):
            ws = wsrc(j * B + k)
            x = XB[j % 2] + 2 * k
            if ws[0] == 'a':
                tmp = 48 + 4 * (k % 2)
                m_ac4(tmp, ws[1])
                m_gv8(tmp, x, acc)
            elif ws[0] == 'v':
                m_gv8(ws[1], x, acc)
            else:
                m_gv8(WB[j % 2] + 4 * k, x, acc)

def write_red(addr, acc=56):
    set_exec_lanes(60)
    a.lds(f'ds_write_b128 v{addr}, v[{acc}:{acc+3}]')
    a.lds(f'ds_write_b128 v{addr}, v[{acc+4}:{acc+7}] offset:16')
    set_exec_lanes(64)
    a.barrier()

def reduce3_publish(sreg):
    L = newlab('Lr3')
    a.ins('s_cmp_eq_u32 s3, 3')
    a.ins(f's_cbranch_scc1 {L}')
    M = newlab('Lr3m')
    a.ins('s_cmp_lg_u32 s3, 2')
    a.ins(f's_cbranch_scc1 {M}')
    set_exec_lanes(32)
    a.label(M)
    for r in range(3):
        a.lds(f'ds_read_b128 v[{16+4*r}:{19+4*r}], v15 offset:{RED + r*2560}')
    a.wait_lg_all()
    for e in range(4):
        a.ins(f'v_add_f32 v{16+e}, v{16+e}, v{20+e}')
    for e in range(4):
        a.ins(f'v_add_f32 v{16+e}, v{16+e}, v{24+e}')
    a.ins(f's_add_u32 s76, s70, s{sreg}')
    a.ins('buffer_store_dwordx4 v[16:19], v15, s[64:67], s76 offen sc1')
    set_exec_lanes(64)
    a.label(L)
    a.fence_hazards()


def prep_blocks(blocks):
    TB = (16, 48); U = 80
    def issue(i):
        blocks[i][0](TB[i % 2], ('blk', i))
    issue(0)
    for i, (em, dest) in enumerate(blocks):
        if i + 1 < len(blocks):
            issue(i + 1)
        a.wait_vm(('blk', i))
        T = TB[i % 2]
        out = dest[1] if dest[0] == 'v' else U
        for d in range(4):
            for h in range(2):
                c = 2 * d + h
                for p in range(4):
                    a.ins(f'v_perm_b32 v{out+4*c+p}, v{T+4*(2*p+1)+d}, v{T+4*(2*p)+d}, s{62+h}')
        if dest[0] == 'a':
            for k in range(32):
                a.ins(f'v_accvgpr_write_b32 a{dest[1]+k}, v{U+k}')
        elif dest[0] in ('l', 'l?'):
            LS = None
            if dest[0] == 'l?':
                LS = newlab('Lpb')
                a.ins('s_cmp_ge_u32 s3, 2')
                a.ins(f's_cbranch_scc1 {LS}')
            for c in range(8):
                a.lds(f'ds_write_b128 v{dest[1]}, v[{U+4*c}:{U+4*c+3}] offset:{dest[2]+c*1024}')
            a.wait_lg_all()
            if LS:
                a.label(LS)
                a.fence_hazards()
    a.wait_lg_all()

def stage_block(dst, areg, off, tag):
    for c in range(8):
        a.lds(f'ds_read_b128 v[{dst+4*c}:{dst+4*c+3}], v{areg} offset:{off+c*1024}', tag)

def mfma_block(acc, x, kind, base, first):
    for c in range(8):
        cc = '0' if first else f'v[{acc+4*c}:{acc+4*c+3}]'
        a.ins(f'v_mfma_f32_16x16x32_bf16 v[{acc+4*c}:{acc+4*c+3}], v[{x}:{x+3}], {kind}[{base+4*c}:{base+4*c+3}], {cc}')

def extract(acc, E):
    for c in range(8):
        a.ins(f'v_mov_b32 v{E+c}, v{acc+4*c}')

def xread(dst, areg, off, tag='x'):
    a.lds(f'ds_read_b128 v[{dst}:{dst+3}], v{areg} offset:{off}', tag)

def mfma_consts():
    smov(62, 0x05040100)
    smov(63, 0x07060302)
    a.ins('v_and_b32 v3, 15, v0')
    a.ins('v_lshrrev_b32 v4, 4, v0')
    a.ins('v_lshlrev_b32 v112, 4, v4')
    a.ins(f'v_add_u32 v112, {XS}, v112')
    a.ins('s_lshl_b32 s4, s3, 6')
    a.ins('v_add_u32 v113, s4, v112')
    a.ins('s_mul_i32 s4, s3, 320')
    a.ins('v_add_u32 v114, s4, v112')

def direct_and_cb4_publish(sreg):
    pass

def publish_own(E, sreg):
    a.ins(f's_add_u32 s76, s70, s{sreg}')
    set_exec_lanes(16)
    a.ins(f'buffer_store_dwordx4 v[{E}:{E+3}], v115, s[64:67], s76 offen sc1')
    a.ins(f'buffer_store_dwordx4 v[{E+4}:{E+7}], v115, s[64:67], s76 offen offset:16 sc1')
    set_exec_lanes(64)

def publish_cb4(E, sreg):
    set_exec_lanes(16)
    a.lds(f'ds_write_b128 v116, v[{E}:{E+3}]')
    a.lds(f'ds_write_b128 v116, v[{E+4}:{E+7}] offset:16')
    set_exec_lanes(64)
    a.barrier()
    L0 = only_wave0_begin()
    for w in range(4):
        a.lds(f'ds_read_b128 v[{16+4*w}:{19+4*w}], v13 offset:{RED + w*512}')
    a.wait_lg_all()
    for w in range(1, 4):
        for e in range(4):
            a.ins(f'v_add_f32 v{16+e}, v{16+e}, v{16+4*w+e}')
    a.ins(f's_add_u32 s76, s70, s{sreg}')
    set_exec_lanes(32)
    a.ins('buffer_store_dwordx4 v[16:19], v13, s[64:67], s76 offen offset:2048 sc1')
    set_exec_lanes(64)
    only_wave0_end(L0)

def combine_records(n, first_reg, Mv, Lv, out):
    for k in range(n):
        a.ins(f'v_readlane_b32 s{40+k}, v{first_reg+4*k}, 48')
        a.ins(f'v_readlane_b32 s{48+k}, v{first_reg+4*k+1}, 48')
    a.ins(f'v_mov_b32 v{Mv}, s40')
    for k in range(1, n):
        a.ins(f'v_max_f32 v{Mv}, s{40+k}, v{Mv}')
    E = 100
    for k in range(n):
        a.ins(f'v_sub_f32 v{E+k}, s{40+k}, v{Mv}')
    for k in range(n):
        a.ins(f'v_exp_f32 v{E+k}, v{E+k}')
    a.ins(f'v_mul_f32 v{Lv}, s48, v{E}')
    for k in range(1, n):
        a.ins(f'v_fma_f32 v{Lv}, v{E+k}, s{48+k}, v{Lv}')
    for e in range(4):
        a.ins(f'v_mul_f32 v{out+e}, v{E}, v{first_reg+e}')
    for k in range(1, n):
        for e in range(4):
            a.ins(f'v_fma_f32 v{out+e}, v{E+k}, v{first_reg+4*k+e}, v{out+e}')

def chain_common_init():
    a.ins('s_lshl_b32 s4, s3, 6')
    a.ins('v_add_u32 v15, s4, v0')
    a.ins('v_lshlrev_b32 v15, 4, v15')
    for k in range(4):
        a.ins(f'v_mov_b32 v{16+k}, -1')
    L1 = newlab('Lst1')
    a.ins('s_cmp_ge_u32 s2, 12')
    a.ins(f's_cbranch_scc1 {L1}')
    a.ins('s_lshl_b32 s76, s2, 12')
    a.ins(f's_add_u32 s76, s76, {hex(Q_OFF)}')
    a.ins('buffer_store_dwordx4 v[16:19], v15, s[64:67], s76 offen sc1')
    a.ins('s_waitcnt vmcnt(0)')
    a.ins('s_barrier')
    set_flag(1)
    a.label(L1)
    a.fence_hazards()
    startup1()
    startup2a()
    L0 = only_wave0_begin()
    startup2b()
    only_wave0_end(L0)
    a.barrier()
    a.ins(f's_mul_i32 s4, s2, {ARM_PER}')
    for k in range(ARM_N):
        LS = newlab('Lsa')
        a.ins(f's_add_u32 s76, s4, {k*4096}')
        a.ins(f's_sub_u32 s5, s76, {hex(Q_OFF)}')
        a.ins('s_cmp_lt_u32 s5, 49152')
        a.ins(f's_cbranch_scc1 {LS}')
        a.ins('buffer_store_dwordx4 v[16:19], v15, s[64:67], s76 offen sc1')
        a.label(LS)
    a.ins('s_waitcnt vmcnt(0)')
    a.ins('s_barrier')
    set_flag(2)
    a.vm = []
    a.ins('s_lshl_b32 s4, s3, 6')
    a.ins('v_add_u32 v1, s4, v0')
    a.ins('v_lshlrev_b32 v15, 4, v1')
    a.ins('v_min_u32 v2, 59, v0')
    a.ins('s_mul_i32 s4, s3, 60')
    a.ins('v_add_u32 v2, s4, v2')
    a.ins('v_lshlrev_b32 v14, 4, v2')
    a.ins(f'v_add_u32 v14, {WL}, v14')
    a.ins('v_add_u32 v120, 61440, v14')
    a.ins('s_lshl_b32 s4, s3, 3')
    a.ins('v_add_u32 v8, s4, v0')
    a.ins('v_mul_u32_u24 v8, 2560, v8')
    a.ins('v_add_u32 v8, 2556, v8')
    a.ins('s_mul_i32 s4, s3, 20480')
    a.ins('v_lshlrev_b32 v13, 4, v0')
    a.ins('v_add_u32 v9, s4, v13')
    a.ins(f's_mul_i32 s4, s3, 5120')
    a.ins(f's_add_u32 s4, s4, {RED}')
    a.ins('v_add_u32 v10, s4, v13')
    a.ins('v_lshlrev_b32 v12, 3, v0')
    a.ins('s_lshl_b32 s4, s2, 2')
    a.ins('s_add_u32 s4, s4, s3')
    a.ins('s_lshl_b32 s77, s4, 9')
    a.ins(f's_add_u32 s77, s77, {hex(STAMP_OFF + 832*256)}')
    stamp(120, 77, 122)

def arm_arrive():
    a.wait_vm('arm')
    a.ins('s_barrier')
    L = only_wave0_begin()
    a.ins('v_mov_b32 v124, 0')
    a.ins('v_mov_b32 v125, 1')
    set_exec_lanes(1)
    a.vmem('global_atomic_add v124, v125, s[28:29] sc1', None)
    set_exec_lanes(64)
    a.label(L)
    a.fence_hazards()

def load_xres():
    L = only_wave0_begin()
    srd(96, 8, 9, 4 * 1280)
    a.ins('v_lshlrev_b32 v127, 2, v0')
    for b in range(4):
        smov(76, b * 1280)
        for k in range(5):
            a.ins(f'buffer_load_dword v{16+b*5+k}, v127, s[96:99], s76 offen offset:{k*256}')
    a.ins('s_waitcnt vmcnt(0)')
    for b in range(4):
        for k in range(5):
            r = 16 + b * 5 + k
            d = 40 + 2 * (b * 5 + k)
            a.ins(f'v_lshlrev_b32 v{d}, 16, v{r}')
            a.ins(f'v_and_b32 v{d+1}, 0xffff0000, v{r}')
            a.lds(f'ds_write_b64 v12, v[{d}:{d+1}] offset:{XRES + b*2560 + k*512}')
    only_wave0_end(L)


def gen_acu():
    a.label('L_acu')
    chain_common_init()
    mfma_consts()
    a.ins('s_mul_i32 s70, s2, 2560')
    a.ins('v_lshlrev_b32 v119, 2, v0')
    a.ins('s_mul_i32 s4, s3, 24576')
    a.ins(f's_add_u32 s4, s4, {WL}')
    a.ins('v_add_u32 v14, s4, v13')
    a.ins('s_and_b32 s4, s3, 1')
    a.ins('s_lshl_b32 s4, s4, 13')
    a.ins(f's_add_u32 s4, s4, {WL + 4*24576}')
    a.ins('v_add_u32 v120, s4, v13')
    a.ins('v_mul_u32_u24 v125, 10240, v4')
    a.ins('v_lshl_add_u32 v125, v3, 4, v125')
    a.ins('v_subrev_u32 v127, 6, v3')
    a.ins('v_min_u32 v127, 5, v127')
    a.ins('v_cmp_gt_u32 vcc, 6, v3')
    a.ins('v_cndmask_b32 v127, v127, v3, vcc')
    a.ins('v_mul_u32_u24 v126, 24576, v4')
    a.ins('v_lshl_add_u32 v126, v127, 4, v126')
    a.ins('s_mov_b64 s[88:89], vcc')
    a.ins('s_not_b64 s[90:91], vcc')
    a.ins('s_mul_i32 s4, s2, 245760')
    srd_off(96, 16, 17, 4, 245760)
    a.ins('s_mul_i32 s4, s2, 96')
    a.ins(f's_sub_u32 s5, {640*3072}, s4')
    srd_off(80, 20, 21, 4, 's5')
    srd_off(84, 22, 23, 4, 's5')
    a.ins('s_mul_i32 s4, s2, 61440')
    srd_off(92, 24, 25, 4, 61440)
    a.ins('s_lshl_b32 s40, s3, 8')
    a.ins('s_mul_i32 s41, s3, 40960')
    a.ins('s_add_u32 s41, s41, 1024')
    a.ins(f's_mul_i32 s42, s3, {160*3072}')
    def ld1280(srd_, sbase, const):
        def em(T, tag):
            for e in range(8):
                if e % 3 == 0:
                    a.ins(f's_add_u32 s76, s{sbase}, {const + (e // 3) * 3840}')
                off = f' offset:{(e % 3) * 1280}' if e % 3 else ''
                a.vmem(f'buffer_load_dwordx4 v[{T+4*e}:{T+4*e+3}], v125, s[{srd_}:{srd_+3}], s76 offen{off} nt', tag)
        return em
    def ldgu(i):
        def em(T, tag):
            for e in range(8):
                a.ins(f's_add_u32 s76, s42, {(32 * i + e) * 3072}')
                a.ins('s_mov_b64 exec, s[88:89]')
                a.vmem(f'buffer_load_dwordx4 v[{T+4*e}:{T+4*e+3}], v126, s[80:83], s76 offen nt', tag)
                a.ins('s_mov_b64 exec, s[90:91]')
                a.vmem(f'buffer_load_dwordx4 v[{T+4*e}:{T+4*e+3}], v126, s[84:87], s76 offen nt', tag)
            a.ins('s_mov_b64 exec, -1')
        return em
    blocks = []
    for ks in range(6):
        blocks.append((ld1280(96, 40, ks * 40960), ('a', 32 * ks)))
    blocks.append((ld1280(96, 41, 0), ('a', 192)))
    blocks.append((ld1280(96, 41, 4 * 40960), ('a', 224)))
    for i in range(4):
        blocks.append((ldgu(i), ('v', W1 + 32 * i)))
    blocks.append((ldgu(4), ('l', 14, 0)))
    blocks.append((ld1280(92, 40, 0), ('l', 14, 8192)))
    blocks.append((ld1280(92, 40, 40960), ('l', 14, 16384)))
    blocks.append((ld1280(92, 41, 0), ('l?', 120, 0)))
    prep_blocks(blocks)
    load_xres()
    a.ins('s_lshl_b32 s4, s3, 9')
    a.ins('v_lshlrev_b32 v115, 5, v3')
    a.ins('v_add_u32 v115, s4, v115')
    a.ins(f'v_add_u32 v116, {RED}, v115')
    a.ins('s_mul_i32 s4, s3, 384')
    a.ins('v_lshlrev_b32 v11, 5, v3')
    a.ins('v_add_u32 v11, s4, v11')
    a.ins(f'v_add_u32 v11, {RED}, v11')
    a.barrier()
    a.ins('v_lshlrev_b32 v117, 2, v0')
    a.ins('v_add_u32 v117, s3, v117')
    a.ins('v_min_u32 v117, 25, v117')
    a.ins(f'v_mul_u32_u24 v117, {REC}, v117')
    a.ins('v_add_u32 v117, 772, v117')
    a.ins(f's_mul_i32 s71, s2, {WPH*REC}')
    a.ins(f's_mul_i32 s72, s3, {REC}')
    a.ins('s_add_u32 s72, s72, s71')
    a.ins(f's_mul_i32 s4, s3, {REC}')
    a.ins(f's_add_u32 s4, s4, {RED}')
    a.ins('v_add_u32 v118, s4, v13')
    a.ins('v_add_u32 v117, s71, v117')
    wait_flags(2, 126)
    order = 0
    for i, (ly, b) in enumerate(CHAIN_ORDER):
        order |= (ly * 4 + b) << (4 * i)
    tab = 0
    for i, k in enumerate(CHAIN_ORDER):
        sg = CHAIN_SEGS[k]
        assert 2 <= len(sg) <= 3
        e = sg[0] | (sg[1] << 5) | ((sg[2] if len(sg) > 2 else 0) << 10) | ((1 if len(sg) > 2 else 0) << 15)
        tab |= e << (16 * i)
    for w in range(4):
        smov(56 + w, (tab >> (32 * w)) & 0xffffffff)
    a.ins('s_mov_b32 s78, 0')
    a.label('L_aloop')
    a.fence_hazards()
    if True:
        a.ins('s_lshl_b32 s4, s78, 2')
        a.ins(f's_lshr_b32 s79, {hex(order)}, s4')
        a.ins('s_and_b32 s79, s79, 15')
        a.ins(f's_mul_i32 s81, s79, {2*AR_SZ}')
        a.ins(f's_add_u32 s81, s81, {hex(AR_OFF)}')
        a.ins(f's_add_u32 s82, s81, {AR_SZ}')
        a.ins('s_and_b32 s83, s79, 3')
        a.ins('s_mul_i32 s84, s83, 1280')
        a.ins('s_mul_i32 s4, s83, 2560')
        a.ins('v_add_u32 v121, s4, v12')
        a.ins('s_lshr_b32 s85, s79, 2')
        a.ins(f's_add_u32 s4, s4, {X1A}')
        a.ins('v_add_u32 v124, s4, v12')
        LD = newlab('Ldf')
        a.ins('s_cmp_eq_u32 s85, 0')
        a.ins(f's_cbranch_scc1 {LD}')
        L0 = only_wave0_begin()
        a.ins('s_mul_i32 s90, s83, 2560')
        a.ins(f's_add_u32 s90, s90, {hex(X2_OFF)}')
        LX = newlab('Lx2'); LXD = newlab('Lx2d')
        smov(75, SPIN_MAX)
        a.label(LX)
        for k in range(5):
            a.ins(f'buffer_load_dwordx2 v[{16+2*k}:{17+2*k}], v12, s[64:67], s90 offen offset:{k*512} sc1')
        a.ins('s_waitcnt vmcnt(0)')
        check_regs(range(16, 26), 127)
        a.ins(f's_cbranch_vccz {LXD}')
        a.ins('s_sleep 2')
        a.ins('s_sub_u32 s75, s75, 1')
        a.ins('s_cmp_lg_u32 s75, 0')
        a.ins(f's_cbranch_scc1 {LX}')
        a.label(LXD)
        store_x(121, XRES)
        only_wave0_end(L0)
        a.label(LD)
        a.fence_hazards()
        a.ins('s_lshl_b32 s88, s78, 6')
        stamp(0, 77, 122, 88)
        a.ins('s_and_b32 s4, s78, 3')
        a.ins('s_lshl_b32 s4, s4, 4')
        a.ins('s_cmp_lt_u32 s78, 4')
        a.ins('s_cselect_b64 s[60:61], s[56:57], s[58:59]')
        a.ins('s_lshr_b64 s[60:61], s[60:61], s4')
        a.ins('s_and_b32 s87, s60, 0x7fff')
        a.ins('s_bfe_u32 s89, s60, 0x1000f')
        a.ins('s_add_u32 s89, s89, 2')
        a.ins('v_mov_b32 v44, 0xf149f2ca')
        for e in range(1, 4):
            a.ins(f'v_mov_b32 v{44+e}, 0')
        a.label('L_aseg')
        a.fence_hazards()
        a.ins('s_and_b32 s80, s87, 31')
        a.ins('s_lshr_b32 s87, s87, 5')
        a.ins(f's_mul_i32 s80, s80, {PART_C}')
        a.ins('s_add_u32 s86, s72, s80')
        poll_indicator(117, 7, 80)
        stamp(1, 77, 122, 88)
        a.ins('v_mov_b32 v40, 0xf149f2ca')
        for e in range(1, 4):
            a.ins(f'v_mov_b32 v{40+e}, 0')
        set_exec_lanes(49)
        def ld1(k):
            a.ins(f's_add_u32 s76, s86, {k * 4 * REC}')
            a.ins(f'buffer_load_dwordx4 v[{16+4*k}:{19+4*k}], v13, s[64:67], s76 offen sc1')
        def im():
            a.ins('s_cmp_ge_u32 s3, 2')
            a.ins('s_cselect_b32 s91, 63, 127')
        gather_sel(7, ld1, lambda k: 16 + 4 * k, im)
        set_exec_lanes(64)
        combine_records(8, 16, 48, 49, 52)
        a.ins('s_mov_b32 exec_lo, 0', dst=[], src=[])
        a.ins('s_mov_b32 exec_hi, 0x10000', dst=[], src=[])
        a.ins('v_mov_b32 v52, v48')
        a.ins('v_mov_b32 v53, v49')
        set_exec_lanes(64)
        for e in range(4):
            a.ins(f'v_mov_b32 v{44+e}, v{52+e}')
        a.ins('s_sub_u32 s89, s89, 1')
        a.ins('s_cmp_lg_u32 s89, 0')
        a.ins('s_cbranch_scc1 L_aseg')
        set_exec_lanes(49)
        a.lds('ds_write_b128 v118, v[52:55]')
        set_exec_lanes(64)
        a.barrier()
        L0 = only_wave0_begin()
        for k in range(4):
            a.lds(f'ds_read_b128 v[{16+4*k}:{19+4*k}], v13 offset:{RED + k*REC}')
        a.wait_lg_all()
        combine_records(4, 16, 48, 49, 52)
        a.ins('v_rcp_f32 v50, v49')
        for e in range(4):
            a.ins(f'v_mul_f32 v{52+e}, v{52+e}, v50')
        a.ins('v_cvt_pk_bf16_f32 v56, v52, v53')
        a.ins('v_cvt_pk_bf16_f32 v57, v54, v55')
        a.ins('s_mov_b32 exec_lo, 0', dst=[], src=[])
        a.ins('s_mov_b32 exec_hi, 0xffff0000', dst=[], src=[])
        a.ins('v_mov_b32 v56, 0')
        a.ins('v_mov_b32 v57, 0')
        set_exec_lanes(64)
        a.lds(f'ds_write_b64 v12, v[56:57] offset:{XS}')
        only_wave0_end(L0)
        a.barrier()
        stamp(2, 77, 122, 88)
        for ks in range(6):
            xread(80 + 4 * ks, 112, 64 * ks)
        xread(104, 113, 0)
        xread(108, 113, 256)
        a.wait_lg_all()
        mfma_block(48, 104, 'a', 192, True)
        mfma_block(48, 108, 'a', 224, False)
        for ks in range(6):
            mfma_block(16, 80 + 4 * ks, 'a', 32 * ks, ks == 0)
        extract(48, 100)
        extract(16, 92)
        publish_own(92, 81)
        publish_cb4(100, 81)
        stamp(3, 77, 122, 88)
        gather_ar(81)
        stamp(4, 77, 122, 88)
        L0 = only_wave0_begin()
        ar_sum_wave0()
        residual(121, XRES)
        layernorm_to_xs()
        only_wave0_end(L0)
        a.barrier()
        stamp(5, 77, 122, 88)
        stage_block(48, 14, 0, 'st')
        for i in range(5):
            xread(80 + 4 * i, 114, 64 * i)
        a.wait_lg_all()
        for i in range(4):
            mfma_block(16, 80 + 4 * i, 'v', W1 + 32 * i, i == 0)
        mfma_block(16, 96, 'v', 48, False)
        stage_block(48, 14, 8192, 'st5')
        extract(16, 100)
        set_exec_lanes(12)
        a.lds('ds_write_b128 v11, v[100:103]')
        a.lds('ds_write_b128 v11, v[104:107] offset:16')
        set_exec_lanes(64)
        a.barrier()
        L0 = only_wave0_begin()
        for r in range(4):
            a.lds(f'ds_read_b32 v{16+r}, v119 offset:{RED + r*384}')
            a.lds(f'ds_read_b32 v{36+r}, v119 offset:{RED + r*384 + 192}')
        a.wait_lg_all()
        for r in range(1, 4):
            a.ins(f'v_add_f32 v16, v16, v{16+r}')
            a.ins(f'v_add_f32 v36, v36, v{36+r}')
        bf16r(16, 16); bf16r(36, 36)
        a.ins('v_mul_f32 v17, v16, v16')
        a.ins('v_mul_f32 v17, v17, v16')
        a.ins(f'v_mov_b32 v18, {hex(f32(0.044715))}')
        a.ins('v_fma_f32 v17, v17, v18, v16')
        a.ins(f'v_mul_f32 v17, {hex(f32(2*0.7978845608028654*math.log2(math.e)))}, v17')
        a.ins('v_exp_f32 v17, v17')
        a.ins('v_add_f32 v17, 1.0, v17')
        a.ins('v_rcp_f32 v17, v17')
        a.ins('v_fma_f32 v17, v17, -2.0, 1.0')
        a.ins('v_add_f32 v17, 1.0, v17')
        a.ins('v_mul_f32 v17, v17, v16')
        a.ins('v_mul_f32 v17, 0.5, v17')
        bf16r(17, 17)
        a.ins('v_mul_f32 v17, v17, v36')
        a.ins('v_cvt_pk_bf16_f32 v18, v17, 0')
        a.ins('v_mov_b32 v19, 0')
        a.ins('s_mov_b32 exec_lo, 0', dst=[], src=[])
        a.ins('s_mov_b32 exec_hi, 0xffff0000', dst=[], src=[])
        a.ins('v_mov_b32 v18, 0')
        set_exec_lanes(64)
        a.ins('v_lshlrev_b32 v20, 1, v0')
        a.lds(f'ds_write_b16 v20, v18 offset:{XS}')
        a.lds(f'ds_write_b16 v20, v19 offset:{XS + 128}')
        only_wave0_end(L0)
        a.barrier()
        stamp(6, 77, 122, 88)
        xread(80, 112, 0)
        xread(84, 112, 64)
        xread(88, 113, 0)
        a.wait_lg_all()
        mfma_block(16, 80, 'v', 48, True)
        stage_block(48, 14, 16384, 'st5b')
        a.wait_lg_all()
        mfma_block(16, 84, 'v', 48, False)
        stage_block(48, 120, 0, 'st5c')
        extract(16, 92)
        publish_own(92, 82)
        a.wait_lg_all()
        mfma_block(16, 88, 'v', 48, True)
        extract(16, 100)
        publish_cb4(100, 82)
        stamp(7, 77, 122, 88)
        a.barrier()
    stamp(9, 77, 122, 88)
    a.ins('s_add_u32 s78, s78, 1')
    a.ins('s_cmp_lt_u32 s78, 8')
    a.ins('s_cbranch_scc1 L_aloop')
    a.ins('s_waitcnt vmcnt(0)')
    a.ins('s_endpgm')

def wait_armed_chain():
    L = newlab('Lar'); D = newlab('Lad')
    smov(75, SPIN_MAX)
    a.ins('v_mov_b32 v126, 0')
    a.label(L)
    a.ins('global_load_dword v127, v126, s[28:29] sc1')
    a.ins('s_waitcnt vmcnt(0)')
    a.vm = []
    a.ins(f'v_cmp_gt_u32 vcc, {NCH}, v127')
    a.ins(f's_cbranch_vccz {D}')
    a.ins('s_sleep 2')
    a.ins('s_sub_u32 s75, s75, 1')
    a.ins('s_cmp_lg_u32 s75, 0')
    a.ins(f's_cbranch_scc1 {L}')
    a.label(D)
    a.fence_hazards()

def q_gemv_publish():
    stage_block(48, 14, 0, 'st')
    for i in range(5):
        xread(80 + 4 * i, 114, 64 * i)
    a.wait_lg_all()
    for cb in range(3):
        for i in range(4):
            kind, base = (('a', 128 * cb + 32 * i) if cb < 2 else ('v', W1 + 32 * i))
            mfma_block(16, 80 + 4 * i, kind, base, i == 0)
        a.wait_lg_all()
        mfma_block(16, 96, 'v', 48, False)
        if cb < 2:
            stage_block(48, 14, (cb + 1) * 8192, 'st')
        extract(16, 100)
        set_exec_lanes(16)
        a.lds(f'ds_write_b128 v115, v[100:103] offset:{cb*512}')
        a.lds(f'ds_write_b128 v115, v[104:107] offset:{cb*512+16}')
        set_exec_lanes(64)
    a.barrier()
    L0 = only_wave0_begin()
    a.ins('v_lshlrev_b32 v127, 1, v13')
    for r in range(4):
        a.lds(f'ds_read_b128 v[{16+8*r}:{19+8*r}], v127 offset:{RED + r*1536}')
        a.lds(f'ds_read_b128 v[{20+8*r}:{23+8*r}], v127 offset:{RED + r*1536 + 16}')
    a.wait_lg_all()
    for r in range(1, 4):
        for e in range(8):
            a.ins(f'v_add_f32 v{16+e}, v{16+e}, v{16+8*r+e}')
    for e in range(4):
        a.ins(f'v_cvt_pk_bf16_f32 v{60+e}, v{16+2*e}, v{17+2*e}')
    a.ins('s_add_u32 s76, s70, s86')
    set_exec_lanes(48)
    a.ins('buffer_store_dwordx4 v[60:63], v13, s[64:67], s76 offen sc1')
    set_exec_lanes(64)
    only_wave0_end(L0)
    a.barrier()

def gen_qcu():
    a.label('L_qcu')
    chain_common_init()
    a.ins(f's_sub_u32 s5, s2, {NA}')
    mfma_consts()
    a.ins('s_mul_i32 s70, s5, 768')
    a.ins(f's_sub_u32 s6, {640*12288}, s70')
    srd_off(96, 14, 15, 70, 's6')
    a.ins(f'v_mul_u32_u24 v126, {8*12288}, v4')
    a.ins('v_lshl_add_u32 v126, v3, 4, v126')
    a.ins('s_mul_i32 s4, s3, 24576')
    a.ins(f's_add_u32 s4, s4, {WL}')
    a.ins('v_add_u32 v14, s4, v13')
    a.ins(f's_mul_i32 s42, s3, {160*12288}')
    def ldq(i, cb):
        def em(T, tag):
            for e in range(8):
                a.ins(f's_add_u32 s76, s42, {(32 * i + e) * 12288 + cb * 256}')
                a.vmem(f'buffer_load_dwordx4 v[{T+4*e}:{T+4*e+3}], v126, s[96:99], s76 offen nt', tag)
        return em
    blocks = []
    for cb in range(3):
        for i in range(4):
            blocks.append((ldq(i, cb), ('a', 128 * cb + 32 * i) if cb < 2 else ('v', W1 + 32 * i)))
        blocks.append((ldq(4, cb), ('l', 14, cb * 8192)))
    prep_blocks(blocks)
    load_xres()
    a.ins('s_mul_i32 s4, s3, 1536')
    a.ins('v_lshlrev_b32 v115, 5, v3')
    a.ins('v_add_u32 v115, s4, v115')
    a.ins(f'v_add_u32 v115, {RED}, v115')
    a.barrier()
    wait_flags(2, 126)
    order = 0
    for i, (ly, b) in enumerate(CHAIN_ORDER):
        order |= (ly * 4 + b) << (4 * i)
    srd(92, 26, 27, 4 * 1280)
    a.ins('v_lshlrev_b32 v119, 2, v0')
    a.ins('s_mov_b32 s78, 0')
    a.label('L_qloop')
    a.fence_hazards()
    a.ins('s_lshl_b32 s4, s78, 2')
    a.ins(f's_lshr_b32 s79, {hex(order)}, s4')
    a.ins('s_and_b32 s79, s79, 15')
    a.ins('s_and_b32 s83, s79, 3')
    a.ins('s_lshr_b32 s85, s79, 2')
    a.ins('s_mul_i32 s84, s83, 1280')
    a.ins('s_mul_i32 s4, s83, 2560')
    a.ins('v_add_u32 v121, s4, v12')
    a.ins(f's_mul_i32 s86, s83, {32*384}')
    a.ins(f's_add_u32 s86, s86, {hex(Q_OFF + 4*32*384)}')
    a.ins(f's_mul_i32 s81, s79, {2*AR_SZ}')
    a.ins(f's_add_u32 s81, s81, {hex(AR_OFF)}')
    a.ins(f's_add_u32 s82, s81, {AR_SZ}')
    a.ins('s_lshl_b32 s88, s78, 6')
    stamp(0, 77, 122, 88)
    a.ins('s_cmp_eq_u32 s85, 0')
    a.ins('s_cbranch_scc1 L_qgo')
    a.ins(f's_cmp_lg_u32 s2, {NA}')
    a.ins('s_cbranch_scc1 L_qnext')
    a.label('L_qgo')
    a.fence_hazards()
    gather_ar(81)
    L0 = only_wave0_begin()
    ar_sum_wave0()
    residual(121, XRES)
    store_x(12, X1)
    only_wave0_end(L0)
    a.barrier()
    stamp(1, 77, 122, 88)
    gather_ar(82)
    stamp(2, 77, 122, 88)
    L0 = only_wave0_begin()
    ar_sum_wave0()
    residual(12, X1)
    store_x(121, XRES)
    LO = newlab('Lout'); LX = newlab('Lx2p')
    a.ins('s_cmp_eq_u32 s85, 0')
    a.ins(f's_cbranch_scc1 {LX}')
    for k in range(5):
        a.ins(f'v_cvt_pk_bf16_f32 v{32+k}, v{16+2*k}, v{17+2*k}')
        a.ins(f'buffer_store_dword v{32+k}, v119, s[92:95], s84 offen offset:{k*256}')
    a.ins(f's_branch {LO}')
    a.label(LX)
    a.ins(f's_cmp_lg_u32 s2, {NA}')
    a.ins(f's_cbranch_scc1 {LO}')
    a.ins('s_mul_i32 s90, s83, 2560')
    a.ins(f's_add_u32 s90, s90, {hex(X2_OFF)}')
    for k in range(5):
        a.ins(f'buffer_store_dwordx2 v[{16+2*k}:{17+2*k}], v12, s[64:67], s90 offen offset:{k*512} sc1')
    a.label(LO)
    a.fence_hazards()
    layernorm_to_xs()
    only_wave0_end(L0)
    a.barrier()
    stamp(3, 77, 122, 88)
    a.ins('s_cmp_lg_u32 s85, 0')
    a.ins('s_cbranch_scc1 L_qnext')
    q_gemv_publish()
    a.label('L_qnext')
    a.fence_hazards()
    stamp(4, 77, 122, 88)
    a.ins('s_add_u32 s78, s78, 1')
    a.ins('s_cmp_lt_u32 s78, 8')
    a.ins('s_cbranch_scc1 L_qloop')
    a.ins('s_waitcnt vmcnt(0)')
    a.ins('s_endpgm')

def main(outpath):
    hdr = open('cdna_kernels/' + NAME + '.s.ref').read().split('\n')
    top = [l for l in hdr if l.startswith(';') and '@launch' not in l]
    out = []
    out += top
    out.append('; @launch grid=(256,1,1) block=(256,1,1) lds=163840')
    out.append('.amdgcn_target "amdgcn-amd-amdhsa--gfx950"')
    out.append('.text')
    out.append(MACROS)
    out.append(f'.globl {KNAME}')
    out.append('.p2align 8')
    out.append(f'.type {KNAME},@function')
    out.append(f'{KNAME}:')
    a.ins('s_cmp_ge_u32 s2, 256')
    a.ins('s_cbranch_scc1 L_exit')
    a.ins('s_load_dwordx16 s[8:23], s[0:1], 0')
    a.ins('s_load_dwordx8 s[24:31], s[0:1], 64')
    a.ins('v_lshrrev_b32 v1, 6, v0')
    a.ins('v_and_b32 v0, 63, v0')
    a.ins('v_readfirstlane_b32 s3, v1')
    a.ins('s_waitcnt lgkmcnt(0)')
    srd(64, 30, 31, WS_SIZE)
    a.ins(f's_cmp_ge_u32 s2, {NCH}')
    a.ins('s_cbranch_scc0 L_chain')
    a.ins('s_branch L_stream')
    a.label('L_exit')
    a.ins('s_endpgm')
    a.label('L_chain')
    a.ins(f's_cmp_ge_u32 s2, {NA}')
    a.ins('s_cbranch_scc1 L_qcu')
    a.fence_hazards()
    gen_acu()
    a.hist = []; a.vm = []; a.lg = []
    a.fence_hazards()
    gen_qcu()
    a.hist = []; a.vm = []; a.lg = []
    a.fence_hazards()
    gen_stream()
    out.append(a.text())
    out.append('.section .rodata,"a"')
    out.append('.p2align 6')
    out.append(f'.amdhsa_kernel {KNAME}')
    out.append('  .amdhsa_next_free_vgpr 512')
    out.append('  .amdhsa_next_free_sgpr 102')
    out.append('  .amdhsa_accum_offset 256')
    out.append('  .amdhsa_group_segment_fixed_size 0')
    out.append('  .amdhsa_kernarg_size 96')
    out.append('  .amdhsa_user_sgpr_count 2')
    out.append('  .amdhsa_user_sgpr_kernarg_segment_ptr 1')
    out.append('  .amdhsa_system_sgpr_workgroup_id_x 1')
    out.append('.end_amdhsa_kernel')
    open(outpath, 'w').write('\n'.join(out) + '\n')
    print('instrs', a.ninstr, 'bytes', sum(len(x) + 1 for x in out))

if __name__ == '__main__':
    main(sys.argv[1] if len(sys.argv) > 1 else 'cdna_kernels/' + NAME + '.s')
```

```python
import struct, sys, math, os
from asmlib import *

NAME = 'interleave_layers__mha_block_cached__glu_gated_geglu__decode'
KNAME = NAME + '_kernel'

NA, NQ = 32, 16
NCH = NA + NQ
NST = 256 - NCH
WPH = NST * 4 // 32
REC = 784
PART_OFF = 0
PART_C = 32 * WPH * REC
NR = 21
NL = int(os.environ.get('NL', '0'))
LMODE = os.environ.get('LMODE', 'def')
NN = 40 - NR - NL
NA_HALF = (NN + 1) // 2
NT_ALL = 40
def _d_order():
    L = list(range(NR, NR + NL)); R = list(range(NR))
    if os.environ.get('DORD', '0') == '0' or NL <= 2:
        return L + R
    return L[:2] + R[:4] + L[2:] + R[4:]
NPOL = os.environ.get('NPOL', '')
R_T = list(range(NR + NL)); D_T = _d_order(); N_T = list(range(NR + NL, NT_ALL)); NA_T = N_T[:NA_HALF]; NB_T = N_T[NA_HALF:]
if os.environ.get('SCH', '1') == '0':
    SCHED = [('A', 0, 0, R_T), ('N', 0, 0, N_T), ('N', 0, 1, N_T), ('N', 0, 2, NA_T),
             ('D', 1, 0, D_T), ('A', 0, 1, R_T), ('N', 0, 2, NB_T), ('N', 1, 0, N_T),
             ('D', 1, 1, D_T), ('A', 0, 2, R_T), ('N', 0, 3, N_T), ('N', 1, 1, NA_T),
             ('D', 1, 2, D_T), ('A', 0, 3, R_T), ('N', 1, 1, NB_T), ('N', 1, 2, N_T),
             ('D', 1, 3, D_T), ('N', 1, 3, N_T)]
else:
    SCHED = [('A', 0, 0, R_T), ('N', 0, 0, N_T), ('N', 0, 1, N_T), ('N', 0, 2, NA_T),
             ('D', 1, 0, D_T), ('A', 0, 1, R_T), ('N', 1, 0, N_T), ('N', 0, 2, NB_T),
             ('D', 1, 1, D_T), ('A', 0, 2, R_T), ('N', 1, 1, NA_T), ('N', 0, 3, N_T),
             ('D', 1, 2, D_T), ('A', 0, 3, R_T), ('N', 1, 1, NB_T), ('N', 1, 2, N_T),
             ('D', 1, 3, D_T), ('N', 1, 3, N_T)]
NSEG = len(SCHED)
_last = {}
for _i, (_t, _p, _b, _tl) in enumerate(SCHED):
    _last[(_p, _b)] = _i
CHAIN_ORDER = sorted(_last, key=lambda k: _last[k])
CHAIN_SEGS = {k: [i for i, (t, p, b, tl) in enumerate(SCHED) if (p, b) == k] for k in CHAIN_ORDER}
AR_OFF = ((NSEG * PART_C + 4095) // 4096) * 4096
AR_SZ = 32 * 2560
Q_OFF = AR_OFF + 16 * AR_SZ
X2_OFF = Q_OFF + 8 * 32 * 384
ARM_N = (X2_OFF + 4 * 2560 + 48 * 4096 - 1) // (48 * 4096)
COMM = ARM_N * 48 * 4096
assert Q_OFF % 4096 == 0
ARM_PER = COMM // NCH
BATCH_STRIDE = 32 * 8192 * 384
SPIN_MAX = 400000
import os
DIAG = int(os.environ.get('DIAG', '0'))
STAMP_OFF = COMM
WS_SIZE = COMM + (1 << 20 if DIAG else 0)

def f32(x):
    return struct.unpack('<I', struct.pack('<f', x))[0]

CSCALE = f32((192 ** -0.5) * math.log2(math.e))

a = Asm()
_lab = [0]
def newlab(p='L'):
    _lab[0] += 1
    return f'{p}{_lab[0]}'

MACROS = r'''
.macro QK2 ta, tb, q, s
  v_dot2_f32_bf16 v[\s+0], v[\ta+0], v[\q+0], 0
  v_dot2_f32_bf16 v[\s+1], v[\ta+4], v[\q+4], 0
  v_dot2_f32_bf16 v[\s+2], v[\ta+8], v[\q+8], 0
  v_dot2_f32_bf16 v[\s+3], v[\tb+0], v[\q+0], 0
  v_dot2_f32_bf16 v[\s+4], v[\tb+4], v[\q+4], 0
  v_dot2_f32_bf16 v[\s+5], v[\tb+8], v[\q+8], 0
  .irp k, 1, 2, 3
  v_dot2c_f32_bf16 v[\s+0], v[\ta+\k], v[\q+\k]
  v_dot2c_f32_bf16 v[\s+1], v[\ta+4+\k], v[\q+4+\k]
  v_dot2c_f32_bf16 v[\s+2], v[\ta+8+\k], v[\q+8+\k]
  v_dot2c_f32_bf16 v[\s+3], v[\tb+\k], v[\q+\k]
  v_dot2c_f32_bf16 v[\s+4], v[\tb+4+\k], v[\q+4+\k]
  v_dot2c_f32_bf16 v[\s+5], v[\tb+8+\k], v[\q+8+\k]
  .endr
.endm
.macro PV t, p, acc
  .irp k, 0, 1, 2, 3, 4, 5, 6, 7, 8, 9, 10, 11
  v_dot2c_f32_bf16 v[\acc+2*\k], v[\t+\k], v[\p]
  v_dot2c_f32_bf16 v[\acc+2*\k+1], v[\t+\k], v[\p+1]
  .endr
.endm
.macro ACR t, s
  .irp k, 0, 1, 2, 3, 4, 5, 6, 7, 8, 9, 10, 11
  v_accvgpr_read_b32 v[\t+\k], a[\s+\k]
  .endr
.endm
.macro LDT k, d, srd
  buffer_load_dwordx4 \k[\d:\d+3], v1, s[\srd:\srd+3], s76 offen nt
  buffer_load_dwordx4 \k[\d+4:\d+7], v1, s[\srd:\srd+3], s76 offen offset:128 nt
  buffer_load_dwordx4 \k[\d+8:\d+11], v1, s[\srd:\srd+3], s76 offen offset:256 nt
.endm
.macro LDC k, d, srd
  buffer_load_dwordx4 \k[\d:\d+3], v1, s[\srd:\srd+3], s76 offen
  buffer_load_dwordx4 \k[\d+4:\d+7], v1, s[\srd:\srd+3], s76 offen offset:128
  buffer_load_dwordx4 \k[\d+8:\d+11], v1, s[\srd:\srd+3], s76 offen offset:256
.endm
.macro RESC acc, al
  .irp k, 0, 1, 2, 3, 4, 5, 6, 7, 8, 9, 10, 11, 12, 13, 14, 15, 16, 17, 18, 19, 20, 21, 22, 23
  v_mul_f32 v[\acc+\k], v[\al], v[\acc+\k]
  .endr
.endm
.macro GV8 w, x, acc
  .irp k, 0, 1, 2, 3
  v_dot2c_f32_bf16 v[\acc+2*\k], v[\w+\k], v[\x]
  v_dot2c_f32_bf16 v[\acc+2*\k+1], v[\w+\k], v[\x+1]
  .endr
.endm
.macro AC4 t, s
  .irp k, 0, 1, 2, 3
  v_accvgpr_read_b32 v[\t+\k], a[\s+\k]
  .endr
.endm
'''

def m_qk2(ta, tb, q, s):
    a.mbegin(f'QK2 {ta}, {tb}, {q}, {s}')
    for i, (t, o) in enumerate([(ta, 0), (ta, 4), (ta, 8), (tb, 0), (tb, 4), (tb, 8)]):
        a.ins(f'v_dot2_f32_bf16 v{s+i}, v{t+o}, v{q+o}, 0')
    for k in (1, 2, 3):
        for i, (t, o) in enumerate([(ta, 0), (ta, 4), (ta, 8), (tb, 0), (tb, 4), (tb, 8)]):
            a.ins(f'v_dot2c_f32_bf16 v{s+i}, v{t+o+k}, v{q+o+k}')
    a.mend()

def m_pv(t, p, acc):
    a.mbegin(f'PV {t}, {p}, {acc}')
    for k in range(12):
        a.ins(f'v_dot2c_f32_bf16 v{acc+2*k}, v{t+k}, v{p}')
        a.ins(f'v_dot2c_f32_bf16 v{acc+2*k+1}, v{t+k}, v{p+1}')
    a.mend()

def m_acr(t, s):
    a.mbegin(f'ACR {t}, {s}')
    for k in range(12):
        a.ins(f'v_accvgpr_read_b32 v{t+k}, a{s+k}')
    a.mend()

def m_ldt(kind, d, srd, tag, pol='nt'):
    mac = {'nt': 'LDT', '': 'LDC'}.get(pol)
    if mac:
        a.mbegin(f'{mac} {kind}, {d}, {srd}')
    for i in range(3):
        off = f' offset:{i*128}' if i else ''
        a.vmem(f'buffer_load_dwordx4 {kind}[{d+4*i}:{d+4*i+3}], v1, s[{srd}:{srd+3}], s76 offen{off} {pol}', tag)
    if mac:
        a.mend()

def m_resc(acc, al):
    a.mbegin(f'RESC {acc}, {al}')
    for k in range(24):
        a.ins(f'v_mul_f32 v{acc+k}, v{al}, v{acc+k}')
    a.mend()

def m_gv8(w, x, acc):
    a.mbegin(f'GV8 {w}, {x}, {acc}')
    for k in range(4):
        a.ins(f'v_dot2c_f32_bf16 v{acc+2*k}, v{w+k}, v{x}')
        a.ins(f'v_dot2c_f32_bf16 v{acc+2*k+1}, v{w+k}, v{x+1}')
    a.mend()

def m_ac4(t, s):
    a.mbegin(f'AC4 {t}, {s}')
    for k in range(4):
        a.ins(f'v_accvgpr_read_b32 v{t+k}, a{s+k}')
    a.mend()

DPP = 'row_mask:0xf bank_mask:0xf'

def smov(s, val):
    val &= 0xffffffff
    a.ins(f's_mov_b32 s{s}, {val if val <= 64 else hex(val)}')

def srd(d, lo, hi, nrec):
    a.ins(f's_mov_b32 s{d}, s{lo}')
    a.ins(f's_and_b32 s{d+1}, s{hi}, 0xffff')
    if isinstance(nrec, int):
        smov(d + 2, nrec)
    else:
        a.ins(f's_mov_b32 s{d+2}, {nrec}')
    a.ins(f's_mov_b32 s{d+3}, 0x20000')

def srd_off(d, lo, hi, offs, nrec):
    a.ins(f's_add_u32 s{d}, s{lo}, s{offs}')
    a.ins(f's_addc_u32 s{d+1}, s{hi}, 0')
    a.ins(f's_and_b32 s{d+1}, s{d+1}, 0xffff')
    if isinstance(nrec, int):
        smov(d + 2, nrec)
    else:
        a.ins(f's_mov_b32 s{d+2}, {nrec}')
    a.ins(f's_mov_b32 s{d+3}, 0x20000')

def set_exec_lanes(n):
    if n >= 64:
        a.ins('s_mov_b64 exec, -1')
    elif n <= 32:
        a.ins(f's_mov_b32 exec_lo, {hex((1 << n) - 1)}', dst=[], src=[])
        a.ins('s_mov_b32 exec_hi, 0', dst=[], src=[])
    else:
        a.ins('s_mov_b32 exec_lo, -1', dst=[], src=[])
        a.ins(f's_mov_b32 exec_hi, {hex((1 << (n - 32)) - 1)}', dst=[], src=[])

def stamp(idx, base_s, vt, dyn=None):
    if not DIAG:
        return
    a.ins('s_memrealtime s[100:101]')
    a.ins('s_waitcnt lgkmcnt(0)')
    a.lg = []
    a.ins(f'v_mov_b32 v{vt}, s100')
    a.ins(f'v_mov_b32 v{vt+1}, 0')
    if dyn is None:
        a.ins(f's_add_u32 s101, s{base_s}, {idx*4}')
    else:
        a.ins(f's_add_u32 s101, s{base_s}, s{dyn}')
        a.ins(f's_add_u32 s101, s101, {idx*4}')
    a.vmem(f'buffer_store_dword v{vt}, v{vt+1}, s[64:67], s101 offen', 'stamp')

def flags_addr(va, stage):
    if stage == 1:
        a.ins(f'v_min_u32 v{va}, 11, v0')
        a.ins(f'v_lshlrev_b32 v{va}, 2, v{va}')
    else:
        a.ins(f'v_min_u32 v{va}, 23, v0')
        a.ins(f'v_lshlrev_b32 v{va}, 2, v{va}')
        a.ins(f'v_add_u32 v{va}, 128, v{va}')

def flags_check(vreg, stage):
    a.ins(f'v_cmp_ne_u32 vcc, {1 if stage == 1 else "0x10001"}, v{vreg}')

def wait_flags(stage, va=254, plain_first=True):
    L = newlab('Lar'); D = newlab('Lad')
    smov(75, SPIN_MAX)
    flags_addr(va, stage)
    if plain_first:
        a.ins(f'global_load_dword v{va+1}, v{va}, s[28:29]')
        a.ins('s_waitcnt vmcnt(0)')
        flags_check(va + 1, stage)
        a.ins(f's_cbranch_vccz {D}')
    a.label(L)
    a.ins(f'global_load_dword v{va+1}, v{va}, s[28:29] sc1')
    a.ins('s_waitcnt vmcnt(0)')
    a.vm = []
    flags_check(va + 1, stage)
    a.ins(f's_cbranch_vccz {D}')
    a.ins('s_sleep 8')
    a.ins('s_sub_u32 s75, s75, 1')
    a.ins('s_cmp_lg_u32 s75, 0')
    a.ins(f's_cbranch_scc1 {L}')
    a.label(D)
    a.fence_hazards()

def set_flag(stage):
    L = only_wave0_begin()
    if stage == 1:
        a.ins('s_lshl_b32 s4, s2, 2')
    else:
        a.ins('s_lshl_b32 s4, s2, 1')
        a.ins('s_add_u32 s4, s4, 128')
    a.ins('v_mov_b32 v150, s4')
    a.ins('v_mov_b32 v151, 1')
    set_exec_lanes(1)
    a.ins(f'global_store_{"dword" if stage == 1 else "short"} v150, v151, s[28:29] sc1')
    set_exec_lanes(64)
    a.label(L)
    a.fence_hazards()

SU_W = 56
SU_ACC = 96
SU_X = 226
SU_RED = 20480

def startup1():
    srd(96, 8, 9, 4 * 1280)
    a.ins('v_lshlrev_b32 v254, 2, v0')
    a.ins('s_mul_i32 s76, s3, 1280')
    for k in range(5):
        a.vmem(f'buffer_load_dword v{SU_X+k}, v254, s[96:99], s76 offen offset:{k*256}', 'sux')
    a.ins('s_mul_i32 s4, s2, 48')
    a.ins(f's_sub_u32 s5, {640*12288}, s4')
    srd_off(92, 14, 15, 4, 's5')
    a.ins('v_and_b32 v255, 15, v0')
    a.ins(f'v_mul_u32_u24 v255, {10*12288}, v255')
    a.ins('v_lshrrev_b32 v128, 4, v0')
    a.ins('v_min_u32 v128, 2, v128')
    a.ins('v_lshl_add_u32 v255, v128, 4, v255')
    a.ins(f's_mul_i32 s4, s3, {160*12288}')
    for i in range(10):
        a.ins(f's_add_u32 s76, s4, {i*12288}')
        a.vmem(f'buffer_load_dwordx4 v[{SU_W+4*i}:{SU_W+4*i+3}], v255, s[92:95], s76 offen', 'suw')

def startup2a(topup=None, st=False, after_x=None):
    X = SU_X
    a.wait_vm('sux')
    if after_x:
        after_x()
    if st: stamp(56, 78, 252)
    xs = X + 5
    for k in range(5):
        a.ins(f'v_lshlrev_b32 v{xs+2*k}, 16, v{X+k}')
        a.ins(f'v_and_b32 v{xs+2*k+1}, 0xffff0000, v{X+k}')
    A = SU_ACC
    t, u, mean, var = A, A + 1, A + 2, A + 3
    d0, q0, e0 = A + 4, A + 14, X + 15
    a.ins(f'v_add_f32 v{t}, v{xs}, v{xs+1}')
    for i in range(2, 10):
        a.ins(f'v_add_f32 v{t}, v{t}, v{xs+i}')
    wave_sum(t, u)
    a.ins(f'v_mul_f32 v{mean}, {hex(f32(1.0/640))}, v{t}')
    for i in range(10):
        a.ins(f'v_sub_f32 v{d0+i}, v{xs+i}, v{mean}')
    a.ins(f'v_mul_f32 v{t}, v{d0}, v{d0}')
    for i in range(1, 10):
        a.ins(f'v_fmac_f32 v{t}, v{d0+i}, v{d0+i}')
    wave_sum(t, u)
    a.ins(f'v_mul_f32 v{var}, {hex(f32(1.0/640))}, v{t}')
    bf16r(mean, mean)
    bf16r(var, var)
    a.ins(f'v_add_f32 v{var}, {hex(f32(1e-5))}, v{var}')
    bf16r(var, var)
    a.ins(f'v_sqrt_f32 v{var}, v{var}')
    bf16r(var, var)
    a.ins(f'v_rcp_f32 v{u}, v{var}')
    for i in range(10):
        a.ins(f'v_sub_f32 v{d0+i}, v{xs+i}, v{mean}')
    for i in range(10):
        bf16r(d0 + i, d0 + i)
    for i in range(10):
        a.ins(f'v_mul_f32 v{q0+i}, v{d0+i}, v{u}')
    for i in range(10):
        a.ins(f'v_fma_f32 v{e0+i}, -v{q0+i}, v{var}, v{d0+i}')
    for i in range(10):
        a.ins(f'v_fma_f32 v{q0+i}, v{e0+i}, v{u}, v{q0+i}')
    a.ins('s_mul_i32 s4, s3, 5120')
    a.ins('v_lshlrev_b32 v254, 4, v0')
    a.ins('v_add_u32 v254, s4, v254')
    r = A + 24
    for k in range(5):
        a.ins(f'v_cvt_pk_bf16_f32 v{r}, v{q0+2*k}, 0')
        a.ins(f'v_cvt_pk_bf16_f32 v{r+1}, 0, v{q0+2*k}')
        a.ins(f'v_cvt_pk_bf16_f32 v{r+2}, v{q0+2*k+1}, 0')
        a.ins(f'v_cvt_pk_bf16_f32 v{r+3}, 0, v{q0+2*k+1}')
        a.lds(f'ds_write_b128 v254, v[{r}:{r+3}] offset:{k*1024}')
        a.wait_lg_all()
    a.barrier()
    if st: stamp(57, 78, 252)
    a.ins('v_and_b32 v254, 15, v0')
    a.ins('v_mul_u32_u24 v254, 80, v254')
    a.ins('s_mul_i32 s4, s3, 1280')
    a.ins('v_add_u32 v254, s4, v254')
    for k in range(32):
        a.ins(f'v_mov_b32 v{SU_ACC+k}, 0')
    a.wait_vm('suw')
    if st: stamp(58, 78, 252)
    for b in range(4):
        for k in range(5):
            a.lds(f'ds_read_b128 v[{X+4*k}:{X+4*k+3}], v254 offset:{b*5120 + k*16}')
        a.wait_lg_all()
        for i in range(10):
            m_gv8(SU_W + 4 * i, X + 2 * i, SU_ACC + 8 * b)
    for pat in ('quad_perm:[1,0,3,2]', 'quad_perm:[2,3,0,1]', 'row_half_mirror', 'row_mirror'):
        for k in range(32):
            a.ins(f'v_add_f32_dpp v{SU_ACC+k}, v{SU_ACC+k}, v{SU_ACC+k} {pat} {DPP}')
    a.ins('v_lshrrev_b32 v254, 4, v0')
    a.ins('v_lshlrev_b32 v254, 7, v254')
    a.ins('s_mul_i32 s4, s3, 384')
    a.ins(f's_add_u32 s4, s4, {SU_RED}')
    a.ins('v_add_u32 v254, s4, v254')
    a.ins('s_mov_b32 exec_lo, 0x10001', dst=[], src=[])
    a.ins('s_mov_b32 exec_hi, 1', dst=[], src=[])
    for k in range(8):
        a.lds(f'ds_write_b128 v254, v[{SU_ACC+4*k}:{SU_ACC+4*k+3}] offset:{k*16}')
    set_exec_lanes(64)
    if topup:
        topup()
    if st: stamp(59, 78, 252)
    a.barrier()
    if st: stamp(60, 78, 252)

def startup2b(st=False):
    a.ins('v_mul_u32_u24 v254, 171, v0')
    a.ins('v_lshrrev_b32 v254, 9, v254')
    a.ins('v_mul_u32_u24 v255, 3, v254')
    a.ins('v_sub_u32 v255, v0, v255')
    a.ins('v_lshlrev_b32 v128, 7, v255')
    a.ins('v_lshl_add_u32 v128, v254, 5, v128')
    a.ins('v_and_b32 v128, 0x1ff, v128')
    for wv in range(4):
        a.lds(f'ds_read_b128 v[{SU_W+8*wv}:{SU_W+8*wv+3}], v128 offset:{SU_RED + wv*384}')
        a.lds(f'ds_read_b128 v[{SU_W+8*wv+4}:{SU_W+8*wv+7}], v128 offset:{SU_RED + wv*384 + 16}')
    a.wait_lg_all()
    for wv in range(1, 4):
        for e in range(8):
            a.ins(f'v_add_f32 v{SU_W+e}, v{SU_W+e}, v{SU_W+8*wv+e}')
    for e in range(4):
        a.ins(f'v_cvt_pk_bf16_f32 v{SU_ACC+e}, v{SU_W+2*e}, v{SU_W+2*e+1}')
    a.ins('v_mul_u32_u24 v254, 12288, v254')
    a.ins('v_lshl_add_u32 v254, v255, 4, v254')
    if st: stamp(61, 78, 250)
    wait_flags(1, 252)
    if st: stamp(62, 78, 250)
    a.ins('s_mul_i32 s76, s2, 48')
    a.ins(f's_add_u32 s76, s76, {hex(Q_OFF)}')
    set_exec_lanes(12)
    a.vmem(f'buffer_store_dwordx4 v[{SU_ACC}:{SU_ACC+3}], v254, s[64:67], s76 offen sc1', 'q1pub')
    set_exec_lanes(64)

RING = [8, 20, 32, 44]
T0, T1 = 56, 68
Q, QS = 80, 92
ST = 104
VSLOT = 130
NVS = 8
WK = 226

def srd_k(b): return 32 + 8 * b
def srd_v(b): return 36 + 8 * b

def r_storage(kind, t):
    if t >= NR:
        return ('c',)
    if kind == 'K':
        return ('a', 12 * t)
    if t < NVS:
        return ('v', VSLOT + 12 * t)
    return ('l', t - NVS)

def groups_of(tiles):
    return [tiles[i:i + 2] for i in range(0, len(tiles), 2)]

class Stream:
    def __init__(self):
        self.P = SCHED
        self.LQ = []
        for pi, (ty, ps, b, tiles) in enumerate(self.P):
            for grp in groups_of(tiles):
                for kind in ('K', 'V'):
                    for t in grp:
                        pol = 'nt'
                        if ty == 'D':
                            if r_storage(kind, t)[0] != 'c':
                                continue
                            dest = ('r', None)
                        elif ty == 'A':
                            stg = r_storage(kind, t)
                            dest = stg if stg[0] in 'av' else ('r', None)
                            if stg[0] == 'c' and LMODE == 'def':
                                pol = ''
                        else:
                            dest = ('r', None)
                            if ps == 0:
                                pol = NPOL
                        self.LQ.append({'pi': pi, 'kind': kind, 't': t, 'b': b, 'dest': dest, 'pol': pol})
        self.lqi = 0
        self.nissued = 0
        self.ring_free = [True] * 4
        self.ring_next = 0
        self.ded_free = {}
        self.d_done = set()
        self.cur_pi = 0
        self.loc = {}
        self.last_A = max(i for i, p in enumerate(self.P) if p[0] == 'A')
        self.all_ded = [r_storage(k, t) for t in R_T for k in 'KV' if r_storage(k, t)[0] in 'av']

    def ring_alloc(self):
        s = self.ring_next
        if not self.ring_free[s]:
            return None
        self.ring_free[s] = False
        self.ring_next = (s + 1) % 4
        return s

    def _issue_one(self, e):
        if e['dest'][0] == 'r':
            s = self.ring_alloc()
            if s is not None:
                kind, base = 'v', RING[s]
                self.loc[(e['pi'], e['kind'], e['t'])] = ('r', s)
            else:
                key = None
                if self.cur_pi > self.last_A and e['pi'] == len(self.P) - 1:
                    for k in self.all_ded:
                        if self.ded_free.get(k, True):
                            key = k
                            break
                if key is None:
                    return False
                self.ded_free[key] = False
                kind, base = key
                self.loc[(e['pi'], e['kind'], e['t'])] = ('x', key)
        else:
            key = e['dest']
            if not self.ded_free.get(key, True):
                return False
            self.ded_free[key] = False
            kind, base = key
            self.loc[(e['pi'], e['kind'], e['t'])] = key
        smov(76, e['t'] * 3072)
        sd = srd_k(e['b']) if e['kind'] == 'K' else srd_v(e['b'])
        m_ldt(kind, base, sd, ('T', e['pi'], e['kind'], e['t']), e['pol'])
        if LMODE == 'touch' and self.P[e['pi']][0] == 'A' and r_storage(e['kind'], e['t'])[0] == 'c':
            a.vmem(f'buffer_load_dword v249, v248, s[{sd}:{sd+3}], s76 offen sc1', 'touch')
        e['done'] = True
        self.nissued += 1
        return True

    def try_issue(self, cap=None, limit=None):
        if cap is None:
            cap = int(os.environ.get('CAP', '54'))
        while True:
            if len(a.vm) + 4 > cap:
                return
            if limit is not None and self.nissued >= limit:
                return
            cand = []
            seen = set()
            for i in range(self.lqi, len(self.LQ)):
                e = self.LQ[i]
                if e.get('done'):
                    continue
                c = 'r' if e['dest'][0] == 'r' else 'd'
                if c not in seen:
                    seen.add(c)
                    cand.append(e)
                if len(seen) == 2:
                    break
            ok = False
            for e in cand:
                if self._issue_one(e):
                    ok = True
                    break
            while self.lqi < len(self.LQ) and self.LQ[self.lqi].get('done'):
                self.lqi += 1
            if not ok:
                return

    def q_issue(self, ps, b):
        a.ins(f's_add_u32 s76, s72, {hex((ps * 4 + b) * 32 * 384)}')
        for i in range(3):
            off = f' offset:{i*128}' if i else ''
            a.vmem(f'buffer_load_dwordx4 v[{QS+4*i}:{QS+4*i+3}], v2, s[64:67], s76 offen{off} sc1', ('Q', ps, b))

    def q_check(self):
        w = WK
        a.ins(f'v_max3_u32 v{w}, v{QS}, v{QS+1}, v{QS+2}')
        for k in range(3, 12, 2):
            k2 = min(k + 1, 11)
            a.ins(f'v_max3_u32 v{w}, v{w}, v{QS+k}, v{QS+k2}')
        a.ins(f'v_cmp_eq_u32 vcc, -1, v{w}')

    def q_take(self, ps, b):
        a.wait_vm(('Q', ps, b))
        OK = newlab('Lqo'); RT = newlab('Lqr')
        self.q_check()
        a.ins(f's_cbranch_vccz {OK}')
        smov(75, SPIN_MAX)
        a.label(RT)
        a.ins('s_sleep 2')
        a.ins(f's_add_u32 s77, s72, {hex((ps * 4 + b) * 32 * 384)}')
        for i in range(3):
            off = f' offset:{i*128}' if i else ''
            a.ins(f'buffer_load_dwordx4 v[{QS+4*i}:{QS+4*i+3}], v2, s[64:67], s77 offen{off} sc1')
        a.ins('s_waitcnt vmcnt(0)')
        self.q_check()
        a.ins(f's_cbranch_vccz {OK}')
        a.ins('s_sub_u32 s75, s75, 1')
        a.ins('s_cmp_lg_u32 s75, 0')
        a.ins(f's_cbranch_scc1 {RT}')
        a.label(OK)
        for k in range(12):
            a.ins(f'v_mov_b32 v{Q+k}, v{QS+k}')

    def get_tile(self, pi, ty, kind, t, tmp):
        if ty == 'D' and r_storage(kind, t)[0] != 'c':
            stg = r_storage(kind, t)
            if stg[0] == 'a':
                m_acr(tmp, stg[1])
                self.ded_free[stg] = True
                return tmp, None
            if stg[0] == 'v':
                return stg[1], ('ded', stg)
            a.wait_lg(('L', pi, t))
            return tmp, None
        a.wait_vm(('T', pi, kind, t))
        loc = self.loc[(pi, kind, t)]
        if loc[0] == 'x':
            key = loc[1]
            if key[0] == 'a':
                m_acr(tmp, key[1])
                self.ded_free[key] = True
                return tmp, None
            return key[1], ('ded', key)
        if loc[0] == 'a':
            m_acr(tmp, loc[1])
            return tmp, None
        if loc[0] == 'v':
            return loc[1], None
        return RING[loc[1]], ('ring', loc[1])

    def touch(self, pi, ty, kind, t):
        if ty != 'A' or r_storage(kind, t)[0] != 'c':
            return
        b = self.P[pi][2]
        sd = srd_k(b) if kind == 'K' else srd_v(b)
        smov(76, t * 3072)
        a.vmem(f'buffer_load_dword v249, v248, s[{sd}:{sd+3}], s76 offen sc1', 'touch')

    def release(self, rel):
        if rel is None:
            return
        if rel[0] == 'ring':
            self.ring_free[rel[1]] = True
        else:
            self.ded_free[rel[1]] = True

    def lds_prefetch(self, pi, t, tmp):
        slot = t - NVS
        for i in range(3):
            a.lds(f'ds_read_b128 v[{tmp+4*i}:{tmp+4*i+3}], v3 offset:{slot*3072+i*1024}', ('L', pi, t))

    def group(self, pi, ty, grp, last_group):
        st = ST
        acc, m, l = st, st + 24, st + 25
        s = WK
        sa, sb = WK, WK + 3
        mn, cm, al = WK + 6, WK + 7, WK + 8
        pa, pb = WK + 9, WK + 10
        PA, PB = WK + 12, WK + 14
        two = len(grp) == 2
        ta, ra = self.get_tile(pi, ty, 'K', grp[0], T0)
        if two:
            tb, rb = self.get_tile(pi, ty, 'K', grp[1], T1)
            m_qk2(ta, tb, Q, s)
            self.release(ra); self.release(rb)
        else:
            for i, o in enumerate((0, 4, 8)):
                a.ins(f'v_dot2_f32_bf16 v{s+i}, v{ta+o}, v{Q+o}, 0')
            for k in (1, 2, 3):
                for i, o in enumerate((0, 4, 8)):
                    a.ins(f'v_dot2c_f32_bf16 v{s+i}, v{ta+o+k}, v{Q+o+k}')
            self.release(ra)
        if ty == 'D':
            for t, tmp in zip(grp, (T0, T1)):
                if r_storage('V', t)[0] == 'l':
                    self.lds_prefetch(pi, t, tmp)
        self.try_issue()
        a.ins(f'v_add_f32 v{sa}, v{s}, v{s+1}')
        a.ins(f'v_add_f32 v{sa}, v{sa}, v{s+2}')
        if two:
            a.ins(f'v_add_f32 v{sb}, v{s+3}, v{s+4}')
            a.ins(f'v_add_f32 v{sb}, v{sb}, v{s+5}')
        for pat in ('quad_perm:[1,0,3,2]', 'quad_perm:[2,3,0,1]', 'row_half_mirror'):
            a.ins(f'v_add_f32_dpp v{sa}, v{sa}, v{sa} {pat} {DPP}')
            if two:
                a.ins(f'v_add_f32_dpp v{sb}, v{sb}, v{sb} {pat} {DPP}')
        if grp[-1] == NT_ALL - 1:
            x = sb if two else sa
            a.ins(f'v_add_f32 v{x}, s69, v{x}')
        if two:
            a.ins(f'v_max3_f32 v{mn}, v{m}, v{sa}, v{sb}')
        else:
            a.ins(f'v_max_f32 v{mn}, v{m}, v{sa}')
        a.ins(f'v_cmp_gt_f32 vcc, v{mn}, v{m}')
        SK = newlab('Lsk')
        a.ins(f's_cbranch_vccz {SK}')
        a.ins(f'v_sub_f32 v{al}, v{m}, v{mn}')
        a.ins(f'v_mul_f32 v{al}, s74, v{al}')
        a.ins(f'v_exp_f32 v{al}, v{al}')
        a.ins(f'v_mov_b32 v{m}, v{mn}')
        m_resc(acc, al)
        a.ins(f'v_mul_f32 v{l}, v{al}, v{l}')
        a.label(SK)
        a.ins(f'v_mul_f32 v{cm}, s74, v{m}')
        a.ins(f'v_fma_f32 v{pa}, v{sa}, s74, -v{cm}')
        if two:
            a.ins(f'v_fma_f32 v{pb}, v{sb}, s74, -v{cm}')
        a.ins(f'v_exp_f32 v{pa}, v{pa}')
        if two:
            a.ins(f'v_exp_f32 v{pb}, v{pb}')
        a.ins(f'v_cvt_pk_bf16_f32 v{PA}, v{pa}, 0')
        a.ins(f'v_cvt_pk_bf16_f32 v{PA+1}, 0, v{pa}')
        if two:
            a.ins(f'v_cvt_pk_bf16_f32 v{PB}, v{pb}, 0')
            a.ins(f'v_cvt_pk_bf16_f32 v{PB+1}, 0, v{pb}')
        a.ins(f'v_add_f32 v{l}, v{l}, v{PA+1}')
        if two:
            a.ins(f'v_add_f32 v{l}, v{l}, v{PB+1}')
        for (t, P, tmp) in list(zip(grp, (PA, PB), (T0, T1))):
            tv, rv = self.get_tile(pi, ty, 'V', t, tmp)
            m_pv(tv, P, acc)
            if ty == 'A' and r_storage('V', t)[0] == 'l':
                slot = t - NVS
                for i in range(3):
                    a.lds(f'ds_write_b128 v3, v[{tv+4*i}:{tv+4*i+3}] offset:{slot*3072+i*1024}', ('W', pi, t))
            self.release(rv)
            self.try_issue()

    def publish(self, st, c):
        acc, m, l = st, st + 24, st + 25
        M, u, sc = WK, WK + 1, WK + 2
        a.ins(f'v_max_f32_dpp v{M}, v{m}, v{m} row_ror:8 {DPP}')
        a.ins(f'v_mov_b32 v{u}, v{M}')
        a.ins(f'v_permlane16_swap_b32 v{M}, v{u}')
        a.ins(f'v_max_f32 v{M}, v{M}, v{u}')
        a.ins(f'v_mov_b32 v{u}, v{M}')
        a.ins(f'v_permlane32_swap_b32 v{M}, v{u}')
        a.ins(f'v_max_f32 v{M}, v{M}, v{u}')
        a.ins(f'v_sub_f32 v{sc}, v{m}, v{M}')
        a.ins(f'v_mul_f32 v{sc}, s74, v{sc}')
        a.ins(f'v_exp_f32 v{sc}, v{sc}')
        a.ins(f'v_mul_f32 v{M}, s74, v{M}')
        m_resc(acc, sc)
        a.ins(f'v_mul_f32 v{l}, v{sc}, v{l}')
        a.ins(f'v_add_f32_dpp v{l}, v{l}, v{l} row_ror:8 {DPP}')
        a.ins(f'v_mov_b32 v{u}, v{l}')
        a.ins(f'v_permlane16_swap_b32 v{l}, v{u}')
        a.ins(f'v_add_f32 v{l}, v{l}, v{u}')
        a.ins(f'v_mov_b32 v{u}, v{l}')
        a.ins(f'v_permlane32_swap_b32 v{l}, v{u}')
        a.ins(f'v_add_f32 v{l}, v{l}, v{u}')
        for k in range(12):
            a.ins(f'v_permlane32_swap_b32 v{acc+k}, v{acc+k+12}')
        for k in range(12):
            a.ins(f'v_add_f32 v{acc+k}, v{acc+k}, v{acc+k+12}')
        for k in range(6):
            a.ins(f'v_permlane16_swap_b32 v{acc+k}, v{acc+k+6}')
        for k in range(6):
            a.ins(f'v_add_f32 v{acc+k}, v{acc+k}, v{acc+k+6}')
        for k in range(6):
            a.ins(f'v_add_f32_dpp v{acc+k}, v{acc+k}, v{acc+k} row_ror:8 {DPP}')
        t1, t2 = WK + 3, WK + 4
        for k in range(6):
            a.ins(f'v_add_u32 v{t1}, {k}, v7')
            a.ins(f'v_lshrrev_b32 v{t2}, 3, v{t1}')
            a.ins(f'v_and_b32 v{t1}, 7, v{t1}')
            a.ins(f'v_lshlrev_b32 v{t2}, 6, v{t2}')
            a.ins(f'v_add_u32 v{t1}, v{t1}, v{t2}')
            a.ins(f'v_lshl_add_u32 v{t1}, v{t1}, 2, v4')
            a.lds(f'ds_write_b32 v{t1}, v{acc+k}')
        z = WK + 8
        a.ins(f'v_mov_b32 v{z}, v{M}')
        a.ins(f'v_mov_b32 v{z+1}, v{l}')
        a.ins(f'v_mov_b32 v{z+2}, 0')
        a.ins(f'v_mov_b32 v{z+3}, 0')
        a.ins(f'v_and_b32 v{t1}, 0xffffff1f, v4')
        a.lds(f'ds_write_b128 v{t1}, v[{z}:{z+3}] offset:768')
        a.wait_lg_all()
        a.lds(f'ds_read_b128 v[{z}:{z+3}], v5')
        a.wait_lg_all()
        a.ins(f's_add_u32 s76, s73, {hex(c * PART_C)}')
        set_exec_lanes(49)
        a.vmem(f'buffer_store_dwordx4 v[{z}:{z+3}], v6, s[64:67], s76 offen sc1', ('P', c))
        set_exec_lanes(64)

    def run(self):
        P = self.P
        stamp(0, 78, 252)
        SCAP = int(os.environ.get('SCAP', '24'))
        def fill(n_more):
            done = 0
            while done < n_more:
                before = self.nissued
                tags = [t for t in a.vm if isinstance(t, tuple) and t[0] == 'T']
                if len(tags) + 3 > SCAP:
                    a.wait_vm(tags[2])
                self.try_issue(cap=len(a.vm) + 4)
                if self.nissued == before:
                    break
                done += self.nissued - before
        def snapshot():
            return (self.lqi, self.nissued, list(self.ring_free), self.ring_next, dict(self.ded_free), dict(self.loc), list(a.vm), [e.get('done', False) for e in self.LQ])
        def restore(sn):
            self.lqi, self.nissued = sn[0], sn[1]
            self.ring_free, self.ring_next, self.ded_free, self.loc, a.vm = list(sn[2]), sn[3], dict(sn[4]), dict(sn[5]), list(sn[6])
            for e, d in zip(self.LQ, sn[7]):
                e['done'] = d
        FLAG_LDS = 3 * 40960 + 39936 + 1016
        a.ins(f'v_mov_b32 v250, {FLAG_LDS}')
        a.ins('v_mov_b32 v251, 0')
        a.lds('ds_write_b32 v250, v251')
        startup2a(after_x=lambda: self.try_issue(cap=len(a.vm) + SCAP), st=True)
        sv = list(a.vm)
        L0 = only_wave0_begin()
        startup2b(st=True)
        a.ins(f'v_mov_b32 v250, {FLAG_LDS}')
        a.ins('v_mov_b32 v251, 1')
        a.lds('ds_write_b32 v250, v251')
        only_wave0_end(L0)
        a.vm = sv
        fill(100)
        LF = newlab('Llf'); LD = newlab('Lld')
        smov(75, SPIN_MAX)
        a.ins(f'v_mov_b32 v250, {FLAG_LDS}')
        a.label(LF)
        a.ins('ds_read_b32 v251, v250')
        a.ins('s_waitcnt lgkmcnt(0)')
        a.ins('v_cmp_ne_u32 vcc, 1, v251')
        a.ins(f's_cbranch_vccz {LD}')
        a.ins('s_sleep 1')
        a.ins('s_sub_u32 s75, s75, 1')
        a.ins('s_cmp_lg_u32 s75, 0')
        a.ins(f's_cbranch_scc1 {LF}')
        a.label(LD)
        a.fence_hazards()
        stamp(1, 78, 252)
        a.ins('v_min_u32 v248, 23, v0')
        a.ins('v_lshlrev_b32 v248, 7, v248')
        self.q_issue(P[0][1], P[0][2])
        for pi, (ty, ps, b, tiles) in enumerate(P):
            a.comment(f'---- phase {pi}: {ty} pass{ps} b{b}')
            self.cur_pi = pi
            stamp(2 + 3 * pi, 78, 252)
            self.q_take(ps, b)
            stamp(3 + 3 * pi, 78, 252)
            for k in range(24):
                a.ins(f'v_mov_b32 v{ST+k}, 0')
            a.ins(f'v_mov_b32 v{ST+24}, 0xf149f2ca')
            a.ins(f'v_mov_b32 v{ST+25}, 0')
            gs = groups_of(tiles)
            for g, grp in enumerate(gs):
                if g == len(gs) - 3 and pi + 1 < len(P):
                    self.q_issue(P[pi + 1][1], P[pi + 1][2])
                if g == len(gs) - 4 and pi == 0:
                    flags_addr(250, 2)
                    a.vmem('global_load_dword v251, v250, s[28:29]', 'fl2')
                self.group(pi, ty, grp, g == len(gs) - 1)
            if pi == 0:
                a.wait_vm('fl2')
                FO = newlab('Lfo')
                flags_check(251, 2)
                a.ins(f's_cbranch_vccz {FO}')
                sv = list(a.vm)
                wait_flags(2, 250, plain_first=False)
                a.vm = sv
                a.label(FO)
                a.fence_hazards()
            self.publish(ST, pi)
            stamp(4 + 3 * pi, 78, 252)
            self.try_issue()
        a.ins('s_waitcnt vmcnt(0)')
        a.ins('s_endpgm')

def gen_stream():
    a.label('L_stream')
    startup1()
    a.ins(f's_sub_u32 s4, s2, {NCH}')
    a.ins('s_lshl_b32 s4, s4, 2')
    a.ins('s_add_u32 s4, s4, s3')
    a.ins('s_mul_i32 s5, s4, 2521')
    a.ins('s_lshr_b32 s5, s5, 16')
    a.ins(f's_mul_i32 s6, s5, {WPH}')
    a.ins('s_sub_u32 s6, s4, s6')
    a.ins('s_mul_i32 s7, s6, 39')
    a.ins('s_min_u32 s68, s6, 10')
    a.ins('s_add_u32 s7, s7, s68')
    a.ins('s_cmp_lt_u32 s6, 10')
    a.ins('s_cselect_b32 s68, 40, 39')
    a.ins('s_cselect_b32 s69, 0, 0xff800000')
    a.ins('s_mul_i32 s68, s68, 3072')
    a.ins('s_mul_i32 s70, s5, 3145728')
    a.ins('s_mul_i32 s71, s7, 3072')
    a.ins('s_add_u32 s70, s70, s71')
    for b in range(4):
        a.ins(f's_add_u32 s71, s70, {hex(b * BATCH_STRIDE)}')
        srd_off(srd_k(b), 10, 11, 71, 's68')
        srd_off(srd_v(b), 12, 13, 71, 's68')
    a.ins('s_mul_i32 s72, s5, 384')
    a.ins(f's_add_u32 s72, s72, {hex(Q_OFF)}')
    a.ins(f's_mul_i32 s73, s4, {REC}')
    smov(74, CSCALE)
    a.ins('s_lshl_b32 s78, s4, 8')
    a.ins(f's_add_u32 s78, s78, {hex(STAMP_OFF)}')
    a.ins('v_lshrrev_b32 v1, 3, v0')
    a.ins('v_mul_u32_u24 v1, 384, v1')
    a.ins('v_and_b32 v2, 7, v0')
    a.ins('v_lshlrev_b32 v2, 4, v2')
    a.ins('v_add_u32 v1, v1, v2')
    a.ins('s_mul_i32 s71, s3, 40960')
    a.ins('v_lshlrev_b32 v6, 4, v0')
    a.ins('v_add_u32 v3, s71, v6')
    a.ins('s_add_u32 s71, s71, 39936')
    a.ins('v_add_u32 v5, s71, v6')
    a.ins('v_lshlrev_b32 v4, 1, v2')
    a.ins('v_add_u32 v4, s71, v4')
    a.ins('v_bfe_u32 v7, v0, 4, 1')
    a.ins('v_mul_u32_u24 v7, 6, v7')
    a.ins('v_bfe_u32 v254, v0, 5, 1')
    a.ins('v_mul_u32_u24 v254, 12, v254')
    a.ins('v_add_u32 v7, v7, v254')
    Stream().run()

XS = 0
RED = 5120
XRES = 25600
X1 = 35840
WL = 38912
X1A = 100352
W1 = 128

def vm_auto(text):
    if len(a.vm) >= 60:
        a.ins('s_waitcnt vmcnt(30)')
        a.vm = a.vm[-30:]
    a.vmem(text, None)

def wave_sum(t, u):
    for pat in ('quad_perm:[1,0,3,2]', 'quad_perm:[2,3,0,1]', 'row_half_mirror', 'row_mirror'):
        a.ins(f'v_add_f32_dpp v{t}, v{t}, v{t} {pat} {DPP}')
    a.ins(f'v_mov_b32 v{u}, v{t}')
    a.ins(f'v_permlane16_swap_b32 v{t}, v{u}')
    a.ins(f'v_add_f32 v{t}, v{t}, v{u}')
    a.ins(f'v_mov_b32 v{u}, v{t}')
    a.ins(f'v_permlane32_swap_b32 v{t}, v{u}')
    a.ins(f'v_add_f32 v{t}, v{t}, v{u}')

def bf16r(d, s):
    a.ins(f'v_cvt_pk_bf16_f32 v{d}, 0, v{s}')

def poll_indicator(voff, nl, sreg):
    L = newlab('Lpi'); D = newlab('Lpd')
    smov(75, SPIN_MAX)
    set_exec_lanes(nl)
    a.label(L)
    a.ins(f'buffer_load_dword v127, v{voff}, s[64:67], s{sreg} offen sc1')
    a.ins('s_waitcnt vmcnt(0)')
    if os.environ.get('POLL', 'any') == 'any':
        a.ins('v_cmp_ne_u32 vcc, -1, v127')
        a.ins(f's_cbranch_vccnz {D}')
    else:
        a.ins('v_cmp_eq_u32 vcc, -1, v127')
        a.ins(f's_cbranch_vccz {D}')
    a.ins(f's_sleep {os.environ.get("PSLEEP", "3")}')
    a.ins('s_sub_u32 s75, s75, 1')
    a.ins('s_cmp_lg_u32 s75, 0')
    a.ins(f's_cbranch_scc1 {L}')
    a.label(D)
    set_exec_lanes(64)
    a.vm = []

def gather_sel(n, emit_load, reg_of, init_mask=None):
    L = newlab('Lgs'); D = newlab('Lgsd')
    if init_mask is None:
        smov(91, (1 << n) - 1)
    else:
        init_mask()
    smov(75, SPIN_MAX)
    a.label(L)
    for i in range(n):
        K = newlab('Lgk')
        a.ins(f's_bitcmp1_b32 s91, {i}')
        a.ins(f's_cbranch_scc0 {K}')
        emit_load(i)
        a.label(K)
    a.ins('s_waitcnt vmcnt(0)')
    for i in range(n):
        K = newlab('Lgc')
        r = reg_of(i)
        a.ins(f's_bitcmp1_b32 s91, {i}')
        a.ins(f's_cbranch_scc0 {K}')
        a.ins(f'v_max3_u32 v127, v{r}, v{r+1}, v{r+2}')
        a.ins(f'v_max_u32 v127, v127, v{r+3}')
        a.ins('v_cmp_eq_u32 vcc, -1, v127')
        a.ins(f's_cbranch_vccnz {K}')
        a.ins(f's_bitset0_b32 s91, {i}')
        a.label(K)
    a.ins('s_cmp_eq_u32 s91, 0')
    a.ins(f's_cbranch_scc1 {D}')
    a.ins('s_sub_u32 s75, s75, 1')
    a.ins('s_cmp_lg_u32 s75, 0')
    a.ins(f's_cbranch_scc1 {L}')
    a.label(D)
    a.fence_hazards()

def check_regs(regs, w):
    regs = list(regs)
    a.ins(f'v_max3_u32 v{w}, v{regs[0]}, v{regs[1]}, v{regs[2]}')
    k = 3
    while k < len(regs):
        k2 = min(k + 1, len(regs) - 1)
        a.ins(f'v_max3_u32 v{w}, v{w}, v{regs[k]}, v{regs[k2]}')
        k += 2
    a.ins(f'v_cmp_eq_u32 vcc, -1, v{w}')

def gather_ar(sreg):
    poll_indicator(8, 8, sreg)
    def ld(i):
        a.ins(f's_add_u32 s76, s{sreg}, {(i // 4) * 4096}')
        off = f' offset:{(i % 4) * 1024}' if i % 4 else ''
        a.ins(f'buffer_load_dwordx4 v[{16+4*i}:{19+4*i}], v9, s[64:67], s76 offen{off} sc1')
    gather_sel(20, ld, lambda i: 16 + 4 * i)
    for grp in range(5):
        for k in range(1, 4):
            for e in range(4):
                a.ins(f'v_add_f32 v{16+4*grp+e}, v{16+4*grp+e}, v{16+4*(grp+5*k)+e}')
    for grp in range(5):
        a.lds(f'ds_write_b128 v10, v[{16+4*grp}:{19+4*grp}] offset:{grp*1024}')
    a.barrier()

def ar_sum_wave0():
    for wv in range(8):
        for k in range(5):
            r = 32 + (wv * 5 + k) * 2
            a.lds(f'ds_read_b64 v[{r}:{r+1}], v12 offset:{RED + wv*2560 + k*512}')
    a.wait_lg_all()
    for k in range(5):
        for e in range(2):
            d = 16 + 2 * k + e
            a.ins(f'v_add_f32 v{d}, v{32+2*k+e}, v{32+(5+k)*2+e}')
    for p in range(2, 8):
        for k in range(5):
            for e in range(2):
                d = 16 + 2 * k + e
                a.ins(f'v_add_f32 v{d}, v{d}, v{32+(5*p+k)*2+e}')

def residual(areg, src_off):
    for k in range(5):
        a.lds(f'ds_read_b64 v[{32+2*k}:{33+2*k}], v{areg} offset:{src_off + k*512}')
    for i in range(10):
        bf16r(16 + i, 16 + i)
    a.wait_lg_all()
    for i in range(10):
        a.ins(f'v_add_f32 v{16+i}, v{16+i}, v{32+i}')
    for i in range(10):
        bf16r(16 + i, 16 + i)

def store_x(areg, dst_off):
    for k in range(5):
        a.lds(f'ds_write_b64 v{areg}, v[{16+2*k}:{17+2*k}] offset:{dst_off + k*512}')

def layernorm_to_xs():
    t, u, mean, var = 32, 33, 34, 35
    a.ins(f'v_add_f32 v{t}, v16, v17')
    for i in range(2, 10):
        a.ins(f'v_add_f32 v{t}, v{t}, v{16+i}')
    wave_sum(t, u)
    a.ins(f'v_mul_f32 v{mean}, {hex(f32(1.0/640))}, v{t}')
    for i in range(10):
        a.ins(f'v_sub_f32 v{40+i}, v{16+i}, v{mean}')
    a.ins(f'v_mul_f32 v{t}, v40, v40')
    for i in range(1, 10):
        a.ins(f'v_fmac_f32 v{t}, v{40+i}, v{40+i}')
    wave_sum(t, u)
    a.ins(f'v_mul_f32 v{var}, {hex(f32(1.0/640))}, v{t}')
    bf16r(mean, mean)
    bf16r(var, var)
    a.ins(f'v_add_f32 v{var}, {hex(f32(1e-5))}, v{var}')
    bf16r(var, var)
    a.ins(f'v_sqrt_f32 v{var}, v{var}')
    bf16r(var, var)
    a.ins(f'v_rcp_f32 v{u}, v{var}')
    for i in range(10):
        a.ins(f'v_sub_f32 v{40+i}, v{16+i}, v{mean}')
    for i in range(10):
        bf16r(40 + i, 40 + i)
    for i in range(10):
        a.ins(f'v_mul_f32 v{50+i}, v{40+i}, v{u}')
    for i in range(10):
        a.ins(f'v_fma_f32 v{60+i}, -v{50+i}, v{var}, v{40+i}')
    for i in range(10):
        a.ins(f'v_fma_f32 v{50+i}, v{60+i}, v{u}, v{50+i}')
    for k in range(5):
        a.ins(f'v_cvt_pk_bf16_f32 v{72+k}, v{50+2*k}, v{51+2*k}')
        a.lds(f'ds_write_b32 v119, v{72+k} offset:{XS + k*256}')

def only_wave0_begin():
    L = newlab('Lw0')
    a.ins('s_cmp_lg_u32 s3, 0')
    a.ins(f's_cbranch_scc1 {L}')
    return L

def only_wave0_end(L):
    a.wait_lg_all()
    a.label(L)
    a.fence_hazards()

def gemv_rows(nrows, xaddr, wsrc, acc=56):
    for k in range(8):
        a.ins(f'v_mov_b32 v{acc+k}, 0')
    B = 4
    XB = (16, 24); WB = (64, 80)
    nb = nrows // B
    def issue(j):
        r0 = j * B
        for k in range(B // 2):
            a.lds(f'ds_read_b128 v[{XB[j%2]+4*k}:{XB[j%2]+4*k+3}], v{xaddr} offset:{(r0+2*k)*8}', ('g', j))
        for k in range(B):
            ws = wsrc(r0 + k)
            if ws[0] == 'l':
                a.lds(f'ds_read_b128 v[{WB[j%2]+4*k}:{WB[j%2]+4*k+3}], v{ws[1]} offset:{ws[2]}', ('g', j))
    issue(0)
    for j in range(nb):
        if j + 1 < nb:
            issue(j + 1)
        a.wait_lg(('g', j))
        for k in range(B):
            ws = wsrc(j * B + k)
            x = XB[j % 2] + 2 * k
            if ws[0] == 'a':
                tmp = 48 + 4 * (k % 2)
                m_ac4(tmp, ws[1])
                m_gv8(tmp, x, acc)
            elif ws[0] == 'v':
                m_gv8(ws[1], x, acc)
            else:
                m_gv8(WB[j % 2] + 4 * k, x, acc)

def write_red(addr, acc=56):
    set_exec_lanes(60)
    a.lds(f'ds_write_b128 v{addr}, v[{acc}:{acc+3}]')
    a.lds(f'ds_write_b128 v{addr}, v[{acc+4}:{acc+7}] offset:16')
    set_exec_lanes(64)
    a.barrier()

def reduce3_publish(sreg):
    L = newlab('Lr3')
    a.ins('s_cmp_eq_u32 s3, 3')
    a.ins(f's_cbranch_scc1 {L}')
    M = newlab('Lr3m')
    a.ins('s_cmp_lg_u32 s3, 2')
    a.ins(f's_cbranch_scc1 {M}')
    set_exec_lanes(32)
    a.label(M)
    for r in range(3):
        a.lds(f'ds_read_b128 v[{16+4*r}:{19+4*r}], v15 offset:{RED + r*2560}')
    a.wait_lg_all()
    for e in range(4):
        a.ins(f'v_add_f32 v{16+e}, v{16+e}, v{20+e}')
    for e in range(4):
        a.ins(f'v_add_f32 v{16+e}, v{16+e}, v{24+e}')
    a.ins(f's_add_u32 s76, s70, s{sreg}')
    a.ins('buffer_store_dwordx4 v[16:19], v15, s[64:67], s76 offen sc1')
    set_exec_lanes(64)
    a.label(L)
    a.fence_hazards()


def prep_blocks(blocks):
    TB = (16, 48); U = 80
    def issue(i):
        blocks[i][0](TB[i % 2], ('blk', i))
    issue(0)
    for i, (em, dest) in enumerate(blocks):
        if i + 1 < len(blocks):
            issue(i + 1)
        a.wait_vm(('blk', i))
        T = TB[i % 2]
        out = dest[1] if dest[0] == 'v' else U
        for d in range(4):
            for h in range(2):
                c = 2 * d + h
                for p in range(4):
                    a.ins(f'v_perm_b32 v{out+4*c+p}, v{T+4*(2*p+1)+d}, v{T+4*(2*p)+d}, s{62+h}')
        if dest[0] == 'a':
            for k in range(32):
                a.ins(f'v_accvgpr_write_b32 a{dest[1]+k}, v{U+k}')
        elif dest[0] in ('l', 'l?'):
            LS = None
            if dest[0] == 'l?':
                LS = newlab('Lpb')
                a.ins('s_cmp_ge_u32 s3, 2')
                a.ins(f's_cbranch_scc1 {LS}')
            for c in range(8):
                a.lds(f'ds_write_b128 v{dest[1]}, v[{U+4*c}:{U+4*c+3}] offset:{dest[2]+c*1024}')
            a.wait_lg_all()
            if LS:
                a.label(LS)
                a.fence_hazards()
    a.wait_lg_all()

def stage_block(dst, areg, off, tag):
    for c in range(8):
        a.lds(f'ds_read_b128 v[{dst+4*c}:{dst+4*c+3}], v{areg} offset:{off+c*1024}', tag)

def mfma_block(acc, x, kind, base, first):
    for c in range(8):
        cc = '0' if first else f'v[{acc+4*c}:{acc+4*c+3}]'
        a.ins(f'v_mfma_f32_16x16x32_bf16 v[{acc+4*c}:{acc+4*c+3}], v[{x}:{x+3}], {kind}[{base+4*c}:{base+4*c+3}], {cc}')

def extract(acc, E):
    for c in range(8):
        a.ins(f'v_mov_b32 v{E+c}, v{acc+4*c}')

def xread(dst, areg, off, tag='x'):
    a.lds(f'ds_read_b128 v[{dst}:{dst+3}], v{areg} offset:{off}', tag)

def mfma_consts():
    smov(62, 0x05040100)
    smov(63, 0x07060302)
    a.ins('v_and_b32 v3, 15, v0')
    a.ins('v_lshrrev_b32 v4, 4, v0')
    a.ins('v_lshlrev_b32 v112, 4, v4')
    a.ins(f'v_add_u32 v112, {XS}, v112')
    a.ins('s_lshl_b32 s4, s3, 6')
    a.ins('v_add_u32 v113, s4, v112')
    a.ins('s_mul_i32 s4, s3, 320')
    a.ins('v_add_u32 v114, s4, v112')

def direct_and_cb4_publish(sreg):
    pass

def publish_own(E, sreg):
    a.ins(f's_add_u32 s76, s70, s{sreg}')
    set_exec_lanes(16)
    a.ins(f'buffer_store_dwordx4 v[{E}:{E+3}], v115, s[64:67], s76 offen sc1')
    a.ins(f'buffer_store_dwordx4 v[{E+4}:{E+7}], v115, s[64:67], s76 offen offset:16 sc1')
    set_exec_lanes(64)

def publish_cb4(E, sreg):
    set_exec_lanes(16)
    a.lds(f'ds_write_b128 v116, v[{E}:{E+3}]')
    a.lds(f'ds_write_b128 v116, v[{E+4}:{E+7}] offset:16')
    set_exec_lanes(64)
    a.barrier()
    L0 = only_wave0_begin()
    for w in range(4):
        a.lds(f'ds_read_b128 v[{16+4*w}:{19+4*w}], v13 offset:{RED + w*512}')
    a.wait_lg_all()
    for w in range(1, 4):
        for e in range(4):
            a.ins(f'v_add_f32 v{16+e}, v{16+e}, v{16+4*w+e}')
    a.ins(f's_add_u32 s76, s70, s{sreg}')
    set_exec_lanes(32)
    a.ins('buffer_store_dwordx4 v[16:19], v13, s[64:67], s76 offen offset:2048 sc1')
    set_exec_lanes(64)
    only_wave0_end(L0)

def combine_records(n, first_reg, Mv, Lv, out):
    for k in range(n):
        a.ins(f'v_readlane_b32 s{40+k}, v{first_reg+4*k}, 48')
        a.ins(f'v_readlane_b32 s{48+k}, v{first_reg+4*k+1}, 48')
    a.ins(f'v_mov_b32 v{Mv}, s40')
    for k in range(1, n):
        a.ins(f'v_max_f32 v{Mv}, s{40+k}, v{Mv}')
    E = 100
    for k in range(n):
        a.ins(f'v_sub_f32 v{E+k}, s{40+k}, v{Mv}')
    for k in range(n):
        a.ins(f'v_exp_f32 v{E+k}, v{E+k}')
    a.ins(f'v_mul_f32 v{Lv}, s48, v{E}')
    for k in range(1, n):
        a.ins(f'v_fma_f32 v{Lv}, v{E+k}, s{48+k}, v{Lv}')
    for e in range(4):
        a.ins(f'v_mul_f32 v{out+e}, v{E}, v{first_reg+e}')
    for k in range(1, n):
        for e in range(4):
            a.ins(f'v_fma_f32 v{out+e}, v{E+k}, v{first_reg+4*k+e}, v{out+e}')

def combine_big(n, first_reg, Mv, Lv, out, E):
    a.ins(f'v_readlane_b32 s40, v{first_reg}, 48')
    a.ins(f'v_readlane_b32 s41, v{first_reg+4}, 48')
    a.ins(f'v_mov_b32 v{Mv}, s40')
    for k in range(1, n):
        if k + 1 < n:
            a.ins(f'v_readlane_b32 s{40+(k+1)%2}, v{first_reg+4*(k+1)}, 48')
        a.ins(f'v_max_f32 v{Mv}, s{40+k%2}, v{Mv}')
    a.ins(f'v_mov_b32 v{Lv}, 0')
    for e in range(4):
        a.ins(f'v_mov_b32 v{out+e}, 0')
    def rl(k):
        a.ins(f'v_readlane_b32 s{40+2*(k%2)}, v{first_reg+4*k}, 48')
        a.ins(f'v_readlane_b32 s{41+2*(k%2)}, v{first_reg+4*k+1}, 48')
    rl(0)
    for k in range(n):
        if k + 1 < n:
            rl(k + 1)
        e_ = E + k % 2
        a.ins(f'v_sub_f32 v{e_}, s{40+2*(k%2)}, v{Mv}')
        a.ins(f'v_exp_f32 v{e_}, v{e_}')
        a.ins(f'v_fma_f32 v{Lv}, v{e_}, s{41+2*(k%2)}, v{Lv}')
        for e in range(4):
            a.ins(f'v_fma_f32 v{out+e}, v{e_}, v{first_reg+4*k+e}, v{out+e}')

def chain_common_init():
    a.ins('s_lshl_b32 s4, s3, 6')
    a.ins('v_add_u32 v15, s4, v0')
    a.ins('v_lshlrev_b32 v15, 4, v15')
    for k in range(4):
        a.ins(f'v_mov_b32 v{16+k}, -1')
    L1 = newlab('Lst1')
    a.ins('s_cmp_ge_u32 s2, 12')
    a.ins(f's_cbranch_scc1 {L1}')
    a.ins('s_lshl_b32 s76, s2, 12')
    a.ins(f's_add_u32 s76, s76, {hex(Q_OFF)}')
    a.ins('buffer_store_dwordx4 v[16:19], v15, s[64:67], s76 offen sc1')
    a.ins('s_waitcnt vmcnt(0)')
    a.ins('s_barrier')
    set_flag(1)
    a.label(L1)
    a.fence_hazards()
    startup1()
    startup2a()
    L0 = only_wave0_begin()
    startup2b()
    only_wave0_end(L0)
    a.barrier()
    a.ins(f's_mul_i32 s4, s2, {ARM_PER}')
    for k in range(ARM_N):
        LS = newlab('Lsa')
        a.ins(f's_add_u32 s76, s4, {k*4096}')
        a.ins(f's_sub_u32 s5, s76, {hex(Q_OFF)}')
        a.ins('s_cmp_lt_u32 s5, 49152')
        a.ins(f's_cbranch_scc1 {LS}')
        a.ins('buffer_store_dwordx4 v[16:19], v15, s[64:67], s76 offen sc1')
        a.label(LS)
    a.ins('s_waitcnt vmcnt(0)')
    a.ins('s_barrier')
    set_flag(2)
    a.vm = []
    a.ins('s_lshl_b32 s4, s3, 6')
    a.ins('v_add_u32 v1, s4, v0')
    a.ins('v_lshlrev_b32 v15, 4, v1')
    a.ins('v_min_u32 v2, 59, v0')
    a.ins('s_mul_i32 s4, s3, 60')
    a.ins('v_add_u32 v2, s4, v2')
    a.ins('v_lshlrev_b32 v14, 4, v2')
    a.ins(f'v_add_u32 v14, {WL}, v14')
    a.ins('v_add_u32 v120, 61440, v14')
    a.ins('s_lshl_b32 s4, s3, 3')
    a.ins('v_add_u32 v8, s4, v0')
    a.ins('v_mul_u32_u24 v8, 2560, v8')
    a.ins('v_add_u32 v8, 2556, v8')
    a.ins('s_mul_i32 s4, s3, 20480')
    a.ins('v_lshlrev_b32 v13, 4, v0')
    a.ins('v_add_u32 v9, s4, v13')
    a.ins(f's_mul_i32 s4, s3, 5120')
    a.ins(f's_add_u32 s4, s4, {RED}')
    a.ins('v_add_u32 v10, s4, v13')
    a.ins('v_lshlrev_b32 v12, 3, v0')
    a.ins('s_lshl_b32 s4, s2, 2')
    a.ins('s_add_u32 s4, s4, s3')
    a.ins('s_lshl_b32 s77, s4, 9')
    a.ins(f's_add_u32 s77, s77, {hex(STAMP_OFF + 832*256)}')
    stamp(120, 77, 122)

def arm_arrive():
    a.wait_vm('arm')
    a.ins('s_barrier')
    L = only_wave0_begin()
    a.ins('v_mov_b32 v124, 0')
    a.ins('v_mov_b32 v125, 1')
    set_exec_lanes(1)
    a.vmem('global_atomic_add v124, v125, s[28:29] sc1', None)
    set_exec_lanes(64)
    a.label(L)
    a.fence_hazards()

def load_xres():
    L = only_wave0_begin()
    srd(96, 8, 9, 4 * 1280)
    a.ins('v_lshlrev_b32 v127, 2, v0')
    for b in range(4):
        smov(76, b * 1280)
        for k in range(5):
            a.ins(f'buffer_load_dword v{16+b*5+k}, v127, s[96:99], s76 offen offset:{k*256}')
    a.ins('s_waitcnt vmcnt(0)')
    for b in range(4):
        for k in range(5):
            r = 16 + b * 5 + k
            d = 40 + 2 * (b * 5 + k)
            a.ins(f'v_lshlrev_b32 v{d}, 16, v{r}')
            a.ins(f'v_and_b32 v{d+1}, 0xffff0000, v{r}')
            a.lds(f'ds_write_b64 v12, v[{d}:{d+1}] offset:{XRES + b*2560 + k*512}')
    only_wave0_end(L)


def gen_acu():
    a.label('L_acu')
    chain_common_init()
    mfma_consts()
    a.ins('s_mul_i32 s70, s2, 2560')
    a.ins('v_lshlrev_b32 v119, 2, v0')
    a.ins('s_mul_i32 s4, s3, 24576')
    a.ins(f's_add_u32 s4, s4, {WL}')
    a.ins('v_add_u32 v14, s4, v13')
    a.ins('s_and_b32 s4, s3, 1')
    a.ins('s_lshl_b32 s4, s4, 13')
    a.ins(f's_add_u32 s4, s4, {WL + 4*24576}')
    a.ins('v_add_u32 v120, s4, v13')
    a.ins('v_mul_u32_u24 v125, 10240, v4')
    a.ins('v_lshl_add_u32 v125, v3, 4, v125')
    a.ins('v_subrev_u32 v127, 6, v3')
    a.ins('v_min_u32 v127, 5, v127')
    a.ins('v_cmp_gt_u32 vcc, 6, v3')
    a.ins('v_cndmask_b32 v127, v127, v3, vcc')
    a.ins('v_mul_u32_u24 v126, 24576, v4')
    a.ins('v_lshl_add_u32 v126, v127, 4, v126')
    a.ins('s_mov_b64 s[88:89], vcc')
    a.ins('s_not_b64 s[90:91], vcc')
    a.ins('s_mul_i32 s4, s2, 245760')
    srd_off(96, 16, 17, 4, 245760)
    a.ins('s_mul_i32 s4, s2, 96')
    a.ins(f's_sub_u32 s5, {640*3072}, s4')
    srd_off(80, 20, 21, 4, 's5')
    srd_off(84, 22, 23, 4, 's5')
    a.ins('s_mul_i32 s4, s2, 61440')
    srd_off(92, 24, 25, 4, 61440)
    a.ins('s_lshl_b32 s40, s3, 8')
    a.ins('s_mul_i32 s41, s3, 40960')
    a.ins('s_add_u32 s41, s41, 1024')
    a.ins(f's_mul_i32 s42, s3, {160*3072}')
    def ld1280(srd_, sbase, const):
        def em(T, tag):
            for e in range(8):
                if e % 3 == 0:
                    a.ins(f's_add_u32 s76, s{sbase}, {const + (e // 3) * 3840}')
                off = f' offset:{(e % 3) * 1280}' if e % 3 else ''
                a.vmem(f'buffer_load_dwordx4 v[{T+4*e}:{T+4*e+3}], v125, s[{srd_}:{srd_+3}], s76 offen{off} nt', tag)
        return em
    def ldgu(i):
        def em(T, tag):
            for e in range(8):
                a.ins(f's_add_u32 s76, s42, {(32 * i + e) * 3072}')
                a.ins('s_mov_b64 exec, s[88:89]')
                a.vmem(f'buffer_load_dwordx4 v[{T+4*e}:{T+4*e+3}], v126, s[80:83], s76 offen nt', tag)
                a.ins('s_mov_b64 exec, s[90:91]')
                a.vmem(f'buffer_load_dwordx4 v[{T+4*e}:{T+4*e+3}], v126, s[84:87], s76 offen nt', tag)
            a.ins('s_mov_b64 exec, -1')
        return em
    blocks = []
    for ks in range(6):
        blocks.append((ld1280(96, 40, ks * 40960), ('a', 32 * ks)))
    blocks.append((ld1280(96, 41, 0), ('a', 192)))
    blocks.append((ld1280(96, 41, 4 * 40960), ('a', 224)))
    for i in range(4):
        blocks.append((ldgu(i), ('v', W1 + 32 * i)))
    blocks.append((ldgu(4), ('l', 14, 0)))
    blocks.append((ld1280(92, 40, 0), ('l', 14, 8192)))
    blocks.append((ld1280(92, 40, 40960), ('l', 14, 16384)))
    blocks.append((ld1280(92, 41, 0), ('l?', 120, 0)))
    prep_blocks(blocks)
    load_xres()
    a.ins('s_lshl_b32 s4, s3, 9')
    a.ins('v_lshlrev_b32 v115, 5, v3')
    a.ins('v_add_u32 v115, s4, v115')
    a.ins(f'v_add_u32 v116, {RED}, v115')
    a.ins('s_mul_i32 s4, s3, 384')
    a.ins('v_lshlrev_b32 v11, 5, v3')
    a.ins('v_add_u32 v11, s4, v11')
    a.ins(f'v_add_u32 v11, {RED}, v11')
    a.barrier()
    a.ins('v_lshlrev_b32 v117, 2, v0')
    a.ins('v_add_u32 v117, s3, v117')
    a.ins('v_min_u32 v117, 25, v117')
    a.ins(f'v_mul_u32_u24 v117, {REC}, v117')
    a.ins('v_add_u32 v117, 772, v117')
    a.ins(f's_mul_i32 s71, s2, {WPH*REC}')
    a.ins(f's_mul_i32 s72, s3, {REC}')
    a.ins('s_add_u32 s72, s72, s71')
    a.ins(f's_mul_i32 s4, s3, {REC}')
    a.ins(f's_add_u32 s4, s4, {RED}')
    a.ins('v_add_u32 v118, s4, v13')
    a.ins('v_add_u32 v117, s71, v117')
    wait_flags(2, 126)
    order = 0
    for i, (ly, b) in enumerate(CHAIN_ORDER):
        order |= (ly * 4 + b) << (4 * i)
    tab = 0
    for i, k in enumerate(CHAIN_ORDER):
        sg = CHAIN_SEGS[k]
        assert 2 <= len(sg) <= 3
        e = sg[0] | ((sg[1] if len(sg) > 2 else 0) << 5) | (sg[-1] << 10) | ((1 if len(sg) > 2 else 0) << 15)
        tab |= e << (16 * i)
    for w in range(4):
        smov(56 + w, (tab >> (32 * w)) & 0xffffffff)
    a.ins('s_mov_b32 s78, 0')
    a.label('L_aloop')
    a.fence_hazards()
    if True:
        a.ins('s_lshl_b32 s4, s78, 2')
        a.ins(f's_lshr_b32 s79, {hex(order)}, s4')
        a.ins('s_and_b32 s79, s79, 15')
        a.ins(f's_mul_i32 s81, s79, {2*AR_SZ}')
        a.ins(f's_add_u32 s81, s81, {hex(AR_OFF)}')
        a.ins(f's_add_u32 s82, s81, {AR_SZ}')
        a.ins('s_and_b32 s83, s79, 3')
        a.ins('s_mul_i32 s84, s83, 1280')
        a.ins('s_mul_i32 s4, s83, 2560')
        a.ins('v_add_u32 v121, s4, v12')
        a.ins('s_lshr_b32 s85, s79, 2')
        a.ins(f's_add_u32 s4, s4, {X1A}')
        a.ins('v_add_u32 v124, s4, v12')
        a.ins('s_lshl_b32 s88, s78, 6')
        stamp(0, 77, 122, 88)
        a.ins('s_and_b32 s4, s78, 3')
        a.ins('s_lshl_b32 s4, s4, 4')
        a.ins('s_cmp_lt_u32 s78, 4')
        a.ins('s_cselect_b64 s[60:61], s[56:57], s[58:59]')
        a.ins('s_lshr_b64 s[60:61], s[60:61], s4')
        for k in range(3):
            a.ins(f's_bfe_u32 s4, s60, {hex((5 << 16) | (5 * k))}')
            a.ins(f's_mul_i32 s{43+k}, s4, {PART_C}')
        a.ins('s_bfe_u32 s89, s60, 0x1000f')
        poll_indicator(117, 7, 45)
        stamp(1, 77, 122, 88)
        for k in (6, 7, 8, 9, 10, 11, 12, 13, 20):
            a.ins(f'v_mov_b32 v{16+4*k}, 0xf149f2ca')
            for e in range(1, 4):
                a.ins(f'v_mov_b32 v{16+4*k+e}, 0')
        set_exec_lanes(49)
        def ld1(k):
            sg, r = k // 7, k % 7
            a.ins(f's_add_u32 s76, s72, s{43+sg}')
            a.ins(f's_add_u32 s76, s76, {r * 4 * REC}')
            a.ins(f'buffer_load_dwordx4 v[{16+4*k}:{19+4*k}], v13, s[64:67], s76 offen sc1')
        def im():
            full = (1 << 21) - 1
            short = full & ~((1 << 6) | (1 << 13) | (1 << 20))
            a.ins('s_cmp_ge_u32 s3, 2')
            a.ins(f's_mov_b32 s91, {hex(full)}')
            a.ins(f's_cselect_b32 s91, {hex(short)}, s91')
            a.ins('s_cmp_eq_u32 s89, 0')
            a.ins(f's_cselect_b32 s4, {hex(0x7f << 7)}, 0')
            a.ins('s_andn2_b32 s91, s91, s4')
        gather_sel(21, ld1, lambda k: 16 + 4 * k, im)
        set_exec_lanes(64)
        combine_big(21, 16, 100, 101, 104, 102)
        a.ins('s_mov_b32 exec_lo, 0', dst=[], src=[])
        a.ins('s_mov_b32 exec_hi, 0x10000', dst=[], src=[])
        a.ins('v_mov_b32 v104, v100')
        a.ins('v_mov_b32 v105, v101')
        set_exec_lanes(64)
        for e in range(4):
            a.ins(f'v_mov_b32 v{52+e}, v{104+e}')
        set_exec_lanes(49)
        a.lds('ds_write_b128 v118, v[52:55]')
        set_exec_lanes(64)
        a.barrier()
        L0 = only_wave0_begin()
        for k in range(4):
            a.lds(f'ds_read_b128 v[{16+4*k}:{19+4*k}], v13 offset:{RED + k*REC}')
        a.wait_lg_all()
        combine_records(4, 16, 48, 49, 52)
        a.ins('v_rcp_f32 v50, v49')
        for e in range(4):
            a.ins(f'v_mul_f32 v{52+e}, v{52+e}, v50')
        a.ins('v_cvt_pk_bf16_f32 v56, v52, v53')
        a.ins('v_cvt_pk_bf16_f32 v57, v54, v55')
        a.ins('s_mov_b32 exec_lo, 0', dst=[], src=[])
        a.ins('s_mov_b32 exec_hi, 0xffff0000', dst=[], src=[])
        a.ins('v_mov_b32 v56, 0')
        a.ins('v_mov_b32 v57, 0')
        set_exec_lanes(64)
        a.lds(f'ds_write_b64 v12, v[56:57] offset:{XS}')
        only_wave0_end(L0)
        a.barrier()
        stamp(2, 77, 122, 88)
        for ks in range(6):
            xread(80 + 4 * ks, 112, 64 * ks)
        xread(104, 113, 0)
        xread(108, 113, 256)
        a.wait_lg_all()
        mfma_block(48, 104, 'a', 192, True)
        mfma_block(48, 108, 'a', 224, False)
        for ks in range(6):
            mfma_block(16, 80 + 4 * ks, 'a', 32 * ks, ks == 0)
        extract(48, 100)
        extract(16, 92)
        publish_own(92, 81)
        publish_cb4(100, 81)
        stamp(3, 77, 122, 88)
        LD = newlab('Ldf')
        a.ins('s_cmp_eq_u32 s85, 0')
        a.ins(f's_cbranch_scc1 {LD}')
        L0 = only_wave0_begin()
        a.ins('s_mul_i32 s90, s83, 2560')
        a.ins(f's_add_u32 s90, s90, {hex(X2_OFF)}')
        LX = newlab('Lx2'); LXD = newlab('Lx2d')
        smov(75, SPIN_MAX)
        a.label(LX)
        for k in range(5):
            a.ins(f'buffer_load_dwordx2 v[{16+2*k}:{17+2*k}], v12, s[64:67], s90 offen offset:{k*512} sc1')
        a.ins('s_waitcnt vmcnt(0)')
        check_regs(range(16, 26), 127)
        a.ins(f's_cbranch_vccz {LXD}')
        a.ins('s_sleep 2')
        a.ins('s_sub_u32 s75, s75, 1')
        a.ins('s_cmp_lg_u32 s75, 0')
        a.ins(f's_cbranch_scc1 {LX}')
        a.label(LXD)
        store_x(121, XRES)
        only_wave0_end(L0)
        a.label(LD)
        a.fence_hazards()
        gather_ar(81)
        stamp(4, 77, 122, 88)
        L0 = only_wave0_begin()
        ar_sum_wave0()
        residual(121, XRES)
        layernorm_to_xs()
        only_wave0_end(L0)
        a.barrier()
        stamp(5, 77, 122, 88)
        stage_block(48, 14, 0, 'st')
        for i in range(5):
            xread(80 + 4 * i, 114, 64 * i)
        a.wait_lg_all()
        for i in range(4):
            mfma_block(16, 80 + 4 * i, 'v', W1 + 32 * i, i == 0)
        mfma_block(16, 96, 'v', 48, False)
        stage_block(48, 14, 8192, 'st5')
        extract(16, 100)
        set_exec_lanes(12)
        a.lds('ds_write_b128 v11, v[100:103]')
        a.lds('ds_write_b128 v11, v[104:107] offset:16')
        set_exec_lanes(64)
        a.barrier()
        L0 = only_wave0_begin()
        for r in range(4):
            a.lds(f'ds_read_b32 v{16+r}, v119 offset:{RED + r*384}')
            a.lds(f'ds_read_b32 v{36+r}, v119 offset:{RED + r*384 + 192}')
        a.wait_lg_all()
        for r in range(1, 4):
            a.ins(f'v_add_f32 v16, v16, v{16+r}')
            a.ins(f'v_add_f32 v36, v36, v{36+r}')
        bf16r(16, 16); bf16r(36, 36)
        a.ins('v_mul_f32 v17, v16, v16')
        a.ins('v_mul_f32 v17, v17, v16')
        a.ins(f'v_mov_b32 v18, {hex(f32(0.044715))}')
        a.ins('v_fma_f32 v17, v17, v18, v16')
        a.ins(f'v_mul_f32 v17, {hex(f32(2*0.7978845608028654*math.log2(math.e)))}, v17')
        a.ins('v_exp_f32 v17, v17')
        a.ins('v_add_f32 v17, 1.0, v17')
        a.ins('v_rcp_f32 v17, v17')
        a.ins('v_fma_f32 v17, v17, -2.0, 1.0')
        a.ins('v_add_f32 v17, 1.0, v17')
        a.ins('v_mul_f32 v17, v17, v16')
        a.ins('v_mul_f32 v17, 0.5, v17')
        bf16r(17, 17)
        a.ins('v_mul_f32 v17, v17, v36')
        a.ins('v_cvt_pk_bf16_f32 v18, v17, 0')
        a.ins('v_mov_b32 v19, 0')
        a.ins('s_mov_b32 exec_lo, 0', dst=[], src=[])
        a.ins('s_mov_b32 exec_hi, 0xffff0000', dst=[], src=[])
        a.ins('v_mov_b32 v18, 0')
        set_exec_lanes(64)
        a.ins('v_lshlrev_b32 v20, 1, v0')
        a.lds(f'ds_write_b16 v20, v18 offset:{XS}')
        a.lds(f'ds_write_b16 v20, v19 offset:{XS + 128}')
        only_wave0_end(L0)
        a.barrier()
        stamp(6, 77, 122, 88)
        xread(80, 112, 0)
        xread(84, 112, 64)
        xread(88, 113, 0)
        a.wait_lg_all()
        mfma_block(16, 80, 'v', 48, True)
        stage_block(48, 14, 16384, 'st5b')
        a.wait_lg_all()
        mfma_block(16, 84, 'v', 48, False)
        stage_block(48, 120, 0, 'st5c')
        extract(16, 92)
        publish_own(92, 82)
        a.wait_lg_all()
        mfma_block(16, 88, 'v', 48, True)
        extract(16, 100)
        publish_cb4(100, 82)
        stamp(7, 77, 122, 88)
        a.barrier()
    stamp(9, 77, 122, 88)
    a.ins('s_add_u32 s78, s78, 1')
    a.ins('s_cmp_lt_u32 s78, 8')
    a.ins('s_cbranch_scc1 L_aloop')
    a.ins('s_waitcnt vmcnt(0)')
    a.ins('s_endpgm')

def wait_armed_chain():
    L = newlab('Lar'); D = newlab('Lad')
    smov(75, SPIN_MAX)
    a.ins('v_mov_b32 v126, 0')
    a.label(L)
    a.ins('global_load_dword v127, v126, s[28:29] sc1')
    a.ins('s_waitcnt vmcnt(0)')
    a.vm = []
    a.ins(f'v_cmp_gt_u32 vcc, {NCH}, v127')
    a.ins(f's_cbranch_vccz {D}')
    a.ins('s_sleep 2')
    a.ins('s_sub_u32 s75, s75, 1')
    a.ins('s_cmp_lg_u32 s75, 0')
    a.ins(f's_cbranch_scc1 {L}')
    a.label(D)
    a.fence_hazards()

def q_gemv_publish():
    stage_block(48, 14, 0, 'st')
    for i in range(5):
        xread(80 + 4 * i, 114, 64 * i)
    a.wait_lg_all()
    for cb in range(3):
        for i in range(4):
            kind, base = (('a', 128 * cb + 32 * i) if cb < 2 else ('v', W1 + 32 * i))
            mfma_block(16, 80 + 4 * i, kind, base, i == 0)
        a.wait_lg_all()
        mfma_block(16, 96, 'v', 48, False)
        if cb < 2:
            stage_block(48, 14, (cb + 1) * 8192, 'st')
        extract(16, 100)
        set_exec_lanes(16)
        a.lds(f'ds_write_b128 v115, v[100:103] offset:{cb*512}')
        a.lds(f'ds_write_b128 v115, v[104:107] offset:{cb*512+16}')
        set_exec_lanes(64)
    a.barrier()
    L0 = only_wave0_begin()
    a.ins('v_lshlrev_b32 v127, 1, v13')
    for r in range(4):
        a.lds(f'ds_read_b128 v[{16+8*r}:{19+8*r}], v127 offset:{RED + r*1536}')
        a.lds(f'ds_read_b128 v[{20+8*r}:{23+8*r}], v127 offset:{RED + r*1536 + 16}')
    a.wait_lg_all()
    for r in range(1, 4):
        for e in range(8):
            a.ins(f'v_add_f32 v{16+e}, v{16+e}, v{16+8*r+e}')
    for e in range(4):
        a.ins(f'v_cvt_pk_bf16_f32 v{60+e}, v{16+2*e}, v{17+2*e}')
    a.ins('s_add_u32 s76, s70, s86')
    set_exec_lanes(48)
    a.ins('buffer_store_dwordx4 v[60:63], v13, s[64:67], s76 offen sc1')
    set_exec_lanes(64)
    only_wave0_end(L0)
    a.barrier()

def gen_qcu():
    a.label('L_qcu')
    chain_common_init()
    a.ins(f's_sub_u32 s5, s2, {NA}')
    mfma_consts()
    a.ins('s_mul_i32 s70, s5, 768')
    a.ins(f's_sub_u32 s6, {640*12288}, s70')
    srd_off(96, 14, 15, 70, 's6')
    a.ins(f'v_mul_u32_u24 v126, {8*12288}, v4')
    a.ins('v_lshl_add_u32 v126, v3, 4, v126')
    a.ins('s_mul_i32 s4, s3, 24576')
    a.ins(f's_add_u32 s4, s4, {WL}')
    a.ins('v_add_u32 v14, s4, v13')
    a.ins(f's_mul_i32 s42, s3, {160*12288}')
    def ldq(i, cb):
        def em(T, tag):
            for e in range(8):
                a.ins(f's_add_u32 s76, s42, {(32 * i + e) * 12288 + cb * 256}')
                a.vmem(f'buffer_load_dwordx4 v[{T+4*e}:{T+4*e+3}], v126, s[96:99], s76 offen nt', tag)
        return em
    blocks = []
    for cb in range(3):
        for i in range(4):
            blocks.append((ldq(i, cb), ('a', 128 * cb + 32 * i) if cb < 2 else ('v', W1 + 32 * i)))
        blocks.append((ldq(4, cb), ('l', 14, cb * 8192)))
    prep_blocks(blocks)
    load_xres()
    a.ins('s_mul_i32 s4, s3, 1536')
    a.ins('v_lshlrev_b32 v115, 5, v3')
    a.ins('v_add_u32 v115, s4, v115')
    a.ins(f'v_add_u32 v115, {RED}, v115')
    a.barrier()
    wait_flags(2, 126)
    order = 0
    for i, (ly, b) in enumerate(CHAIN_ORDER):
        order |= (ly * 4 + b) << (4 * i)
    srd(92, 26, 27, 4 * 1280)
    a.ins('v_lshlrev_b32 v119, 2, v0')
    a.ins('s_mov_b32 s78, 0')
    a.label('L_qloop')
    a.fence_hazards()
    a.ins('s_lshl_b32 s4, s78, 2')
    a.ins(f's_lshr_b32 s79, {hex(order)}, s4')
    a.ins('s_and_b32 s79, s79, 15')
    a.ins('s_and_b32 s83, s79, 3')
    a.ins('s_lshr_b32 s85, s79, 2')
    a.ins('s_mul_i32 s84, s83, 1280')
    a.ins('s_mul_i32 s4, s83, 2560')
    a.ins('v_add_u32 v121, s4, v12')
    a.ins(f's_mul_i32 s86, s83, {32*384}')
    a.ins(f's_add_u32 s86, s86, {hex(Q_OFF + 4*32*384)}')
    a.ins(f's_mul_i32 s81, s79, {2*AR_SZ}')
    a.ins(f's_add_u32 s81, s81, {hex(AR_OFF)}')
    a.ins(f's_add_u32 s82, s81, {AR_SZ}')
    a.ins('s_lshl_b32 s88, s78, 6')
    stamp(0, 77, 122, 88)
    a.ins('s_cmp_eq_u32 s85, 0')
    a.ins('s_cbranch_scc1 L_qgo')
    a.ins(f's_cmp_lg_u32 s2, {NA}')
    a.ins('s_cbranch_scc1 L_qnext')
    a.label('L_qgo')
    a.fence_hazards()
    gather_ar(81)
    L0 = only_wave0_begin()
    ar_sum_wave0()
    residual(121, XRES)
    store_x(12, X1)
    only_wave0_end(L0)
    a.barrier()
    stamp(1, 77, 122, 88)
    gather_ar(82)
    stamp(2, 77, 122, 88)
    L0 = only_wave0_begin()
    ar_sum_wave0()
    residual(12, X1)
    store_x(121, XRES)
    LO = newlab('Lout'); LX = newlab('Lx2p')
    a.ins('s_cmp_eq_u32 s85, 0')
    a.ins(f's_cbranch_scc1 {LX}')
    for k in range(5):
        a.ins(f'v_cvt_pk_bf16_f32 v{32+k}, v{16+2*k}, v{17+2*k}')
        a.ins(f'buffer_store_dword v{32+k}, v119, s[92:95], s84 offen offset:{k*256}')
    a.ins(f's_branch {LO}')
    a.label(LX)
    a.ins(f's_cmp_lg_u32 s2, {NA}')
    a.ins(f's_cbranch_scc1 {LO}')
    a.ins('s_mul_i32 s90, s83, 2560')
    a.ins(f's_add_u32 s90, s90, {hex(X2_OFF)}')
    for k in range(5):
        a.ins(f'buffer_store_dwordx2 v[{16+2*k}:{17+2*k}], v12, s[64:67], s90 offen offset:{k*512} sc1')
    a.label(LO)
    a.fence_hazards()
    layernorm_to_xs()
    only_wave0_end(L0)
    a.barrier()
    stamp(3, 77, 122, 88)
    a.ins('s_cmp_lg_u32 s85, 0')
    a.ins('s_cbranch_scc1 L_qnext')
    q_gemv_publish()
    a.label('L_qnext')
    a.fence_hazards()
    stamp(4, 77, 122, 88)
    a.ins('s_add_u32 s78, s78, 1')
    a.ins('s_cmp_lt_u32 s78, 8')
    a.ins('s_cbranch_scc1 L_qloop')
    a.ins('s_waitcnt vmcnt(0)')
    a.ins('s_endpgm')

def main(outpath):
    hdr = open('cdna_kernels/' + NAME + '.s.ref').read().split('\n')
    top = [l for l in hdr if l.startswith(';') and '@launch' not in l]
    out = []
    out += top
    out.append('; @launch grid=(256,1,1) block=(256,1,1) lds=163840')
    out.append('.amdgcn_target "amdgcn-amd-amdhsa--gfx950"')
    out.append('.text')
    out.append(MACROS)
    out.append(f'.globl {KNAME}')
    out.append('.p2align 8')
    out.append(f'.type {KNAME},@function')
    out.append(f'{KNAME}:')
    a.ins('s_cmp_ge_u32 s2, 256')
    a.ins('s_cbranch_scc1 L_exit')
    a.ins('s_load_dwordx16 s[8:23], s[0:1], 0')
    a.ins('s_load_dwordx8 s[24:31], s[0:1], 64')
    a.ins('v_lshrrev_b32 v1, 6, v0')
    a.ins('v_and_b32 v0, 63, v0')
    a.ins('v_readfirstlane_b32 s3, v1')
    a.ins('s_waitcnt lgkmcnt(0)')
    srd(64, 30, 31, WS_SIZE)
    a.ins(f's_cmp_ge_u32 s2, {NCH}')
    a.ins('s_cbranch_scc0 L_chain')
    a.ins('s_branch L_stream')
    a.label('L_exit')
    a.ins('s_endpgm')
    a.label('L_chain')
    a.ins(f's_cmp_ge_u32 s2, {NA}')
    a.ins('s_cbranch_scc1 L_qcu')
    a.fence_hazards()
    gen_acu()
    a.hist = []; a.vm = []; a.lg = []
    a.fence_hazards()
    gen_qcu()
    a.hist = []; a.vm = []; a.lg = []
    a.fence_hazards()
    gen_stream()
    out.append(a.text())
    out.append('.section .rodata,"a"')
    out.append('.p2align 6')
    out.append(f'.amdhsa_kernel {KNAME}')
    out.append('  .amdhsa_next_free_vgpr 512')
    out.append('  .amdhsa_next_free_sgpr 102')
    out.append('  .amdhsa_accum_offset 256')
    out.append('  .amdhsa_group_segment_fixed_size 0')
    out.append('  .amdhsa_kernarg_size 96')
    out.append('  .amdhsa_user_sgpr_count 2')
    out.append('  .amdhsa_user_sgpr_kernarg_segment_ptr 1')
    out.append('  .amdhsa_system_sgpr_workgroup_id_x 1')
    out.append('.end_amdhsa_kernel')
    open(outpath, 'w').write('\n'.join(out) + '\n')
    print('instrs', a.ninstr, 'bytes', sum(len(x) + 1 for x in out))

if __name__ == '__main__':
    main(sys.argv[1] if len(sys.argv) > 1 else 'cdna_kernels/' + NAME + '.s')
```

```python
import struct, sys, math, os
from asmlib import *

NAME = 'interleave_layers__mha_block_cached__glu_gated_geglu__decode'
KNAME = NAME + '_kernel'

NA, NQ = 32, 16
NCH = NA + NQ
NST = 256 - NCH
WPH = NST * 4 // 32
REC = 784
PART_OFF = 0
PART_C = 32 * WPH * REC
NR = 21
NL = int(os.environ.get('NL', '4'))
LMODE = os.environ.get('LMODE', 'def')
NN = 40 - NR - NL
NA_HALF = (NN + 1) // 2
NT_ALL = 40
def _d_order():
    L = list(range(NR, NR + NL)); R = list(range(NR))
    if os.environ.get('DORD', '0') == '0' or NL <= 2:
        return L + R
    return L[:2] + R[:4] + L[2:] + R[4:]
NPOL = os.environ.get('NPOL', 'nt')
R_T = list(range(NR + NL)); D_T = _d_order(); N_T = list(range(NR + NL, NT_ALL)); NA_T = N_T[:NA_HALF]; NB_T = N_T[NA_HALF:]
if os.environ.get('SCH', '1') == '0':
    SCHED = [('A', 0, 0, R_T), ('N', 0, 0, N_T), ('N', 0, 1, N_T), ('N', 0, 2, NA_T),
             ('D', 1, 0, D_T), ('A', 0, 1, R_T), ('N', 0, 2, NB_T), ('N', 1, 0, N_T),
             ('D', 1, 1, D_T), ('A', 0, 2, R_T), ('N', 0, 3, N_T), ('N', 1, 1, NA_T),
             ('D', 1, 2, D_T), ('A', 0, 3, R_T), ('N', 1, 1, NB_T), ('N', 1, 2, N_T),
             ('D', 1, 3, D_T), ('N', 1, 3, N_T)]
else:
    SCHED = [('A', 0, 0, R_T), ('N', 0, 0, N_T), ('N', 0, 1, N_T), ('N', 0, 2, NA_T),
             ('D', 1, 0, D_T), ('A', 0, 1, R_T), ('N', 1, 0, N_T), ('N', 0, 2, NB_T),
             ('D', 1, 1, D_T), ('A', 0, 2, R_T), ('N', 1, 1, NA_T), ('N', 0, 3, N_T),
             ('D', 1, 2, D_T), ('A', 0, 3, R_T), ('N', 1, 1, NB_T), ('N', 1, 2, N_T),
             ('D', 1, 3, D_T), ('N', 1, 3, N_T)]
NSEG = len(SCHED)
_last = {}
for _i, (_t, _p, _b, _tl) in enumerate(SCHED):
    _last[(_p, _b)] = _i
CHAIN_ORDER = sorted(_last, key=lambda k: _last[k])
CHAIN_SEGS = {k: [i for i, (t, p, b, tl) in enumerate(SCHED) if (p, b) == k] for k in CHAIN_ORDER}
AR_OFF = ((NSEG * PART_C + 4095) // 4096) * 4096
AR_SZ = 32 * 2560
Q_OFF = AR_OFF + 16 * AR_SZ
X2_OFF = Q_OFF + 8 * 32 * 384
ARM_N = (X2_OFF + 4 * 2560 + 48 * 4096 - 1) // (48 * 4096)
COMM = ARM_N * 48 * 4096
assert Q_OFF % 4096 == 0
ARM_PER = COMM // NCH
BATCH_STRIDE = 32 * 8192 * 384
SPIN_MAX = 400000
import os
DIAG = int(os.environ.get('DIAG', '0'))
STAMP_OFF = COMM
WS_SIZE = COMM + (1 << 20 if DIAG else 0)

def f32(x):
    return struct.unpack('<I', struct.pack('<f', x))[0]

CSCALE = f32((192 ** -0.5) * math.log2(math.e))

a = Asm()
_lab = [0]
def newlab(p='L'):
    _lab[0] += 1
    return f'{p}{_lab[0]}'

MACROS = r'''
.macro QK2 ta, tb, q, s
  v_dot2_f32_bf16 v[\s+0], v[\ta+0], v[\q+0], 0
  v_dot2_f32_bf16 v[\s+1], v[\ta+4], v[\q+4], 0
  v_dot2_f32_bf16 v[\s+2], v[\ta+8], v[\q+8], 0
  v_dot2_f32_bf16 v[\s+3], v[\tb+0], v[\q+0], 0
  v_dot2_f32_bf16 v[\s+4], v[\tb+4], v[\q+4], 0
  v_dot2_f32_bf16 v[\s+5], v[\tb+8], v[\q+8], 0
  .irp k, 1, 2, 3
  v_dot2c_f32_bf16 v[\s+0], v[\ta+\k], v[\q+\k]
  v_dot2c_f32_bf16 v[\s+1], v[\ta+4+\k], v[\q+4+\k]
  v_dot2c_f32_bf16 v[\s+2], v[\ta+8+\k], v[\q+8+\k]
  v_dot2c_f32_bf16 v[\s+3], v[\tb+\k], v[\q+\k]
  v_dot2c_f32_bf16 v[\s+4], v[\tb+4+\k], v[\q+4+\k]
  v_dot2c_f32_bf16 v[\s+5], v[\tb+8+\k], v[\q+8+\k]
  .endr
.endm
.macro PV t, p, acc
  .irp k, 0, 1, 2, 3, 4, 5, 6, 7, 8, 9, 10, 11
  v_dot2c_f32_bf16 v[\acc+2*\k], v[\t+\k], v[\p]
  v_dot2c_f32_bf16 v[\acc+2*\k+1], v[\t+\k], v[\p+1]
  .endr
.endm
.macro ACR t, s
  .irp k, 0, 1, 2, 3, 4, 5, 6, 7, 8, 9, 10, 11
  v_accvgpr_read_b32 v[\t+\k], a[\s+\k]
  .endr
.endm
.macro LDT k, d, srd
  buffer_load_dwordx4 \k[\d:\d+3], v1, s[\srd:\srd+3], s76 offen nt
  buffer_load_dwordx4 \k[\d+4:\d+7], v1, s[\srd:\srd+3], s76 offen offset:128 nt
  buffer_load_dwordx4 \k[\d+8:\d+11], v1, s[\srd:\srd+3], s76 offen offset:256 nt
.endm
.macro LDC k, d, srd
  buffer_load_dwordx4 \k[\d:\d+3], v1, s[\srd:\srd+3], s76 offen
  buffer_load_dwordx4 \k[\d+4:\d+7], v1, s[\srd:\srd+3], s76 offen offset:128
  buffer_load_dwordx4 \k[\d+8:\d+11], v1, s[\srd:\srd+3], s76 offen offset:256
.endm
.macro RESC acc, al
  .irp k, 0, 1, 2, 3, 4, 5, 6, 7, 8, 9, 10, 11, 12, 13, 14, 15, 16, 17, 18, 19, 20, 21, 22, 23
  v_mul_f32 v[\acc+\k], v[\al], v[\acc+\k]
  .endr
.endm
.macro GV8 w, x, acc
  .irp k, 0, 1, 2, 3
  v_dot2c_f32_bf16 v[\acc+2*\k], v[\w+\k], v[\x]
  v_dot2c_f32_bf16 v[\acc+2*\k+1], v[\w+\k], v[\x+1]
  .endr
.endm
.macro AC4 t, s
  .irp k, 0, 1, 2, 3
  v_accvgpr_read_b32 v[\t+\k], a[\s+\k]
  .endr
.endm
'''

def m_qk2(ta, tb, q, s):
    a.mbegin(f'QK2 {ta}, {tb}, {q}, {s}')
    for i, (t, o) in enumerate([(ta, 0), (ta, 4), (ta, 8), (tb, 0), (tb, 4), (tb, 8)]):
        a.ins(f'v_dot2_f32_bf16 v{s+i}, v{t+o}, v{q+o}, 0')
    for k in (1, 2, 3):
        for i, (t, o) in enumerate([(ta, 0), (ta, 4), (ta, 8), (tb, 0), (tb, 4), (tb, 8)]):
            a.ins(f'v_dot2c_f32_bf16 v{s+i}, v{t+o+k}, v{q+o+k}')
    a.mend()

def m_pv(t, p, acc):
    a.mbegin(f'PV {t}, {p}, {acc}')
    for k in range(12):
        a.ins(f'v_dot2c_f32_bf16 v{acc+2*k}, v{t+k}, v{p}')
        a.ins(f'v_dot2c_f32_bf16 v{acc+2*k+1}, v{t+k}, v{p+1}')
    a.mend()

def m_acr(t, s):
    a.mbegin(f'ACR {t}, {s}')
    for k in range(12):
        a.ins(f'v_accvgpr_read_b32 v{t+k}, a{s+k}')
    a.mend()

def m_ldt(kind, d, srd, tag, pol='nt'):
    mac = {'nt': 'LDT', '': 'LDC'}.get(pol)
    if mac:
        a.mbegin(f'{mac} {kind}, {d}, {srd}')
    for i in range(3):
        off = f' offset:{i*128}' if i else ''
        a.vmem(f'buffer_load_dwordx4 {kind}[{d+4*i}:{d+4*i+3}], v1, s[{srd}:{srd+3}], s76 offen{off} {pol}', tag)
    if mac:
        a.mend()

def m_resc(acc, al):
    a.mbegin(f'RESC {acc}, {al}')
    for k in range(24):
        a.ins(f'v_mul_f32 v{acc+k}, v{al}, v{acc+k}')
    a.mend()

def m_gv8(w, x, acc):
    a.mbegin(f'GV8 {w}, {x}, {acc}')
    for k in range(4):
        a.ins(f'v_dot2c_f32_bf16 v{acc+2*k}, v{w+k}, v{x}')
        a.ins(f'v_dot2c_f32_bf16 v{acc+2*k+1}, v{w+k}, v{x+1}')
    a.mend()

def m_ac4(t, s):
    a.mbegin(f'AC4 {t}, {s}')
    for k in range(4):
        a.ins(f'v_accvgpr_read_b32 v{t+k}, a{s+k}')
    a.mend()

DPP = 'row_mask:0xf bank_mask:0xf'

def smov(s, val):
    val &= 0xffffffff
    a.ins(f's_mov_b32 s{s}, {val if val <= 64 else hex(val)}')

def srd(d, lo, hi, nrec):
    a.ins(f's_mov_b32 s{d}, s{lo}')
    a.ins(f's_and_b32 s{d+1}, s{hi}, 0xffff')
    if isinstance(nrec, int):
        smov(d + 2, nrec)
    else:
        a.ins(f's_mov_b32 s{d+2}, {nrec}')
    a.ins(f's_mov_b32 s{d+3}, 0x20000')

def srd_off(d, lo, hi, offs, nrec):
    a.ins(f's_add_u32 s{d}, s{lo}, s{offs}')
    a.ins(f's_addc_u32 s{d+1}, s{hi}, 0')
    a.ins(f's_and_b32 s{d+1}, s{d+1}, 0xffff')
    if isinstance(nrec, int):
        smov(d + 2, nrec)
    else:
        a.ins(f's_mov_b32 s{d+2}, {nrec}')
    a.ins(f's_mov_b32 s{d+3}, 0x20000')

def set_exec_lanes(n):
    if n >= 64:
        a.ins('s_mov_b64 exec, -1')
    elif n <= 32:
        a.ins(f's_mov_b32 exec_lo, {hex((1 << n) - 1)}', dst=[], src=[])
        a.ins('s_mov_b32 exec_hi, 0', dst=[], src=[])
    else:
        a.ins('s_mov_b32 exec_lo, -1', dst=[], src=[])
        a.ins(f's_mov_b32 exec_hi, {hex((1 << (n - 32)) - 1)}', dst=[], src=[])

def stamp(idx, base_s, vt, dyn=None):
    if not DIAG:
        return
    a.ins('s_memrealtime s[100:101]')
    a.ins('s_waitcnt lgkmcnt(0)')
    a.lg = []
    a.ins(f'v_mov_b32 v{vt}, s100')
    a.ins(f'v_mov_b32 v{vt+1}, 0')
    if dyn is None:
        a.ins(f's_add_u32 s101, s{base_s}, {idx*4}')
    else:
        a.ins(f's_add_u32 s101, s{base_s}, s{dyn}')
        a.ins(f's_add_u32 s101, s101, {idx*4}')
    a.vmem(f'buffer_store_dword v{vt}, v{vt+1}, s[64:67], s101 offen', 'stamp')

def flags_addr(va, stage):
    if stage == 1:
        a.ins(f'v_min_u32 v{va}, 11, v0')
        a.ins(f'v_lshlrev_b32 v{va}, 2, v{va}')
    else:
        a.ins(f'v_min_u32 v{va}, 23, v0')
        a.ins(f'v_lshlrev_b32 v{va}, 2, v{va}')
        a.ins(f'v_add_u32 v{va}, 128, v{va}')

def flags_check(vreg, stage):
    a.ins(f'v_cmp_ne_u32 vcc, {1 if stage == 1 else "0x10001"}, v{vreg}')

def wait_flags(stage, va=254, plain_first=True):
    L = newlab('Lar'); D = newlab('Lad')
    smov(75, SPIN_MAX)
    flags_addr(va, stage)
    if plain_first:
        a.ins(f'global_load_dword v{va+1}, v{va}, s[28:29]')
        a.ins('s_waitcnt vmcnt(0)')
        flags_check(va + 1, stage)
        a.ins(f's_cbranch_vccz {D}')
    a.label(L)
    a.ins(f'global_load_dword v{va+1}, v{va}, s[28:29] sc1')
    a.ins('s_waitcnt vmcnt(0)')
    a.vm = []
    flags_check(va + 1, stage)
    a.ins(f's_cbranch_vccz {D}')
    a.ins('s_sleep 8')
    a.ins('s_sub_u32 s75, s75, 1')
    a.ins('s_cmp_lg_u32 s75, 0')
    a.ins(f's_cbranch_scc1 {L}')
    a.label(D)
    a.fence_hazards()

def set_flag(stage):
    L = only_wave0_begin()
    if stage == 1:
        a.ins('s_lshl_b32 s4, s2, 2')
    else:
        a.ins('s_lshl_b32 s4, s2, 1')
        a.ins('s_add_u32 s4, s4, 128')
    a.ins('v_mov_b32 v150, s4')
    a.ins('v_mov_b32 v151, 1')
    set_exec_lanes(1)
    a.ins(f'global_store_{"dword" if stage == 1 else "short"} v150, v151, s[28:29] sc1')
    set_exec_lanes(64)
    a.label(L)
    a.fence_hazards()

SU_W = 56
SU_ACC = 96
SU_X = 226
SU_RED = 20480

def startup1():
    srd(96, 8, 9, 4 * 1280)
    a.ins('v_lshlrev_b32 v254, 2, v0')
    a.ins('s_mul_i32 s76, s3, 1280')
    for k in range(5):
        a.vmem(f'buffer_load_dword v{SU_X+k}, v254, s[96:99], s76 offen offset:{k*256}', 'sux')
    a.ins('s_mul_i32 s4, s2, 48')
    a.ins(f's_sub_u32 s5, {640*12288}, s4')
    srd_off(92, 14, 15, 4, 's5')
    a.ins('v_and_b32 v255, 15, v0')
    a.ins(f'v_mul_u32_u24 v255, {10*12288}, v255')
    a.ins('v_lshrrev_b32 v128, 4, v0')
    a.ins('v_min_u32 v128, 2, v128')
    a.ins('v_lshl_add_u32 v255, v128, 4, v255')
    a.ins(f's_mul_i32 s4, s3, {160*12288}')
    for i in range(10):
        a.ins(f's_add_u32 s76, s4, {i*12288}')
        a.vmem(f'buffer_load_dwordx4 v[{SU_W+4*i}:{SU_W+4*i+3}], v255, s[92:95], s76 offen', 'suw')

def startup2a(topup=None, st=False, after_x=None):
    X = SU_X
    a.wait_vm('sux')
    if after_x:
        after_x()
    if st: stamp(56, 78, 252)
    xs = X + 5
    for k in range(5):
        a.ins(f'v_lshlrev_b32 v{xs+2*k}, 16, v{X+k}')
        a.ins(f'v_and_b32 v{xs+2*k+1}, 0xffff0000, v{X+k}')
    A = SU_ACC
    t, u, mean, var = A, A + 1, A + 2, A + 3
    d0, q0, e0 = A + 4, A + 14, X + 15
    a.ins(f'v_add_f32 v{t}, v{xs}, v{xs+1}')
    for i in range(2, 10):
        a.ins(f'v_add_f32 v{t}, v{t}, v{xs+i}')
    wave_sum(t, u)
    a.ins(f'v_mul_f32 v{mean}, {hex(f32(1.0/640))}, v{t}')
    for i in range(10):
        a.ins(f'v_sub_f32 v{d0+i}, v{xs+i}, v{mean}')
    a.ins(f'v_mul_f32 v{t}, v{d0}, v{d0}')
    for i in range(1, 10):
        a.ins(f'v_fmac_f32 v{t}, v{d0+i}, v{d0+i}')
    wave_sum(t, u)
    a.ins(f'v_mul_f32 v{var}, {hex(f32(1.0/640))}, v{t}')
    bf16r(mean, mean)
    bf16r(var, var)
    a.ins(f'v_add_f32 v{var}, {hex(f32(1e-5))}, v{var}')
    bf16r(var, var)
    a.ins(f'v_sqrt_f32 v{var}, v{var}')
    bf16r(var, var)
    a.ins(f'v_rcp_f32 v{u}, v{var}')
    for i in range(10):
        a.ins(f'v_sub_f32 v{d0+i}, v{xs+i}, v{mean}')
    for i in range(10):
        bf16r(d0 + i, d0 + i)
    for i in range(10):
        a.ins(f'v_mul_f32 v{q0+i}, v{d0+i}, v{u}')
    for i in range(10):
        a.ins(f'v_fma_f32 v{e0+i}, -v{q0+i}, v{var}, v{d0+i}')
    for i in range(10):
        a.ins(f'v_fma_f32 v{q0+i}, v{e0+i}, v{u}, v{q0+i}')
    a.ins('s_mul_i32 s4, s3, 5120')
    a.ins('v_lshlrev_b32 v254, 4, v0')
    a.ins('v_add_u32 v254, s4, v254')
    r = A + 24
    for k in range(5):
        a.ins(f'v_cvt_pk_bf16_f32 v{r}, v{q0+2*k}, 0')
        a.ins(f'v_cvt_pk_bf16_f32 v{r+1}, 0, v{q0+2*k}')
        a.ins(f'v_cvt_pk_bf16_f32 v{r+2}, v{q0+2*k+1}, 0')
        a.ins(f'v_cvt_pk_bf16_f32 v{r+3}, 0, v{q0+2*k+1}')
        a.lds(f'ds_write_b128 v254, v[{r}:{r+3}] offset:{k*1024}')
        a.wait_lg_all()
    a.barrier()
    if st: stamp(57, 78, 252)
    a.ins('v_and_b32 v254, 15, v0')
    a.ins('v_mul_u32_u24 v254, 80, v254')
    a.ins('s_mul_i32 s4, s3, 1280')
    a.ins('v_add_u32 v254, s4, v254')
    for k in range(32):
        a.ins(f'v_mov_b32 v{SU_ACC+k}, 0')
    a.wait_vm('suw')
    if st: stamp(58, 78, 252)
    for b in range(4):
        for k in range(5):
            a.lds(f'ds_read_b128 v[{X+4*k}:{X+4*k+3}], v254 offset:{b*5120 + k*16}')
        a.wait_lg_all()
        for i in range(10):
            m_gv8(SU_W + 4 * i, X + 2 * i, SU_ACC + 8 * b)
    for pat in ('quad_perm:[1,0,3,2]', 'quad_perm:[2,3,0,1]', 'row_half_mirror', 'row_mirror'):
        for k in range(32):
            a.ins(f'v_add_f32_dpp v{SU_ACC+k}, v{SU_ACC+k}, v{SU_ACC+k} {pat} {DPP}')
    a.ins('v_lshrrev_b32 v254, 4, v0')
    a.ins('v_lshlrev_b32 v254, 7, v254')
    a.ins('s_mul_i32 s4, s3, 384')
    a.ins(f's_add_u32 s4, s4, {SU_RED}')
    a.ins('v_add_u32 v254, s4, v254')
    a.ins('s_mov_b32 exec_lo, 0x10001', dst=[], src=[])
    a.ins('s_mov_b32 exec_hi, 1', dst=[], src=[])
    for k in range(8):
        a.lds(f'ds_write_b128 v254, v[{SU_ACC+4*k}:{SU_ACC+4*k+3}] offset:{k*16}')
    set_exec_lanes(64)
    if topup:
        topup()
    if st: stamp(59, 78, 252)
    a.barrier()
    if st: stamp(60, 78, 252)

def startup2b(st=False):
    a.ins('v_mul_u32_u24 v254, 171, v0')
    a.ins('v_lshrrev_b32 v254, 9, v254')
    a.ins('v_mul_u32_u24 v255, 3, v254')
    a.ins('v_sub_u32 v255, v0, v255')
    a.ins('v_lshlrev_b32 v128, 7, v255')
    a.ins('v_lshl_add_u32 v128, v254, 5, v128')
    a.ins('v_and_b32 v128, 0x1ff, v128')
    for wv in range(4):
        a.lds(f'ds_read_b128 v[{SU_W+8*wv}:{SU_W+8*wv+3}], v128 offset:{SU_RED + wv*384}')
        a.lds(f'ds_read_b128 v[{SU_W+8*wv+4}:{SU_W+8*wv+7}], v128 offset:{SU_RED + wv*384 + 16}')
    a.wait_lg_all()
    for wv in range(1, 4):
        for e in range(8):
            a.ins(f'v_add_f32 v{SU_W+e}, v{SU_W+e}, v{SU_W+8*wv+e}')
    for e in range(4):
        a.ins(f'v_cvt_pk_bf16_f32 v{SU_ACC+e}, v{SU_W+2*e}, v{SU_W+2*e+1}')
    a.ins('v_mul_u32_u24 v254, 12288, v254')
    a.ins('v_lshl_add_u32 v254, v255, 4, v254')
    if st: stamp(61, 78, 250)
    wait_flags(1, 252)
    if st: stamp(62, 78, 250)
    a.ins('s_mul_i32 s76, s2, 48')
    a.ins(f's_add_u32 s76, s76, {hex(Q_OFF)}')
    set_exec_lanes(12)
    a.vmem(f'buffer_store_dwordx4 v[{SU_ACC}:{SU_ACC+3}], v254, s[64:67], s76 offen sc1', 'q1pub')
    set_exec_lanes(64)

RING = [8, 20, 32, 44]
T0, T1 = 56, 68
Q, QS = 80, 92
ST = 104
VSLOT = 130
NVS = 8
WK = 226

def srd_k(b): return 32 + 8 * b
def srd_v(b): return 36 + 8 * b

def r_storage(kind, t):
    if t >= NR:
        return ('c',)
    if kind == 'K':
        return ('a', 12 * t)
    if t < NVS:
        return ('v', VSLOT + 12 * t)
    return ('l', t - NVS)

def groups_of(tiles):
    return [tiles[i:i + 2] for i in range(0, len(tiles), 2)]

class Stream:
    def __init__(self):
        self.P = SCHED
        self.LQ = []
        for pi, (ty, ps, b, tiles) in enumerate(self.P):
            for grp in groups_of(tiles):
                for kind in ('K', 'V'):
                    for t in grp:
                        pol = 'nt'
                        if ty == 'D':
                            if r_storage(kind, t)[0] != 'c':
                                continue
                            dest = ('r', None)
                        elif ty == 'A':
                            stg = r_storage(kind, t)
                            dest = stg if stg[0] in 'av' else ('r', None)
                            if stg[0] == 'c' and LMODE == 'def':
                                pol = ''
                        else:
                            dest = ('r', None)
                            if ps == 0:
                                pol = NPOL
                        self.LQ.append({'pi': pi, 'kind': kind, 't': t, 'b': b, 'dest': dest, 'pol': pol})
        self.lqi = 0
        self.nissued = 0
        self.ring_free = [True] * 4
        self.ring_next = 0
        self.ded_free = {}
        self.d_done = set()
        self.cur_pi = 0
        self.loc = {}
        self.last_A = max(i for i, p in enumerate(self.P) if p[0] == 'A')
        self.all_ded = [r_storage(k, t) for t in R_T for k in 'KV' if r_storage(k, t)[0] in 'av']

    def ring_alloc(self):
        s = self.ring_next
        if not self.ring_free[s]:
            return None
        self.ring_free[s] = False
        self.ring_next = (s + 1) % 4
        return s

    def _issue_one(self, e):
        if e['dest'][0] == 'r':
            s = self.ring_alloc()
            if s is not None:
                kind, base = 'v', RING[s]
                self.loc[(e['pi'], e['kind'], e['t'])] = ('r', s)
            else:
                key = None
                if self.cur_pi > self.last_A and e['pi'] == len(self.P) - 1:
                    for k in self.all_ded:
                        if self.ded_free.get(k, True):
                            key = k
                            break
                if key is None:
                    return False
                self.ded_free[key] = False
                kind, base = key
                self.loc[(e['pi'], e['kind'], e['t'])] = ('x', key)
        else:
            key = e['dest']
            if not self.ded_free.get(key, True):
                return False
            self.ded_free[key] = False
            kind, base = key
            self.loc[(e['pi'], e['kind'], e['t'])] = key
        smov(76, e['t'] * 3072)
        sd = srd_k(e['b']) if e['kind'] == 'K' else srd_v(e['b'])
        m_ldt(kind, base, sd, ('T', e['pi'], e['kind'], e['t']), e['pol'])
        if LMODE == 'touch' and self.P[e['pi']][0] == 'A' and r_storage(e['kind'], e['t'])[0] == 'c':
            a.vmem(f'buffer_load_dword v249, v248, s[{sd}:{sd+3}], s76 offen sc1', 'touch')
        e['done'] = True
        self.nissued += 1
        return True

    def try_issue(self, cap=None, limit=None):
        if cap is None:
            cap = int(os.environ.get('CAP', '54'))
        while True:
            if len(a.vm) + 4 > cap:
                return
            if limit is not None and self.nissued >= limit:
                return
            cand = []
            seen = set()
            for i in range(self.lqi, len(self.LQ)):
                e = self.LQ[i]
                if e.get('done'):
                    continue
                c = 'r' if e['dest'][0] == 'r' else 'd'
                if c not in seen:
                    seen.add(c)
                    cand.append(e)
                if len(seen) == 2:
                    break
            ok = False
            for e in cand:
                if self._issue_one(e):
                    ok = True
                    break
            while self.lqi < len(self.LQ) and self.LQ[self.lqi].get('done'):
                self.lqi += 1
            if not ok:
                return

    def q_issue(self, ps, b):
        a.ins(f's_add_u32 s76, s72, {hex((ps * 4 + b) * 32 * 384)}')
        for i in range(3):
            off = f' offset:{i*128}' if i else ''
            a.vmem(f'buffer_load_dwordx4 v[{QS+4*i}:{QS+4*i+3}], v2, s[64:67], s76 offen{off} sc1', ('Q', ps, b))

    def q_check(self):
        w = WK
        a.ins(f'v_max3_u32 v{w}, v{QS}, v{QS+1}, v{QS+2}')
        for k in range(3, 12, 2):
            k2 = min(k + 1, 11)
            a.ins(f'v_max3_u32 v{w}, v{w}, v{QS+k}, v{QS+k2}')
        a.ins(f'v_cmp_eq_u32 vcc, -1, v{w}')

    def q_take(self, ps, b):
        a.wait_vm(('Q', ps, b))
        OK = newlab('Lqo'); RT = newlab('Lqr')
        self.q_check()
        a.ins(f's_cbranch_vccz {OK}')
        smov(75, SPIN_MAX)
        a.label(RT)
        a.ins('s_sleep 2')
        a.ins(f's_add_u32 s77, s72, {hex((ps * 4 + b) * 32 * 384)}')
        for i in range(3):
            off = f' offset:{i*128}' if i else ''
            a.ins(f'buffer_load_dwordx4 v[{QS+4*i}:{QS+4*i+3}], v2, s[64:67], s77 offen{off} sc1')
        a.ins('s_waitcnt vmcnt(0)')
        self.q_check()
        a.ins(f's_cbranch_vccz {OK}')
        a.ins('s_sub_u32 s75, s75, 1')
        a.ins('s_cmp_lg_u32 s75, 0')
        a.ins(f's_cbranch_scc1 {RT}')
        a.label(OK)
        for k in range(12):
            a.ins(f'v_mov_b32 v{Q+k}, v{QS+k}')

    def get_tile(self, pi, ty, kind, t, tmp):
        if ty == 'D' and r_storage(kind, t)[0] != 'c':
            stg = r_storage(kind, t)
            if stg[0] == 'a':
                m_acr(tmp, stg[1])
                self.ded_free[stg] = True
                return tmp, None
            if stg[0] == 'v':
                return stg[1], ('ded', stg)
            a.wait_lg(('L', pi, t))
            return tmp, None
        a.wait_vm(('T', pi, kind, t))
        loc = self.loc[(pi, kind, t)]
        if loc[0] == 'x':
            key = loc[1]
            if key[0] == 'a':
                m_acr(tmp, key[1])
                self.ded_free[key] = True
                return tmp, None
            return key[1], ('ded', key)
        if loc[0] == 'a':
            m_acr(tmp, loc[1])
            return tmp, None
        if loc[0] == 'v':
            return loc[1], None
        return RING[loc[1]], ('ring', loc[1])

    def touch(self, pi, ty, kind, t):
        if ty != 'A' or r_storage(kind, t)[0] != 'c':
            return
        b = self.P[pi][2]
        sd = srd_k(b) if kind == 'K' else srd_v(b)
        smov(76, t * 3072)
        a.vmem(f'buffer_load_dword v249, v248, s[{sd}:{sd+3}], s76 offen sc1', 'touch')

    def release(self, rel):
        if rel is None:
            return
        if rel[0] == 'ring':
            self.ring_free[rel[1]] = True
        else:
            self.ded_free[rel[1]] = True

    def lds_prefetch(self, pi, t, tmp):
        slot = t - NVS
        for i in range(3):
            a.lds(f'ds_read_b128 v[{tmp+4*i}:{tmp+4*i+3}], v3 offset:{slot*3072+i*1024}', ('L', pi, t))

    def group(self, pi, ty, grp, last_group):
        st = ST
        acc, m, l = st, st + 24, st + 25
        s = WK
        sa, sb = WK, WK + 3
        mn, cm, al = WK + 6, WK + 7, WK + 8
        pa, pb = WK + 9, WK + 10
        PA, PB = WK + 12, WK + 14
        two = len(grp) == 2
        ta, ra = self.get_tile(pi, ty, 'K', grp[0], T0)
        if two:
            tb, rb = self.get_tile(pi, ty, 'K', grp[1], T1)
            m_qk2(ta, tb, Q, s)
            self.release(ra); self.release(rb)
        else:
            for i, o in enumerate((0, 4, 8)):
                a.ins(f'v_dot2_f32_bf16 v{s+i}, v{ta+o}, v{Q+o}, 0')
            for k in (1, 2, 3):
                for i, o in enumerate((0, 4, 8)):
                    a.ins(f'v_dot2c_f32_bf16 v{s+i}, v{ta+o+k}, v{Q+o+k}')
            self.release(ra)
        if ty == 'D':
            for t, tmp in zip(grp, (T0, T1)):
                if r_storage('V', t)[0] == 'l':
                    self.lds_prefetch(pi, t, tmp)
        self.try_issue()
        a.ins(f'v_add_f32 v{sa}, v{s}, v{s+1}')
        a.ins(f'v_add_f32 v{sa}, v{sa}, v{s+2}')
        if two:
            a.ins(f'v_add_f32 v{sb}, v{s+3}, v{s+4}')
            a.ins(f'v_add_f32 v{sb}, v{sb}, v{s+5}')
        for pat in ('quad_perm:[1,0,3,2]', 'quad_perm:[2,3,0,1]', 'row_half_mirror'):
            a.ins(f'v_add_f32_dpp v{sa}, v{sa}, v{sa} {pat} {DPP}')
            if two:
                a.ins(f'v_add_f32_dpp v{sb}, v{sb}, v{sb} {pat} {DPP}')
        if grp[-1] == NT_ALL - 1:
            x = sb if two else sa
            a.ins(f'v_add_f32 v{x}, s69, v{x}')
        if two:
            a.ins(f'v_max3_f32 v{mn}, v{m}, v{sa}, v{sb}')
        else:
            a.ins(f'v_max_f32 v{mn}, v{m}, v{sa}')
        a.ins(f'v_cmp_gt_f32 vcc, v{mn}, v{m}')
        SK = newlab('Lsk')
        a.ins(f's_cbranch_vccz {SK}')
        a.ins(f'v_sub_f32 v{al}, v{m}, v{mn}')
        a.ins(f'v_mul_f32 v{al}, s74, v{al}')
        a.ins(f'v_exp_f32 v{al}, v{al}')
        a.ins(f'v_mov_b32 v{m}, v{mn}')
        m_resc(acc, al)
        a.ins(f'v_mul_f32 v{l}, v{al}, v{l}')
        a.label(SK)
        a.ins(f'v_mul_f32 v{cm}, s74, v{m}')
        a.ins(f'v_fma_f32 v{pa}, v{sa}, s74, -v{cm}')
        if two:
            a.ins(f'v_fma_f32 v{pb}, v{sb}, s74, -v{cm}')
        a.ins(f'v_exp_f32 v{pa}, v{pa}')
        if two:
            a.ins(f'v_exp_f32 v{pb}, v{pb}')
        a.ins(f'v_cvt_pk_bf16_f32 v{PA}, v{pa}, 0')
        a.ins(f'v_cvt_pk_bf16_f32 v{PA+1}, 0, v{pa}')
        if two:
            a.ins(f'v_cvt_pk_bf16_f32 v{PB}, v{pb}, 0')
            a.ins(f'v_cvt_pk_bf16_f32 v{PB+1}, 0, v{pb}')
        a.ins(f'v_add_f32 v{l}, v{l}, v{PA+1}')
        if two:
            a.ins(f'v_add_f32 v{l}, v{l}, v{PB+1}')
        for (t, P, tmp) in list(zip(grp, (PA, PB), (T0, T1))):
            tv, rv = self.get_tile(pi, ty, 'V', t, tmp)
            m_pv(tv, P, acc)
            if ty == 'A' and r_storage('V', t)[0] == 'l':
                slot = t - NVS
                for i in range(3):
                    a.lds(f'ds_write_b128 v3, v[{tv+4*i}:{tv+4*i+3}] offset:{slot*3072+i*1024}', ('W', pi, t))
            self.release(rv)
            self.try_issue()

    def publish(self, st, c):
        acc, m, l = st, st + 24, st + 25
        M, u, sc = WK, WK + 1, WK + 2
        a.ins(f'v_max_f32_dpp v{M}, v{m}, v{m} row_ror:8 {DPP}')
        a.ins(f'v_mov_b32 v{u}, v{M}')
        a.ins(f'v_permlane16_swap_b32 v{M}, v{u}')
        a.ins(f'v_max_f32 v{M}, v{M}, v{u}')
        a.ins(f'v_mov_b32 v{u}, v{M}')
        a.ins(f'v_permlane32_swap_b32 v{M}, v{u}')
        a.ins(f'v_max_f32 v{M}, v{M}, v{u}')
        a.ins(f'v_sub_f32 v{sc}, v{m}, v{M}')
        a.ins(f'v_mul_f32 v{sc}, s74, v{sc}')
        a.ins(f'v_exp_f32 v{sc}, v{sc}')
        a.ins(f'v_mul_f32 v{M}, s74, v{M}')
        m_resc(acc, sc)
        a.ins(f'v_mul_f32 v{l}, v{sc}, v{l}')
        a.ins(f'v_add_f32_dpp v{l}, v{l}, v{l} row_ror:8 {DPP}')
        a.ins(f'v_mov_b32 v{u}, v{l}')
        a.ins(f'v_permlane16_swap_b32 v{l}, v{u}')
        a.ins(f'v_add_f32 v{l}, v{l}, v{u}')
        a.ins(f'v_mov_b32 v{u}, v{l}')
        a.ins(f'v_permlane32_swap_b32 v{l}, v{u}')
        a.ins(f'v_add_f32 v{l}, v{l}, v{u}')
        for k in range(12):
            a.ins(f'v_permlane32_swap_b32 v{acc+k}, v{acc+k+12}')
        for k in range(12):
            a.ins(f'v_add_f32 v{acc+k}, v{acc+k}, v{acc+k+12}')
        for k in range(6):
            a.ins(f'v_permlane16_swap_b32 v{acc+k}, v{acc+k+6}')
        for k in range(6):
            a.ins(f'v_add_f32 v{acc+k}, v{acc+k}, v{acc+k+6}')
        for k in range(6):
            a.ins(f'v_add_f32_dpp v{acc+k}, v{acc+k}, v{acc+k} row_ror:8 {DPP}')
        t1, t2 = WK + 3, WK + 4
        for k in range(6):
            a.ins(f'v_add_u32 v{t1}, {k}, v7')
            a.ins(f'v_lshrrev_b32 v{t2}, 3, v{t1}')
            a.ins(f'v_and_b32 v{t1}, 7, v{t1}')
            a.ins(f'v_lshlrev_b32 v{t2}, 6, v{t2}')
            a.ins(f'v_add_u32 v{t1}, v{t1}, v{t2}')
            a.ins(f'v_lshl_add_u32 v{t1}, v{t1}, 2, v4')
            a.lds(f'ds_write_b32 v{t1}, v{acc+k}')
        z = WK + 8
        a.ins(f'v_mov_b32 v{z}, v{M}')
        a.ins(f'v_mov_b32 v{z+1}, v{l}')
        a.ins(f'v_mov_b32 v{z+2}, 0')
        a.ins(f'v_mov_b32 v{z+3}, 0')
        a.ins(f'v_and_b32 v{t1}, 0xffffff1f, v4')
        a.lds(f'ds_write_b128 v{t1}, v[{z}:{z+3}] offset:768')
        a.wait_lg_all()
        a.lds(f'ds_read_b128 v[{z}:{z+3}], v5')
        a.wait_lg_all()
        a.ins(f's_add_u32 s76, s73, {hex(c * PART_C)}')
        set_exec_lanes(49)
        a.vmem(f'buffer_store_dwordx4 v[{z}:{z+3}], v6, s[64:67], s76 offen sc1', ('P', c))
        set_exec_lanes(64)

    def run(self):
        P = self.P
        stamp(0, 78, 252)
        SCAP = int(os.environ.get('SCAP', '24'))
        def fill(n_more):
            done = 0
            while done < n_more:
                before = self.nissued
                tags = [t for t in a.vm if isinstance(t, tuple) and t[0] == 'T']
                if len(tags) + 3 > SCAP:
                    a.wait_vm(tags[2])
                self.try_issue(cap=len(a.vm) + 4)
                if self.nissued == before:
                    break
                done += self.nissued - before
        def snapshot():
            return (self.lqi, self.nissued, list(self.ring_free), self.ring_next, dict(self.ded_free), dict(self.loc), list(a.vm), [e.get('done', False) for e in self.LQ])
        def restore(sn):
            self.lqi, self.nissued = sn[0], sn[1]
            self.ring_free, self.ring_next, self.ded_free, self.loc, a.vm = list(sn[2]), sn[3], dict(sn[4]), dict(sn[5]), list(sn[6])
            for e, d in zip(self.LQ, sn[7]):
                e['done'] = d
        FLAG_LDS = 3 * 40960 + 39936 + 1016
        a.ins(f'v_mov_b32 v250, {FLAG_LDS}')
        a.ins('v_mov_b32 v251, 0')
        a.lds('ds_write_b32 v250, v251')
        startup2a(after_x=lambda: self.try_issue(cap=len(a.vm) + SCAP), st=True)
        sv = list(a.vm)
        L0 = only_wave0_begin()
        startup2b(st=True)
        a.ins(f'v_mov_b32 v250, {FLAG_LDS}')
        a.ins('v_mov_b32 v251, 1')
        a.lds('ds_write_b32 v250, v251')
        only_wave0_end(L0)
        a.vm = sv
        fill(100)
        LF = newlab('Llf'); LD = newlab('Lld')
        smov(75, SPIN_MAX)
        a.ins(f'v_mov_b32 v250, {FLAG_LDS}')
        a.label(LF)
        a.ins('ds_read_b32 v251, v250')
        a.ins('s_waitcnt lgkmcnt(0)')
        a.ins('v_cmp_ne_u32 vcc, 1, v251')
        a.ins(f's_cbranch_vccz {LD}')
        a.ins('s_sleep 1')
        a.ins('s_sub_u32 s75, s75, 1')
        a.ins('s_cmp_lg_u32 s75, 0')
        a.ins(f's_cbranch_scc1 {LF}')
        a.label(LD)
        a.fence_hazards()
        stamp(1, 78, 252)
        a.ins('v_min_u32 v248, 23, v0')
        a.ins('v_lshlrev_b32 v248, 7, v248')
        self.q_issue(P[0][1], P[0][2])
        for pi, (ty, ps, b, tiles) in enumerate(P):
            a.comment(f'---- phase {pi}: {ty} pass{ps} b{b}')
            self.cur_pi = pi
            stamp(2 + 3 * pi, 78, 252)
            self.q_take(ps, b)
            stamp(3 + 3 * pi, 78, 252)
            for k in range(24):
                a.ins(f'v_mov_b32 v{ST+k}, 0')
            a.ins(f'v_mov_b32 v{ST+24}, 0xf149f2ca')
            a.ins(f'v_mov_b32 v{ST+25}, 0')
            gs = groups_of(tiles)
            for g, grp in enumerate(gs):
                if g == len(gs) - 3 and pi + 1 < len(P):
                    self.q_issue(P[pi + 1][1], P[pi + 1][2])
                if g == len(gs) - 4 and pi == 0:
                    flags_addr(250, 2)
                    a.vmem('global_load_dword v251, v250, s[28:29]', 'fl2')
                self.group(pi, ty, grp, g == len(gs) - 1)
                if ty == 'D' and g >= int(os.environ.get('DPOP', '6')):
                    tags = [t for t in a.vm if isinstance(t, tuple) and t[0] == 'T']
                    if len(a.vm) + 4 > int(os.environ.get('CAP', '54')) and len(tags) >= 12:
                        a.wait_vm(tags[5])
                        self.try_issue()
            if pi == 0:
                a.wait_vm('fl2')
                FO = newlab('Lfo')
                flags_check(251, 2)
                a.ins(f's_cbranch_vccz {FO}')
                sv = list(a.vm)
                wait_flags(2, 250, plain_first=False)
                a.vm = sv
                a.label(FO)
                a.fence_hazards()
            self.publish(ST, pi)
            stamp(4 + 3 * pi, 78, 252)
            self.try_issue()
        a.ins('s_waitcnt vmcnt(0)')
        a.ins('s_endpgm')

def gen_stream():
    a.label('L_stream')
    startup1()
    a.ins(f's_sub_u32 s4, s2, {NCH}')
    a.ins('s_lshl_b32 s4, s4, 2')
    a.ins('s_add_u32 s4, s4, s3')
    a.ins('s_mul_i32 s5, s4, 2521')
    a.ins('s_lshr_b32 s5, s5, 16')
    a.ins(f's_mul_i32 s6, s5, {WPH}')
    a.ins('s_sub_u32 s6, s4, s6')
    a.ins('s_mul_i32 s7, s6, 39')
    a.ins('s_min_u32 s68, s6, 10')
    a.ins('s_add_u32 s7, s7, s68')
    a.ins('s_cmp_lt_u32 s6, 10')
    a.ins('s_cselect_b32 s68, 40, 39')
    a.ins('s_cselect_b32 s69, 0, 0xff800000')
    a.ins('s_mul_i32 s68, s68, 3072')
    a.ins('s_mul_i32 s70, s5, 3145728')
    a.ins('s_mul_i32 s71, s7, 3072')
    a.ins('s_add_u32 s70, s70, s71')
    for b in range(4):
        a.ins(f's_add_u32 s71, s70, {hex(b * BATCH_STRIDE)}')
        srd_off(srd_k(b), 10, 11, 71, 's68')
        srd_off(srd_v(b), 12, 13, 71, 's68')
    a.ins('s_mul_i32 s72, s5, 384')
    a.ins(f's_add_u32 s72, s72, {hex(Q_OFF)}')
    a.ins(f's_mul_i32 s73, s4, {REC}')
    smov(74, CSCALE)
    a.ins('s_lshl_b32 s78, s4, 8')
    a.ins(f's_add_u32 s78, s78, {hex(STAMP_OFF)}')
    a.ins('v_lshrrev_b32 v1, 3, v0')
    a.ins('v_mul_u32_u24 v1, 384, v1')
    a.ins('v_and_b32 v2, 7, v0')
    a.ins('v_lshlrev_b32 v2, 4, v2')
    a.ins('v_add_u32 v1, v1, v2')
    a.ins('s_mul_i32 s71, s3, 40960')
    a.ins('v_lshlrev_b32 v6, 4, v0')
    a.ins('v_add_u32 v3, s71, v6')
    a.ins('s_add_u32 s71, s71, 39936')
    a.ins('v_add_u32 v5, s71, v6')
    a.ins('v_lshlrev_b32 v4, 1, v2')
    a.ins('v_add_u32 v4, s71, v4')
    a.ins('v_bfe_u32 v7, v0, 4, 1')
    a.ins('v_mul_u32_u24 v7, 6, v7')
    a.ins('v_bfe_u32 v254, v0, 5, 1')
    a.ins('v_mul_u32_u24 v254, 12, v254')
    a.ins('v_add_u32 v7, v7, v254')
    Stream().run()

XS = 0
RED = 5120
XRES = 25600
X1 = 35840
WL = 38912
X1A = 100352
W1 = 128

def vm_auto(text):
    if len(a.vm) >= 60:
        a.ins('s_waitcnt vmcnt(30)')
        a.vm = a.vm[-30:]
    a.vmem(text, None)

def wave_sum(t, u):
    for pat in ('quad_perm:[1,0,3,2]', 'quad_perm:[2,3,0,1]', 'row_half_mirror', 'row_mirror'):
        a.ins(f'v_add_f32_dpp v{t}, v{t}, v{t} {pat} {DPP}')
    a.ins(f'v_mov_b32 v{u}, v{t}')
    a.ins(f'v_permlane16_swap_b32 v{t}, v{u}')
    a.ins(f'v_add_f32 v{t}, v{t}, v{u}')
    a.ins(f'v_mov_b32 v{u}, v{t}')
    a.ins(f'v_permlane32_swap_b32 v{t}, v{u}')
    a.ins(f'v_add_f32 v{t}, v{t}, v{u}')

def bf16r(d, s):
    a.ins(f'v_cvt_pk_bf16_f32 v{d}, 0, v{s}')

def poll_indicator(voff, nl, sreg):
    L = newlab('Lpi'); D = newlab('Lpd')
    smov(75, SPIN_MAX)
    set_exec_lanes(nl)
    a.label(L)
    a.ins(f'buffer_load_dword v127, v{voff}, s[64:67], s{sreg} offen sc1')
    a.ins('s_waitcnt vmcnt(0)')
    if os.environ.get('POLL', 'any') == 'any':
        a.ins('v_cmp_ne_u32 vcc, -1, v127')
        a.ins(f's_cbranch_vccnz {D}')
    else:
        a.ins('v_cmp_eq_u32 vcc, -1, v127')
        a.ins(f's_cbranch_vccz {D}')
    a.ins(f's_sleep {os.environ.get("PSLEEP", "3")}')
    a.ins('s_sub_u32 s75, s75, 1')
    a.ins('s_cmp_lg_u32 s75, 0')
    a.ins(f's_cbranch_scc1 {L}')
    a.label(D)
    set_exec_lanes(64)
    a.vm = []

def gather_sel(n, emit_load, reg_of, init_mask=None):
    L = newlab('Lgs'); D = newlab('Lgsd')
    if init_mask is None:
        smov(91, (1 << n) - 1)
    else:
        init_mask()
    smov(75, SPIN_MAX)
    a.label(L)
    for i in range(n):
        K = newlab('Lgk')
        a.ins(f's_bitcmp1_b32 s91, {i}')
        a.ins(f's_cbranch_scc0 {K}')
        emit_load(i)
        a.label(K)
    a.ins('s_waitcnt vmcnt(0)')
    for i in range(n):
        K = newlab('Lgc')
        r = reg_of(i)
        a.ins(f's_bitcmp1_b32 s91, {i}')
        a.ins(f's_cbranch_scc0 {K}')
        a.ins(f'v_max3_u32 v127, v{r}, v{r+1}, v{r+2}')
        a.ins(f'v_max_u32 v127, v127, v{r+3}')
        a.ins('v_cmp_eq_u32 vcc, -1, v127')
        a.ins(f's_cbranch_vccnz {K}')
        a.ins(f's_bitset0_b32 s91, {i}')
        a.label(K)
    a.ins('s_cmp_eq_u32 s91, 0')
    a.ins(f's_cbranch_scc1 {D}')
    a.ins('s_sub_u32 s75, s75, 1')
    a.ins('s_cmp_lg_u32 s75, 0')
    a.ins(f's_cbranch_scc1 {L}')
    a.label(D)
    a.fence_hazards()

def check_regs(regs, w):
    regs = list(regs)
    a.ins(f'v_max3_u32 v{w}, v{regs[0]}, v{regs[1]}, v{regs[2]}')
    k = 3
    while k < len(regs):
        k2 = min(k + 1, len(regs) - 1)
        a.ins(f'v_max3_u32 v{w}, v{w}, v{regs[k]}, v{regs[k2]}')
        k += 2
    a.ins(f'v_cmp_eq_u32 vcc, -1, v{w}')

def gather_ar(sreg):
    poll_indicator(8, 8, sreg)
    def ld(i):
        a.ins(f's_add_u32 s76, s{sreg}, {(i // 4) * 4096}')
        off = f' offset:{(i % 4) * 1024}' if i % 4 else ''
        a.ins(f'buffer_load_dwordx4 v[{16+4*i}:{19+4*i}], v9, s[64:67], s76 offen{off} sc1')
    gather_sel(20, ld, lambda i: 16 + 4 * i)
    for grp in range(5):
        for k in range(1, 4):
            for e in range(4):
                a.ins(f'v_add_f32 v{16+4*grp+e}, v{16+4*grp+e}, v{16+4*(grp+5*k)+e}')
    for grp in range(5):
        a.lds(f'ds_write_b128 v10, v[{16+4*grp}:{19+4*grp}] offset:{grp*1024}')
    a.barrier()

def ar_sum_wave0():
    for wv in range(8):
        for k in range(5):
            r = 32 + (wv * 5 + k) * 2
            a.lds(f'ds_read_b64 v[{r}:{r+1}], v12 offset:{RED + wv*2560 + k*512}')
    a.wait_lg_all()
    for k in range(5):
        for e in range(2):
            d = 16 + 2 * k + e
            a.ins(f'v_add_f32 v{d}, v{32+2*k+e}, v{32+(5+k)*2+e}')
    for p in range(2, 8):
        for k in range(5):
            for e in range(2):
                d = 16 + 2 * k + e
                a.ins(f'v_add_f32 v{d}, v{d}, v{32+(5*p+k)*2+e}')

def residual(areg, src_off):
    for k in range(5):
        a.lds(f'ds_read_b64 v[{32+2*k}:{33+2*k}], v{areg} offset:{src_off + k*512}')
    for i in range(10):
        bf16r(16 + i, 16 + i)
    a.wait_lg_all()
    for i in range(10):
        a.ins(f'v_add_f32 v{16+i}, v{16+i}, v{32+i}')
    for i in range(10):
        bf16r(16 + i, 16 + i)

def store_x(areg, dst_off):
    for k in range(5):
        a.lds(f'ds_write_b64 v{areg}, v[{16+2*k}:{17+2*k}] offset:{dst_off + k*512}')

def layernorm_to_xs():
    t, u, mean, var = 32, 33, 34, 35
    a.ins(f'v_add_f32 v{t}, v16, v17')
    for i in range(2, 10):
        a.ins(f'v_add_f32 v{t}, v{t}, v{16+i}')
    wave_sum(t, u)
    a.ins(f'v_mul_f32 v{mean}, {hex(f32(1.0/640))}, v{t}')
    for i in range(10):
        a.ins(f'v_sub_f32 v{40+i}, v{16+i}, v{mean}')
    a.ins(f'v_mul_f32 v{t}, v40, v40')
    for i in range(1, 10):
        a.ins(f'v_fmac_f32 v{t}, v{40+i}, v{40+i}')
    wave_sum(t, u)
    a.ins(f'v_mul_f32 v{var}, {hex(f32(1.0/640))}, v{t}')
    bf16r(mean, mean)
    bf16r(var, var)
    a.ins(f'v_add_f32 v{var}, {hex(f32(1e-5))}, v{var}')
    bf16r(var, var)
    a.ins(f'v_sqrt_f32 v{var}, v{var}')
    bf16r(var, var)
    a.ins(f'v_rcp_f32 v{u}, v{var}')
    for i in range(10):
        a.ins(f'v_sub_f32 v{40+i}, v{16+i}, v{mean}')
    for i in range(10):
        bf16r(40 + i, 40 + i)
    for i in range(10):
        a.ins(f'v_mul_f32 v{50+i}, v{40+i}, v{u}')
    for i in range(10):
        a.ins(f'v_fma_f32 v{60+i}, -v{50+i}, v{var}, v{40+i}')
    for i in range(10):
        a.ins(f'v_fma_f32 v{50+i}, v{60+i}, v{u}, v{50+i}')
    for k in range(5):
        a.ins(f'v_cvt_pk_bf16_f32 v{72+k}, v{50+2*k}, v{51+2*k}')
        a.lds(f'ds_write_b32 v119, v{72+k} offset:{XS + k*256}')

def only_wave0_begin():
    L = newlab('Lw0')
    a.ins('s_cmp_lg_u32 s3, 0')
    a.ins(f's_cbranch_scc1 {L}')
    return L

def only_wave0_end(L):
    a.wait_lg_all()
    a.label(L)
    a.fence_hazards()

def gemv_rows(nrows, xaddr, wsrc, acc=56):
    for k in range(8):
        a.ins(f'v_mov_b32 v{acc+k}, 0')
    B = 4
    XB = (16, 24); WB = (64, 80)
    nb = nrows // B
    def issue(j):
        r0 = j * B
        for k in range(B // 2):
            a.lds(f'ds_read_b128 v[{XB[j%2]+4*k}:{XB[j%2]+4*k+3}], v{xaddr} offset:{(r0+2*k)*8}', ('g', j))
        for k in range(B):
            ws = wsrc(r0 + k)
            if ws[0] == 'l':
                a.lds(f'ds_read_b128 v[{WB[j%2]+4*k}:{WB[j%2]+4*k+3}], v{ws[1]} offset:{ws[2]}', ('g', j))
    issue(0)
    for j in range(nb):
        if j + 1 < nb:
            issue(j + 1)
        a.wait_lg(('g', j))
        for k in range(B):
            ws = wsrc(j * B + k)
            x = XB[j % 2] + 2 * k
            if ws[0] == 'a':
                tmp = 48 + 4 * (k % 2)
                m_ac4(tmp, ws[1])
                m_gv8(tmp, x, acc)
            elif ws[0] == 'v':
                m_gv8(ws[1], x, acc)
            else:
                m_gv8(WB[j % 2] + 4 * k, x, acc)

def write_red(addr, acc=56):
    set_exec_lanes(60)
    a.lds(f'ds_write_b128 v{addr}, v[{acc}:{acc+3}]')
    a.lds(f'ds_write_b128 v{addr}, v[{acc+4}:{acc+7}] offset:16')
    set_exec_lanes(64)
    a.barrier()

def reduce3_publish(sreg):
    L = newlab('Lr3')
    a.ins('s_cmp_eq_u32 s3, 3')
    a.ins(f's_cbranch_scc1 {L}')
    M = newlab('Lr3m')
    a.ins('s_cmp_lg_u32 s3, 2')
    a.ins(f's_cbranch_scc1 {M}')
    set_exec_lanes(32)
    a.label(M)
    for r in range(3):
        a.lds(f'ds_read_b128 v[{16+4*r}:{19+4*r}], v15 offset:{RED + r*2560}')
    a.wait_lg_all()
    for e in range(4):
        a.ins(f'v_add_f32 v{16+e}, v{16+e}, v{20+e}')
    for e in range(4):
        a.ins(f'v_add_f32 v{16+e}, v{16+e}, v{24+e}')
    a.ins(f's_add_u32 s76, s70, s{sreg}')
    a.ins('buffer_store_dwordx4 v[16:19], v15, s[64:67], s76 offen sc1')
    set_exec_lanes(64)
    a.label(L)
    a.fence_hazards()


def prep_blocks(blocks):
    TB = (16, 48); U = 80
    def issue(i):
        blocks[i][0](TB[i % 2], ('blk', i))
    issue(0)
    for i, (em, dest) in enumerate(blocks):
        if i + 1 < len(blocks):
            issue(i + 1)
        a.wait_vm(('blk', i))
        T = TB[i % 2]
        out = dest[1] if dest[0] == 'v' else U
        for d in range(4):
            for h in range(2):
                c = 2 * d + h
                for p in range(4):
                    a.ins(f'v_perm_b32 v{out+4*c+p}, v{T+4*(2*p+1)+d}, v{T+4*(2*p)+d}, s{62+h}')
        if dest[0] == 'a':
            for k in range(32):
                a.ins(f'v_accvgpr_write_b32 a{dest[1]+k}, v{U+k}')
        elif dest[0] in ('l', 'l?'):
            LS = None
            if dest[0] == 'l?':
                LS = newlab('Lpb')
                a.ins('s_cmp_ge_u32 s3, 2')
                a.ins(f's_cbranch_scc1 {LS}')
            for c in range(8):
                a.lds(f'ds_write_b128 v{dest[1]}, v[{U+4*c}:{U+4*c+3}] offset:{dest[2]+c*1024}')
            a.wait_lg_all()
            if LS:
                a.label(LS)
                a.fence_hazards()
    a.wait_lg_all()

def stage_block(dst, areg, off, tag):
    for c in range(8):
        a.lds(f'ds_read_b128 v[{dst+4*c}:{dst+4*c+3}], v{areg} offset:{off+c*1024}', tag)

def mfma_block(acc, x, kind, base, first):
    for c in range(8):
        cc = '0' if first else f'v[{acc+4*c}:{acc+4*c+3}]'
        a.ins(f'v_mfma_f32_16x16x32_bf16 v[{acc+4*c}:{acc+4*c+3}], v[{x}:{x+3}], {kind}[{base+4*c}:{base+4*c+3}], {cc}')

def extract(acc, E):
    for c in range(8):
        a.ins(f'v_mov_b32 v{E+c}, v{acc+4*c}')

def xread(dst, areg, off, tag='x'):
    a.lds(f'ds_read_b128 v[{dst}:{dst+3}], v{areg} offset:{off}', tag)

def mfma_consts():
    smov(62, 0x05040100)
    smov(63, 0x07060302)
    a.ins('v_and_b32 v3, 15, v0')
    a.ins('v_lshrrev_b32 v4, 4, v0')
    a.ins('v_lshlrev_b32 v112, 4, v4')
    a.ins(f'v_add_u32 v112, {XS}, v112')
    a.ins('s_lshl_b32 s4, s3, 6')
    a.ins('v_add_u32 v113, s4, v112')
    a.ins('s_mul_i32 s4, s3, 320')
    a.ins('v_add_u32 v114, s4, v112')

def direct_and_cb4_publish(sreg):
    pass

def publish_own(E, sreg):
    a.ins(f's_add_u32 s76, s70, s{sreg}')
    set_exec_lanes(16)
    a.ins(f'buffer_store_dwordx4 v[{E}:{E+3}], v115, s[64:67], s76 offen sc1')
    a.ins(f'buffer_store_dwordx4 v[{E+4}:{E+7}], v115, s[64:67], s76 offen offset:16 sc1')
    set_exec_lanes(64)

def publish_cb4(E, sreg):
    set_exec_lanes(16)
    a.lds(f'ds_write_b128 v116, v[{E}:{E+3}]')
    a.lds(f'ds_write_b128 v116, v[{E+4}:{E+7}] offset:16')
    set_exec_lanes(64)
    a.barrier()
    L0 = only_wave0_begin()
    for w in range(4):
        a.lds(f'ds_read_b128 v[{16+4*w}:{19+4*w}], v13 offset:{RED + w*512}')
    a.wait_lg_all()
    for w in range(1, 4):
        for e in range(4):
            a.ins(f'v_add_f32 v{16+e}, v{16+e}, v{16+4*w+e}')
    a.ins(f's_add_u32 s76, s70, s{sreg}')
    set_exec_lanes(32)
    a.ins('buffer_store_dwordx4 v[16:19], v13, s[64:67], s76 offen offset:2048 sc1')
    set_exec_lanes(64)
    only_wave0_end(L0)

def combine_records(n, first_reg, Mv, Lv, out):
    for k in range(n):
        a.ins(f'v_readlane_b32 s{40+k}, v{first_reg+4*k}, 48')
        a.ins(f'v_readlane_b32 s{48+k}, v{first_reg+4*k+1}, 48')
    a.ins(f'v_mov_b32 v{Mv}, s40')
    for k in range(1, n):
        a.ins(f'v_max_f32 v{Mv}, s{40+k}, v{Mv}')
    E = 100
    for k in range(n):
        a.ins(f'v_sub_f32 v{E+k}, s{40+k}, v{Mv}')
    for k in range(n):
        a.ins(f'v_exp_f32 v{E+k}, v{E+k}')
    a.ins(f'v_mul_f32 v{Lv}, s48, v{E}')
    for k in range(1, n):
        a.ins(f'v_fma_f32 v{Lv}, v{E+k}, s{48+k}, v{Lv}')
    for e in range(4):
        a.ins(f'v_mul_f32 v{out+e}, v{E}, v{first_reg+e}')
    for k in range(1, n):
        for e in range(4):
            a.ins(f'v_fma_f32 v{out+e}, v{E+k}, v{first_reg+4*k+e}, v{out+e}')

def combine_big(n, first_reg, Mv, Lv, out, E):
    a.ins(f'v_readlane_b32 s40, v{first_reg}, 48')
    a.ins(f'v_readlane_b32 s41, v{first_reg+4}, 48')
    a.ins(f'v_mov_b32 v{Mv}, s40')
    for k in range(1, n):
        if k + 1 < n:
            a.ins(f'v_readlane_b32 s{40+(k+1)%2}, v{first_reg+4*(k+1)}, 48')
        a.ins(f'v_max_f32 v{Mv}, s{40+k%2}, v{Mv}')
    a.ins(f'v_mov_b32 v{Lv}, 0')
    for e in range(4):
        a.ins(f'v_mov_b32 v{out+e}, 0')
    def rl(k):
        a.ins(f'v_readlane_b32 s{40+2*(k%2)}, v{first_reg+4*k}, 48')
        a.ins(f'v_readlane_b32 s{41+2*(k%2)}, v{first_reg+4*k+1}, 48')
    rl(0)
    for k in range(n):
        if k + 1 < n:
            rl(k + 1)
        e_ = E + k % 2
        a.ins(f'v_sub_f32 v{e_}, s{40+2*(k%2)}, v{Mv}')
        a.ins(f'v_exp_f32 v{e_}, v{e_}')
        a.ins(f'v_fma_f32 v{Lv}, v{e_}, s{41+2*(k%2)}, v{Lv}')
        for e in range(4):
            a.ins(f'v_fma_f32 v{out+e}, v{e_}, v{first_reg+4*k+e}, v{out+e}')

def chain_common_init():
    a.ins('s_lshl_b32 s4, s3, 6')
    a.ins('v_add_u32 v15, s4, v0')
    a.ins('v_lshlrev_b32 v15, 4, v15')
    for k in range(4):
        a.ins(f'v_mov_b32 v{16+k}, -1')
    L1 = newlab('Lst1')
    a.ins('s_cmp_ge_u32 s2, 12')
    a.ins(f's_cbranch_scc1 {L1}')
    a.ins('s_lshl_b32 s76, s2, 12')
    a.ins(f's_add_u32 s76, s76, {hex(Q_OFF)}')
    a.ins('buffer_store_dwordx4 v[16:19], v15, s[64:67], s76 offen sc1')
    a.ins('s_waitcnt vmcnt(0)')
    a.ins('s_barrier')
    set_flag(1)
    a.label(L1)
    a.fence_hazards()
    startup1()
    startup2a()
    L0 = only_wave0_begin()
    startup2b()
    only_wave0_end(L0)
    a.barrier()
    a.ins(f's_mul_i32 s4, s2, {ARM_PER}')
    for k in range(ARM_N):
        LS = newlab('Lsa')
        a.ins(f's_add_u32 s76, s4, {k*4096}')
        a.ins(f's_sub_u32 s5, s76, {hex(Q_OFF)}')
        a.ins('s_cmp_lt_u32 s5, 49152')
        a.ins(f's_cbranch_scc1 {LS}')
        a.ins('buffer_store_dwordx4 v[16:19], v15, s[64:67], s76 offen sc1')
        a.label(LS)
    a.ins('s_waitcnt vmcnt(0)')
    a.ins('s_barrier')
    set_flag(2)
    a.vm = []
    a.ins('s_lshl_b32 s4, s3, 6')
    a.ins('v_add_u32 v1, s4, v0')
    a.ins('v_lshlrev_b32 v15, 4, v1')
    a.ins('v_min_u32 v2, 59, v0')
    a.ins('s_mul_i32 s4, s3, 60')
    a.ins('v_add_u32 v2, s4, v2')
    a.ins('v_lshlrev_b32 v14, 4, v2')
    a.ins(f'v_add_u32 v14, {WL}, v14')
    a.ins('v_add_u32 v120, 61440, v14')
    a.ins('s_lshl_b32 s4, s3, 3')
    a.ins('v_add_u32 v8, s4, v0')
    a.ins('v_mul_u32_u24 v8, 2560, v8')
    a.ins('v_add_u32 v8, 2556, v8')
    a.ins('s_mul_i32 s4, s3, 20480')
    a.ins('v_lshlrev_b32 v13, 4, v0')
    a.ins('v_add_u32 v9, s4, v13')
    a.ins(f's_mul_i32 s4, s3, 5120')
    a.ins(f's_add_u32 s4, s4, {RED}')
    a.ins('v_add_u32 v10, s4, v13')
    a.ins('v_lshlrev_b32 v12, 3, v0')
    a.ins('s_lshl_b32 s4, s2, 2')
    a.ins('s_add_u32 s4, s4, s3')
    a.ins('s_lshl_b32 s77, s4, 9')
    a.ins(f's_add_u32 s77, s77, {hex(STAMP_OFF + 832*256)}')
    stamp(120, 77, 122)

def arm_arrive():
    a.wait_vm('arm')
    a.ins('s_barrier')
    L = only_wave0_begin()
    a.ins('v_mov_b32 v124, 0')
    a.ins('v_mov_b32 v125, 1')
    set_exec_lanes(1)
    a.vmem('global_atomic_add v124, v125, s[28:29] sc1', None)
    set_exec_lanes(64)
    a.label(L)
    a.fence_hazards()

def load_xres():
    L = only_wave0_begin()
    srd(96, 8, 9, 4 * 1280)
    a.ins('v_lshlrev_b32 v127, 2, v0')
    for b in range(4):
        smov(76, b * 1280)
        for k in range(5):
            a.ins(f'buffer_load_dword v{16+b*5+k}, v127, s[96:99], s76 offen offset:{k*256}')
    a.ins('s_waitcnt vmcnt(0)')
    for b in range(4):
        for k in range(5):
            r = 16 + b * 5 + k
            d = 40 + 2 * (b * 5 + k)
            a.ins(f'v_lshlrev_b32 v{d}, 16, v{r}')
            a.ins(f'v_and_b32 v{d+1}, 0xffff0000, v{r}')
            a.lds(f'ds_write_b64 v12, v[{d}:{d+1}] offset:{XRES + b*2560 + k*512}')
    only_wave0_end(L)


def gen_acu():
    a.label('L_acu')
    chain_common_init()
    mfma_consts()
    a.ins('s_mul_i32 s70, s2, 2560')
    a.ins('v_lshlrev_b32 v119, 2, v0')
    a.ins('s_mul_i32 s4, s3, 24576')
    a.ins(f's_add_u32 s4, s4, {WL}')
    a.ins('v_add_u32 v14, s4, v13')
    a.ins('s_and_b32 s4, s3, 1')
    a.ins('s_lshl_b32 s4, s4, 13')
    a.ins(f's_add_u32 s4, s4, {WL + 4*24576}')
    a.ins('v_add_u32 v120, s4, v13')
    a.ins('v_mul_u32_u24 v125, 10240, v4')
    a.ins('v_lshl_add_u32 v125, v3, 4, v125')
    a.ins('v_subrev_u32 v127, 6, v3')
    a.ins('v_min_u32 v127, 5, v127')
    a.ins('v_cmp_gt_u32 vcc, 6, v3')
    a.ins('v_cndmask_b32 v127, v127, v3, vcc')
    a.ins('v_mul_u32_u24 v126, 24576, v4')
    a.ins('v_lshl_add_u32 v126, v127, 4, v126')
    a.ins('s_mov_b64 s[88:89], vcc')
    a.ins('s_not_b64 s[90:91], vcc')
    a.ins('s_mul_i32 s4, s2, 245760')
    srd_off(96, 16, 17, 4, 245760)
    a.ins('s_mul_i32 s4, s2, 96')
    a.ins(f's_sub_u32 s5, {640*3072}, s4')
    srd_off(80, 20, 21, 4, 's5')
    srd_off(84, 22, 23, 4, 's5')
    a.ins('s_mul_i32 s4, s2, 61440')
    srd_off(92, 24, 25, 4, 61440)
    a.ins('s_lshl_b32 s40, s3, 8')
    a.ins('s_mul_i32 s41, s3, 40960')
    a.ins('s_add_u32 s41, s41, 1024')
    a.ins(f's_mul_i32 s42, s3, {160*3072}')
    def ld1280(srd_, sbase, const):
        def em(T, tag):
            for e in range(8):
                if e % 3 == 0:
                    a.ins(f's_add_u32 s76, s{sbase}, {const + (e // 3) * 3840}')
                off = f' offset:{(e % 3) * 1280}' if e % 3 else ''
                a.vmem(f'buffer_load_dwordx4 v[{T+4*e}:{T+4*e+3}], v125, s[{srd_}:{srd_+3}], s76 offen{off} nt', tag)
        return em
    def ldgu(i):
        def em(T, tag):
            for e in range(8):
                a.ins(f's_add_u32 s76, s42, {(32 * i + e) * 3072}')
                a.ins('s_mov_b64 exec, s[88:89]')
                a.vmem(f'buffer_load_dwordx4 v[{T+4*e}:{T+4*e+3}], v126, s[80:83], s76 offen nt', tag)
                a.ins('s_mov_b64 exec, s[90:91]')
                a.vmem(f'buffer_load_dwordx4 v[{T+4*e}:{T+4*e+3}], v126, s[84:87], s76 offen nt', tag)
            a.ins('s_mov_b64 exec, -1')
        return em
    blocks = []
    for ks in range(6):
        blocks.append((ld1280(96, 40, ks * 40960), ('a', 32 * ks)))
    blocks.append((ld1280(96, 41, 0), ('a', 192)))
    blocks.append((ld1280(96, 41, 4 * 40960), ('a', 224)))
    for i in range(4):
        blocks.append((ldgu(i), ('v', W1 + 32 * i)))
    blocks.append((ldgu(4), ('l', 14, 0)))
    blocks.append((ld1280(92, 40, 0), ('l', 14, 8192)))
    blocks.append((ld1280(92, 40, 40960), ('l', 14, 16384)))
    blocks.append((ld1280(92, 41, 0), ('l?', 120, 0)))
    prep_blocks(blocks)
    load_xres()
    a.ins('s_lshl_b32 s4, s3, 9')
    a.ins('v_lshlrev_b32 v115, 5, v3')
    a.ins('v_add_u32 v115, s4, v115')
    a.ins(f'v_add_u32 v116, {RED}, v115')
    a.ins('s_mul_i32 s4, s3, 384')
    a.ins('v_lshlrev_b32 v11, 5, v3')
    a.ins('v_add_u32 v11, s4, v11')
    a.ins(f'v_add_u32 v11, {RED}, v11')
    a.barrier()
    a.ins('v_lshlrev_b32 v117, 2, v0')
    a.ins('v_add_u32 v117, s3, v117')
    a.ins('v_min_u32 v117, 25, v117')
    a.ins(f'v_mul_u32_u24 v117, {REC}, v117')
    a.ins('v_add_u32 v117, 772, v117')
    a.ins(f's_mul_i32 s71, s2, {WPH*REC}')
    a.ins(f's_mul_i32 s72, s3, {REC}')
    a.ins('s_add_u32 s72, s72, s71')
    a.ins(f's_mul_i32 s4, s3, {REC}')
    a.ins(f's_add_u32 s4, s4, {RED}')
    a.ins('v_add_u32 v118, s4, v13')
    a.ins('v_add_u32 v117, s71, v117')
    wait_flags(2, 126)
    order = 0
    for i, (ly, b) in enumerate(CHAIN_ORDER):
        order |= (ly * 4 + b) << (4 * i)
    tab = 0
    for i, k in enumerate(CHAIN_ORDER):
        sg = CHAIN_SEGS[k]
        assert 2 <= len(sg) <= 3
        e = sg[0] | ((sg[1] if len(sg) > 2 else 0) << 5) | (sg[-1] << 10) | ((1 if len(sg) > 2 else 0) << 15)
        tab |= e << (16 * i)
    for w in range(4):
        smov(56 + w, (tab >> (32 * w)) & 0xffffffff)
    a.ins('s_mov_b32 s78, 0')
    a.label('L_aloop')
    a.fence_hazards()
    if True:
        a.ins('s_lshl_b32 s4, s78, 2')
        a.ins(f's_lshr_b32 s79, {hex(order)}, s4')
        a.ins('s_and_b32 s79, s79, 15')
        a.ins(f's_mul_i32 s81, s79, {2*AR_SZ}')
        a.ins(f's_add_u32 s81, s81, {hex(AR_OFF)}')
        a.ins(f's_add_u32 s82, s81, {AR_SZ}')
        a.ins('s_and_b32 s83, s79, 3')
        a.ins('s_mul_i32 s84, s83, 1280')
        a.ins('s_mul_i32 s4, s83, 2560')
        a.ins('v_add_u32 v121, s4, v12')
        a.ins('s_lshr_b32 s85, s79, 2')
        a.ins(f's_add_u32 s4, s4, {X1A}')
        a.ins('v_add_u32 v124, s4, v12')
        a.ins('s_lshl_b32 s88, s78, 6')
        stamp(0, 77, 122, 88)
        a.ins('s_and_b32 s4, s78, 3')
        a.ins('s_lshl_b32 s4, s4, 4')
        a.ins('s_cmp_lt_u32 s78, 4')
        a.ins('s_cselect_b64 s[60:61], s[56:57], s[58:59]')
        a.ins('s_lshr_b64 s[60:61], s[60:61], s4')
        for k in range(3):
            a.ins(f's_bfe_u32 s4, s60, {hex((5 << 16) | (5 * k))}')
            a.ins(f's_mul_i32 s{43+k}, s4, {PART_C}')
        a.ins('s_bfe_u32 s89, s60, 0x1000f')
        poll_indicator(117, 7, 45)
        stamp(1, 77, 122, 88)
        for k in (6, 7, 8, 9, 10, 11, 12, 13, 20):
            a.ins(f'v_mov_b32 v{16+4*k}, 0xf149f2ca')
            for e in range(1, 4):
                a.ins(f'v_mov_b32 v{16+4*k+e}, 0')
        set_exec_lanes(49)
        def ld1(k):
            sg, r = k // 7, k % 7
            a.ins(f's_add_u32 s76, s72, s{43+sg}')
            a.ins(f's_add_u32 s76, s76, {r * 4 * REC}')
            a.ins(f'buffer_load_dwordx4 v[{16+4*k}:{19+4*k}], v13, s[64:67], s76 offen sc1')
        def im():
            full = (1 << 21) - 1
            short = full & ~((1 << 6) | (1 << 13) | (1 << 20))
            a.ins('s_cmp_ge_u32 s3, 2')
            a.ins(f's_mov_b32 s91, {hex(full)}')
            a.ins(f's_cselect_b32 s91, {hex(short)}, s91')
            a.ins('s_cmp_eq_u32 s89, 0')
            a.ins(f's_cselect_b32 s4, {hex(0x7f << 7)}, 0')
            a.ins('s_andn2_b32 s91, s91, s4')
        gather_sel(21, ld1, lambda k: 16 + 4 * k, im)
        set_exec_lanes(64)
        combine_big(21, 16, 100, 101, 104, 102)
        a.ins('s_mov_b32 exec_lo, 0', dst=[], src=[])
        a.ins('s_mov_b32 exec_hi, 0x10000', dst=[], src=[])
        a.ins('v_mov_b32 v104, v100')
        a.ins('v_mov_b32 v105, v101')
        set_exec_lanes(64)
        for e in range(4):
            a.ins(f'v_mov_b32 v{52+e}, v{104+e}')
        set_exec_lanes(49)
        a.lds('ds_write_b128 v118, v[52:55]')
        set_exec_lanes(64)
        a.barrier()
        L0 = only_wave0_begin()
        for k in range(4):
            a.lds(f'ds_read_b128 v[{16+4*k}:{19+4*k}], v13 offset:{RED + k*REC}')
        a.wait_lg_all()
        combine_records(4, 16, 48, 49, 52)
        a.ins('v_rcp_f32 v50, v49')
        for e in range(4):
            a.ins(f'v_mul_f32 v{52+e}, v{52+e}, v50')
        a.ins('v_cvt_pk_bf16_f32 v56, v52, v53')
        a.ins('v_cvt_pk_bf16_f32 v57, v54, v55')
        a.ins('s_mov_b32 exec_lo, 0', dst=[], src=[])
        a.ins('s_mov_b32 exec_hi, 0xffff0000', dst=[], src=[])
        a.ins('v_mov_b32 v56, 0')
        a.ins('v_mov_b32 v57, 0')
        set_exec_lanes(64)
        a.lds(f'ds_write_b64 v12, v[56:57] offset:{XS}')
        only_wave0_end(L0)
        a.barrier()
        stamp(2, 77, 122, 88)
        for ks in range(6):
            xread(80 + 4 * ks, 112, 64 * ks)
        xread(104, 113, 0)
        xread(108, 113, 256)
        a.wait_lg_all()
        mfma_block(48, 104, 'a', 192, True)
        mfma_block(48, 108, 'a', 224, False)
        for ks in range(6):
            mfma_block(16, 80 + 4 * ks, 'a', 32 * ks, ks == 0)
        extract(48, 100)
        extract(16, 92)
        publish_own(92, 81)
        publish_cb4(100, 81)
        stamp(3, 77, 122, 88)
        LD = newlab('Ldf')
        a.ins('s_cmp_eq_u32 s85, 0')
        a.ins(f's_cbranch_scc1 {LD}')
        L0 = only_wave0_begin()
        a.ins('s_mul_i32 s90, s83, 2560')
        a.ins(f's_add_u32 s90, s90, {hex(X2_OFF)}')
        LX = newlab('Lx2'); LXD = newlab('Lx2d')
        smov(75, SPIN_MAX)
        a.label(LX)
        for k in range(5):
            a.ins(f'buffer_load_dwordx2 v[{16+2*k}:{17+2*k}], v12, s[64:67], s90 offen offset:{k*512} sc1')
        a.ins('s_waitcnt vmcnt(0)')
        check_regs(range(16, 26), 127)
        a.ins(f's_cbranch_vccz {LXD}')
        a.ins('s_sleep 2')
        a.ins('s_sub_u32 s75, s75, 1')
        a.ins('s_cmp_lg_u32 s75, 0')
        a.ins(f's_cbranch_scc1 {LX}')
        a.label(LXD)
        store_x(121, XRES)
        only_wave0_end(L0)
        a.label(LD)
        a.fence_hazards()
        gather_ar(81)
        stamp(4, 77, 122, 88)
        L0 = only_wave0_begin()
        ar_sum_wave0()
        residual(121, XRES)
        layernorm_to_xs()
        only_wave0_end(L0)
        a.barrier()
        stamp(5, 77, 122, 88)
        stage_block(48, 14, 0, 'st')
        for i in range(5):
            xread(80 + 4 * i, 114, 64 * i)
        a.wait_lg_all()
        for i in range(4):
            mfma_block(16, 80 + 4 * i, 'v', W1 + 32 * i, i == 0)
        mfma_block(16, 96, 'v', 48, False)
        stage_block(48, 14, 8192, 'st5')
        extract(16, 100)
        set_exec_lanes(12)
        a.lds('ds_write_b128 v11, v[100:103]')
        a.lds('ds_write_b128 v11, v[104:107] offset:16')
        set_exec_lanes(64)
        a.barrier()
        L0 = only_wave0_begin()
        for r in range(4):
            a.lds(f'ds_read_b32 v{16+r}, v119 offset:{RED + r*384}')
            a.lds(f'ds_read_b32 v{36+r}, v119 offset:{RED + r*384 + 192}')
        a.wait_lg_all()
        for r in range(1, 4):
            a.ins(f'v_add_f32 v16, v16, v{16+r}')
            a.ins(f'v_add_f32 v36, v36, v{36+r}')
        bf16r(16, 16); bf16r(36, 36)
        a.ins('v_mul_f32 v17, v16, v16')
        a.ins('v_mul_f32 v17, v17, v16')
        a.ins(f'v_mov_b32 v18, {hex(f32(0.044715))}')
        a.ins('v_fma_f32 v17, v17, v18, v16')
        a.ins(f'v_mul_f32 v17, {hex(f32(2*0.7978845608028654*math.log2(math.e)))}, v17')
        a.ins('v_exp_f32 v17, v17')
        a.ins('v_add_f32 v17, 1.0, v17')
        a.ins('v_rcp_f32 v17, v17')
        a.ins('v_fma_f32 v17, v17, -2.0, 1.0')
        a.ins('v_add_f32 v17, 1.0, v17')
        a.ins('v_mul_f32 v17, v17, v16')
        a.ins('v_mul_f32 v17, 0.5, v17')
        bf16r(17, 17)
        a.ins('v_mul_f32 v17, v17, v36')
        a.ins('v_cvt_pk_bf16_f32 v18, v17, 0')
        a.ins('v_mov_b32 v19, 0')
        a.ins('s_mov_b32 exec_lo, 0', dst=[], src=[])
        a.ins('s_mov_b32 exec_hi, 0xffff0000', dst=[], src=[])
        a.ins('v_mov_b32 v18, 0')
        set_exec_lanes(64)
        a.ins('v_lshlrev_b32 v20, 1, v0')
        a.lds(f'ds_write_b16 v20, v18 offset:{XS}')
        a.lds(f'ds_write_b16 v20, v19 offset:{XS + 128}')
        only_wave0_end(L0)
        a.barrier()
        stamp(6, 77, 122, 88)
        xread(80, 112, 0)
        xread(84, 112, 64)
        xread(88, 113, 0)
        a.wait_lg_all()
        mfma_block(16, 80, 'v', 48, True)
        stage_block(48, 14, 16384, 'st5b')
        a.wait_lg_all()
        mfma_block(16, 84, 'v', 48, False)
        stage_block(48, 120, 0, 'st5c')
        extract(16, 92)
        publish_own(92, 82)
        a.wait_lg_all()
        mfma_block(16, 88, 'v', 48, True)
        extract(16, 100)
        publish_cb4(100, 82)
        stamp(7, 77, 122, 88)
        a.barrier()
    stamp(9, 77, 122, 88)
    a.ins('s_add_u32 s78, s78, 1')
    a.ins('s_cmp_lt_u32 s78, 8')
    a.ins('s_cbranch_scc1 L_aloop')
    a.ins('s_waitcnt vmcnt(0)')
    a.ins('s_endpgm')

def wait_armed_chain():
    L = newlab('Lar'); D = newlab('Lad')
    smov(75, SPIN_MAX)
    a.ins('v_mov_b32 v126, 0')
    a.label(L)
    a.ins('global_load_dword v127, v126, s[28:29] sc1')
    a.ins('s_waitcnt vmcnt(0)')
    a.vm = []
    a.ins(f'v_cmp_gt_u32 vcc, {NCH}, v127')
    a.ins(f's_cbranch_vccz {D}')
    a.ins('s_sleep 2')
    a.ins('s_sub_u32 s75, s75, 1')
    a.ins('s_cmp_lg_u32 s75, 0')
    a.ins(f's_cbranch_scc1 {L}')
    a.label(D)
    a.fence_hazards()

def q_gemv_publish():
    stage_block(48, 14, 0, 'st')
    for i in range(5):
        xread(80 + 4 * i, 114, 64 * i)
    a.wait_lg_all()
    for cb in range(3):
        for i in range(4):
            kind, base = (('a', 128 * cb + 32 * i) if cb < 2 else ('v', W1 + 32 * i))
            mfma_block(16, 80 + 4 * i, kind, base, i == 0)
        a.wait_lg_all()
        mfma_block(16, 96, 'v', 48, False)
        if cb < 2:
            stage_block(48, 14, (cb + 1) * 8192, 'st')
        extract(16, 100)
        set_exec_lanes(16)
        a.lds(f'ds_write_b128 v115, v[100:103] offset:{cb*512}')
        a.lds(f'ds_write_b128 v115, v[104:107] offset:{cb*512+16}')
        set_exec_lanes(64)
    a.barrier()
    L0 = only_wave0_begin()
    a.ins('v_lshlrev_b32 v127, 1, v13')
    for r in range(4):
        a.lds(f'ds_read_b128 v[{16+8*r}:{19+8*r}], v127 offset:{RED + r*1536}')
        a.lds(f'ds_read_b128 v[{20+8*r}:{23+8*r}], v127 offset:{RED + r*1536 + 16}')
    a.wait_lg_all()
    for r in range(1, 4):
        for e in range(8):
            a.ins(f'v_add_f32 v{16+e}, v{16+e}, v{16+8*r+e}')
    for e in range(4):
        a.ins(f'v_cvt_pk_bf16_f32 v{60+e}, v{16+2*e}, v{17+2*e}')
    a.ins('s_add_u32 s76, s70, s86')
    set_exec_lanes(48)
    a.ins('buffer_store_dwordx4 v[60:63], v13, s[64:67], s76 offen sc1')
    set_exec_lanes(64)
    only_wave0_end(L0)
    a.barrier()

def gen_qcu():
    a.label('L_qcu')
    chain_common_init()
    a.ins(f's_sub_u32 s5, s2, {NA}')
    mfma_consts()
    a.ins('s_mul_i32 s70, s5, 768')
    a.ins(f's_sub_u32 s6, {640*12288}, s70')
    srd_off(96, 14, 15, 70, 's6')
    a.ins(f'v_mul_u32_u24 v126, {8*12288}, v4')
    a.ins('v_lshl_add_u32 v126, v3, 4, v126')
    a.ins('s_mul_i32 s4, s3, 24576')
    a.ins(f's_add_u32 s4, s4, {WL}')
    a.ins('v_add_u32 v14, s4, v13')
    a.ins(f's_mul_i32 s42, s3, {160*12288}')
    def ldq(i, cb):
        def em(T, tag):
            for e in range(8):
                a.ins(f's_add_u32 s76, s42, {(32 * i + e) * 12288 + cb * 256}')
                a.vmem(f'buffer_load_dwordx4 v[{T+4*e}:{T+4*e+3}], v126, s[96:99], s76 offen nt', tag)
        return em
    blocks = []
    for cb in range(3):
        for i in range(4):
            blocks.append((ldq(i, cb), ('a', 128 * cb + 32 * i) if cb < 2 else ('v', W1 + 32 * i)))
        blocks.append((ldq(4, cb), ('l', 14, cb * 8192)))
    prep_blocks(blocks)
    load_xres()
    a.ins('s_mul_i32 s4, s3, 1536')
    a.ins('v_lshlrev_b32 v115, 5, v3')
    a.ins('v_add_u32 v115, s4, v115')
    a.ins(f'v_add_u32 v115, {RED}, v115')
    a.barrier()
    wait_flags(2, 126)
    order = 0
    for i, (ly, b) in enumerate(CHAIN_ORDER):
        order |= (ly * 4 + b) << (4 * i)
    srd(92, 26, 27, 4 * 1280)
    a.ins('v_lshlrev_b32 v119, 2, v0')
    a.ins('s_mov_b32 s78, 0')
    a.label('L_qloop')
    a.fence_hazards()
    a.ins('s_lshl_b32 s4, s78, 2')
    a.ins(f's_lshr_b32 s79, {hex(order)}, s4')
    a.ins('s_and_b32 s79, s79, 15')
    a.ins('s_and_b32 s83, s79, 3')
    a.ins('s_lshr_b32 s85, s79, 2')
    a.ins('s_mul_i32 s84, s83, 1280')
    a.ins('s_mul_i32 s4, s83, 2560')
    a.ins('v_add_u32 v121, s4, v12')
    a.ins(f's_mul_i32 s86, s83, {32*384}')
    a.ins(f's_add_u32 s86, s86, {hex(Q_OFF + 4*32*384)}')
    a.ins(f's_mul_i32 s81, s79, {2*AR_SZ}')
    a.ins(f's_add_u32 s81, s81, {hex(AR_OFF)}')
    a.ins(f's_add_u32 s82, s81, {AR_SZ}')
    a.ins('s_lshl_b32 s88, s78, 6')
    stamp(0, 77, 122, 88)
    a.ins('s_cmp_eq_u32 s85, 0')
    a.ins('s_cbranch_scc1 L_qgo')
    a.ins(f's_cmp_lg_u32 s2, {NA}')
    a.ins('s_cbranch_scc1 L_qnext')
    a.label('L_qgo')
    a.fence_hazards()
    gather_ar(81)
    L0 = only_wave0_begin()
    ar_sum_wave0()
    residual(121, XRES)
    store_x(12, X1)
    only_wave0_end(L0)
    a.barrier()
    stamp(1, 77, 122, 88)
    gather_ar(82)
    stamp(2, 77, 122, 88)
    L0 = only_wave0_begin()
    ar_sum_wave0()
    residual(12, X1)
    store_x(121, XRES)
    LO = newlab('Lout'); LX = newlab('Lx2p')
    a.ins('s_cmp_eq_u32 s85, 0')
    a.ins(f's_cbranch_scc1 {LX}')
    for k in range(5):
        a.ins(f'v_cvt_pk_bf16_f32 v{32+k}, v{16+2*k}, v{17+2*k}')
        a.ins(f'buffer_store_dword v{32+k}, v119, s[92:95], s84 offen offset:{k*256}')
    a.ins(f's_branch {LO}')
    a.label(LX)
    a.ins(f's_cmp_lg_u32 s2, {NA}')
    a.ins(f's_cbranch_scc1 {LO}')
    a.ins('s_mul_i32 s90, s83, 2560')
    a.ins(f's_add_u32 s90, s90, {hex(X2_OFF)}')
    for k in range(5):
        a.ins(f'buffer_store_dwordx2 v[{16+2*k}:{17+2*k}], v12, s[64:67], s90 offen offset:{k*512} sc1')
    a.label(LO)
    a.fence_hazards()
    layernorm_to_xs()
    only_wave0_end(L0)
    a.barrier()
    stamp(3, 77, 122, 88)
    a.ins('s_cmp_lg_u32 s85, 0')
    a.ins('s_cbranch_scc1 L_qnext')
    q_gemv_publish()
    a.label('L_qnext')
    a.fence_hazards()
    stamp(4, 77, 122, 88)
    a.ins('s_add_u32 s78, s78, 1')
    a.ins('s_cmp_lt_u32 s78, 8')
    a.ins('s_cbranch_scc1 L_qloop')
    a.ins('s_waitcnt vmcnt(0)')
    a.ins('s_endpgm')

def main(outpath):
    hdr = open('cdna_kernels/' + NAME + '.s.ref').read().split('\n')
    top = [l for l in hdr if l.startswith(';') and '@launch' not in l]
    out = []
    out += top
    out.append('; @launch grid=(256,1,1) block=(256,1,1) lds=163840')
    out.append('.amdgcn_target "amdgcn-amd-amdhsa--gfx950"')
    out.append('.text')
    out.append(MACROS)
    out.append(f'.globl {KNAME}')
    out.append('.p2align 8')
    out.append(f'.type {KNAME},@function')
    out.append(f'{KNAME}:')
    a.ins('s_cmp_ge_u32 s2, 256')
    a.ins('s_cbranch_scc1 L_exit')
    a.ins('s_load_dwordx16 s[8:23], s[0:1], 0')
    a.ins('s_load_dwordx8 s[24:31], s[0:1], 64')
    a.ins('v_lshrrev_b32 v1, 6, v0')
    a.ins('v_and_b32 v0, 63, v0')
    a.ins('v_readfirstlane_b32 s3, v1')
    a.ins('s_waitcnt lgkmcnt(0)')
    srd(64, 30, 31, WS_SIZE)
    a.ins(f's_cmp_ge_u32 s2, {NCH}')
    a.ins('s_cbranch_scc0 L_chain')
    a.ins('s_branch L_stream')
    a.label('L_exit')
    a.ins('s_endpgm')
    a.label('L_chain')
    a.ins(f's_cmp_ge_u32 s2, {NA}')
    a.ins('s_cbranch_scc1 L_qcu')
    a.fence_hazards()
    gen_acu()
    a.hist = []; a.vm = []; a.lg = []
    a.fence_hazards()
    gen_qcu()
    a.hist = []; a.vm = []; a.lg = []
    a.fence_hazards()
    gen_stream()
    out.append(a.text())
    out.append('.section .rodata,"a"')
    out.append('.p2align 6')
    out.append(f'.amdhsa_kernel {KNAME}')
    out.append('  .amdhsa_next_free_vgpr 512')
    out.append('  .amdhsa_next_free_sgpr 102')
    out.append('  .amdhsa_accum_offset 256')
    out.append('  .amdhsa_group_segment_fixed_size 0')
    out.append('  .amdhsa_kernarg_size 96')
    out.append('  .amdhsa_user_sgpr_count 2')
    out.append('  .amdhsa_user_sgpr_kernarg_segment_ptr 1')
    out.append('  .amdhsa_system_sgpr_workgroup_id_x 1')
    out.append('.end_amdhsa_kernel')
    open(outpath, 'w').write('\n'.join(out) + '\n')
    print('instrs', a.ninstr, 'bytes', sum(len(x) + 1 for x in out))

if __name__ == '__main__':
    main(sys.argv[1] if len(sys.argv) > 1 else 'cdna_kernels/' + NAME + '.s')
```

```python
import struct, sys, math, os
from asmlib import *

NAME = 'interleave_layers__mha_block_cached__glu_gated_geglu__decode'
KNAME = NAME + '_kernel'

NA, NQ = 32, 16
NCH = NA + NQ
NST = 256 - NCH
WPH = NST * 4 // 32
REC = 784
PART_OFF = 0
PART_C = 32 * WPH * REC
NR = 21
NL = int(os.environ.get('NL', '4'))
LMODE = os.environ.get('LMODE', 'def')
NN = 40 - NR - NL
NA_HALF = (NN + 1) // 2
NT_ALL = 40
def _d_order():
    L = list(range(NR, NR + NL)); R = list(range(NR))
    if os.environ.get('DORD', '0') == '0' or NL <= 2:
        return L + R
    return L[:2] + R[:4] + L[2:] + R[4:]
NPOL = os.environ.get('NPOL', 'nt')
R_T = list(range(NR + NL)); D_T = _d_order(); N_T = list(range(NR + NL, NT_ALL)); NA_T = N_T[:NA_HALF]; NB_T = N_T[NA_HALF:]
if os.environ.get('SCH', '1') == '0':
    SCHED = [('A', 0, 0, R_T), ('N', 0, 0, N_T), ('N', 0, 1, N_T), ('N', 0, 2, NA_T),
             ('D', 1, 0, D_T), ('A', 0, 1, R_T), ('N', 0, 2, NB_T), ('N', 1, 0, N_T),
             ('D', 1, 1, D_T), ('A', 0, 2, R_T), ('N', 0, 3, N_T), ('N', 1, 1, NA_T),
             ('D', 1, 2, D_T), ('A', 0, 3, R_T), ('N', 1, 1, NB_T), ('N', 1, 2, N_T),
             ('D', 1, 3, D_T), ('N', 1, 3, N_T)]
else:
    SCHED = [('A', 0, 0, R_T), ('N', 0, 0, N_T), ('N', 0, 1, N_T), ('N', 0, 2, NA_T),
             ('D', 1, 0, D_T), ('A', 0, 1, R_T), ('N', 1, 0, N_T), ('N', 0, 2, NB_T),
             ('D', 1, 1, D_T), ('A', 0, 2, R_T), ('N', 1, 1, NA_T), ('N', 0, 3, N_T),
             ('D', 1, 2, D_T), ('A', 0, 3, R_T), ('N', 1, 1, NB_T), ('N', 1, 2, N_T),
             ('D', 1, 3, D_T), ('N', 1, 3, N_T)]
NSEG = len(SCHED)
_last = {}
for _i, (_t, _p, _b, _tl) in enumerate(SCHED):
    _last[(_p, _b)] = _i
CHAIN_ORDER = sorted(_last, key=lambda k: _last[k])
CHAIN_SEGS = {k: [i for i, (t, p, b, tl) in enumerate(SCHED) if (p, b) == k] for k in CHAIN_ORDER}
AR_OFF = ((NSEG * PART_C + 4095) // 4096) * 4096
AR_SZ = 32 * 2560
Q_OFF = AR_OFF + 16 * AR_SZ
X2_OFF = Q_OFF + 8 * 32 * 384
ARM_N = (X2_OFF + 4 * 2560 + 48 * 4096 - 1) // (48 * 4096)
COMM = ARM_N * 48 * 4096
assert Q_OFF % 4096 == 0
ARM_PER = COMM // NCH
BATCH_STRIDE = 32 * 8192 * 384
SPIN_MAX = 400000
import os
DIAG = int(os.environ.get('DIAG', '0'))
STAMP_OFF = COMM
WS_SIZE = COMM + (1 << 20 if DIAG else 0)

def f32(x):
    return struct.unpack('<I', struct.pack('<f', x))[0]

CSCALE = f32((192 ** -0.5) * math.log2(math.e))

a = Asm()
_lab = [0]
def newlab(p='L'):
    _lab[0] += 1
    return f'{p}{_lab[0]}'

MACROS = r'''
.macro QK2 ta, tb, q, s
  v_dot2_f32_bf16 v[\s+0], v[\ta+0], v[\q+0], 0
  v_dot2_f32_bf16 v[\s+1], v[\ta+4], v[\q+4], 0
  v_dot2_f32_bf16 v[\s+2], v[\ta+8], v[\q+8], 0
  v_dot2_f32_bf16 v[\s+3], v[\tb+0], v[\q+0], 0
  v_dot2_f32_bf16 v[\s+4], v[\tb+4], v[\q+4], 0
  v_dot2_f32_bf16 v[\s+5], v[\tb+8], v[\q+8], 0
  .irp k, 1, 2, 3
  v_dot2c_f32_bf16 v[\s+0], v[\ta+\k], v[\q+\k]
  v_dot2c_f32_bf16 v[\s+1], v[\ta+4+\k], v[\q+4+\k]
  v_dot2c_f32_bf16 v[\s+2], v[\ta+8+\k], v[\q+8+\k]
  v_dot2c_f32_bf16 v[\s+3], v[\tb+\k], v[\q+\k]
  v_dot2c_f32_bf16 v[\s+4], v[\tb+4+\k], v[\q+4+\k]
  v_dot2c_f32_bf16 v[\s+5], v[\tb+8+\k], v[\q+8+\k]
  .endr
.endm
.macro PV t, p, acc
  .irp k, 0, 1, 2, 3, 4, 5, 6, 7, 8, 9, 10, 11
  v_dot2c_f32_bf16 v[\acc+2*\k], v[\t+\k], v[\p]
  v_dot2c_f32_bf16 v[\acc+2*\k+1], v[\t+\k], v[\p+1]
  .endr
.endm
.macro ACR t, s
  .irp k, 0, 1, 2, 3, 4, 5, 6, 7, 8, 9, 10, 11
  v_accvgpr_read_b32 v[\t+\k], a[\s+\k]
  .endr
.endm
.macro LDT k, d, srd
  buffer_load_dwordx4 \k[\d:\d+3], v1, s[\srd:\srd+3], s76 offen nt
  buffer_load_dwordx4 \k[\d+4:\d+7], v1, s[\srd:\srd+3], s76 offen offset:128 nt
  buffer_load_dwordx4 \k[\d+8:\d+11], v1, s[\srd:\srd+3], s76 offen offset:256 nt
.endm
.macro LDC k, d, srd
  buffer_load_dwordx4 \k[\d:\d+3], v1, s[\srd:\srd+3], s76 offen
  buffer_load_dwordx4 \k[\d+4:\d+7], v1, s[\srd:\srd+3], s76 offen offset:128
  buffer_load_dwordx4 \k[\d+8:\d+11], v1, s[\srd:\srd+3], s76 offen offset:256
.endm
.macro RESC acc, al
  .irp k, 0, 1, 2, 3, 4, 5, 6, 7, 8, 9, 10, 11, 12, 13, 14, 15, 16, 17, 18, 19, 20, 21, 22, 23
  v_mul_f32 v[\acc+\k], v[\al], v[\acc+\k]
  .endr
.endm
.macro GV8 w, x, acc
  .irp k, 0, 1, 2, 3
  v_dot2c_f32_bf16 v[\acc+2*\k], v[\w+\k], v[\x]
  v_dot2c_f32_bf16 v[\acc+2*\k+1], v[\w+\k], v[\x+1]
  .endr
.endm
.macro AC4 t, s
  .irp k, 0, 1, 2, 3
  v_accvgpr_read_b32 v[\t+\k], a[\s+\k]
  .endr
.endm
'''

def m_qk2(ta, tb, q, s):
    a.mbegin(f'QK2 {ta}, {tb}, {q}, {s}')
    for i, (t, o) in enumerate([(ta, 0), (ta, 4), (ta, 8), (tb, 0), (tb, 4), (tb, 8)]):
        a.ins(f'v_dot2_f32_bf16 v{s+i}, v{t+o}, v{q+o}, 0')
    for k in (1, 2, 3):
        for i, (t, o) in enumerate([(ta, 0), (ta, 4), (ta, 8), (tb, 0), (tb, 4), (tb, 8)]):
            a.ins(f'v_dot2c_f32_bf16 v{s+i}, v{t+o+k}, v{q+o+k}')
    a.mend()

def m_pv(t, p, acc):
    a.mbegin(f'PV {t}, {p}, {acc}')
    for k in range(12):
        a.ins(f'v_dot2c_f32_bf16 v{acc+2*k}, v{t+k}, v{p}')
        a.ins(f'v_dot2c_f32_bf16 v{acc+2*k+1}, v{t+k}, v{p+1}')
    a.mend()

def m_acr(t, s):
    a.mbegin(f'ACR {t}, {s}')
    for k in range(12):
        a.ins(f'v_accvgpr_read_b32 v{t+k}, a{s+k}')
    a.mend()

def m_ldt(kind, d, srd, tag, pol='nt'):
    mac = {'nt': 'LDT', '': 'LDC'}.get(pol)
    if mac:
        a.mbegin(f'{mac} {kind}, {d}, {srd}')
    for i in range(3):
        off = f' offset:{i*128}' if i else ''
        a.vmem(f'buffer_load_dwordx4 {kind}[{d+4*i}:{d+4*i+3}], v1, s[{srd}:{srd+3}], s76 offen{off} {pol}', tag)
    if mac:
        a.mend()

def m_resc(acc, al):
    a.mbegin(f'RESC {acc}, {al}')
    for k in range(24):
        a.ins(f'v_mul_f32 v{acc+k}, v{al}, v{acc+k}')
    a.mend()

def m_gv8(w, x, acc):
    a.mbegin(f'GV8 {w}, {x}, {acc}')
    for k in range(4):
        a.ins(f'v_dot2c_f32_bf16 v{acc+2*k}, v{w+k}, v{x}')
        a.ins(f'v_dot2c_f32_bf16 v{acc+2*k+1}, v{w+k}, v{x+1}')
    a.mend()

def m_ac4(t, s):
    a.mbegin(f'AC4 {t}, {s}')
    for k in range(4):
        a.ins(f'v_accvgpr_read_b32 v{t+k}, a{s+k}')
    a.mend()

DPP = 'row_mask:0xf bank_mask:0xf'

def smov(s, val):
    val &= 0xffffffff
    a.ins(f's_mov_b32 s{s}, {val if val <= 64 else hex(val)}')

def srd(d, lo, hi, nrec):
    a.ins(f's_mov_b32 s{d}, s{lo}')
    a.ins(f's_and_b32 s{d+1}, s{hi}, 0xffff')
    if isinstance(nrec, int):
        smov(d + 2, nrec)
    else:
        a.ins(f's_mov_b32 s{d+2}, {nrec}')
    a.ins(f's_mov_b32 s{d+3}, 0x20000')

def srd_off(d, lo, hi, offs, nrec):
    a.ins(f's_add_u32 s{d}, s{lo}, s{offs}')
    a.ins(f's_addc_u32 s{d+1}, s{hi}, 0')
    a.ins(f's_and_b32 s{d+1}, s{d+1}, 0xffff')
    if isinstance(nrec, int):
        smov(d + 2, nrec)
    else:
        a.ins(f's_mov_b32 s{d+2}, {nrec}')
    a.ins(f's_mov_b32 s{d+3}, 0x20000')

def set_exec_lanes(n):
    if n >= 64:
        a.ins('s_mov_b64 exec, -1')
    elif n <= 32:
        a.ins(f's_mov_b32 exec_lo, {hex((1 << n) - 1)}', dst=[], src=[])
        a.ins('s_mov_b32 exec_hi, 0', dst=[], src=[])
    else:
        a.ins('s_mov_b32 exec_lo, -1', dst=[], src=[])
        a.ins(f's_mov_b32 exec_hi, {hex((1 << (n - 32)) - 1)}', dst=[], src=[])

def stamp(idx, base_s, vt, dyn=None):
    if not DIAG:
        return
    a.ins('s_memrealtime s[100:101]')
    a.ins('s_waitcnt lgkmcnt(0)')
    a.lg = []
    a.ins(f'v_mov_b32 v{vt}, s100')
    a.ins(f'v_mov_b32 v{vt+1}, 0')
    if dyn is None:
        a.ins(f's_add_u32 s101, s{base_s}, {idx*4}')
    else:
        a.ins(f's_add_u32 s101, s{base_s}, s{dyn}')
        a.ins(f's_add_u32 s101, s101, {idx*4}')
    a.vmem(f'buffer_store_dword v{vt}, v{vt+1}, s[64:67], s101 offen', 'stamp')

def flags_addr(va, stage):
    if stage == 1:
        a.ins(f'v_min_u32 v{va}, 11, v0')
        a.ins(f'v_lshlrev_b32 v{va}, 2, v{va}')
    else:
        a.ins(f'v_min_u32 v{va}, 23, v0')
        a.ins(f'v_lshlrev_b32 v{va}, 2, v{va}')
        a.ins(f'v_add_u32 v{va}, 128, v{va}')

def flags_check(vreg, stage):
    a.ins(f'v_cmp_ne_u32 vcc, {1 if stage == 1 else "0x10001"}, v{vreg}')

def wait_flags(stage, va=254, plain_first=True):
    L = newlab('Lar'); D = newlab('Lad')
    smov(75, SPIN_MAX)
    flags_addr(va, stage)
    if plain_first:
        a.ins(f'global_load_dword v{va+1}, v{va}, s[28:29]')
        a.ins('s_waitcnt vmcnt(0)')
        flags_check(va + 1, stage)
        a.ins(f's_cbranch_vccz {D}')
    a.label(L)
    a.ins(f'global_load_dword v{va+1}, v{va}, s[28:29] sc1')
    a.ins('s_waitcnt vmcnt(0)')
    a.vm = []
    flags_check(va + 1, stage)
    a.ins(f's_cbranch_vccz {D}')
    a.ins('s_sleep 8')
    a.ins('s_sub_u32 s75, s75, 1')
    a.ins('s_cmp_lg_u32 s75, 0')
    a.ins(f's_cbranch_scc1 {L}')
    a.label(D)
    a.fence_hazards()

def set_flag(stage):
    L = only_wave0_begin()
    if stage == 1:
        a.ins('s_lshl_b32 s4, s2, 2')
    else:
        a.ins('s_lshl_b32 s4, s2, 1')
        a.ins('s_add_u32 s4, s4, 128')
    a.ins('v_mov_b32 v150, s4')
    a.ins('v_mov_b32 v151, 1')
    set_exec_lanes(1)
    a.ins(f'global_store_{"dword" if stage == 1 else "short"} v150, v151, s[28:29] sc1')
    set_exec_lanes(64)
    a.label(L)
    a.fence_hazards()

SU_W = 56
SU_ACC = 96
SU_X = 226
SU_RED = 20480

def startup1():
    srd(96, 8, 9, 4 * 1280)
    a.ins('v_lshlrev_b32 v254, 2, v0')
    a.ins('s_mul_i32 s76, s3, 1280')
    for k in range(5):
        a.vmem(f'buffer_load_dword v{SU_X+k}, v254, s[96:99], s76 offen offset:{k*256}', 'sux')
    a.ins('s_mul_i32 s4, s2, 48')
    a.ins(f's_sub_u32 s5, {640*12288}, s4')
    srd_off(92, 14, 15, 4, 's5')
    a.ins('v_and_b32 v255, 15, v0')
    a.ins(f'v_mul_u32_u24 v255, {10*12288}, v255')
    a.ins('v_lshrrev_b32 v128, 4, v0')
    a.ins('v_min_u32 v128, 2, v128')
    a.ins('v_lshl_add_u32 v255, v128, 4, v255')
    a.ins(f's_mul_i32 s4, s3, {160*12288}')
    for i in range(10):
        a.ins(f's_add_u32 s76, s4, {i*12288}')
        a.vmem(f'buffer_load_dwordx4 v[{SU_W+4*i}:{SU_W+4*i+3}], v255, s[92:95], s76 offen', 'suw')

def startup2a(topup=None, st=False, after_x=None):
    X = SU_X
    a.wait_vm('sux')
    if after_x:
        after_x()
    if st: stamp(56, 78, 252)
    xs = X + 5
    for k in range(5):
        a.ins(f'v_lshlrev_b32 v{xs+2*k}, 16, v{X+k}')
        a.ins(f'v_and_b32 v{xs+2*k+1}, 0xffff0000, v{X+k}')
    A = SU_ACC
    t, u, mean, var = A, A + 1, A + 2, A + 3
    d0, q0, e0 = A + 4, A + 14, X + 15
    a.ins(f'v_add_f32 v{t}, v{xs}, v{xs+1}')
    for i in range(2, 10):
        a.ins(f'v_add_f32 v{t}, v{t}, v{xs+i}')
    wave_sum(t, u)
    a.ins(f'v_mul_f32 v{mean}, {hex(f32(1.0/640))}, v{t}')
    for i in range(10):
        a.ins(f'v_sub_f32 v{d0+i}, v{xs+i}, v{mean}')
    a.ins(f'v_mul_f32 v{t}, v{d0}, v{d0}')
    for i in range(1, 10):
        a.ins(f'v_fmac_f32 v{t}, v{d0+i}, v{d0+i}')
    wave_sum(t, u)
    a.ins(f'v_mul_f32 v{var}, {hex(f32(1.0/640))}, v{t}')
    bf16r(mean, mean)
    bf16r(var, var)
    a.ins(f'v_add_f32 v{var}, {hex(f32(1e-5))}, v{var}')
    bf16r(var, var)
    a.ins(f'v_sqrt_f32 v{var}, v{var}')
    bf16r(var, var)
    a.ins(f'v_rcp_f32 v{u}, v{var}')
    for i in range(10):
        a.ins(f'v_sub_f32 v{d0+i}, v{xs+i}, v{mean}')
    for i in range(10):
        bf16r(d0 + i, d0 + i)
    for i in range(10):
        a.ins(f'v_mul_f32 v{q0+i}, v{d0+i}, v{u}')
    for i in range(10):
        a.ins(f'v_fma_f32 v{e0+i}, -v{q0+i}, v{var}, v{d0+i}')
    for i in range(10):
        a.ins(f'v_fma_f32 v{q0+i}, v{e0+i}, v{u}, v{q0+i}')
    a.ins('s_mul_i32 s4, s3, 5120')
    a.ins('v_lshlrev_b32 v254, 4, v0')
    a.ins('v_add_u32 v254, s4, v254')
    r = A + 24
    for k in range(5):
        a.ins(f'v_cvt_pk_bf16_f32 v{r}, v{q0+2*k}, 0')
        a.ins(f'v_cvt_pk_bf16_f32 v{r+1}, 0, v{q0+2*k}')
        a.ins(f'v_cvt_pk_bf16_f32 v{r+2}, v{q0+2*k+1}, 0')
        a.ins(f'v_cvt_pk_bf16_f32 v{r+3}, 0, v{q0+2*k+1}')
        a.lds(f'ds_write_b128 v254, v[{r}:{r+3}] offset:{k*1024}')
        a.wait_lg_all()
    a.barrier()
    if st: stamp(57, 78, 252)
    a.ins('v_and_b32 v254, 15, v0')
    a.ins('v_mul_u32_u24 v254, 80, v254')
    a.ins('s_mul_i32 s4, s3, 1280')
    a.ins('v_add_u32 v254, s4, v254')
    for k in range(32):
        a.ins(f'v_mov_b32 v{SU_ACC+k}, 0')
    a.wait_vm('suw')
    if st: stamp(58, 78, 252)
    for b in range(4):
        for k in range(5):
            a.lds(f'ds_read_b128 v[{X+4*k}:{X+4*k+3}], v254 offset:{b*5120 + k*16}')
        a.wait_lg_all()
        for i in range(10):
            m_gv8(SU_W + 4 * i, X + 2 * i, SU_ACC + 8 * b)
    for pat in ('quad_perm:[1,0,3,2]', 'quad_perm:[2,3,0,1]', 'row_half_mirror', 'row_mirror'):
        for k in range(32):
            a.ins(f'v_add_f32_dpp v{SU_ACC+k}, v{SU_ACC+k}, v{SU_ACC+k} {pat} {DPP}')
    a.ins('v_lshrrev_b32 v254, 4, v0')
    a.ins('v_lshlrev_b32 v254, 7, v254')
    a.ins('s_mul_i32 s4, s3, 384')
    a.ins(f's_add_u32 s4, s4, {SU_RED}')
    a.ins('v_add_u32 v254, s4, v254')
    a.ins('s_mov_b32 exec_lo, 0x10001', dst=[], src=[])
    a.ins('s_mov_b32 exec_hi, 1', dst=[], src=[])
    for k in range(8):
        a.lds(f'ds_write_b128 v254, v[{SU_ACC+4*k}:{SU_ACC+4*k+3}] offset:{k*16}')
    set_exec_lanes(64)
    if topup:
        topup()
    if st: stamp(59, 78, 252)
    a.barrier()
    if st: stamp(60, 78, 252)

def startup2b(st=False):
    a.ins('v_mul_u32_u24 v254, 171, v0')
    a.ins('v_lshrrev_b32 v254, 9, v254')
    a.ins('v_mul_u32_u24 v255, 3, v254')
    a.ins('v_sub_u32 v255, v0, v255')
    a.ins('v_lshlrev_b32 v128, 7, v255')
    a.ins('v_lshl_add_u32 v128, v254, 5, v128')
    a.ins('v_and_b32 v128, 0x1ff, v128')
    for wv in range(4):
        a.lds(f'ds_read_b128 v[{SU_W+8*wv}:{SU_W+8*wv+3}], v128 offset:{SU_RED + wv*384}')
        a.lds(f'ds_read_b128 v[{SU_W+8*wv+4}:{SU_W+8*wv+7}], v128 offset:{SU_RED + wv*384 + 16}')
    a.wait_lg_all()
    for wv in range(1, 4):
        for e in range(8):
            a.ins(f'v_add_f32 v{SU_W+e}, v{SU_W+e}, v{SU_W+8*wv+e}')
    for e in range(4):
        a.ins(f'v_cvt_pk_bf16_f32 v{SU_ACC+e}, v{SU_W+2*e}, v{SU_W+2*e+1}')
    a.ins('v_mul_u32_u24 v254, 12288, v254')
    a.ins('v_lshl_add_u32 v254, v255, 4, v254')
    if st: stamp(61, 78, 250)
    wait_flags(1, 252)
    if st: stamp(62, 78, 250)
    a.ins('s_mul_i32 s76, s2, 48')
    a.ins(f's_add_u32 s76, s76, {hex(Q_OFF)}')
    set_exec_lanes(12)
    a.vmem(f'buffer_store_dwordx4 v[{SU_ACC}:{SU_ACC+3}], v254, s[64:67], s76 offen sc1', 'q1pub')
    set_exec_lanes(64)

RING = [8, 20, 32, 44, 56, 68]
T0, T1 = 56, 68
XRING = int(os.environ.get('XRING', '1'))
Q, QS = 80, 92
ST = 104
VSLOT = 130
NVS = 8
WK = 226

def srd_k(b): return 32 + 8 * b
def srd_v(b): return 36 + 8 * b

def r_storage(kind, t):
    if t >= NR:
        return ('c',)
    if kind == 'K':
        return ('a', 12 * t)
    if t < NVS:
        return ('v', VSLOT + 12 * t)
    return ('l', t - NVS)

def groups_of(tiles):
    return [tiles[i:i + 2] for i in range(0, len(tiles), 2)]

class Stream:
    def __init__(self):
        self.P = SCHED
        self.LQ = []
        for pi, (ty, ps, b, tiles) in enumerate(self.P):
            for grp in groups_of(tiles):
                for kind in ('K', 'V'):
                    for t in grp:
                        pol = 'nt'
                        if ty == 'D':
                            if r_storage(kind, t)[0] != 'c':
                                continue
                            dest = ('r', None)
                        elif ty == 'A':
                            stg = r_storage(kind, t)
                            dest = stg if stg[0] in 'av' else ('r', None)
                            if stg[0] == 'c' and LMODE == 'def':
                                pol = ''
                        else:
                            dest = ('r', None)
                            if ps == 0:
                                pol = NPOL
                        self.LQ.append({'pi': pi, 'kind': kind, 't': t, 'b': b, 'dest': dest, 'pol': pol})
        self.lqi = 0
        self.nissued = 0
        self.ring_free = [True] * 6
        self.ring_next = 0
        self.t_ok = False
        self.ded_free = {}
        self.d_done = set()
        self.cur_pi = 0
        self.loc = {}
        self.last_A = max(i for i, p in enumerate(self.P) if p[0] == 'A')
        self.all_ded = [r_storage(k, t) for t in R_T for k in 'KV' if r_storage(k, t)[0] in 'av']

    def ring_alloc(self, e=None):
        n = 4
        if XRING and e is not None and all(self.P[p][0] == 'N' for p in range(self.cur_pi, e['pi'] + 1)) \
                and e['pi'] != len(self.P) - 1 and self.t_ok:
            n = 6
        for s in range(n):
            if self.ring_free[s]:
                self.ring_free[s] = False
                return s
        return None

    def _issue_one(self, e):
        if e['dest'][0] == 'r':
            s = self.ring_alloc(e)
            if s is not None:
                kind, base = 'v', RING[s]
                self.loc[(e['pi'], e['kind'], e['t'])] = ('r', s)
            else:
                key = None
                if self.cur_pi > self.last_A and e['pi'] == len(self.P) - 1:
                    for k in self.all_ded:
                        if self.ded_free.get(k, True):
                            key = k
                            break
                if key is None:
                    return False
                self.ded_free[key] = False
                kind, base = key
                self.loc[(e['pi'], e['kind'], e['t'])] = ('x', key)
        else:
            key = e['dest']
            if not self.ded_free.get(key, True):
                return False
            self.ded_free[key] = False
            kind, base = key
            self.loc[(e['pi'], e['kind'], e['t'])] = key
        smov(76, e['t'] * 3072)
        sd = srd_k(e['b']) if e['kind'] == 'K' else srd_v(e['b'])
        m_ldt(kind, base, sd, ('T', e['pi'], e['kind'], e['t']), e['pol'])
        if LMODE == 'touch' and self.P[e['pi']][0] == 'A' and r_storage(e['kind'], e['t'])[0] == 'c':
            a.vmem(f'buffer_load_dword v249, v248, s[{sd}:{sd+3}], s76 offen sc1', 'touch')
        e['done'] = True
        self.nissued += 1
        return True

    def try_issue(self, cap=None, limit=None):
        if cap is None:
            cap = int(os.environ.get('CAP', '54'))
        while True:
            if len(a.vm) + 4 > cap:
                return
            if limit is not None and self.nissued >= limit:
                return
            cand = []
            seen = set()
            for i in range(self.lqi, len(self.LQ)):
                e = self.LQ[i]
                if e.get('done'):
                    continue
                c = 'r' if e['dest'][0] == 'r' else 'd'
                if c not in seen:
                    seen.add(c)
                    cand.append(e)
                if len(seen) == 2:
                    break
            ok = False
            for e in cand:
                if self._issue_one(e):
                    ok = True
                    break
            while self.lqi < len(self.LQ) and self.LQ[self.lqi].get('done'):
                self.lqi += 1
            if not ok:
                return

    def q_issue(self, ps, b):
        a.ins(f's_add_u32 s76, s72, {hex((ps * 4 + b) * 32 * 384)}')
        for i in range(3):
            off = f' offset:{i*128}' if i else ''
            a.vmem(f'buffer_load_dwordx4 v[{QS+4*i}:{QS+4*i+3}], v2, s[64:67], s76 offen{off} sc1', ('Q', ps, b))

    def q_check(self):
        w = WK
        a.ins(f'v_max3_u32 v{w}, v{QS}, v{QS+1}, v{QS+2}')
        for k in range(3, 12, 2):
            k2 = min(k + 1, 11)
            a.ins(f'v_max3_u32 v{w}, v{w}, v{QS+k}, v{QS+k2}')
        a.ins(f'v_cmp_eq_u32 vcc, -1, v{w}')

    def q_take(self, ps, b):
        a.wait_vm(('Q', ps, b))
        OK = newlab('Lqo'); RT = newlab('Lqr')
        self.q_check()
        a.ins(f's_cbranch_vccz {OK}')
        smov(75, SPIN_MAX)
        a.label(RT)
        a.ins('s_sleep 2')
        a.ins(f's_add_u32 s77, s72, {hex((ps * 4 + b) * 32 * 384)}')
        for i in range(3):
            off = f' offset:{i*128}' if i else ''
            a.ins(f'buffer_load_dwordx4 v[{QS+4*i}:{QS+4*i+3}], v2, s[64:67], s77 offen{off} sc1')
        a.ins('s_waitcnt vmcnt(0)')
        self.q_check()
        a.ins(f's_cbranch_vccz {OK}')
        a.ins('s_sub_u32 s75, s75, 1')
        a.ins('s_cmp_lg_u32 s75, 0')
        a.ins(f's_cbranch_scc1 {RT}')
        a.label(OK)
        for k in range(12):
            a.ins(f'v_mov_b32 v{Q+k}, v{QS+k}')

    def get_tile(self, pi, ty, kind, t, tmp):
        if ty == 'D' and r_storage(kind, t)[0] != 'c':
            stg = r_storage(kind, t)
            if stg[0] == 'a':
                m_acr(tmp, stg[1])
                self.ded_free[stg] = True
                return tmp, None
            if stg[0] == 'v':
                return stg[1], ('ded', stg)
            a.wait_lg(('L', pi, t))
            return tmp, None
        a.wait_vm(('T', pi, kind, t))
        loc = self.loc[(pi, kind, t)]
        if loc[0] == 'x':
            key = loc[1]
            if key[0] == 'a':
                m_acr(tmp, key[1])
                self.ded_free[key] = True
                return tmp, None
            return key[1], ('ded', key)
        if loc[0] == 'a':
            m_acr(tmp, loc[1])
            return tmp, None
        if loc[0] == 'v':
            return loc[1], None
        return RING[loc[1]], ('ring', loc[1])

    def touch(self, pi, ty, kind, t):
        if ty != 'A' or r_storage(kind, t)[0] != 'c':
            return
        b = self.P[pi][2]
        sd = srd_k(b) if kind == 'K' else srd_v(b)
        smov(76, t * 3072)
        a.vmem(f'buffer_load_dword v249, v248, s[{sd}:{sd+3}], s76 offen sc1', 'touch')

    def release(self, rel):
        if rel is None:
            return
        if rel[0] == 'ring':
            self.ring_free[rel[1]] = True
        else:
            self.ded_free[rel[1]] = True

    def lds_prefetch(self, pi, t, tmp):
        slot = t - NVS
        for i in range(3):
            a.lds(f'ds_read_b128 v[{tmp+4*i}:{tmp+4*i+3}], v3 offset:{slot*3072+i*1024}', ('L', pi, t))

    def group(self, pi, ty, grp, last_group):
        st = ST
        acc, m, l = st, st + 24, st + 25
        s = WK
        sa, sb = WK, WK + 3
        mn, cm, al = WK + 6, WK + 7, WK + 8
        pa, pb = WK + 9, WK + 10
        PA, PB = WK + 12, WK + 14
        two = len(grp) == 2
        ta, ra = self.get_tile(pi, ty, 'K', grp[0], T0)
        if two:
            tb, rb = self.get_tile(pi, ty, 'K', grp[1], T1)
            m_qk2(ta, tb, Q, s)
            self.release(ra); self.release(rb)
        else:
            for i, o in enumerate((0, 4, 8)):
                a.ins(f'v_dot2_f32_bf16 v{s+i}, v{ta+o}, v{Q+o}, 0')
            for k in (1, 2, 3):
                for i, o in enumerate((0, 4, 8)):
                    a.ins(f'v_dot2c_f32_bf16 v{s+i}, v{ta+o+k}, v{Q+o+k}')
            self.release(ra)
        if ty == 'D':
            for t, tmp in zip(grp, (T0, T1)):
                if r_storage('V', t)[0] == 'l':
                    self.lds_prefetch(pi, t, tmp)
        self.try_issue()
        a.ins(f'v_add_f32 v{sa}, v{s}, v{s+1}')
        a.ins(f'v_add_f32 v{sa}, v{sa}, v{s+2}')
        if two:
            a.ins(f'v_add_f32 v{sb}, v{s+3}, v{s+4}')
            a.ins(f'v_add_f32 v{sb}, v{sb}, v{s+5}')
        for pat in ('quad_perm:[1,0,3,2]', 'quad_perm:[2,3,0,1]', 'row_half_mirror'):
            a.ins(f'v_add_f32_dpp v{sa}, v{sa}, v{sa} {pat} {DPP}')
            if two:
                a.ins(f'v_add_f32_dpp v{sb}, v{sb}, v{sb} {pat} {DPP}')
        if grp[-1] == NT_ALL - 1:
            x = sb if two else sa
            a.ins(f'v_add_f32 v{x}, s69, v{x}')
        if two:
            a.ins(f'v_max3_f32 v{mn}, v{m}, v{sa}, v{sb}')
        else:
            a.ins(f'v_max_f32 v{mn}, v{m}, v{sa}')
        a.ins(f'v_cmp_gt_f32 vcc, v{mn}, v{m}')
        SK = newlab('Lsk')
        a.ins(f's_cbranch_vccz {SK}')
        a.ins(f'v_sub_f32 v{al}, v{m}, v{mn}')
        a.ins(f'v_mul_f32 v{al}, s74, v{al}')
        a.ins(f'v_exp_f32 v{al}, v{al}')
        a.ins(f'v_mov_b32 v{m}, v{mn}')
        m_resc(acc, al)
        a.ins(f'v_mul_f32 v{l}, v{al}, v{l}')
        a.label(SK)
        a.ins(f'v_mul_f32 v{cm}, s74, v{m}')
        a.ins(f'v_fma_f32 v{pa}, v{sa}, s74, -v{cm}')
        if two:
            a.ins(f'v_fma_f32 v{pb}, v{sb}, s74, -v{cm}')
        a.ins(f'v_exp_f32 v{pa}, v{pa}')
        if two:
            a.ins(f'v_exp_f32 v{pb}, v{pb}')
        a.ins(f'v_cvt_pk_bf16_f32 v{PA}, v{pa}, 0')
        a.ins(f'v_cvt_pk_bf16_f32 v{PA+1}, 0, v{pa}')
        if two:
            a.ins(f'v_cvt_pk_bf16_f32 v{PB}, v{pb}, 0')
            a.ins(f'v_cvt_pk_bf16_f32 v{PB+1}, 0, v{pb}')
        a.ins(f'v_add_f32 v{l}, v{l}, v{PA+1}')
        if two:
            a.ins(f'v_add_f32 v{l}, v{l}, v{PB+1}')
        for (t, P, tmp) in list(zip(grp, (PA, PB), (T0, T1))):
            tv, rv = self.get_tile(pi, ty, 'V', t, tmp)
            m_pv(tv, P, acc)
            if ty == 'A' and r_storage('V', t)[0] == 'l':
                slot = t - NVS
                for i in range(3):
                    a.lds(f'ds_write_b128 v3, v[{tv+4*i}:{tv+4*i+3}] offset:{slot*3072+i*1024}', ('W', pi, t))
            self.release(rv)
            self.try_issue()

    def publish(self, st, c):
        acc, m, l = st, st + 24, st + 25
        M, u, sc = WK, WK + 1, WK + 2
        a.ins(f'v_max_f32_dpp v{M}, v{m}, v{m} row_ror:8 {DPP}')
        a.ins(f'v_mov_b32 v{u}, v{M}')
        a.ins(f'v_permlane16_swap_b32 v{M}, v{u}')
        a.ins(f'v_max_f32 v{M}, v{M}, v{u}')
        a.ins(f'v_mov_b32 v{u}, v{M}')
        a.ins(f'v_permlane32_swap_b32 v{M}, v{u}')
        a.ins(f'v_max_f32 v{M}, v{M}, v{u}')
        a.ins(f'v_sub_f32 v{sc}, v{m}, v{M}')
        a.ins(f'v_mul_f32 v{sc}, s74, v{sc}')
        a.ins(f'v_exp_f32 v{sc}, v{sc}')
        a.ins(f'v_mul_f32 v{M}, s74, v{M}')
        m_resc(acc, sc)
        a.ins(f'v_mul_f32 v{l}, v{sc}, v{l}')
        a.ins(f'v_add_f32_dpp v{l}, v{l}, v{l} row_ror:8 {DPP}')
        a.ins(f'v_mov_b32 v{u}, v{l}')
        a.ins(f'v_permlane16_swap_b32 v{l}, v{u}')
        a.ins(f'v_add_f32 v{l}, v{l}, v{u}')
        a.ins(f'v_mov_b32 v{u}, v{l}')
        a.ins(f'v_permlane32_swap_b32 v{l}, v{u}')
        a.ins(f'v_add_f32 v{l}, v{l}, v{u}')
        for k in range(12):
            a.ins(f'v_permlane32_swap_b32 v{acc+k}, v{acc+k+12}')
        for k in range(12):
            a.ins(f'v_add_f32 v{acc+k}, v{acc+k}, v{acc+k+12}')
        for k in range(6):
            a.ins(f'v_permlane16_swap_b32 v{acc+k}, v{acc+k+6}')
        for k in range(6):
            a.ins(f'v_add_f32 v{acc+k}, v{acc+k}, v{acc+k+6}')
        for k in range(6):
            a.ins(f'v_add_f32_dpp v{acc+k}, v{acc+k}, v{acc+k} row_ror:8 {DPP}')
        t1, t2 = WK + 3, WK + 4
        for k in range(6):
            a.ins(f'v_add_u32 v{t1}, {k}, v7')
            a.ins(f'v_lshrrev_b32 v{t2}, 3, v{t1}')
            a.ins(f'v_and_b32 v{t1}, 7, v{t1}')
            a.ins(f'v_lshlrev_b32 v{t2}, 6, v{t2}')
            a.ins(f'v_add_u32 v{t1}, v{t1}, v{t2}')
            a.ins(f'v_lshl_add_u32 v{t1}, v{t1}, 2, v4')
            a.lds(f'ds_write_b32 v{t1}, v{acc+k}')
        z = WK + 8
        a.ins(f'v_mov_b32 v{z}, v{M}')
        a.ins(f'v_mov_b32 v{z+1}, v{l}')
        a.ins(f'v_mov_b32 v{z+2}, 0')
        a.ins(f'v_mov_b32 v{z+3}, 0')
        a.ins(f'v_and_b32 v{t1}, 0xffffff1f, v4')
        a.lds(f'ds_write_b128 v{t1}, v[{z}:{z+3}] offset:768')
        a.wait_lg_all()
        a.lds(f'ds_read_b128 v[{z}:{z+3}], v5')
        a.wait_lg_all()
        a.ins(f's_add_u32 s76, s73, {hex(c * PART_C)}')
        set_exec_lanes(49)
        a.vmem(f'buffer_store_dwordx4 v[{z}:{z+3}], v6, s[64:67], s76 offen sc1', ('P', c))
        set_exec_lanes(64)

    def run(self):
        P = self.P
        stamp(0, 78, 252)
        SCAP = int(os.environ.get('SCAP', '24'))
        def fill(n_more):
            done = 0
            while done < n_more:
                before = self.nissued
                tags = [t for t in a.vm if isinstance(t, tuple) and t[0] == 'T']
                if len(tags) + 3 > SCAP:
                    a.wait_vm(tags[2])
                self.try_issue(cap=len(a.vm) + 4)
                if self.nissued == before:
                    break
                done += self.nissued - before
        def snapshot():
            return (self.lqi, self.nissued, list(self.ring_free), self.ring_next, dict(self.ded_free), dict(self.loc), list(a.vm), [e.get('done', False) for e in self.LQ])
        def restore(sn):
            self.lqi, self.nissued = sn[0], sn[1]
            self.ring_free, self.ring_next, self.ded_free, self.loc, a.vm = list(sn[2]), sn[3], dict(sn[4]), dict(sn[5]), list(sn[6])
            for e, d in zip(self.LQ, sn[7]):
                e['done'] = d
        FLAG_LDS = 3 * 40960 + 39936 + 1016
        a.ins(f'v_mov_b32 v250, {FLAG_LDS}')
        a.ins('v_mov_b32 v251, 0')
        a.lds('ds_write_b32 v250, v251')
        startup2a(after_x=lambda: self.try_issue(cap=len(a.vm) + SCAP), st=True)
        sv = list(a.vm)
        L0 = only_wave0_begin()
        startup2b(st=True)
        a.ins(f'v_mov_b32 v250, {FLAG_LDS}')
        a.ins('v_mov_b32 v251, 1')
        a.lds('ds_write_b32 v250, v251')
        only_wave0_end(L0)
        a.vm = sv
        fill(100)
        LF = newlab('Llf'); LD = newlab('Lld')
        smov(75, SPIN_MAX)
        a.ins(f'v_mov_b32 v250, {FLAG_LDS}')
        a.label(LF)
        a.ins('ds_read_b32 v251, v250')
        a.ins('s_waitcnt lgkmcnt(0)')
        a.ins('v_cmp_ne_u32 vcc, 1, v251')
        a.ins(f's_cbranch_vccz {LD}')
        a.ins('s_sleep 1')
        a.ins('s_sub_u32 s75, s75, 1')
        a.ins('s_cmp_lg_u32 s75, 0')
        a.ins(f's_cbranch_scc1 {LF}')
        a.label(LD)
        a.fence_hazards()
        stamp(1, 78, 252)
        a.ins('v_min_u32 v248, 23, v0')
        a.ins('v_lshlrev_b32 v248, 7, v248')
        self.q_issue(P[0][1], P[0][2])
        for pi, (ty, ps, b, tiles) in enumerate(P):
            a.comment(f'---- phase {pi}: {ty} pass{ps} b{b}')
            self.cur_pi = pi
            self.t_ok = (ty == 'N')
            assert ty == 'N' or (self.ring_free[4] and self.ring_free[5])
            stamp(2 + 3 * pi, 78, 252)
            self.q_take(ps, b)
            stamp(3 + 3 * pi, 78, 252)
            for k in range(24):
                a.ins(f'v_mov_b32 v{ST+k}, 0')
            a.ins(f'v_mov_b32 v{ST+24}, 0xf149f2ca')
            a.ins(f'v_mov_b32 v{ST+25}, 0')
            gs = groups_of(tiles)
            for g, grp in enumerate(gs):
                qlead = int(os.environ.get('QLEAD', '1')) if (pi + 1 < len(P) and P[pi + 1][0] == 'D') else 3
                if g == len(gs) - qlead and pi + 1 < len(P):
                    self.q_issue(P[pi + 1][1], P[pi + 1][2])
                if g == len(gs) - 4 and pi == 0:
                    flags_addr(250, 2)
                    a.vmem('global_load_dword v251, v250, s[28:29]', 'fl2')
                self.group(pi, ty, grp, g == len(gs) - 1)
                if ty == 'D' and g >= int(os.environ.get('DPOP', '7')):
                    tags = [t for t in a.vm if isinstance(t, tuple) and t[0] == 'T']
                    if len(a.vm) + 4 > int(os.environ.get('CAP', '54')) and len(tags) >= 12:
                        a.wait_vm(tags[5])
                        self.try_issue()
            if pi == 0:
                a.wait_vm('fl2')
                FO = newlab('Lfo')
                flags_check(251, 2)
                a.ins(f's_cbranch_vccz {FO}')
                sv = list(a.vm)
                wait_flags(2, 250, plain_first=False)
                a.vm = sv
                a.label(FO)
                a.fence_hazards()
            self.publish(ST, pi)
            stamp(4 + 3 * pi, 78, 252)
            self.try_issue()
        a.ins('s_waitcnt vmcnt(0)')
        a.ins('s_endpgm')

def gen_stream():
    a.label('L_stream')
    startup1()
    a.ins(f's_sub_u32 s4, s2, {NCH}')
    a.ins('s_lshl_b32 s4, s4, 2')
    a.ins('s_add_u32 s4, s4, s3')
    a.ins('s_mul_i32 s5, s4, 2521')
    a.ins('s_lshr_b32 s5, s5, 16')
    a.ins(f's_mul_i32 s6, s5, {WPH}')
    a.ins('s_sub_u32 s6, s4, s6')
    a.ins('s_mul_i32 s7, s6, 39')
    a.ins('s_min_u32 s68, s6, 10')
    a.ins('s_add_u32 s7, s7, s68')
    a.ins('s_cmp_lt_u32 s6, 10')
    a.ins('s_cselect_b32 s68, 40, 39')
    a.ins('s_cselect_b32 s69, 0, 0xff800000')
    a.ins('s_mul_i32 s68, s68, 3072')
    a.ins('s_mul_i32 s70, s5, 3145728')
    a.ins('s_mul_i32 s71, s7, 3072')
    a.ins('s_add_u32 s70, s70, s71')
    for b in range(4):
        a.ins(f's_add_u32 s71, s70, {hex(b * BATCH_STRIDE)}')
        srd_off(srd_k(b), 10, 11, 71, 's68')
        srd_off(srd_v(b), 12, 13, 71, 's68')
    a.ins('s_mul_i32 s72, s5, 384')
    a.ins(f's_add_u32 s72, s72, {hex(Q_OFF)}')
    a.ins(f's_mul_i32 s73, s4, {REC}')
    smov(74, CSCALE)
    a.ins('s_lshl_b32 s78, s4, 8')
    a.ins(f's_add_u32 s78, s78, {hex(STAMP_OFF)}')
    a.ins('v_lshrrev_b32 v1, 3, v0')
    a.ins('v_mul_u32_u24 v1, 384, v1')
    a.ins('v_and_b32 v2, 7, v0')
    a.ins('v_lshlrev_b32 v2, 4, v2')
    a.ins('v_add_u32 v1, v1, v2')
    a.ins('s_mul_i32 s71, s3, 40960')
    a.ins('v_lshlrev_b32 v6, 4, v0')
    a.ins('v_add_u32 v3, s71, v6')
    a.ins('s_add_u32 s71, s71, 39936')
    a.ins('v_add_u32 v5, s71, v6')
    a.ins('v_lshlrev_b32 v4, 1, v2')
    a.ins('v_add_u32 v4, s71, v4')
    a.ins('v_bfe_u32 v7, v0, 4, 1')
    a.ins('v_mul_u32_u24 v7, 6, v7')
    a.ins('v_bfe_u32 v254, v0, 5, 1')
    a.ins('v_mul_u32_u24 v254, 12, v254')
    a.ins('v_add_u32 v7, v7, v254')
    Stream().run()

XS = 0
RED = 5120
XRES = 25600
X1 = 35840
WL = 38912
X1A = 100352
W1 = 128

def vm_auto(text):
    if len(a.vm) >= 60:
        a.ins('s_waitcnt vmcnt(30)')
        a.vm = a.vm[-30:]
    a.vmem(text, None)

def wave_sum(t, u):
    for pat in ('quad_perm:[1,0,3,2]', 'quad_perm:[2,3,0,1]', 'row_half_mirror', 'row_mirror'):
        a.ins(f'v_add_f32_dpp v{t}, v{t}, v{t} {pat} {DPP}')
    a.ins(f'v_mov_b32 v{u}, v{t}')
    a.ins(f'v_permlane16_swap_b32 v{t}, v{u}')
    a.ins(f'v_add_f32 v{t}, v{t}, v{u}')
    a.ins(f'v_mov_b32 v{u}, v{t}')
    a.ins(f'v_permlane32_swap_b32 v{t}, v{u}')
    a.ins(f'v_add_f32 v{t}, v{t}, v{u}')

def bf16r(d, s):
    a.ins(f'v_cvt_pk_bf16_f32 v{d}, 0, v{s}')

def poll_indicator(voff, nl, sreg):
    L = newlab('Lpi'); D = newlab('Lpd')
    smov(75, SPIN_MAX)
    set_exec_lanes(nl)
    a.label(L)
    a.ins(f'buffer_load_dword v127, v{voff}, s[64:67], s{sreg} offen sc1')
    a.ins('s_waitcnt vmcnt(0)')
    if os.environ.get('POLL', 'any') == 'any':
        a.ins('v_cmp_ne_u32 vcc, -1, v127')
        a.ins(f's_cbranch_vccnz {D}')
    else:
        a.ins('v_cmp_eq_u32 vcc, -1, v127')
        a.ins(f's_cbranch_vccz {D}')
    a.ins(f's_sleep {os.environ.get("PSLEEP", "3")}')
    a.ins('s_sub_u32 s75, s75, 1')
    a.ins('s_cmp_lg_u32 s75, 0')
    a.ins(f's_cbranch_scc1 {L}')
    a.label(D)
    set_exec_lanes(64)
    a.vm = []

def gather_sel(n, emit_load, reg_of, init_mask=None):
    L = newlab('Lgs'); D = newlab('Lgsd')
    if init_mask is None:
        smov(91, (1 << n) - 1)
    else:
        init_mask()
    smov(75, SPIN_MAX)
    a.label(L)
    for i in range(n):
        K = newlab('Lgk')
        a.ins(f's_bitcmp1_b32 s91, {i}')
        a.ins(f's_cbranch_scc0 {K}')
        emit_load(i)
        a.label(K)
    a.ins('s_waitcnt vmcnt(0)')
    for i in range(n):
        K = newlab('Lgc')
        r = reg_of(i)
        a.ins(f's_bitcmp1_b32 s91, {i}')
        a.ins(f's_cbranch_scc0 {K}')
        a.ins(f'v_max3_u32 v127, v{r}, v{r+1}, v{r+2}')
        a.ins(f'v_max_u32 v127, v127, v{r+3}')
        a.ins('v_cmp_eq_u32 vcc, -1, v127')
        a.ins(f's_cbranch_vccnz {K}')
        a.ins(f's_bitset0_b32 s91, {i}')
        a.label(K)
    a.ins('s_cmp_eq_u32 s91, 0')
    a.ins(f's_cbranch_scc1 {D}')
    a.ins('s_sub_u32 s75, s75, 1')
    a.ins('s_cmp_lg_u32 s75, 0')
    a.ins(f's_cbranch_scc1 {L}')
    a.label(D)
    a.fence_hazards()

def check_regs(regs, w):
    regs = list(regs)
    a.ins(f'v_max3_u32 v{w}, v{regs[0]}, v{regs[1]}, v{regs[2]}')
    k = 3
    while k < len(regs):
        k2 = min(k + 1, len(regs) - 1)
        a.ins(f'v_max3_u32 v{w}, v{w}, v{regs[k]}, v{regs[k2]}')
        k += 2
    a.ins(f'v_cmp_eq_u32 vcc, -1, v{w}')

def gather_ar(sreg):
    poll_indicator(8, 8, sreg)
    def ld(i):
        a.ins(f's_add_u32 s76, s{sreg}, {(i // 4) * 4096}')
        off = f' offset:{(i % 4) * 1024}' if i % 4 else ''
        a.ins(f'buffer_load_dwordx4 v[{16+4*i}:{19+4*i}], v9, s[64:67], s76 offen{off} sc1')
    gather_sel(20, ld, lambda i: 16 + 4 * i)
    for grp in range(5):
        for k in range(1, 4):
            for e in range(4):
                a.ins(f'v_add_f32 v{16+4*grp+e}, v{16+4*grp+e}, v{16+4*(grp+5*k)+e}')
    for grp in range(5):
        a.lds(f'ds_write_b128 v10, v[{16+4*grp}:{19+4*grp}] offset:{grp*1024}')
    a.barrier()

def ar_sum_wave0():
    for wv in range(8):
        for k in range(5):
            r = 32 + (wv * 5 + k) * 2
            a.lds(f'ds_read_b64 v[{r}:{r+1}], v12 offset:{RED + wv*2560 + k*512}')
    a.wait_lg_all()
    for k in range(5):
        for e in range(2):
            d = 16 + 2 * k + e
            a.ins(f'v_add_f32 v{d}, v{32+2*k+e}, v{32+(5+k)*2+e}')
    for p in range(2, 8):
        for k in range(5):
            for e in range(2):
                d = 16 + 2 * k + e
                a.ins(f'v_add_f32 v{d}, v{d}, v{32+(5*p+k)*2+e}')

def residual(areg, src_off):
    for k in range(5):
        a.lds(f'ds_read_b64 v[{32+2*k}:{33+2*k}], v{areg} offset:{src_off + k*512}')
    for i in range(10):
        bf16r(16 + i, 16 + i)
    a.wait_lg_all()
    for i in range(10):
        a.ins(f'v_add_f32 v{16+i}, v{16+i}, v{32+i}')
    for i in range(10):
        bf16r(16 + i, 16 + i)

def store_x(areg, dst_off):
    for k in range(5):
        a.lds(f'ds_write_b64 v{areg}, v[{16+2*k}:{17+2*k}] offset:{dst_off + k*512}')

def layernorm_to_xs():
    t, u, mean, var = 32, 33, 34, 35
    a.ins(f'v_add_f32 v{t}, v16, v17')
    for i in range(2, 10):
        a.ins(f'v_add_f32 v{t}, v{t}, v{16+i}')
    wave_sum(t, u)
    a.ins(f'v_mul_f32 v{mean}, {hex(f32(1.0/640))}, v{t}')
    for i in range(10):
        a.ins(f'v_sub_f32 v{40+i}, v{16+i}, v{mean}')
    a.ins(f'v_mul_f32 v{t}, v40, v40')
    for i in range(1, 10):
        a.ins(f'v_fmac_f32 v{t}, v{40+i}, v{40+i}')
    wave_sum(t, u)
    a.ins(f'v_mul_f32 v{var}, {hex(f32(1.0/640))}, v{t}')
    bf16r(mean, mean)
    bf16r(var, var)
    a.ins(f'v_add_f32 v{var}, {hex(f32(1e-5))}, v{var}')
    bf16r(var, var)
    a.ins(f'v_sqrt_f32 v{var}, v{var}')
    bf16r(var, var)
    a.ins(f'v_rcp_f32 v{u}, v{var}')
    for i in range(10):
        a.ins(f'v_sub_f32 v{40+i}, v{16+i}, v{mean}')
    for i in range(10):
        bf16r(40 + i, 40 + i)
    for i in range(10):
        a.ins(f'v_mul_f32 v{50+i}, v{40+i}, v{u}')
    for i in range(10):
        a.ins(f'v_fma_f32 v{60+i}, -v{50+i}, v{var}, v{40+i}')
    for i in range(10):
        a.ins(f'v_fma_f32 v{50+i}, v{60+i}, v{u}, v{50+i}')
    for k in range(5):
        a.ins(f'v_cvt_pk_bf16_f32 v{72+k}, v{50+2*k}, v{51+2*k}')
        a.lds(f'ds_write_b32 v119, v{72+k} offset:{XS + k*256}')

def only_wave0_begin():
    L = newlab('Lw0')
    a.ins('s_cmp_lg_u32 s3, 0')
    a.ins(f's_cbranch_scc1 {L}')
    return L

def only_wave0_end(L):
    a.wait_lg_all()
    a.label(L)
    a.fence_hazards()

def gemv_rows(nrows, xaddr, wsrc, acc=56):
    for k in range(8):
        a.ins(f'v_mov_b32 v{acc+k}, 0')
    B = 4
    XB = (16, 24); WB = (64, 80)
    nb = nrows // B
    def issue(j):
        r0 = j * B
        for k in range(B // 2):
            a.lds(f'ds_read_b128 v[{XB[j%2]+4*k}:{XB[j%2]+4*k+3}], v{xaddr} offset:{(r0+2*k)*8}', ('g', j))
        for k in range(B):
            ws = wsrc(r0 + k)
            if ws[0] == 'l':
                a.lds(f'ds_read_b128 v[{WB[j%2]+4*k}:{WB[j%2]+4*k+3}], v{ws[1]} offset:{ws[2]}', ('g', j))
    issue(0)
    for j in range(nb):
        if j + 1 < nb:
            issue(j + 1)
        a.wait_lg(('g', j))
        for k in range(B):
            ws = wsrc(j * B + k)
            x = XB[j % 2] + 2 * k
            if ws[0] == 'a':
                tmp = 48 + 4 * (k % 2)
                m_ac4(tmp, ws[1])
                m_gv8(tmp, x, acc)
            elif ws[0] == 'v':
                m_gv8(ws[1], x, acc)
            else:
                m_gv8(WB[j % 2] + 4 * k, x, acc)

def write_red(addr, acc=56):
    set_exec_lanes(60)
    a.lds(f'ds_write_b128 v{addr}, v[{acc}:{acc+3}]')
    a.lds(f'ds_write_b128 v{addr}, v[{acc+4}:{acc+7}] offset:16')
    set_exec_lanes(64)
    a.barrier()

def reduce3_publish(sreg):
    L = newlab('Lr3')
    a.ins('s_cmp_eq_u32 s3, 3')
    a.ins(f's_cbranch_scc1 {L}')
    M = newlab('Lr3m')
    a.ins('s_cmp_lg_u32 s3, 2')
    a.ins(f's_cbranch_scc1 {M}')
    set_exec_lanes(32)
    a.label(M)
    for r in range(3):
        a.lds(f'ds_read_b128 v[{16+4*r}:{19+4*r}], v15 offset:{RED + r*2560}')
    a.wait_lg_all()
    for e in range(4):
        a.ins(f'v_add_f32 v{16+e}, v{16+e}, v{20+e}')
    for e in range(4):
        a.ins(f'v_add_f32 v{16+e}, v{16+e}, v{24+e}')
    a.ins(f's_add_u32 s76, s70, s{sreg}')
    a.ins('buffer_store_dwordx4 v[16:19], v15, s[64:67], s76 offen sc1')
    set_exec_lanes(64)
    a.label(L)
    a.fence_hazards()


def prep_blocks(blocks):
    TB = (16, 48); U = 80
    def issue(i):
        blocks[i][0](TB[i % 2], ('blk', i))
    issue(0)
    for i, (em, dest) in enumerate(blocks):
        if i + 1 < len(blocks):
            issue(i + 1)
        a.wait_vm(('blk', i))
        T = TB[i % 2]
        out = dest[1] if dest[0] == 'v' else U
        for d in range(4):
            for h in range(2):
                c = 2 * d + h
                for p in range(4):
                    a.ins(f'v_perm_b32 v{out+4*c+p}, v{T+4*(2*p+1)+d}, v{T+4*(2*p)+d}, s{62+h}')
        if dest[0] == 'a':
            for k in range(32):
                a.ins(f'v_accvgpr_write_b32 a{dest[1]+k}, v{U+k}')
        elif dest[0] in ('l', 'l?'):
            LS = None
            if dest[0] == 'l?':
                LS = newlab('Lpb')
                a.ins('s_cmp_ge_u32 s3, 2')
                a.ins(f's_cbranch_scc1 {LS}')
            for c in range(8):
                a.lds(f'ds_write_b128 v{dest[1]}, v[{U+4*c}:{U+4*c+3}] offset:{dest[2]+c*1024}')
            a.wait_lg_all()
            if LS:
                a.label(LS)
                a.fence_hazards()
    a.wait_lg_all()

def stage_block(dst, areg, off, tag):
    for c in range(8):
        a.lds(f'ds_read_b128 v[{dst+4*c}:{dst+4*c+3}], v{areg} offset:{off+c*1024}', tag)

def mfma_block(acc, x, kind, base, first):
    for c in range(8):
        cc = '0' if first else f'v[{acc+4*c}:{acc+4*c+3}]'
        a.ins(f'v_mfma_f32_16x16x32_bf16 v[{acc+4*c}:{acc+4*c+3}], v[{x}:{x+3}], {kind}[{base+4*c}:{base+4*c+3}], {cc}')

def extract(acc, E):
    for c in range(8):
        a.ins(f'v_mov_b32 v{E+c}, v{acc+4*c}')

def xread(dst, areg, off, tag='x'):
    a.lds(f'ds_read_b128 v[{dst}:{dst+3}], v{areg} offset:{off}', tag)

def mfma_consts():
    smov(62, 0x05040100)
    smov(63, 0x07060302)
    a.ins('v_and_b32 v3, 15, v0')
    a.ins('v_lshrrev_b32 v4, 4, v0')
    a.ins('v_lshlrev_b32 v112, 4, v4')
    a.ins(f'v_add_u32 v112, {XS}, v112')
    a.ins('s_lshl_b32 s4, s3, 6')
    a.ins('v_add_u32 v113, s4, v112')
    a.ins('s_mul_i32 s4, s3, 320')
    a.ins('v_add_u32 v114, s4, v112')

def direct_and_cb4_publish(sreg):
    pass

def publish_own(E, sreg):
    a.ins(f's_add_u32 s76, s70, s{sreg}')
    set_exec_lanes(16)
    a.ins(f'buffer_store_dwordx4 v[{E}:{E+3}], v115, s[64:67], s76 offen sc1')
    a.ins(f'buffer_store_dwordx4 v[{E+4}:{E+7}], v115, s[64:67], s76 offen offset:16 sc1')
    set_exec_lanes(64)

def publish_cb4(E, sreg):
    set_exec_lanes(16)
    a.lds(f'ds_write_b128 v116, v[{E}:{E+3}]')
    a.lds(f'ds_write_b128 v116, v[{E+4}:{E+7}] offset:16')
    set_exec_lanes(64)
    a.barrier()
    L0 = only_wave0_begin()
    for w in range(4):
        a.lds(f'ds_read_b128 v[{16+4*w}:{19+4*w}], v13 offset:{RED + w*512}')
    a.wait_lg_all()
    for w in range(1, 4):
        for e in range(4):
            a.ins(f'v_add_f32 v{16+e}, v{16+e}, v{16+4*w+e}')
    a.ins(f's_add_u32 s76, s70, s{sreg}')
    set_exec_lanes(32)
    a.ins('buffer_store_dwordx4 v[16:19], v13, s[64:67], s76 offen offset:2048 sc1')
    set_exec_lanes(64)
    only_wave0_end(L0)

def combine_records(n, first_reg, Mv, Lv, out):
    for k in range(n):
        a.ins(f'v_readlane_b32 s{40+k}, v{first_reg+4*k}, 48')
        a.ins(f'v_readlane_b32 s{48+k}, v{first_reg+4*k+1}, 48')
    a.ins(f'v_mov_b32 v{Mv}, s40')
    for k in range(1, n):
        a.ins(f'v_max_f32 v{Mv}, s{40+k}, v{Mv}')
    E = 100
    for k in range(n):
        a.ins(f'v_sub_f32 v{E+k}, s{40+k}, v{Mv}')
    for k in range(n):
        a.ins(f'v_exp_f32 v{E+k}, v{E+k}')
    a.ins(f'v_mul_f32 v{Lv}, s48, v{E}')
    for k in range(1, n):
        a.ins(f'v_fma_f32 v{Lv}, v{E+k}, s{48+k}, v{Lv}')
    for e in range(4):
        a.ins(f'v_mul_f32 v{out+e}, v{E}, v{first_reg+e}')
    for k in range(1, n):
        for e in range(4):
            a.ins(f'v_fma_f32 v{out+e}, v{E+k}, v{first_reg+4*k+e}, v{out+e}')

def combine_big(n, first_reg, Mv, Lv, out, E):
    a.ins(f'v_readlane_b32 s40, v{first_reg}, 48')
    a.ins(f'v_readlane_b32 s41, v{first_reg+4}, 48')
    a.ins(f'v_mov_b32 v{Mv}, s40')
    for k in range(1, n):
        if k + 1 < n:
            a.ins(f'v_readlane_b32 s{40+(k+1)%2}, v{first_reg+4*(k+1)}, 48')
        a.ins(f'v_max_f32 v{Mv}, s{40+k%2}, v{Mv}')
    a.ins(f'v_mov_b32 v{Lv}, 0')
    for e in range(4):
        a.ins(f'v_mov_b32 v{out+e}, 0')
    def rl(k):
        a.ins(f'v_readlane_b32 s{40+2*(k%2)}, v{first_reg+4*k}, 48')
        a.ins(f'v_readlane_b32 s{41+2*(k%2)}, v{first_reg+4*k+1}, 48')
    rl(0)
    for k in range(n):
        if k + 1 < n:
            rl(k + 1)
        e_ = E + k % 2
        a.ins(f'v_sub_f32 v{e_}, s{40+2*(k%2)}, v{Mv}')
        a.ins(f'v_exp_f32 v{e_}, v{e_}')
        a.ins(f'v_fma_f32 v{Lv}, v{e_}, s{41+2*(k%2)}, v{Lv}')
        for e in range(4):
            a.ins(f'v_fma_f32 v{out+e}, v{e_}, v{first_reg+4*k+e}, v{out+e}')

def chain_common_init():
    a.ins('s_lshl_b32 s4, s3, 6')
    a.ins('v_add_u32 v15, s4, v0')
    a.ins('v_lshlrev_b32 v15, 4, v15')
    for k in range(4):
        a.ins(f'v_mov_b32 v{16+k}, -1')
    L1 = newlab('Lst1')
    a.ins('s_cmp_ge_u32 s2, 12')
    a.ins(f's_cbranch_scc1 {L1}')
    a.ins('s_lshl_b32 s76, s2, 12')
    a.ins(f's_add_u32 s76, s76, {hex(Q_OFF)}')
    a.ins('buffer_store_dwordx4 v[16:19], v15, s[64:67], s76 offen sc1')
    a.ins('s_waitcnt vmcnt(0)')
    a.ins('s_barrier')
    set_flag(1)
    a.label(L1)
    a.fence_hazards()
    startup1()
    startup2a()
    L0 = only_wave0_begin()
    startup2b()
    only_wave0_end(L0)
    a.barrier()
    a.ins(f's_mul_i32 s4, s2, {ARM_PER}')
    for k in range(ARM_N):
        LS = newlab('Lsa')
        a.ins(f's_add_u32 s76, s4, {k*4096}')
        a.ins(f's_sub_u32 s5, s76, {hex(Q_OFF)}')
        a.ins('s_cmp_lt_u32 s5, 49152')
        a.ins(f's_cbranch_scc1 {LS}')
        a.ins('buffer_store_dwordx4 v[16:19], v15, s[64:67], s76 offen sc1')
        a.label(LS)
    a.ins('s_waitcnt vmcnt(0)')
    a.ins('s_barrier')
    set_flag(2)
    a.vm = []
    a.ins('s_lshl_b32 s4, s3, 6')
    a.ins('v_add_u32 v1, s4, v0')
    a.ins('v_lshlrev_b32 v15, 4, v1')
    a.ins('v_min_u32 v2, 59, v0')
    a.ins('s_mul_i32 s4, s3, 60')
    a.ins('v_add_u32 v2, s4, v2')
    a.ins('v_lshlrev_b32 v14, 4, v2')
    a.ins(f'v_add_u32 v14, {WL}, v14')
    a.ins('v_add_u32 v120, 61440, v14')
    a.ins('s_lshl_b32 s4, s3, 3')
    a.ins('v_add_u32 v8, s4, v0')
    a.ins('v_mul_u32_u24 v8, 2560, v8')
    a.ins('v_add_u32 v8, 2556, v8')
    a.ins('s_mul_i32 s4, s3, 20480')
    a.ins('v_lshlrev_b32 v13, 4, v0')
    a.ins('v_add_u32 v9, s4, v13')
    a.ins(f's_mul_i32 s4, s3, 5120')
    a.ins(f's_add_u32 s4, s4, {RED}')
    a.ins('v_add_u32 v10, s4, v13')
    a.ins('v_lshlrev_b32 v12, 3, v0')
    a.ins('s_lshl_b32 s4, s2, 2')
    a.ins('s_add_u32 s4, s4, s3')
    a.ins('s_lshl_b32 s77, s4, 9')
    a.ins(f's_add_u32 s77, s77, {hex(STAMP_OFF + 832*256)}')
    stamp(120, 77, 122)

def arm_arrive():
    a.wait_vm('arm')
    a.ins('s_barrier')
    L = only_wave0_begin()
    a.ins('v_mov_b32 v124, 0')
    a.ins('v_mov_b32 v125, 1')
    set_exec_lanes(1)
    a.vmem('global_atomic_add v124, v125, s[28:29] sc1', None)
    set_exec_lanes(64)
    a.label(L)
    a.fence_hazards()

def load_xres():
    L = only_wave0_begin()
    srd(96, 8, 9, 4 * 1280)
    a.ins('v_lshlrev_b32 v127, 2, v0')
    for b in range(4):
        smov(76, b * 1280)
        for k in range(5):
            a.ins(f'buffer_load_dword v{16+b*5+k}, v127, s[96:99], s76 offen offset:{k*256}')
    a.ins('s_waitcnt vmcnt(0)')
    for b in range(4):
        for k in range(5):
            r = 16 + b * 5 + k
            d = 40 + 2 * (b * 5 + k)
            a.ins(f'v_lshlrev_b32 v{d}, 16, v{r}')
            a.ins(f'v_and_b32 v{d+1}, 0xffff0000, v{r}')
            a.lds(f'ds_write_b64 v12, v[{d}:{d+1}] offset:{XRES + b*2560 + k*512}')
    only_wave0_end(L)


def gen_acu():
    a.label('L_acu')
    chain_common_init()
    mfma_consts()
    a.ins('s_mul_i32 s70, s2, 2560')
    a.ins('v_lshlrev_b32 v119, 2, v0')
    a.ins('s_mul_i32 s4, s3, 24576')
    a.ins(f's_add_u32 s4, s4, {WL}')
    a.ins('v_add_u32 v14, s4, v13')
    a.ins('s_and_b32 s4, s3, 1')
    a.ins('s_lshl_b32 s4, s4, 13')
    a.ins(f's_add_u32 s4, s4, {WL + 4*24576}')
    a.ins('v_add_u32 v120, s4, v13')
    a.ins('v_mul_u32_u24 v125, 10240, v4')
    a.ins('v_lshl_add_u32 v125, v3, 4, v125')
    a.ins('v_subrev_u32 v127, 6, v3')
    a.ins('v_min_u32 v127, 5, v127')
    a.ins('v_cmp_gt_u32 vcc, 6, v3')
    a.ins('v_cndmask_b32 v127, v127, v3, vcc')
    a.ins('v_mul_u32_u24 v126, 24576, v4')
    a.ins('v_lshl_add_u32 v126, v127, 4, v126')
    a.ins('s_mov_b64 s[88:89], vcc')
    a.ins('s_not_b64 s[90:91], vcc')
    a.ins('s_mul_i32 s4, s2, 245760')
    srd_off(96, 16, 17, 4, 245760)
    a.ins('s_mul_i32 s4, s2, 96')
    a.ins(f's_sub_u32 s5, {640*3072}, s4')
    srd_off(80, 20, 21, 4, 's5')
    srd_off(84, 22, 23, 4, 's5')
    a.ins('s_mul_i32 s4, s2, 61440')
    srd_off(92, 24, 25, 4, 61440)
    a.ins('s_lshl_b32 s40, s3, 8')
    a.ins('s_mul_i32 s41, s3, 40960')
    a.ins('s_add_u32 s41, s41, 1024')
    a.ins(f's_mul_i32 s42, s3, {160*3072}')
    def ld1280(srd_, sbase, const):
        def em(T, tag):
            for e in range(8):
                if e % 3 == 0:
                    a.ins(f's_add_u32 s76, s{sbase}, {const + (e // 3) * 3840}')
                off = f' offset:{(e % 3) * 1280}' if e % 3 else ''
                a.vmem(f'buffer_load_dwordx4 v[{T+4*e}:{T+4*e+3}], v125, s[{srd_}:{srd_+3}], s76 offen{off} nt', tag)
        return em
    def ldgu(i):
        def em(T, tag):
            for e in range(8):
                a.ins(f's_add_u32 s76, s42, {(32 * i + e) * 3072}')
                a.ins('s_mov_b64 exec, s[88:89]')
                a.vmem(f'buffer_load_dwordx4 v[{T+4*e}:{T+4*e+3}], v126, s[80:83], s76 offen nt', tag)
                a.ins('s_mov_b64 exec, s[90:91]')
                a.vmem(f'buffer_load_dwordx4 v[{T+4*e}:{T+4*e+3}], v126, s[84:87], s76 offen nt', tag)
            a.ins('s_mov_b64 exec, -1')
        return em
    blocks = []
    for ks in range(6):
        blocks.append((ld1280(96, 40, ks * 40960), ('a', 32 * ks)))
    blocks.append((ld1280(96, 41, 0), ('a', 192)))
    blocks.append((ld1280(96, 41, 4 * 40960), ('a', 224)))
    for i in range(4):
        blocks.append((ldgu(i), ('v', W1 + 32 * i)))
    blocks.append((ldgu(4), ('l', 14, 0)))
    blocks.append((ld1280(92, 40, 0), ('l', 14, 8192)))
    blocks.append((ld1280(92, 40, 40960), ('l', 14, 16384)))
    blocks.append((ld1280(92, 41, 0), ('l?', 120, 0)))
    prep_blocks(blocks)
    load_xres()
    a.ins('s_lshl_b32 s4, s3, 9')
    a.ins('v_lshlrev_b32 v115, 5, v3')
    a.ins('v_add_u32 v115, s4, v115')
    a.ins(f'v_add_u32 v116, {RED}, v115')
    a.ins('s_mul_i32 s4, s3, 384')
    a.ins('v_lshlrev_b32 v11, 5, v3')
    a.ins('v_add_u32 v11, s4, v11')
    a.ins(f'v_add_u32 v11, {RED}, v11')
    a.barrier()
    a.ins('v_lshlrev_b32 v117, 2, v0')
    a.ins('v_add_u32 v117, s3, v117')
    a.ins('v_min_u32 v117, 25, v117')
    a.ins(f'v_mul_u32_u24 v117, {REC}, v117')
    a.ins('v_add_u32 v117, 772, v117')
    a.ins(f's_mul_i32 s71, s2, {WPH*REC}')
    a.ins(f's_mul_i32 s72, s3, {REC}')
    a.ins('s_add_u32 s72, s72, s71')
    a.ins(f's_mul_i32 s4, s3, {REC}')
    a.ins(f's_add_u32 s4, s4, {RED}')
    a.ins('v_add_u32 v118, s4, v13')
    a.ins('v_add_u32 v117, s71, v117')
    wait_flags(2, 126)
    order = 0
    for i, (ly, b) in enumerate(CHAIN_ORDER):
        order |= (ly * 4 + b) << (4 * i)
    tab = 0
    for i, k in enumerate(CHAIN_ORDER):
        sg = CHAIN_SEGS[k]
        assert 2 <= len(sg) <= 3
        e = sg[0] | ((sg[1] if len(sg) > 2 else 0) << 5) | (sg[-1] << 10) | ((1 if len(sg) > 2 else 0) << 15)
        tab |= e << (16 * i)
    for w in range(4):
        smov(56 + w, (tab >> (32 * w)) & 0xffffffff)
    a.ins('s_mov_b32 s78, 0')
    a.label('L_aloop')
    a.fence_hazards()
    if True:
        a.ins('s_lshl_b32 s4, s78, 2')
        a.ins(f's_lshr_b32 s79, {hex(order)}, s4')
        a.ins('s_and_b32 s79, s79, 15')
        a.ins(f's_mul_i32 s81, s79, {2*AR_SZ}')
        a.ins(f's_add_u32 s81, s81, {hex(AR_OFF)}')
        a.ins(f's_add_u32 s82, s81, {AR_SZ}')
        a.ins('s_and_b32 s83, s79, 3')
        a.ins('s_mul_i32 s84, s83, 1280')
        a.ins('s_mul_i32 s4, s83, 2560')
        a.ins('v_add_u32 v121, s4, v12')
        a.ins('s_lshr_b32 s85, s79, 2')
        a.ins(f's_add_u32 s4, s4, {X1A}')
        a.ins('v_add_u32 v124, s4, v12')
        a.ins('s_lshl_b32 s88, s78, 6')
        stamp(0, 77, 122, 88)
        a.ins('s_and_b32 s4, s78, 3')
        a.ins('s_lshl_b32 s4, s4, 4')
        a.ins('s_cmp_lt_u32 s78, 4')
        a.ins('s_cselect_b64 s[60:61], s[56:57], s[58:59]')
        a.ins('s_lshr_b64 s[60:61], s[60:61], s4')
        for k in range(3):
            a.ins(f's_bfe_u32 s4, s60, {hex((5 << 16) | (5 * k))}')
            a.ins(f's_mul_i32 s{43+k}, s4, {PART_C}')
        a.ins('s_bfe_u32 s89, s60, 0x1000f')
        poll_indicator(117, 7, 45)
        stamp(1, 77, 122, 88)
        for k in (6, 7, 8, 9, 10, 11, 12, 13, 20):
            a.ins(f'v_mov_b32 v{16+4*k}, 0xf149f2ca')
            for e in range(1, 4):
                a.ins(f'v_mov_b32 v{16+4*k+e}, 0')
        set_exec_lanes(49)
        def ld1(k):
            sg, r = k // 7, k % 7
            a.ins(f's_add_u32 s76, s72, s{43+sg}')
            a.ins(f's_add_u32 s76, s76, {r * 4 * REC}')
            a.ins(f'buffer_load_dwordx4 v[{16+4*k}:{19+4*k}], v13, s[64:67], s76 offen sc1')
        def im():
            full = (1 << 21) - 1
            short = full & ~((1 << 6) | (1 << 13) | (1 << 20))
            a.ins('s_cmp_ge_u32 s3, 2')
            a.ins(f's_mov_b32 s91, {hex(full)}')
            a.ins(f's_cselect_b32 s91, {hex(short)}, s91')
            a.ins('s_cmp_eq_u32 s89, 0')
            a.ins(f's_cselect_b32 s4, {hex(0x7f << 7)}, 0')
            a.ins('s_andn2_b32 s91, s91, s4')
        gather_sel(21, ld1, lambda k: 16 + 4 * k, im)
        set_exec_lanes(64)
        combine_big(21, 16, 100, 101, 104, 102)
        a.ins('s_mov_b32 exec_lo, 0', dst=[], src=[])
        a.ins('s_mov_b32 exec_hi, 0x10000', dst=[], src=[])
        a.ins('v_mov_b32 v104, v100')
        a.ins('v_mov_b32 v105, v101')
        set_exec_lanes(64)
        for e in range(4):
            a.ins(f'v_mov_b32 v{52+e}, v{104+e}')
        set_exec_lanes(49)
        a.lds('ds_write_b128 v118, v[52:55]')
        set_exec_lanes(64)
        a.barrier()
        L0 = only_wave0_begin()
        for k in range(4):
            a.lds(f'ds_read_b128 v[{16+4*k}:{19+4*k}], v13 offset:{RED + k*REC}')
        a.wait_lg_all()
        combine_records(4, 16, 48, 49, 52)
        a.ins('v_rcp_f32 v50, v49')
        for e in range(4):
            a.ins(f'v_mul_f32 v{52+e}, v{52+e}, v50')
        a.ins('v_cvt_pk_bf16_f32 v56, v52, v53')
        a.ins('v_cvt_pk_bf16_f32 v57, v54, v55')
        a.ins('s_mov_b32 exec_lo, 0', dst=[], src=[])
        a.ins('s_mov_b32 exec_hi, 0xffff0000', dst=[], src=[])
        a.ins('v_mov_b32 v56, 0')
        a.ins('v_mov_b32 v57, 0')
        set_exec_lanes(64)
        a.lds(f'ds_write_b64 v12, v[56:57] offset:{XS}')
        only_wave0_end(L0)
        a.barrier()
        stamp(2, 77, 122, 88)
        for ks in range(6):
            xread(80 + 4 * ks, 112, 64 * ks)
        xread(104, 113, 0)
        xread(108, 113, 256)
        a.wait_lg_all()
        mfma_block(48, 104, 'a', 192, True)
        mfma_block(48, 108, 'a', 224, False)
        for ks in range(6):
            mfma_block(16, 80 + 4 * ks, 'a', 32 * ks, ks == 0)
        extract(48, 100)
        extract(16, 92)
        publish_own(92, 81)
        publish_cb4(100, 81)
        stamp(3, 77, 122, 88)
        LD = newlab('Ldf')
        a.ins('s_cmp_eq_u32 s85, 0')
        a.ins(f's_cbranch_scc1 {LD}')
        L0 = only_wave0_begin()
        a.ins('s_mul_i32 s90, s83, 2560')
        a.ins(f's_add_u32 s90, s90, {hex(X2_OFF)}')
        LX = newlab('Lx2'); LXD = newlab('Lx2d')
        smov(75, SPIN_MAX)
        a.label(LX)
        for k in range(5):
            a.ins(f'buffer_load_dwordx2 v[{16+2*k}:{17+2*k}], v12, s[64:67], s90 offen offset:{k*512} sc1')
        a.ins('s_waitcnt vmcnt(0)')
        check_regs(range(16, 26), 127)
        a.ins(f's_cbranch_vccz {LXD}')
        a.ins('s_sleep 2')
        a.ins('s_sub_u32 s75, s75, 1')
        a.ins('s_cmp_lg_u32 s75, 0')
        a.ins(f's_cbranch_scc1 {LX}')
        a.label(LXD)
        store_x(121, XRES)
        only_wave0_end(L0)
        a.label(LD)
        a.fence_hazards()
        gather_ar(81)
        stamp(4, 77, 122, 88)
        L0 = only_wave0_begin()
        ar_sum_wave0()
        residual(121, XRES)
        layernorm_to_xs()
        only_wave0_end(L0)
        a.barrier()
        stamp(5, 77, 122, 88)
        stage_block(48, 14, 0, 'st')
        for i in range(5):
            xread(80 + 4 * i, 114, 64 * i)
        a.wait_lg_all()
        for i in range(4):
            mfma_block(16, 80 + 4 * i, 'v', W1 + 32 * i, i == 0)
        mfma_block(16, 96, 'v', 48, False)
        stage_block(48, 14, 8192, 'st5')
        extract(16, 100)
        set_exec_lanes(12)
        a.lds('ds_write_b128 v11, v[100:103]')
        a.lds('ds_write_b128 v11, v[104:107] offset:16')
        set_exec_lanes(64)
        a.barrier()
        L0 = only_wave0_begin()
        for r in range(4):
            a.lds(f'ds_read_b32 v{16+r}, v119 offset:{RED + r*384}')
            a.lds(f'ds_read_b32 v{36+r}, v119 offset:{RED + r*384 + 192}')
        a.wait_lg_all()
        for r in range(1, 4):
            a.ins(f'v_add_f32 v16, v16, v{16+r}')
            a.ins(f'v_add_f32 v36, v36, v{36+r}')
        bf16r(16, 16); bf16r(36, 36)
        a.ins('v_mul_f32 v17, v16, v16')
        a.ins('v_mul_f32 v17, v17, v16')
        a.ins(f'v_mov_b32 v18, {hex(f32(0.044715))}')
        a.ins('v_fma_f32 v17, v17, v18, v16')
        a.ins(f'v_mul_f32 v17, {hex(f32(2*0.7978845608028654*math.log2(math.e)))}, v17')
        a.ins('v_exp_f32 v17, v17')
        a.ins('v_add_f32 v17, 1.0, v17')
        a.ins('v_rcp_f32 v17, v17')
        a.ins('v_fma_f32 v17, v17, -2.0, 1.0')
        a.ins('v_add_f32 v17, 1.0, v17')
        a.ins('v_mul_f32 v17, v17, v16')
        a.ins('v_mul_f32 v17, 0.5, v17')
        bf16r(17, 17)
        a.ins('v_mul_f32 v17, v17, v36')
        a.ins('v_cvt_pk_bf16_f32 v18, v17, 0')
        a.ins('v_mov_b32 v19, 0')
        a.ins('s_mov_b32 exec_lo, 0', dst=[], src=[])
        a.ins('s_mov_b32 exec_hi, 0xffff0000', dst=[], src=[])
        a.ins('v_mov_b32 v18, 0')
        set_exec_lanes(64)
        a.ins('v_lshlrev_b32 v20, 1, v0')
        a.lds(f'ds_write_b16 v20, v18 offset:{XS}')
        a.lds(f'ds_write_b16 v20, v19 offset:{XS + 128}')
        only_wave0_end(L0)
        a.barrier()
        stamp(6, 77, 122, 88)
        xread(80, 112, 0)
        xread(84, 112, 64)
        xread(88, 113, 0)
        a.wait_lg_all()
        mfma_block(16, 80, 'v', 48, True)
        stage_block(48, 14, 16384, 'st5b')
        a.wait_lg_all()
        mfma_block(16, 84, 'v', 48, False)
        stage_block(48, 120, 0, 'st5c')
        extract(16, 92)
        publish_own(92, 82)
        a.wait_lg_all()
        mfma_block(16, 88, 'v', 48, True)
        extract(16, 100)
        publish_cb4(100, 82)
        stamp(7, 77, 122, 88)
        a.barrier()
    stamp(9, 77, 122, 88)
    a.ins('s_add_u32 s78, s78, 1')
    a.ins('s_cmp_lt_u32 s78, 8')
    a.ins('s_cbranch_scc1 L_aloop')
    a.ins('s_waitcnt vmcnt(0)')
    a.ins('s_endpgm')

def wait_armed_chain():
    L = newlab('Lar'); D = newlab('Lad')
    smov(75, SPIN_MAX)
    a.ins('v_mov_b32 v126, 0')
    a.label(L)
    a.ins('global_load_dword v127, v126, s[28:29] sc1')
    a.ins('s_waitcnt vmcnt(0)')
    a.vm = []
    a.ins(f'v_cmp_gt_u32 vcc, {NCH}, v127')
    a.ins(f's_cbranch_vccz {D}')
    a.ins('s_sleep 2')
    a.ins('s_sub_u32 s75, s75, 1')
    a.ins('s_cmp_lg_u32 s75, 0')
    a.ins(f's_cbranch_scc1 {L}')
    a.label(D)
    a.fence_hazards()

def q_gemv_publish():
    stage_block(48, 14, 0, 'st')
    for i in range(5):
        xread(80 + 4 * i, 114, 64 * i)
    a.wait_lg_all()
    for cb in range(3):
        for i in range(4):
            kind, base = (('a', 128 * cb + 32 * i) if cb < 2 else ('v', W1 + 32 * i))
            mfma_block(16, 80 + 4 * i, kind, base, i == 0)
        a.wait_lg_all()
        mfma_block(16, 96, 'v', 48, False)
        if cb < 2:
            stage_block(48, 14, (cb + 1) * 8192, 'st')
        extract(16, 100)
        set_exec_lanes(16)
        a.lds(f'ds_write_b128 v115, v[100:103] offset:{cb*512}')
        a.lds(f'ds_write_b128 v115, v[104:107] offset:{cb*512+16}')
        set_exec_lanes(64)
    a.barrier()
    L0 = only_wave0_begin()
    a.ins('v_lshlrev_b32 v127, 1, v13')
    for r in range(4):
        a.lds(f'ds_read_b128 v[{16+8*r}:{19+8*r}], v127 offset:{RED + r*1536}')
        a.lds(f'ds_read_b128 v[{20+8*r}:{23+8*r}], v127 offset:{RED + r*1536 + 16}')
    a.wait_lg_all()
    for r in range(1, 4):
        for e in range(8):
            a.ins(f'v_add_f32 v{16+e}, v{16+e}, v{16+8*r+e}')
    for e in range(4):
        a.ins(f'v_cvt_pk_bf16_f32 v{60+e}, v{16+2*e}, v{17+2*e}')
    a.ins('s_add_u32 s76, s70, s86')
    set_exec_lanes(48)
    a.ins('buffer_store_dwordx4 v[60:63], v13, s[64:67], s76 offen sc1')
    set_exec_lanes(64)
    only_wave0_end(L0)
    a.barrier()

def gen_qcu():
    a.label('L_qcu')
    chain_common_init()
    a.ins(f's_sub_u32 s5, s2, {NA}')
    mfma_consts()
    a.ins('s_mul_i32 s70, s5, 768')
    a.ins(f's_sub_u32 s6, {640*12288}, s70')
    srd_off(96, 14, 15, 70, 's6')
    a.ins(f'v_mul_u32_u24 v126, {8*12288}, v4')
    a.ins('v_lshl_add_u32 v126, v3, 4, v126')
    a.ins('s_mul_i32 s4, s3, 24576')
    a.ins(f's_add_u32 s4, s4, {WL}')
    a.ins('v_add_u32 v14, s4, v13')
    a.ins(f's_mul_i32 s42, s3, {160*12288}')
    def ldq(i, cb):
        def em(T, tag):
            for e in range(8):
                a.ins(f's_add_u32 s76, s42, {(32 * i + e) * 12288 + cb * 256}')
                a.vmem(f'buffer_load_dwordx4 v[{T+4*e}:{T+4*e+3}], v126, s[96:99], s76 offen nt', tag)
        return em
    blocks = []
    for cb in range(3):
        for i in range(4):
            blocks.append((ldq(i, cb), ('a', 128 * cb + 32 * i) if cb < 2 else ('v', W1 + 32 * i)))
        blocks.append((ldq(4, cb), ('l', 14, cb * 8192)))
    prep_blocks(blocks)
    load_xres()
    a.ins('s_mul_i32 s4, s3, 1536')
    a.ins('v_lshlrev_b32 v115, 5, v3')
    a.ins('v_add_u32 v115, s4, v115')
    a.ins(f'v_add_u32 v115, {RED}, v115')
    a.barrier()
    wait_flags(2, 126)
    order = 0
    for i, (ly, b) in enumerate(CHAIN_ORDER):
        order |= (ly * 4 + b) << (4 * i)
    srd(92, 26, 27, 4 * 1280)
    a.ins('v_lshlrev_b32 v119, 2, v0')
    a.ins('s_mov_b32 s78, 0')
    a.label('L_qloop')
    a.fence_hazards()
    a.ins('s_lshl_b32 s4, s78, 2')
    a.ins(f's_lshr_b32 s79, {hex(order)}, s4')
    a.ins('s_and_b32 s79, s79, 15')
    a.ins('s_and_b32 s83, s79, 3')
    a.ins('s_lshr_b32 s85, s79, 2')
    a.ins('s_mul_i32 s84, s83, 1280')
    a.ins('s_mul_i32 s4, s83, 2560')
    a.ins('v_add_u32 v121, s4, v12')
    a.ins(f's_mul_i32 s86, s83, {32*384}')
    a.ins(f's_add_u32 s86, s86, {hex(Q_OFF + 4*32*384)}')
    a.ins(f's_mul_i32 s81, s79, {2*AR_SZ}')
    a.ins(f's_add_u32 s81, s81, {hex(AR_OFF)}')
    a.ins(f's_add_u32 s82, s81, {AR_SZ}')
    a.ins('s_lshl_b32 s88, s78, 6')
    stamp(0, 77, 122, 88)
    a.ins('s_cmp_eq_u32 s85, 0')
    a.ins('s_cbranch_scc1 L_qgo')
    a.ins(f's_cmp_lg_u32 s2, {NA}')
    a.ins('s_cbranch_scc1 L_qnext')
    a.label('L_qgo')
    a.fence_hazards()
    gather_ar(81)
    L0 = only_wave0_begin()
    ar_sum_wave0()
    residual(121, XRES)
    store_x(12, X1)
    only_wave0_end(L0)
    a.barrier()
    stamp(1, 77, 122, 88)
    gather_ar(82)
    stamp(2, 77, 122, 88)
    L0 = only_wave0_begin()
    ar_sum_wave0()
    residual(12, X1)
    store_x(121, XRES)
    LO = newlab('Lout'); LX = newlab('Lx2p')
    a.ins('s_cmp_eq_u32 s85, 0')
    a.ins(f's_cbranch_scc1 {LX}')
    for k in range(5):
        a.ins(f'v_cvt_pk_bf16_f32 v{32+k}, v{16+2*k}, v{17+2*k}')
        a.ins(f'buffer_store_dword v{32+k}, v119, s[92:95], s84 offen offset:{k*256}')
    a.ins(f's_branch {LO}')
    a.label(LX)
    a.ins(f's_cmp_lg_u32 s2, {NA}')
    a.ins(f's_cbranch_scc1 {LO}')
    a.ins('s_mul_i32 s90, s83, 2560')
    a.ins(f's_add_u32 s90, s90, {hex(X2_OFF)}')
    for k in range(5):
        a.ins(f'buffer_store_dwordx2 v[{16+2*k}:{17+2*k}], v12, s[64:67], s90 offen offset:{k*512} sc1')
    a.label(LO)
    a.fence_hazards()
    layernorm_to_xs()
    only_wave0_end(L0)
    a.barrier()
    stamp(3, 77, 122, 88)
    a.ins('s_cmp_lg_u32 s85, 0')
    a.ins('s_cbranch_scc1 L_qnext')
    q_gemv_publish()
    a.label('L_qnext')
    a.fence_hazards()
    stamp(4, 77, 122, 88)
    a.ins('s_add_u32 s78, s78, 1')
    a.ins('s_cmp_lt_u32 s78, 8')
    a.ins('s_cbranch_scc1 L_qloop')
    a.ins('s_waitcnt vmcnt(0)')
    a.ins('s_endpgm')

def main(outpath):
    hdr = open('cdna_kernels/' + NAME + '.s.ref').read().split('\n')
    top = [l for l in hdr if l.startswith(';') and '@launch' not in l]
    out = []
    out += top
    out.append('; @launch grid=(256,1,1) block=(256,1,1) lds=163840')
    out.append('.amdgcn_target "amdgcn-amd-amdhsa--gfx950"')
    out.append('.text')
    out.append(MACROS)
    out.append(f'.globl {KNAME}')
    out.append('.p2align 8')
    out.append(f'.type {KNAME},@function')
    out.append(f'{KNAME}:')
    a.ins('s_cmp_ge_u32 s2, 256')
    a.ins('s_cbranch_scc1 L_exit')
    a.ins('s_load_dwordx16 s[8:23], s[0:1], 0')
    a.ins('s_load_dwordx8 s[24:31], s[0:1], 64')
    a.ins('v_lshrrev_b32 v1, 6, v0')
    a.ins('v_and_b32 v0, 63, v0')
    a.ins('v_readfirstlane_b32 s3, v1')
    a.ins('s_waitcnt lgkmcnt(0)')
    srd(64, 30, 31, WS_SIZE)
    a.ins(f's_cmp_ge_u32 s2, {NCH}')
    a.ins('s_cbranch_scc0 L_chain')
    a.ins('s_branch L_stream')
    a.label('L_exit')
    a.ins('s_endpgm')
    a.label('L_chain')
    a.ins(f's_cmp_ge_u32 s2, {NA}')
    a.ins('s_cbranch_scc1 L_qcu')
    a.fence_hazards()
    gen_acu()
    a.hist = []; a.vm = []; a.lg = []
    a.fence_hazards()
    gen_qcu()
    a.hist = []; a.vm = []; a.lg = []
    a.fence_hazards()
    gen_stream()
    out.append(a.text())
    out.append('.section .rodata,"a"')
    out.append('.p2align 6')
    out.append(f'.amdhsa_kernel {KNAME}')
    out.append('  .amdhsa_next_free_vgpr 512')
    out.append('  .amdhsa_next_free_sgpr 102')
    out.append('  .amdhsa_accum_offset 256')
    out.append('  .amdhsa_group_segment_fixed_size 0')
    out.append('  .amdhsa_kernarg_size 96')
    out.append('  .amdhsa_user_sgpr_count 2')
    out.append('  .amdhsa_user_sgpr_kernarg_segment_ptr 1')
    out.append('  .amdhsa_system_sgpr_workgroup_id_x 1')
    out.append('.end_amdhsa_kernel')
    open(outpath, 'w').write('\n'.join(out) + '\n')
    print('instrs', a.ninstr, 'bytes', sum(len(x) + 1 for x in out))

if __name__ == '__main__':
    main(sys.argv[1] if len(sys.argv) > 1 else 'cdna_kernels/' + NAME + '.s')
```

```python
import struct, sys, math, os
from asmlib import *

NAME = 'interleave_layers__mha_block_cached__glu_gated_geglu__decode'
KNAME = NAME + '_kernel'

NA, NQ = 32, 16
NCH = NA + NQ
NST = 256 - NCH
WPH = NST * 4 // 32
REC = 784
PART_OFF = 0
PART_C = 32 * WPH * REC
NR = 21
NL = int(os.environ.get('NL', '4'))
LMODE = os.environ.get('LMODE', 'def')
NN = 40 - NR - NL
NA_HALF = (NN + 1) // 2
NT_ALL = 40
def _d_order():
    L = list(range(NR, NR + NL)); R = list(range(NR))
    if os.environ.get('DORD', '0') == '0' or NL <= 2:
        return L + R
    return L[:2] + R[:4] + L[2:] + R[4:]
NPOL = os.environ.get('NPOL', 'nt')
R_T = list(range(NR + NL)); D_T = _d_order(); N_T = list(range(NR + NL, NT_ALL)); NA_T = N_T[:NA_HALF]; NB_T = N_T[NA_HALF:]
if os.environ.get('SCH', '1') == '0':
    SCHED = [('A', 0, 0, R_T), ('N', 0, 0, N_T), ('N', 0, 1, N_T), ('N', 0, 2, NA_T),
             ('D', 1, 0, D_T), ('A', 0, 1, R_T), ('N', 0, 2, NB_T), ('N', 1, 0, N_T),
             ('D', 1, 1, D_T), ('A', 0, 2, R_T), ('N', 0, 3, N_T), ('N', 1, 1, NA_T),
             ('D', 1, 2, D_T), ('A', 0, 3, R_T), ('N', 1, 1, NB_T), ('N', 1, 2, N_T),
             ('D', 1, 3, D_T), ('N', 1, 3, N_T)]
else:
    SCHED = [('A', 0, 0, R_T), ('N', 0, 0, N_T), ('N', 0, 1, N_T), ('N', 0, 2, NA_T),
             ('D', 1, 0, D_T), ('A', 0, 1, R_T), ('N', 1, 0, N_T), ('N', 0, 2, NB_T),
             ('D', 1, 1, D_T), ('A', 0, 2, R_T), ('N', 1, 1, NA_T), ('N', 0, 3, N_T),
             ('D', 1, 2, D_T), ('A', 0, 3, R_T), ('N', 1, 1, NB_T), ('N', 1, 2, N_T),
             ('D', 1, 3, D_T), ('N', 1, 3, N_T)]
NSEG = len(SCHED)
_last = {}
for _i, (_t, _p, _b, _tl) in enumerate(SCHED):
    _last[(_p, _b)] = _i
CHAIN_ORDER = sorted(_last, key=lambda k: _last[k])
CHAIN_SEGS = {k: [i for i, (t, p, b, tl) in enumerate(SCHED) if (p, b) == k] for k in CHAIN_ORDER}
AR_OFF = ((NSEG * PART_C + 4095) // 4096) * 4096
AR_SZ = 32 * 2560
Q_OFF = AR_OFF + 16 * AR_SZ
X2_OFF = Q_OFF + 8 * 32 * 384
ARM_N = (X2_OFF + 4 * 2560 + 48 * 4096 - 1) // (48 * 4096)
COMM = ARM_N * 48 * 4096
assert Q_OFF % 4096 == 0
ARM_PER = COMM // NCH
BATCH_STRIDE = 32 * 8192 * 384
SPIN_MAX = 400000
import os
DIAG = int(os.environ.get('DIAG', '0'))
STAMP_OFF = COMM
WS_SIZE = COMM + (1 << 20 if DIAG else 0)

def f32(x):
    return struct.unpack('<I', struct.pack('<f', x))[0]

CSCALE = f32((192 ** -0.5) * math.log2(math.e))

a = Asm()
_lab = [0]
def newlab(p='L'):
    _lab[0] += 1
    return f'{p}{_lab[0]}'

MACROS = r'''
.macro QK2 ta, tb, q, s
  v_dot2_f32_bf16 v[\s+0], v[\ta+0], v[\q+0], 0
  v_dot2_f32_bf16 v[\s+1], v[\ta+4], v[\q+4], 0
  v_dot2_f32_bf16 v[\s+2], v[\ta+8], v[\q+8], 0
  v_dot2_f32_bf16 v[\s+3], v[\tb+0], v[\q+0], 0
  v_dot2_f32_bf16 v[\s+4], v[\tb+4], v[\q+4], 0
  v_dot2_f32_bf16 v[\s+5], v[\tb+8], v[\q+8], 0
  .irp k, 1, 2, 3
  v_dot2c_f32_bf16 v[\s+0], v[\ta+\k], v[\q+\k]
  v_dot2c_f32_bf16 v[\s+1], v[\ta+4+\k], v[\q+4+\k]
  v_dot2c_f32_bf16 v[\s+2], v[\ta+8+\k], v[\q+8+\k]
  v_dot2c_f32_bf16 v[\s+3], v[\tb+\k], v[\q+\k]
  v_dot2c_f32_bf16 v[\s+4], v[\tb+4+\k], v[\q+4+\k]
  v_dot2c_f32_bf16 v[\s+5], v[\tb+8+\k], v[\q+8+\k]
  .endr
.endm
.macro PV t, p, acc
  .irp k, 0, 1, 2, 3, 4, 5, 6, 7, 8, 9, 10, 11
  v_dot2c_f32_bf16 v[\acc+2*\k], v[\t+\k], v[\p]
  v_dot2c_f32_bf16 v[\acc+2*\k+1], v[\t+\k], v[\p+1]
  .endr
.endm
.macro ACR t, s
  .irp k, 0, 1, 2, 3, 4, 5, 6, 7, 8, 9, 10, 11
  v_accvgpr_read_b32 v[\t+\k], a[\s+\k]
  .endr
.endm
.macro LDT k, d, srd
  buffer_load_dwordx4 \k[\d:\d+3], v1, s[\srd:\srd+3], s76 offen nt
  buffer_load_dwordx4 \k[\d+4:\d+7], v1, s[\srd:\srd+3], s76 offen offset:128 nt
  buffer_load_dwordx4 \k[\d+8:\d+11], v1, s[\srd:\srd+3], s76 offen offset:256 nt
.endm
.macro LDC k, d, srd
  buffer_load_dwordx4 \k[\d:\d+3], v1, s[\srd:\srd+3], s76 offen
  buffer_load_dwordx4 \k[\d+4:\d+7], v1, s[\srd:\srd+3], s76 offen offset:128
  buffer_load_dwordx4 \k[\d+8:\d+11], v1, s[\srd:\srd+3], s76 offen offset:256
.endm
.macro RESC acc, al
  .irp k, 0, 1, 2, 3, 4, 5, 6, 7, 8, 9, 10, 11, 12, 13, 14, 15, 16, 17, 18, 19, 20, 21, 22, 23
  v_mul_f32 v[\acc+\k], v[\al], v[\acc+\k]
  .endr
.endm
.macro GV8 w, x, acc
  .irp k, 0, 1, 2, 3
  v_dot2c_f32_bf16 v[\acc+2*\k], v[\w+\k], v[\x]
  v_dot2c_f32_bf16 v[\acc+2*\k+1], v[\w+\k], v[\x+1]
  .endr
.endm
.macro AC4 t, s
  .irp k, 0, 1, 2, 3
  v_accvgpr_read_b32 v[\t+\k], a[\s+\k]
  .endr
.endm
'''

def m_qk2(ta, tb, q, s):
    a.mbegin(f'QK2 {ta}, {tb}, {q}, {s}')
    for i, (t, o) in enumerate([(ta, 0), (ta, 4), (ta, 8), (tb, 0), (tb, 4), (tb, 8)]):
        a.ins(f'v_dot2_f32_bf16 v{s+i}, v{t+o}, v{q+o}, 0')
    for k in (1, 2, 3):
        for i, (t, o) in enumerate([(ta, 0), (ta, 4), (ta, 8), (tb, 0), (tb, 4), (tb, 8)]):
            a.ins(f'v_dot2c_f32_bf16 v{s+i}, v{t+o+k}, v{q+o+k}')
    a.mend()

def m_pv(t, p, acc):
    a.mbegin(f'PV {t}, {p}, {acc}')
    for k in range(12):
        a.ins(f'v_dot2c_f32_bf16 v{acc+2*k}, v{t+k}, v{p}')
        a.ins(f'v_dot2c_f32_bf16 v{acc+2*k+1}, v{t+k}, v{p+1}')
    a.mend()

def m_acr(t, s):
    a.mbegin(f'ACR {t}, {s}')
    for k in range(12):
        a.ins(f'v_accvgpr_read_b32 v{t+k}, a{s+k}')
    a.mend()

def m_ldt(kind, d, srd, tag, pol='nt'):
    mac = {'nt': 'LDT', '': 'LDC'}.get(pol)
    if mac:
        a.mbegin(f'{mac} {kind}, {d}, {srd}')
    for i in range(3):
        off = f' offset:{i*128}' if i else ''
        a.vmem(f'buffer_load_dwordx4 {kind}[{d+4*i}:{d+4*i+3}], v1, s[{srd}:{srd+3}], s76 offen{off} {pol}', tag)
    if mac:
        a.mend()

def m_resc(acc, al):
    a.mbegin(f'RESC {acc}, {al}')
    for k in range(24):
        a.ins(f'v_mul_f32 v{acc+k}, v{al}, v{acc+k}')
    a.mend()

def m_gv8(w, x, acc):
    a.mbegin(f'GV8 {w}, {x}, {acc}')
    for k in range(4):
        a.ins(f'v_dot2c_f32_bf16 v{acc+2*k}, v{w+k}, v{x}')
        a.ins(f'v_dot2c_f32_bf16 v{acc+2*k+1}, v{w+k}, v{x+1}')
    a.mend()

def m_ac4(t, s):
    a.mbegin(f'AC4 {t}, {s}')
    for k in range(4):
        a.ins(f'v_accvgpr_read_b32 v{t+k}, a{s+k}')
    a.mend()

DPP = 'row_mask:0xf bank_mask:0xf'

def smov(s, val):
    val &= 0xffffffff
    a.ins(f's_mov_b32 s{s}, {val if val <= 64 else hex(val)}')

def srd(d, lo, hi, nrec):
    a.ins(f's_mov_b32 s{d}, s{lo}')
    a.ins(f's_and_b32 s{d+1}, s{hi}, 0xffff')
    if isinstance(nrec, int):
        smov(d + 2, nrec)
    else:
        a.ins(f's_mov_b32 s{d+2}, {nrec}')
    a.ins(f's_mov_b32 s{d+3}, 0x20000')

def srd_off(d, lo, hi, offs, nrec):
    a.ins(f's_add_u32 s{d}, s{lo}, s{offs}')
    a.ins(f's_addc_u32 s{d+1}, s{hi}, 0')
    a.ins(f's_and_b32 s{d+1}, s{d+1}, 0xffff')
    if isinstance(nrec, int):
        smov(d + 2, nrec)
    else:
        a.ins(f's_mov_b32 s{d+2}, {nrec}')
    a.ins(f's_mov_b32 s{d+3}, 0x20000')

def set_exec_lanes(n):
    if n >= 64:
        a.ins('s_mov_b64 exec, -1')
    elif n <= 32:
        a.ins(f's_mov_b32 exec_lo, {hex((1 << n) - 1)}', dst=[], src=[])
        a.ins('s_mov_b32 exec_hi, 0', dst=[], src=[])
    else:
        a.ins('s_mov_b32 exec_lo, -1', dst=[], src=[])
        a.ins(f's_mov_b32 exec_hi, {hex((1 << (n - 32)) - 1)}', dst=[], src=[])

def stamp(idx, base_s, vt, dyn=None):
    if not DIAG:
        return
    a.ins('s_memrealtime s[100:101]')
    a.ins('s_waitcnt lgkmcnt(0)')
    a.lg = []
    a.ins(f'v_mov_b32 v{vt}, s100')
    a.ins(f'v_mov_b32 v{vt+1}, 0')
    if dyn is None:
        a.ins(f's_add_u32 s101, s{base_s}, {idx*4}')
    else:
        a.ins(f's_add_u32 s101, s{base_s}, s{dyn}')
        a.ins(f's_add_u32 s101, s101, {idx*4}')
    a.vmem(f'buffer_store_dword v{vt}, v{vt+1}, s[64:67], s101 offen', 'stamp')

def flags_addr(va, stage):
    if stage == 1:
        a.ins(f'v_min_u32 v{va}, 11, v0')
        a.ins(f'v_lshlrev_b32 v{va}, 2, v{va}')
    else:
        a.ins(f'v_min_u32 v{va}, 23, v0')
        a.ins(f'v_lshlrev_b32 v{va}, 2, v{va}')
        a.ins(f'v_add_u32 v{va}, 128, v{va}')

def flags_check(vreg, stage):
    a.ins(f'v_cmp_ne_u32 vcc, {1 if stage == 1 else "0x10001"}, v{vreg}')

def wait_flags(stage, va=254, plain_first=True):
    L = newlab('Lar'); D = newlab('Lad')
    smov(75, SPIN_MAX)
    flags_addr(va, stage)
    if plain_first:
        a.ins(f'global_load_dword v{va+1}, v{va}, s[28:29]')
        a.ins('s_waitcnt vmcnt(0)')
        flags_check(va + 1, stage)
        a.ins(f's_cbranch_vccz {D}')
    a.label(L)
    a.ins(f'global_load_dword v{va+1}, v{va}, s[28:29] sc1')
    a.ins('s_waitcnt vmcnt(0)')
    a.vm = []
    flags_check(va + 1, stage)
    a.ins(f's_cbranch_vccz {D}')
    a.ins('s_sleep 8')
    a.ins('s_sub_u32 s75, s75, 1')
    a.ins('s_cmp_lg_u32 s75, 0')
    a.ins(f's_cbranch_scc1 {L}')
    a.label(D)
    a.fence_hazards()

def set_flag(stage):
    L = only_wave0_begin()
    if stage == 1:
        a.ins('s_lshl_b32 s4, s2, 2')
    else:
        a.ins('s_lshl_b32 s4, s2, 1')
        a.ins('s_add_u32 s4, s4, 128')
    a.ins('v_mov_b32 v150, s4')
    a.ins('v_mov_b32 v151, 1')
    set_exec_lanes(1)
    a.ins(f'global_store_{"dword" if stage == 1 else "short"} v150, v151, s[28:29] sc1')
    set_exec_lanes(64)
    a.label(L)
    a.fence_hazards()

SU_W = 56
SU_ACC = 96
SU_X = 226
SU_RED = 20480

def startup1():
    srd(96, 8, 9, 4 * 1280)
    a.ins('v_lshlrev_b32 v254, 2, v0')
    a.ins('s_mul_i32 s76, s3, 1280')
    for k in range(5):
        a.vmem(f'buffer_load_dword v{SU_X+k}, v254, s[96:99], s76 offen offset:{k*256}', 'sux')
    a.ins('s_mul_i32 s4, s2, 48')
    a.ins(f's_sub_u32 s5, {640*12288}, s4')
    srd_off(92, 14, 15, 4, 's5')
    a.ins('v_and_b32 v255, 15, v0')
    a.ins(f'v_mul_u32_u24 v255, {10*12288}, v255')
    a.ins('v_lshrrev_b32 v128, 4, v0')
    a.ins('v_min_u32 v128, 2, v128')
    a.ins('v_lshl_add_u32 v255, v128, 4, v255')
    a.ins(f's_mul_i32 s4, s3, {160*12288}')
    for i in range(10):
        a.ins(f's_add_u32 s76, s4, {i*12288}')
        a.vmem(f'buffer_load_dwordx4 v[{SU_W+4*i}:{SU_W+4*i+3}], v255, s[92:95], s76 offen', 'suw')

def startup2a(topup=None, st=False, after_x=None):
    X = SU_X
    a.wait_vm('sux')
    if after_x:
        after_x()
    if st: stamp(56, 78, 252)
    xs = X + 5
    for k in range(5):
        a.ins(f'v_lshlrev_b32 v{xs+2*k}, 16, v{X+k}')
        a.ins(f'v_and_b32 v{xs+2*k+1}, 0xffff0000, v{X+k}')
    A = SU_ACC
    t, u, mean, var = A, A + 1, A + 2, A + 3
    d0, q0, e0 = A + 4, A + 14, X + 15
    a.ins(f'v_add_f32 v{t}, v{xs}, v{xs+1}')
    for i in range(2, 10):
        a.ins(f'v_add_f32 v{t}, v{t}, v{xs+i}')
    wave_sum(t, u)
    a.ins(f'v_mul_f32 v{mean}, {hex(f32(1.0/640))}, v{t}')
    for i in range(10):
        a.ins(f'v_sub_f32 v{d0+i}, v{xs+i}, v{mean}')
    a.ins(f'v_mul_f32 v{t}, v{d0}, v{d0}')
    for i in range(1, 10):
        a.ins(f'v_fmac_f32 v{t}, v{d0+i}, v{d0+i}')
    wave_sum(t, u)
    a.ins(f'v_mul_f32 v{var}, {hex(f32(1.0/640))}, v{t}')
    bf16r(mean, mean)
    bf16r(var, var)
    a.ins(f'v_add_f32 v{var}, {hex(f32(1e-5))}, v{var}')
    bf16r(var, var)
    a.ins(f'v_sqrt_f32 v{var}, v{var}')
    bf16r(var, var)
    a.ins(f'v_rcp_f32 v{u}, v{var}')
    for i in range(10):
        a.ins(f'v_sub_f32 v{d0+i}, v{xs+i}, v{mean}')
    for i in range(10):
        bf16r(d0 + i, d0 + i)
    for i in range(10):
        a.ins(f'v_mul_f32 v{q0+i}, v{d0+i}, v{u}')
    for i in range(10):
        a.ins(f'v_fma_f32 v{e0+i}, -v{q0+i}, v{var}, v{d0+i}')
    for i in range(10):
        a.ins(f'v_fma_f32 v{q0+i}, v{e0+i}, v{u}, v{q0+i}')
    a.ins('s_mul_i32 s4, s3, 5120')
    a.ins('v_lshlrev_b32 v254, 4, v0')
    a.ins('v_add_u32 v254, s4, v254')
    r = A + 24
    for k in range(5):
        a.ins(f'v_cvt_pk_bf16_f32 v{r}, v{q0+2*k}, 0')
        a.ins(f'v_cvt_pk_bf16_f32 v{r+1}, 0, v{q0+2*k}')
        a.ins(f'v_cvt_pk_bf16_f32 v{r+2}, v{q0+2*k+1}, 0')
        a.ins(f'v_cvt_pk_bf16_f32 v{r+3}, 0, v{q0+2*k+1}')
        a.lds(f'ds_write_b128 v254, v[{r}:{r+3}] offset:{k*1024}')
        a.wait_lg_all()
    a.barrier()
    if st: stamp(57, 78, 252)
    a.ins('v_and_b32 v254, 15, v0')
    a.ins('v_mul_u32_u24 v254, 80, v254')
    a.ins('s_mul_i32 s4, s3, 1280')
    a.ins('v_add_u32 v254, s4, v254')
    for k in range(32):
        a.ins(f'v_mov_b32 v{SU_ACC+k}, 0')
    a.wait_vm('suw')
    if st: stamp(58, 78, 252)
    for b in range(4):
        for k in range(5):
            a.lds(f'ds_read_b128 v[{X+4*k}:{X+4*k+3}], v254 offset:{b*5120 + k*16}')
        a.wait_lg_all()
        for i in range(10):
            m_gv8(SU_W + 4 * i, X + 2 * i, SU_ACC + 8 * b)
    for pat in ('quad_perm:[1,0,3,2]', 'quad_perm:[2,3,0,1]', 'row_half_mirror', 'row_mirror'):
        for k in range(32):
            a.ins(f'v_add_f32_dpp v{SU_ACC+k}, v{SU_ACC+k}, v{SU_ACC+k} {pat} {DPP}')
    a.ins('v_lshrrev_b32 v254, 4, v0')
    a.ins('v_lshlrev_b32 v254, 7, v254')
    a.ins('s_mul_i32 s4, s3, 384')
    a.ins(f's_add_u32 s4, s4, {SU_RED}')
    a.ins('v_add_u32 v254, s4, v254')
    a.ins('s_mov_b32 exec_lo, 0x10001', dst=[], src=[])
    a.ins('s_mov_b32 exec_hi, 1', dst=[], src=[])
    for k in range(8):
        a.lds(f'ds_write_b128 v254, v[{SU_ACC+4*k}:{SU_ACC+4*k+3}] offset:{k*16}')
    set_exec_lanes(64)
    if topup:
        topup()
    if st: stamp(59, 78, 252)
    a.barrier()
    if st: stamp(60, 78, 252)

def startup2b(st=False):
    a.ins('v_mul_u32_u24 v254, 171, v0')
    a.ins('v_lshrrev_b32 v254, 9, v254')
    a.ins('v_mul_u32_u24 v255, 3, v254')
    a.ins('v_sub_u32 v255, v0, v255')
    a.ins('v_lshlrev_b32 v128, 7, v255')
    a.ins('v_lshl_add_u32 v128, v254, 5, v128')
    a.ins('v_and_b32 v128, 0x1ff, v128')
    for wv in range(4):
        a.lds(f'ds_read_b128 v[{SU_W+8*wv}:{SU_W+8*wv+3}], v128 offset:{SU_RED + wv*384}')
        a.lds(f'ds_read_b128 v[{SU_W+8*wv+4}:{SU_W+8*wv+7}], v128 offset:{SU_RED + wv*384 + 16}')
    a.wait_lg_all()
    for wv in range(1, 4):
        for e in range(8):
            a.ins(f'v_add_f32 v{SU_W+e}, v{SU_W+e}, v{SU_W+8*wv+e}')
    for e in range(4):
        a.ins(f'v_cvt_pk_bf16_f32 v{SU_ACC+e}, v{SU_W+2*e}, v{SU_W+2*e+1}')
    a.ins('v_mul_u32_u24 v254, 12288, v254')
    a.ins('v_lshl_add_u32 v254, v255, 4, v254')
    if st: stamp(61, 78, 250)
    wait_flags(1, 252)
    if st: stamp(62, 78, 250)
    a.ins('s_mul_i32 s76, s2, 48')
    a.ins(f's_add_u32 s76, s76, {hex(Q_OFF)}')
    set_exec_lanes(12)
    a.vmem(f'buffer_store_dwordx4 v[{SU_ACC}:{SU_ACC+3}], v254, s[64:67], s76 offen sc1', 'q1pub')
    set_exec_lanes(64)

RING = [8, 20, 32, 44, 56, 68]
T0, T1 = 56, 68
XRING = int(os.environ.get('XRING', '0'))
Q, QS = 80, 92
ST = 104
VSLOT = 130
NVS = 8
WK = 226

def srd_k(b): return 32 + 8 * b
def srd_v(b): return 36 + 8 * b

def r_storage(kind, t):
    if t >= NR:
        return ('c',)
    if kind == 'K':
        return ('a', 12 * t)
    if t < NVS:
        return ('v', VSLOT + 12 * t)
    return ('l', t - NVS)

def groups_of(tiles):
    return [tiles[i:i + 2] for i in range(0, len(tiles), 2)]

class Stream:
    def __init__(self):
        self.P = SCHED
        self.LQ = []
        for pi, (ty, ps, b, tiles) in enumerate(self.P):
            for grp in groups_of(tiles):
                for kind in ('K', 'V'):
                    for t in grp:
                        pol = 'nt'
                        if ty == 'D':
                            if r_storage(kind, t)[0] != 'c':
                                continue
                            dest = ('r', None)
                        elif ty == 'A':
                            stg = r_storage(kind, t)
                            dest = stg if stg[0] in 'av' else ('r', None)
                            if stg[0] == 'c' and LMODE == 'def':
                                pol = ''
                        else:
                            dest = ('r', None)
                            if ps == 0:
                                pol = NPOL
                        self.LQ.append({'pi': pi, 'kind': kind, 't': t, 'b': b, 'dest': dest, 'pol': pol})
        self.lqi = 0
        self.nissued = 0
        self.ring_free = [True] * 6
        self.ring_next = 0
        self.t_ok = False
        self.ded_free = {}
        self.d_done = set()
        self.cur_pi = 0
        self.loc = {}
        self.last_A = max(i for i, p in enumerate(self.P) if p[0] == 'A')
        self.all_ded = [r_storage(k, t) for t in R_T for k in 'KV' if r_storage(k, t)[0] in 'av']

    def ring_alloc(self, e=None):
        n = 4
        if XRING and e is not None and all(self.P[p][0] == 'N' for p in range(self.cur_pi, e['pi'] + 1)) \
                and e['pi'] != len(self.P) - 1 and self.t_ok:
            n = 6
        for s in range(n):
            if self.ring_free[s]:
                self.ring_free[s] = False
                return s
        return None

    def _issue_one(self, e):
        if e['dest'][0] == 'r':
            s = self.ring_alloc(e)
            if s is not None:
                kind, base = 'v', RING[s]
                self.loc[(e['pi'], e['kind'], e['t'])] = ('r', s)
            else:
                key = None
                if self.cur_pi > self.last_A and e['pi'] == len(self.P) - 1:
                    for k in self.all_ded:
                        if self.ded_free.get(k, True):
                            key = k
                            break
                if key is None:
                    return False
                self.ded_free[key] = False
                kind, base = key
                self.loc[(e['pi'], e['kind'], e['t'])] = ('x', key)
        else:
            key = e['dest']
            if not self.ded_free.get(key, True):
                return False
            self.ded_free[key] = False
            kind, base = key
            self.loc[(e['pi'], e['kind'], e['t'])] = key
        smov(76, e['t'] * 3072)
        sd = srd_k(e['b']) if e['kind'] == 'K' else srd_v(e['b'])
        m_ldt(kind, base, sd, ('T', e['pi'], e['kind'], e['t']), e['pol'])
        if LMODE == 'touch' and self.P[e['pi']][0] == 'A' and r_storage(e['kind'], e['t'])[0] == 'c':
            a.vmem(f'buffer_load_dword v249, v248, s[{sd}:{sd+3}], s76 offen sc1', 'touch')
        e['done'] = True
        self.nissued += 1
        return True

    def try_issue(self, cap=None, limit=None):
        if cap is None:
            cap = int(os.environ.get('CAP', '54'))
        while True:
            if len(a.vm) + 4 > cap:
                return
            if limit is not None and self.nissued >= limit:
                return
            cand = []
            seen = set()
            for i in range(self.lqi, len(self.LQ)):
                e = self.LQ[i]
                if e.get('done'):
                    continue
                c = 'r' if e['dest'][0] == 'r' else 'd'
                if c not in seen:
                    seen.add(c)
                    cand.append(e)
                if len(seen) == 2:
                    break
            ok = False
            for e in cand:
                if self._issue_one(e):
                    ok = True
                    break
            while self.lqi < len(self.LQ) and self.LQ[self.lqi].get('done'):
                self.lqi += 1
            if not ok:
                return

    def q_issue(self, ps, b):
        a.ins(f's_add_u32 s76, s72, {hex((ps * 4 + b) * 32 * 384)}')
        for i in range(3):
            off = f' offset:{i*128}' if i else ''
            a.vmem(f'buffer_load_dwordx4 v[{QS+4*i}:{QS+4*i+3}], v2, s[64:67], s76 offen{off} sc1', ('Q', ps, b))

    def q_check(self):
        w = WK
        a.ins(f'v_max3_u32 v{w}, v{QS}, v{QS+1}, v{QS+2}')
        for k in range(3, 12, 2):
            k2 = min(k + 1, 11)
            a.ins(f'v_max3_u32 v{w}, v{w}, v{QS+k}, v{QS+k2}')
        a.ins(f'v_cmp_eq_u32 vcc, -1, v{w}')

    def q_take(self, ps, b):
        a.wait_vm(('Q', ps, b))
        OK = newlab('Lqo'); RT = newlab('Lqr')
        self.q_check()
        a.ins(f's_cbranch_vccz {OK}')
        smov(75, SPIN_MAX)
        a.label(RT)
        a.ins('s_sleep 2')
        a.ins(f's_add_u32 s77, s72, {hex((ps * 4 + b) * 32 * 384)}')
        for i in range(3):
            off = f' offset:{i*128}' if i else ''
            a.ins(f'buffer_load_dwordx4 v[{QS+4*i}:{QS+4*i+3}], v2, s[64:67], s77 offen{off} sc1')
        a.ins('s_waitcnt vmcnt(0)')
        self.q_check()
        a.ins(f's_cbranch_vccz {OK}')
        a.ins('s_sub_u32 s75, s75, 1')
        a.ins('s_cmp_lg_u32 s75, 0')
        a.ins(f's_cbranch_scc1 {RT}')
        a.label(OK)
        for k in range(12):
            a.ins(f'v_mov_b32 v{Q+k}, v{QS+k}')

    def get_tile(self, pi, ty, kind, t, tmp):
        if ty == 'D' and r_storage(kind, t)[0] != 'c':
            stg = r_storage(kind, t)
            if stg[0] == 'a':
                m_acr(tmp, stg[1])
                self.ded_free[stg] = True
                return tmp, None
            if stg[0] == 'v':
                return stg[1], ('ded', stg)
            a.wait_lg(('L', pi, t))
            return tmp, None
        a.wait_vm(('T', pi, kind, t))
        loc = self.loc[(pi, kind, t)]
        if loc[0] == 'x':
            key = loc[1]
            if key[0] == 'a':
                m_acr(tmp, key[1])
                self.ded_free[key] = True
                return tmp, None
            return key[1], ('ded', key)
        if loc[0] == 'a':
            m_acr(tmp, loc[1])
            return tmp, None
        if loc[0] == 'v':
            return loc[1], None
        return RING[loc[1]], ('ring', loc[1])

    def touch(self, pi, ty, kind, t):
        if ty != 'A' or r_storage(kind, t)[0] != 'c':
            return
        b = self.P[pi][2]
        sd = srd_k(b) if kind == 'K' else srd_v(b)
        smov(76, t * 3072)
        a.vmem(f'buffer_load_dword v249, v248, s[{sd}:{sd+3}], s76 offen sc1', 'touch')

    def release(self, rel):
        if rel is None:
            return
        if rel[0] == 'ring':
            self.ring_free[rel[1]] = True
        else:
            self.ded_free[rel[1]] = True

    def lds_prefetch(self, pi, t, tmp):
        slot = t - NVS
        for i in range(3):
            a.lds(f'ds_read_b128 v[{tmp+4*i}:{tmp+4*i+3}], v3 offset:{slot*3072+i*1024}', ('L', pi, t))

    def group(self, pi, ty, grp, last_group):
        st = ST
        acc, m, l = st, st + 24, st + 25
        s = WK
        sa, sb = WK, WK + 3
        mn, cm, al = WK + 6, WK + 7, WK + 8
        pa, pb = WK + 9, WK + 10
        PA, PB = WK + 12, WK + 14
        two = len(grp) == 2
        ta, ra = self.get_tile(pi, ty, 'K', grp[0], T0)
        if two:
            tb, rb = self.get_tile(pi, ty, 'K', grp[1], T1)
            m_qk2(ta, tb, Q, s)
            self.release(ra); self.release(rb)
        else:
            for i, o in enumerate((0, 4, 8)):
                a.ins(f'v_dot2_f32_bf16 v{s+i}, v{ta+o}, v{Q+o}, 0')
            for k in (1, 2, 3):
                for i, o in enumerate((0, 4, 8)):
                    a.ins(f'v_dot2c_f32_bf16 v{s+i}, v{ta+o+k}, v{Q+o+k}')
            self.release(ra)
        if ty == 'D':
            for t, tmp in zip(grp, (T0, T1)):
                if r_storage('V', t)[0] == 'l':
                    self.lds_prefetch(pi, t, tmp)
        self.try_issue()
        a.ins(f'v_add_f32 v{sa}, v{s}, v{s+1}')
        a.ins(f'v_add_f32 v{sa}, v{sa}, v{s+2}')
        if two:
            a.ins(f'v_add_f32 v{sb}, v{s+3}, v{s+4}')
            a.ins(f'v_add_f32 v{sb}, v{sb}, v{s+5}')
        for pat in ('quad_perm:[1,0,3,2]', 'quad_perm:[2,3,0,1]', 'row_half_mirror'):
            a.ins(f'v_add_f32_dpp v{sa}, v{sa}, v{sa} {pat} {DPP}')
            if two:
                a.ins(f'v_add_f32_dpp v{sb}, v{sb}, v{sb} {pat} {DPP}')
        if grp[-1] == NT_ALL - 1:
            x = sb if two else sa
            a.ins(f'v_add_f32 v{x}, s{80+self.P[pi][2]}, v{x}')
        if two:
            a.ins(f'v_max3_f32 v{mn}, v{m}, v{sa}, v{sb}')
        else:
            a.ins(f'v_max_f32 v{mn}, v{m}, v{sa}')
        a.ins(f'v_cmp_gt_f32 vcc, v{mn}, v{m}')
        SK = newlab('Lsk')
        a.ins(f's_cbranch_vccz {SK}')
        a.ins(f'v_sub_f32 v{al}, v{m}, v{mn}')
        a.ins(f'v_mul_f32 v{al}, s74, v{al}')
        a.ins(f'v_exp_f32 v{al}, v{al}')
        a.ins(f'v_mov_b32 v{m}, v{mn}')
        m_resc(acc, al)
        a.ins(f'v_mul_f32 v{l}, v{al}, v{l}')
        a.label(SK)
        a.ins(f'v_mul_f32 v{cm}, s74, v{m}')
        a.ins(f'v_fma_f32 v{pa}, v{sa}, s74, -v{cm}')
        if two:
            a.ins(f'v_fma_f32 v{pb}, v{sb}, s74, -v{cm}')
        a.ins(f'v_exp_f32 v{pa}, v{pa}')
        if two:
            a.ins(f'v_exp_f32 v{pb}, v{pb}')
        a.ins(f'v_cvt_pk_bf16_f32 v{PA}, v{pa}, 0')
        a.ins(f'v_cvt_pk_bf16_f32 v{PA+1}, 0, v{pa}')
        if two:
            a.ins(f'v_cvt_pk_bf16_f32 v{PB}, v{pb}, 0')
            a.ins(f'v_cvt_pk_bf16_f32 v{PB+1}, 0, v{pb}')
        a.ins(f'v_add_f32 v{l}, v{l}, v{PA+1}')
        if two:
            a.ins(f'v_add_f32 v{l}, v{l}, v{PB+1}')
        for (t, P, tmp) in list(zip(grp, (PA, PB), (T0, T1))):
            tv, rv = self.get_tile(pi, ty, 'V', t, tmp)
            m_pv(tv, P, acc)
            if ty == 'A' and r_storage('V', t)[0] == 'l':
                slot = t - NVS
                for i in range(3):
                    a.lds(f'ds_write_b128 v3, v[{tv+4*i}:{tv+4*i+3}] offset:{slot*3072+i*1024}', ('W', pi, t))
            self.release(rv)
            self.try_issue()

    def publish(self, st, c):
        acc, m, l = st, st + 24, st + 25
        M, u, sc = WK, WK + 1, WK + 2
        a.ins(f'v_max_f32_dpp v{M}, v{m}, v{m} row_ror:8 {DPP}')
        a.ins(f'v_mov_b32 v{u}, v{M}')
        a.ins(f'v_permlane16_swap_b32 v{M}, v{u}')
        a.ins(f'v_max_f32 v{M}, v{M}, v{u}')
        a.ins(f'v_mov_b32 v{u}, v{M}')
        a.ins(f'v_permlane32_swap_b32 v{M}, v{u}')
        a.ins(f'v_max_f32 v{M}, v{M}, v{u}')
        a.ins(f'v_sub_f32 v{sc}, v{m}, v{M}')
        a.ins(f'v_mul_f32 v{sc}, s74, v{sc}')
        a.ins(f'v_exp_f32 v{sc}, v{sc}')
        a.ins(f'v_mul_f32 v{M}, s74, v{M}')
        m_resc(acc, sc)
        a.ins(f'v_mul_f32 v{l}, v{sc}, v{l}')
        a.ins(f'v_add_f32_dpp v{l}, v{l}, v{l} row_ror:8 {DPP}')
        a.ins(f'v_mov_b32 v{u}, v{l}')
        a.ins(f'v_permlane16_swap_b32 v{l}, v{u}')
        a.ins(f'v_add_f32 v{l}, v{l}, v{u}')
        a.ins(f'v_mov_b32 v{u}, v{l}')
        a.ins(f'v_permlane32_swap_b32 v{l}, v{u}')
        a.ins(f'v_add_f32 v{l}, v{l}, v{u}')
        for k in range(12):
            a.ins(f'v_permlane32_swap_b32 v{acc+k}, v{acc+k+12}')
        for k in range(12):
            a.ins(f'v_add_f32 v{acc+k}, v{acc+k}, v{acc+k+12}')
        for k in range(6):
            a.ins(f'v_permlane16_swap_b32 v{acc+k}, v{acc+k+6}')
        for k in range(6):
            a.ins(f'v_add_f32 v{acc+k}, v{acc+k}, v{acc+k+6}')
        for k in range(6):
            a.ins(f'v_add_f32_dpp v{acc+k}, v{acc+k}, v{acc+k} row_ror:8 {DPP}')
        t1, t2 = WK + 3, WK + 4
        for k in range(6):
            a.ins(f'v_add_u32 v{t1}, {k}, v7')
            a.ins(f'v_lshrrev_b32 v{t2}, 3, v{t1}')
            a.ins(f'v_and_b32 v{t1}, 7, v{t1}')
            a.ins(f'v_lshlrev_b32 v{t2}, 6, v{t2}')
            a.ins(f'v_add_u32 v{t1}, v{t1}, v{t2}')
            a.ins(f'v_lshl_add_u32 v{t1}, v{t1}, 2, v4')
            a.lds(f'ds_write_b32 v{t1}, v{acc+k}')
        z = WK + 8
        a.ins(f'v_mov_b32 v{z}, v{M}')
        a.ins(f'v_mov_b32 v{z+1}, v{l}')
        a.ins(f'v_mov_b32 v{z+2}, 0')
        a.ins(f'v_mov_b32 v{z+3}, 0')
        a.ins(f'v_and_b32 v{t1}, 0xffffff1f, v4')
        a.lds(f'ds_write_b128 v{t1}, v[{z}:{z+3}] offset:768')
        a.wait_lg_all()
        a.lds(f'ds_read_b128 v[{z}:{z+3}], v5')
        a.wait_lg_all()
        a.ins(f's_add_u32 s76, s73, {hex(c * PART_C)}')
        set_exec_lanes(49)
        a.vmem(f'buffer_store_dwordx4 v[{z}:{z+3}], v6, s[64:67], s76 offen sc1', ('P', c))
        set_exec_lanes(64)

    def run(self):
        P = self.P
        stamp(0, 78, 252)
        SCAP = int(os.environ.get('SCAP', '24'))
        def fill(n_more):
            done = 0
            while done < n_more:
                before = self.nissued
                tags = [t for t in a.vm if isinstance(t, tuple) and t[0] == 'T']
                if len(tags) + 3 > SCAP:
                    a.wait_vm(tags[2])
                self.try_issue(cap=len(a.vm) + 4)
                if self.nissued == before:
                    break
                done += self.nissued - before
        def snapshot():
            return (self.lqi, self.nissued, list(self.ring_free), self.ring_next, dict(self.ded_free), dict(self.loc), list(a.vm), [e.get('done', False) for e in self.LQ])
        def restore(sn):
            self.lqi, self.nissued = sn[0], sn[1]
            self.ring_free, self.ring_next, self.ded_free, self.loc, a.vm = list(sn[2]), sn[3], dict(sn[4]), dict(sn[5]), list(sn[6])
            for e, d in zip(self.LQ, sn[7]):
                e['done'] = d
        FLAG_LDS = 3 * 40960 + 39936 + 1016
        a.ins(f'v_mov_b32 v250, {FLAG_LDS}')
        a.ins('v_mov_b32 v251, 0')
        a.lds('ds_write_b32 v250, v251')
        startup2a(after_x=lambda: self.try_issue(cap=len(a.vm) + SCAP), st=True)
        sv = list(a.vm)
        L0 = only_wave0_begin()
        startup2b(st=True)
        a.ins(f'v_mov_b32 v250, {FLAG_LDS}')
        a.ins('v_mov_b32 v251, 1')
        a.lds('ds_write_b32 v250, v251')
        only_wave0_end(L0)
        a.vm = sv
        fill(100)
        LF = newlab('Llf'); LD = newlab('Lld')
        smov(75, SPIN_MAX)
        a.ins(f'v_mov_b32 v250, {FLAG_LDS}')
        a.label(LF)
        a.ins('ds_read_b32 v251, v250')
        a.ins('s_waitcnt lgkmcnt(0)')
        a.ins('v_cmp_ne_u32 vcc, 1, v251')
        a.ins(f's_cbranch_vccz {LD}')
        a.ins('s_sleep 1')
        a.ins('s_sub_u32 s75, s75, 1')
        a.ins('s_cmp_lg_u32 s75, 0')
        a.ins(f's_cbranch_scc1 {LF}')
        a.label(LD)
        a.fence_hazards()
        stamp(1, 78, 252)
        a.ins('v_min_u32 v248, 23, v0')
        a.ins('v_lshlrev_b32 v248, 7, v248')
        self.q_issue(P[0][1], P[0][2])
        for pi, (ty, ps, b, tiles) in enumerate(P):
            a.comment(f'---- phase {pi}: {ty} pass{ps} b{b}')
            self.cur_pi = pi
            self.t_ok = (ty == 'N')
            assert ty == 'N' or (self.ring_free[4] and self.ring_free[5])
            stamp(2 + 3 * pi, 78, 252)
            self.q_take(ps, b)
            stamp(3 + 3 * pi, 78, 252)
            for k in range(24):
                a.ins(f'v_mov_b32 v{ST+k}, 0')
            a.ins(f'v_mov_b32 v{ST+24}, 0xf149f2ca')
            a.ins(f'v_mov_b32 v{ST+25}, 0')
            gs = groups_of(tiles)
            for g, grp in enumerate(gs):
                qlead = int(os.environ.get('QLEAD', '3')) if (pi + 1 < len(P) and P[pi + 1][0] == 'D') else 3
                if g == len(gs) - qlead and pi + 1 < len(P):
                    self.q_issue(P[pi + 1][1], P[pi + 1][2])
                if g == len(gs) - 4 and pi == 0:
                    flags_addr(250, 2)
                    a.vmem('global_load_dword v251, v250, s[28:29]', 'fl2')
                self.group(pi, ty, grp, g == len(gs) - 1)
                if ty == 'D' and g >= int(os.environ.get('DPOP', '7')):
                    tags = [t for t in a.vm if isinstance(t, tuple) and t[0] == 'T']
                    if len(a.vm) + 4 > int(os.environ.get('CAP', '54')) and len(tags) >= 12:
                        a.wait_vm(tags[5])
                        self.try_issue()
            if pi == 0:
                a.wait_vm('fl2')
                FO = newlab('Lfo')
                flags_check(251, 2)
                a.ins(f's_cbranch_vccz {FO}')
                sv = list(a.vm)
                wait_flags(2, 250, plain_first=False)
                a.vm = sv
                a.label(FO)
                a.fence_hazards()
            self.publish(ST, pi)
            stamp(4 + 3 * pi, 78, 252)
            self.try_issue()
        a.ins('s_waitcnt vmcnt(0)')
        a.ins('s_endpgm')

def gen_stream():
    a.label('L_stream')
    startup1()
    a.ins(f's_sub_u32 s4, s2, {NCH}')
    a.ins('s_lshl_b32 s4, s4, 2')
    a.ins('s_add_u32 s4, s4, s3')
    a.ins('s_mul_i32 s5, s4, 2521')
    a.ins('s_lshr_b32 s5, s5, 16')
    a.ins(f's_mul_i32 s6, s5, {WPH}')
    a.ins('s_sub_u32 s6, s4, s6')
    ROT = int(os.environ.get('ROT', '1'))
    a.ins('s_mul_i32 s70, s5, 3145728')
    for b in range(4):
        al = ((26 - 7 * b) % 26) if ROT else 0
        if al + 10 <= 26:
            a.ins(f's_sub_i32 s7, s6, {al}')
            a.ins('s_max_i32 s7, s7, 0')
            a.ins('s_min_i32 s7, s7, 10')
            a.ins(f's_sub_u32 s68, s6, {al}')
            a.ins('s_cmp_lt_u32 s68, 10')
        else:
            wr = al + 10 - 26
            a.ins(f's_min_u32 s7, s6, {wr}')
            a.ins(f's_sub_i32 s68, s6, {al}')
            a.ins('s_max_i32 s68, s68, 0')
            a.ins('s_add_u32 s7, s7, s68')
            a.ins(f's_sub_u32 s68, s6, {wr}')
            a.ins(f's_cmp_ge_u32 s68, {al - wr}')
        a.ins('s_cselect_b32 s68, 40, 39')
        a.ins(f's_cselect_b32 s{80+b}, 0, 0xff800000')
        a.ins('s_mul_i32 s68, s68, 3072')
        a.ins('s_mul_i32 s71, s6, 39')
        a.ins('s_add_u32 s7, s7, s71')
        a.ins('s_mul_i32 s71, s7, 3072')
        a.ins('s_add_u32 s71, s71, s70')
        a.ins(f's_add_u32 s71, s71, {hex(b * BATCH_STRIDE)}')
        srd_off(srd_k(b), 10, 11, 71, 's68')
        srd_off(srd_v(b), 12, 13, 71, 's68')
    a.ins('s_mul_i32 s72, s5, 384')
    a.ins(f's_add_u32 s72, s72, {hex(Q_OFF)}')
    a.ins(f's_mul_i32 s73, s4, {REC}')
    smov(74, CSCALE)
    a.ins('s_lshl_b32 s78, s4, 8')
    a.ins(f's_add_u32 s78, s78, {hex(STAMP_OFF)}')
    a.ins('v_lshrrev_b32 v1, 3, v0')
    a.ins('v_mul_u32_u24 v1, 384, v1')
    a.ins('v_and_b32 v2, 7, v0')
    a.ins('v_lshlrev_b32 v2, 4, v2')
    a.ins('v_add_u32 v1, v1, v2')
    a.ins('s_mul_i32 s71, s3, 40960')
    a.ins('v_lshlrev_b32 v6, 4, v0')
    a.ins('v_add_u32 v3, s71, v6')
    a.ins('s_add_u32 s71, s71, 39936')
    a.ins('v_add_u32 v5, s71, v6')
    a.ins('v_lshlrev_b32 v4, 1, v2')
    a.ins('v_add_u32 v4, s71, v4')
    a.ins('v_bfe_u32 v7, v0, 4, 1')
    a.ins('v_mul_u32_u24 v7, 6, v7')
    a.ins('v_bfe_u32 v254, v0, 5, 1')
    a.ins('v_mul_u32_u24 v254, 12, v254')
    a.ins('v_add_u32 v7, v7, v254')
    Stream().run()

XS = 0
RED = 5120
XRES = 25600
X1 = 35840
WL = 38912
X1A = 100352
W1 = 128

def vm_auto(text):
    if len(a.vm) >= 60:
        a.ins('s_waitcnt vmcnt(30)')
        a.vm = a.vm[-30:]
    a.vmem(text, None)

def wave_sum(t, u):
    for pat in ('quad_perm:[1,0,3,2]', 'quad_perm:[2,3,0,1]', 'row_half_mirror', 'row_mirror'):
        a.ins(f'v_add_f32_dpp v{t}, v{t}, v{t} {pat} {DPP}')
    a.ins(f'v_mov_b32 v{u}, v{t}')
    a.ins(f'v_permlane16_swap_b32 v{t}, v{u}')
    a.ins(f'v_add_f32 v{t}, v{t}, v{u}')
    a.ins(f'v_mov_b32 v{u}, v{t}')
    a.ins(f'v_permlane32_swap_b32 v{t}, v{u}')
    a.ins(f'v_add_f32 v{t}, v{t}, v{u}')

def bf16r(d, s):
    a.ins(f'v_cvt_pk_bf16_f32 v{d}, 0, v{s}')

def poll_indicator(voff, nl, sreg):
    L = newlab('Lpi'); D = newlab('Lpd')
    smov(75, SPIN_MAX)
    set_exec_lanes(nl)
    a.label(L)
    a.ins(f'buffer_load_dword v127, v{voff}, s[64:67], s{sreg} offen sc1')
    a.ins('s_waitcnt vmcnt(0)')
    if os.environ.get('POLL', 'any') == 'any':
        a.ins('v_cmp_ne_u32 vcc, -1, v127')
        a.ins(f's_cbranch_vccnz {D}')
    else:
        a.ins('v_cmp_eq_u32 vcc, -1, v127')
        a.ins(f's_cbranch_vccz {D}')
    a.ins(f's_sleep {os.environ.get("PSLEEP", "3")}')
    a.ins('s_sub_u32 s75, s75, 1')
    a.ins('s_cmp_lg_u32 s75, 0')
    a.ins(f's_cbranch_scc1 {L}')
    a.label(D)
    set_exec_lanes(64)
    a.vm = []

def gather_sel(n, emit_load, reg_of, init_mask=None):
    L = newlab('Lgs'); D = newlab('Lgsd')
    if init_mask is None:
        smov(91, (1 << n) - 1)
    else:
        init_mask()
    smov(75, SPIN_MAX)
    a.label(L)
    for i in range(n):
        K = newlab('Lgk')
        a.ins(f's_bitcmp1_b32 s91, {i}')
        a.ins(f's_cbranch_scc0 {K}')
        emit_load(i)
        a.label(K)
    a.ins('s_waitcnt vmcnt(0)')
    for i in range(n):
        K = newlab('Lgc')
        r = reg_of(i)
        a.ins(f's_bitcmp1_b32 s91, {i}')
        a.ins(f's_cbranch_scc0 {K}')
        a.ins(f'v_max3_u32 v127, v{r}, v{r+1}, v{r+2}')
        a.ins(f'v_max_u32 v127, v127, v{r+3}')
        a.ins('v_cmp_eq_u32 vcc, -1, v127')
        a.ins(f's_cbranch_vccnz {K}')
        a.ins(f's_bitset0_b32 s91, {i}')
        a.label(K)
    a.ins('s_cmp_eq_u32 s91, 0')
    a.ins(f's_cbranch_scc1 {D}')
    a.ins('s_sub_u32 s75, s75, 1')
    a.ins('s_cmp_lg_u32 s75, 0')
    a.ins(f's_cbranch_scc1 {L}')
    a.label(D)
    a.fence_hazards()

def check_regs(regs, w):
    regs = list(regs)
    a.ins(f'v_max3_u32 v{w}, v{regs[0]}, v{regs[1]}, v{regs[2]}')
    k = 3
    while k < len(regs):
        k2 = min(k + 1, len(regs) - 1)
        a.ins(f'v_max3_u32 v{w}, v{w}, v{regs[k]}, v{regs[k2]}')
        k += 2
    a.ins(f'v_cmp_eq_u32 vcc, -1, v{w}')

def gather_ar(sreg):
    poll_indicator(8, 8, sreg)
    def ld(i):
        a.ins(f's_add_u32 s76, s{sreg}, {(i // 4) * 4096}')
        off = f' offset:{(i % 4) * 1024}' if i % 4 else ''
        a.ins(f'buffer_load_dwordx4 v[{16+4*i}:{19+4*i}], v9, s[64:67], s76 offen{off} sc1')
    gather_sel(20, ld, lambda i: 16 + 4 * i)
    for grp in range(5):
        for k in range(1, 4):
            for e in range(4):
                a.ins(f'v_add_f32 v{16+4*grp+e}, v{16+4*grp+e}, v{16+4*(grp+5*k)+e}')
    for grp in range(5):
        a.lds(f'ds_write_b128 v10, v[{16+4*grp}:{19+4*grp}] offset:{grp*1024}')
    a.barrier()

def ar_sum_wave0():
    for wv in range(8):
        for k in range(5):
            r = 32 + (wv * 5 + k) * 2
            a.lds(f'ds_read_b64 v[{r}:{r+1}], v12 offset:{RED + wv*2560 + k*512}')
    a.wait_lg_all()
    for k in range(5):
        for e in range(2):
            d = 16 + 2 * k + e
            a.ins(f'v_add_f32 v{d}, v{32+2*k+e}, v{32+(5+k)*2+e}')
    for p in range(2, 8):
        for k in range(5):
            for e in range(2):
                d = 16 + 2 * k + e
                a.ins(f'v_add_f32 v{d}, v{d}, v{32+(5*p+k)*2+e}')

def residual(areg, src_off):
    for k in range(5):
        a.lds(f'ds_read_b64 v[{32+2*k}:{33+2*k}], v{areg} offset:{src_off + k*512}')
    for i in range(10):
        bf16r(16 + i, 16 + i)
    a.wait_lg_all()
    for i in range(10):
        a.ins(f'v_add_f32 v{16+i}, v{16+i}, v{32+i}')
    for i in range(10):
        bf16r(16 + i, 16 + i)

def store_x(areg, dst_off):
    for k in range(5):
        a.lds(f'ds_write_b64 v{areg}, v[{16+2*k}:{17+2*k}] offset:{dst_off + k*512}')

def layernorm_to_xs():
    t, u, mean, var = 32, 33, 34, 35
    a.ins(f'v_add_f32 v{t}, v16, v17')
    for i in range(2, 10):
        a.ins(f'v_add_f32 v{t}, v{t}, v{16+i}')
    wave_sum(t, u)
    a.ins(f'v_mul_f32 v{mean}, {hex(f32(1.0/640))}, v{t}')
    for i in range(10):
        a.ins(f'v_sub_f32 v{40+i}, v{16+i}, v{mean}')
    a.ins(f'v_mul_f32 v{t}, v40, v40')
    for i in range(1, 10):
        a.ins(f'v_fmac_f32 v{t}, v{40+i}, v{40+i}')
    wave_sum(t, u)
    a.ins(f'v_mul_f32 v{var}, {hex(f32(1.0/640))}, v{t}')
    bf16r(mean, mean)
    bf16r(var, var)
    a.ins(f'v_add_f32 v{var}, {hex(f32(1e-5))}, v{var}')
    bf16r(var, var)
    a.ins(f'v_sqrt_f32 v{var}, v{var}')
    bf16r(var, var)
    a.ins(f'v_rcp_f32 v{u}, v{var}')
    for i in range(10):
        a.ins(f'v_sub_f32 v{40+i}, v{16+i}, v{mean}')
    for i in range(10):
        bf16r(40 + i, 40 + i)
    for i in range(10):
        a.ins(f'v_mul_f32 v{50+i}, v{40+i}, v{u}')
    for i in range(10):
        a.ins(f'v_fma_f32 v{60+i}, -v{50+i}, v{var}, v{40+i}')
    for i in range(10):
        a.ins(f'v_fma_f32 v{50+i}, v{60+i}, v{u}, v{50+i}')
    for k in range(5):
        a.ins(f'v_cvt_pk_bf16_f32 v{72+k}, v{50+2*k}, v{51+2*k}')
        a.lds(f'ds_write_b32 v119, v{72+k} offset:{XS + k*256}')

def only_wave0_begin():
    L = newlab('Lw0')
    a.ins('s_cmp_lg_u32 s3, 0')
    a.ins(f's_cbranch_scc1 {L}')
    return L

def only_wave0_end(L):
    a.wait_lg_all()
    a.label(L)
    a.fence_hazards()

def gemv_rows(nrows, xaddr, wsrc, acc=56):
    for k in range(8):
        a.ins(f'v_mov_b32 v{acc+k}, 0')
    B = 4
    XB = (16, 24); WB = (64, 80)
    nb = nrows // B
    def issue(j):
        r0 = j * B
        for k in range(B // 2):
            a.lds(f'ds_read_b128 v[{XB[j%2]+4*k}:{XB[j%2]+4*k+3}], v{xaddr} offset:{(r0+2*k)*8}', ('g', j))
        for k in range(B):
            ws = wsrc(r0 + k)
            if ws[0] == 'l':
                a.lds(f'ds_read_b128 v[{WB[j%2]+4*k}:{WB[j%2]+4*k+3}], v{ws[1]} offset:{ws[2]}', ('g', j))
    issue(0)
    for j in range(nb):
        if j + 1 < nb:
            issue(j + 1)
        a.wait_lg(('g', j))
        for k in range(B):
            ws = wsrc(j * B + k)
            x = XB[j % 2] + 2 * k
            if ws[0] == 'a':
                tmp = 48 + 4 * (k % 2)
                m_ac4(tmp, ws[1])
                m_gv8(tmp, x, acc)
            elif ws[0] == 'v':
                m_gv8(ws[1], x, acc)
            else:
                m_gv8(WB[j % 2] + 4 * k, x, acc)

def write_red(addr, acc=56):
    set_exec_lanes(60)
    a.lds(f'ds_write_b128 v{addr}, v[{acc}:{acc+3}]')
    a.lds(f'ds_write_b128 v{addr}, v[{acc+4}:{acc+7}] offset:16')
    set_exec_lanes(64)
    a.barrier()

def reduce3_publish(sreg):
    L = newlab('Lr3')
    a.ins('s_cmp_eq_u32 s3, 3')
    a.ins(f's_cbranch_scc1 {L}')
    M = newlab('Lr3m')
    a.ins('s_cmp_lg_u32 s3, 2')
    a.ins(f's_cbranch_scc1 {M}')
    set_exec_lanes(32)
    a.label(M)
    for r in range(3):
        a.lds(f'ds_read_b128 v[{16+4*r}:{19+4*r}], v15 offset:{RED + r*2560}')
    a.wait_lg_all()
    for e in range(4):
        a.ins(f'v_add_f32 v{16+e}, v{16+e}, v{20+e}')
    for e in range(4):
        a.ins(f'v_add_f32 v{16+e}, v{16+e}, v{24+e}')
    a.ins(f's_add_u32 s76, s70, s{sreg}')
    a.ins('buffer_store_dwordx4 v[16:19], v15, s[64:67], s76 offen sc1')
    set_exec_lanes(64)
    a.label(L)
    a.fence_hazards()


def prep_blocks(blocks):
    TB = (16, 48); U = 80
    def issue(i):
        blocks[i][0](TB[i % 2], ('blk', i))
    issue(0)
    for i, (em, dest) in enumerate(blocks):
        if i + 1 < len(blocks):
            issue(i + 1)
        a.wait_vm(('blk', i))
        T = TB[i % 2]
        out = dest[1] if dest[0] == 'v' else U
        for d in range(4):
            for h in range(2):
                c = 2 * d + h
                for p in range(4):
                    a.ins(f'v_perm_b32 v{out+4*c+p}, v{T+4*(2*p+1)+d}, v{T+4*(2*p)+d}, s{62+h}')
        if dest[0] == 'a':
            for k in range(32):
                a.ins(f'v_accvgpr_write_b32 a{dest[1]+k}, v{U+k}')
        elif dest[0] in ('l', 'l?'):
            LS = None
            if dest[0] == 'l?':
                LS = newlab('Lpb')
                a.ins('s_cmp_ge_u32 s3, 2')
                a.ins(f's_cbranch_scc1 {LS}')
            for c in range(8):
                a.lds(f'ds_write_b128 v{dest[1]}, v[{U+4*c}:{U+4*c+3}] offset:{dest[2]+c*1024}')
            a.wait_lg_all()
            if LS:
                a.label(LS)
                a.fence_hazards()
    a.wait_lg_all()

def stage_block(dst, areg, off, tag):
    for c in range(8):
        a.lds(f'ds_read_b128 v[{dst+4*c}:{dst+4*c+3}], v{areg} offset:{off+c*1024}', tag)

def mfma_block(acc, x, kind, base, first):
    for c in range(8):
        cc = '0' if first else f'v[{acc+4*c}:{acc+4*c+3}]'
        a.ins(f'v_mfma_f32_16x16x32_bf16 v[{acc+4*c}:{acc+4*c+3}], v[{x}:{x+3}], {kind}[{base+4*c}:{base+4*c+3}], {cc}')

def extract(acc, E):
    for c in range(8):
        a.ins(f'v_mov_b32 v{E+c}, v{acc+4*c}')

def xread(dst, areg, off, tag='x'):
    a.lds(f'ds_read_b128 v[{dst}:{dst+3}], v{areg} offset:{off}', tag)

def mfma_consts():
    smov(62, 0x05040100)
    smov(63, 0x07060302)
    a.ins('v_and_b32 v3, 15, v0')
    a.ins('v_lshrrev_b32 v4, 4, v0')
    a.ins('v_lshlrev_b32 v112, 4, v4')
    a.ins(f'v_add_u32 v112, {XS}, v112')
    a.ins('s_lshl_b32 s4, s3, 6')
    a.ins('v_add_u32 v113, s4, v112')
    a.ins('s_mul_i32 s4, s3, 320')
    a.ins('v_add_u32 v114, s4, v112')

def direct_and_cb4_publish(sreg):
    pass

def publish_own(E, sreg):
    a.ins(f's_add_u32 s76, s70, s{sreg}')
    set_exec_lanes(16)
    a.ins(f'buffer_store_dwordx4 v[{E}:{E+3}], v115, s[64:67], s76 offen sc1')
    a.ins(f'buffer_store_dwordx4 v[{E+4}:{E+7}], v115, s[64:67], s76 offen offset:16 sc1')
    set_exec_lanes(64)

def publish_cb4(E, sreg):
    set_exec_lanes(16)
    a.lds(f'ds_write_b128 v116, v[{E}:{E+3}]')
    a.lds(f'ds_write_b128 v116, v[{E+4}:{E+7}] offset:16')
    set_exec_lanes(64)
    a.barrier()
    L0 = only_wave0_begin()
    for w in range(4):
        a.lds(f'ds_read_b128 v[{16+4*w}:{19+4*w}], v13 offset:{RED + w*512}')
    a.wait_lg_all()
    for w in range(1, 4):
        for e in range(4):
            a.ins(f'v_add_f32 v{16+e}, v{16+e}, v{16+4*w+e}')
    a.ins(f's_add_u32 s76, s70, s{sreg}')
    set_exec_lanes(32)
    a.ins('buffer_store_dwordx4 v[16:19], v13, s[64:67], s76 offen offset:2048 sc1')
    set_exec_lanes(64)
    only_wave0_end(L0)

def combine_records(n, first_reg, Mv, Lv, out):
    for k in range(n):
        a.ins(f'v_readlane_b32 s{40+k}, v{first_reg+4*k}, 48')
        a.ins(f'v_readlane_b32 s{48+k}, v{first_reg+4*k+1}, 48')
    a.ins(f'v_mov_b32 v{Mv}, s40')
    for k in range(1, n):
        a.ins(f'v_max_f32 v{Mv}, s{40+k}, v{Mv}')
    E = 100
    for k in range(n):
        a.ins(f'v_sub_f32 v{E+k}, s{40+k}, v{Mv}')
    for k in range(n):
        a.ins(f'v_exp_f32 v{E+k}, v{E+k}')
    a.ins(f'v_mul_f32 v{Lv}, s48, v{E}')
    for k in range(1, n):
        a.ins(f'v_fma_f32 v{Lv}, v{E+k}, s{48+k}, v{Lv}')
    for e in range(4):
        a.ins(f'v_mul_f32 v{out+e}, v{E}, v{first_reg+e}')
    for k in range(1, n):
        for e in range(4):
            a.ins(f'v_fma_f32 v{out+e}, v{E+k}, v{first_reg+4*k+e}, v{out+e}')

def combine_big(n, first_reg, Mv, Lv, out, E):
    a.ins(f'v_readlane_b32 s40, v{first_reg}, 48')
    a.ins(f'v_readlane_b32 s41, v{first_reg+4}, 48')
    a.ins(f'v_mov_b32 v{Mv}, s40')
    for k in range(1, n):
        if k + 1 < n:
            a.ins(f'v_readlane_b32 s{40+(k+1)%2}, v{first_reg+4*(k+1)}, 48')
        a.ins(f'v_max_f32 v{Mv}, s{40+k%2}, v{Mv}')
    a.ins(f'v_mov_b32 v{Lv}, 0')
    for e in range(4):
        a.ins(f'v_mov_b32 v{out+e}, 0')
    def rl(k):
        a.ins(f'v_readlane_b32 s{40+2*(k%2)}, v{first_reg+4*k}, 48')
        a.ins(f'v_readlane_b32 s{41+2*(k%2)}, v{first_reg+4*k+1}, 48')
    rl(0)
    for k in range(n):
        if k + 1 < n:
            rl(k + 1)
        e_ = E + k % 2
        a.ins(f'v_sub_f32 v{e_}, s{40+2*(k%2)}, v{Mv}')
        a.ins(f'v_exp_f32 v{e_}, v{e_}')
        a.ins(f'v_fma_f32 v{Lv}, v{e_}, s{41+2*(k%2)}, v{Lv}')
        for e in range(4):
            a.ins(f'v_fma_f32 v{out+e}, v{e_}, v{first_reg+4*k+e}, v{out+e}')

def chain_common_init():
    a.ins('s_lshl_b32 s4, s3, 6')
    a.ins('v_add_u32 v15, s4, v0')
    a.ins('v_lshlrev_b32 v15, 4, v15')
    for k in range(4):
        a.ins(f'v_mov_b32 v{16+k}, -1')
    L1 = newlab('Lst1')
    a.ins('s_cmp_ge_u32 s2, 12')
    a.ins(f's_cbranch_scc1 {L1}')
    a.ins('s_lshl_b32 s76, s2, 12')
    a.ins(f's_add_u32 s76, s76, {hex(Q_OFF)}')
    a.ins('buffer_store_dwordx4 v[16:19], v15, s[64:67], s76 offen sc1')
    a.ins('s_waitcnt vmcnt(0)')
    a.ins('s_barrier')
    set_flag(1)
    a.label(L1)
    a.fence_hazards()
    startup1()
    startup2a()
    L0 = only_wave0_begin()
    startup2b()
    only_wave0_end(L0)
    a.barrier()
    a.ins(f's_mul_i32 s4, s2, {ARM_PER}')
    for k in range(ARM_N):
        LS = newlab('Lsa')
        a.ins(f's_add_u32 s76, s4, {k*4096}')
        a.ins(f's_sub_u32 s5, s76, {hex(Q_OFF)}')
        a.ins('s_cmp_lt_u32 s5, 49152')
        a.ins(f's_cbranch_scc1 {LS}')
        a.ins('buffer_store_dwordx4 v[16:19], v15, s[64:67], s76 offen sc1')
        a.label(LS)
    a.ins('s_waitcnt vmcnt(0)')
    a.ins('s_barrier')
    set_flag(2)
    a.vm = []
    a.ins('s_lshl_b32 s4, s3, 6')
    a.ins('v_add_u32 v1, s4, v0')
    a.ins('v_lshlrev_b32 v15, 4, v1')
    a.ins('v_min_u32 v2, 59, v0')
    a.ins('s_mul_i32 s4, s3, 60')
    a.ins('v_add_u32 v2, s4, v2')
    a.ins('v_lshlrev_b32 v14, 4, v2')
    a.ins(f'v_add_u32 v14, {WL}, v14')
    a.ins('v_add_u32 v120, 61440, v14')
    a.ins('s_lshl_b32 s4, s3, 3')
    a.ins('v_add_u32 v8, s4, v0')
    a.ins('v_mul_u32_u24 v8, 2560, v8')
    a.ins('v_add_u32 v8, 2556, v8')
    a.ins('s_mul_i32 s4, s3, 20480')
    a.ins('v_lshlrev_b32 v13, 4, v0')
    a.ins('v_add_u32 v9, s4, v13')
    a.ins(f's_mul_i32 s4, s3, 5120')
    a.ins(f's_add_u32 s4, s4, {RED}')
    a.ins('v_add_u32 v10, s4, v13')
    a.ins('v_lshlrev_b32 v12, 3, v0')
    a.ins('s_lshl_b32 s4, s2, 2')
    a.ins('s_add_u32 s4, s4, s3')
    a.ins('s_lshl_b32 s77, s4, 9')
    a.ins(f's_add_u32 s77, s77, {hex(STAMP_OFF + 832*256)}')
    stamp(120, 77, 122)

def arm_arrive():
    a.wait_vm('arm')
    a.ins('s_barrier')
    L = only_wave0_begin()
    a.ins('v_mov_b32 v124, 0')
    a.ins('v_mov_b32 v125, 1')
    set_exec_lanes(1)
    a.vmem('global_atomic_add v124, v125, s[28:29] sc1', None)
    set_exec_lanes(64)
    a.label(L)
    a.fence_hazards()

def load_xres():
    L = only_wave0_begin()
    srd(96, 8, 9, 4 * 1280)
    a.ins('v_lshlrev_b32 v127, 2, v0')
    for b in range(4):
        smov(76, b * 1280)
        for k in range(5):
            a.ins(f'buffer_load_dword v{16+b*5+k}, v127, s[96:99], s76 offen offset:{k*256}')
    a.ins('s_waitcnt vmcnt(0)')
    for b in range(4):
        for k in range(5):
            r = 16 + b * 5 + k
            d = 40 + 2 * (b * 5 + k)
            a.ins(f'v_lshlrev_b32 v{d}, 16, v{r}')
            a.ins(f'v_and_b32 v{d+1}, 0xffff0000, v{r}')
            a.lds(f'ds_write_b64 v12, v[{d}:{d+1}] offset:{XRES + b*2560 + k*512}')
    only_wave0_end(L)


def gen_acu():
    a.label('L_acu')
    chain_common_init()
    mfma_consts()
    a.ins('s_mul_i32 s70, s2, 2560')
    a.ins('v_lshlrev_b32 v119, 2, v0')
    a.ins('s_mul_i32 s4, s3, 24576')
    a.ins(f's_add_u32 s4, s4, {WL}')
    a.ins('v_add_u32 v14, s4, v13')
    a.ins('s_and_b32 s4, s3, 1')
    a.ins('s_lshl_b32 s4, s4, 13')
    a.ins(f's_add_u32 s4, s4, {WL + 4*24576}')
    a.ins('v_add_u32 v120, s4, v13')
    a.ins('v_mul_u32_u24 v125, 10240, v4')
    a.ins('v_lshl_add_u32 v125, v3, 4, v125')
    a.ins('v_subrev_u32 v127, 6, v3')
    a.ins('v_min_u32 v127, 5, v127')
    a.ins('v_cmp_gt_u32 vcc, 6, v3')
    a.ins('v_cndmask_b32 v127, v127, v3, vcc')
    a.ins('v_mul_u32_u24 v126, 24576, v4')
    a.ins('v_lshl_add_u32 v126, v127, 4, v126')
    a.ins('s_mov_b64 s[88:89], vcc')
    a.ins('s_not_b64 s[90:91], vcc')
    a.ins('s_mul_i32 s4, s2, 245760')
    srd_off(96, 16, 17, 4, 245760)
    a.ins('s_mul_i32 s4, s2, 96')
    a.ins(f's_sub_u32 s5, {640*3072}, s4')
    srd_off(80, 20, 21, 4, 's5')
    srd_off(84, 22, 23, 4, 's5')
    a.ins('s_mul_i32 s4, s2, 61440')
    srd_off(92, 24, 25, 4, 61440)
    a.ins('s_lshl_b32 s40, s3, 8')
    a.ins('s_mul_i32 s41, s3, 40960')
    a.ins('s_add_u32 s41, s41, 1024')
    a.ins(f's_mul_i32 s42, s3, {160*3072}')
    def ld1280(srd_, sbase, const):
        def em(T, tag):
            for e in range(8):
                if e % 3 == 0:
                    a.ins(f's_add_u32 s76, s{sbase}, {const + (e // 3) * 3840}')
                off = f' offset:{(e % 3) * 1280}' if e % 3 else ''
                a.vmem(f'buffer_load_dwordx4 v[{T+4*e}:{T+4*e+3}], v125, s[{srd_}:{srd_+3}], s76 offen{off} nt', tag)
        return em
    def ldgu(i):
        def em(T, tag):
            for e in range(8):
                a.ins(f's_add_u32 s76, s42, {(32 * i + e) * 3072}')
                a.ins('s_mov_b64 exec, s[88:89]')
                a.vmem(f'buffer_load_dwordx4 v[{T+4*e}:{T+4*e+3}], v126, s[80:83], s76 offen nt', tag)
                a.ins('s_mov_b64 exec, s[90:91]')
                a.vmem(f'buffer_load_dwordx4 v[{T+4*e}:{T+4*e+3}], v126, s[84:87], s76 offen nt', tag)
            a.ins('s_mov_b64 exec, -1')
        return em
    blocks = []
    for ks in range(6):
        blocks.append((ld1280(96, 40, ks * 40960), ('a', 32 * ks)))
    blocks.append((ld1280(96, 41, 0), ('a', 192)))
    blocks.append((ld1280(96, 41, 4 * 40960), ('a', 224)))
    for i in range(4):
        blocks.append((ldgu(i), ('v', W1 + 32 * i)))
    blocks.append((ldgu(4), ('l', 14, 0)))
    blocks.append((ld1280(92, 40, 0), ('l', 14, 8192)))
    blocks.append((ld1280(92, 40, 40960), ('l', 14, 16384)))
    blocks.append((ld1280(92, 41, 0), ('l?', 120, 0)))
    prep_blocks(blocks)
    load_xres()
    a.ins('s_lshl_b32 s4, s3, 9')
    a.ins('v_lshlrev_b32 v115, 5, v3')
    a.ins('v_add_u32 v115, s4, v115')
    a.ins(f'v_add_u32 v116, {RED}, v115')
    a.ins('s_mul_i32 s4, s3, 384')
    a.ins('v_lshlrev_b32 v11, 5, v3')
    a.ins('v_add_u32 v11, s4, v11')
    a.ins(f'v_add_u32 v11, {RED}, v11')
    a.barrier()
    a.ins('v_lshlrev_b32 v117, 2, v0')
    a.ins('v_add_u32 v117, s3, v117')
    a.ins('v_min_u32 v117, 25, v117')
    a.ins(f'v_mul_u32_u24 v117, {REC}, v117')
    a.ins('v_add_u32 v117, 772, v117')
    a.ins(f's_mul_i32 s71, s2, {WPH*REC}')
    a.ins(f's_mul_i32 s72, s3, {REC}')
    a.ins('s_add_u32 s72, s72, s71')
    a.ins(f's_mul_i32 s4, s3, {REC}')
    a.ins(f's_add_u32 s4, s4, {RED}')
    a.ins('v_add_u32 v118, s4, v13')
    a.ins('v_add_u32 v117, s71, v117')
    wait_flags(2, 126)
    order = 0
    for i, (ly, b) in enumerate(CHAIN_ORDER):
        order |= (ly * 4 + b) << (4 * i)
    tab = 0
    for i, k in enumerate(CHAIN_ORDER):
        sg = CHAIN_SEGS[k]
        assert 2 <= len(sg) <= 3
        e = sg[0] | ((sg[1] if len(sg) > 2 else 0) << 5) | (sg[-1] << 10) | ((1 if len(sg) > 2 else 0) << 15)
        tab |= e << (16 * i)
    for w in range(4):
        smov(56 + w, (tab >> (32 * w)) & 0xffffffff)
    a.ins('s_mov_b32 s78, 0')
    a.label('L_aloop')
    a.fence_hazards()
    if True:
        a.ins('s_lshl_b32 s4, s78, 2')
        a.ins(f's_lshr_b32 s79, {hex(order)}, s4')
        a.ins('s_and_b32 s79, s79, 15')
        a.ins(f's_mul_i32 s81, s79, {2*AR_SZ}')
        a.ins(f's_add_u32 s81, s81, {hex(AR_OFF)}')
        a.ins(f's_add_u32 s82, s81, {AR_SZ}')
        a.ins('s_and_b32 s83, s79, 3')
        a.ins('s_mul_i32 s84, s83, 1280')
        a.ins('s_mul_i32 s4, s83, 2560')
        a.ins('v_add_u32 v121, s4, v12')
        a.ins('s_lshr_b32 s85, s79, 2')
        a.ins(f's_add_u32 s4, s4, {X1A}')
        a.ins('v_add_u32 v124, s4, v12')
        a.ins('s_lshl_b32 s88, s78, 6')
        stamp(0, 77, 122, 88)
        a.ins('s_and_b32 s4, s78, 3')
        a.ins('s_lshl_b32 s4, s4, 4')
        a.ins('s_cmp_lt_u32 s78, 4')
        a.ins('s_cselect_b64 s[60:61], s[56:57], s[58:59]')
        a.ins('s_lshr_b64 s[60:61], s[60:61], s4')
        for k in range(3):
            a.ins(f's_bfe_u32 s4, s60, {hex((5 << 16) | (5 * k))}')
            a.ins(f's_mul_i32 s{43+k}, s4, {PART_C}')
        a.ins('s_bfe_u32 s89, s60, 0x1000f')
        poll_indicator(117, 7, 45)
        stamp(1, 77, 122, 88)
        for k in (6, 7, 8, 9, 10, 11, 12, 13, 20):
            a.ins(f'v_mov_b32 v{16+4*k}, 0xf149f2ca')
            for e in range(1, 4):
                a.ins(f'v_mov_b32 v{16+4*k+e}, 0')
        set_exec_lanes(49)
        def ld1(k):
            sg, r = k // 7, k % 7
            a.ins(f's_add_u32 s76, s72, s{43+sg}')
            a.ins(f's_add_u32 s76, s76, {r * 4 * REC}')
            a.ins(f'buffer_load_dwordx4 v[{16+4*k}:{19+4*k}], v13, s[64:67], s76 offen sc1')
        def im():
            full = (1 << 21) - 1
            short = full & ~((1 << 6) | (1 << 13) | (1 << 20))
            a.ins('s_cmp_ge_u32 s3, 2')
            a.ins(f's_mov_b32 s91, {hex(full)}')
            a.ins(f's_cselect_b32 s91, {hex(short)}, s91')
            a.ins('s_cmp_eq_u32 s89, 0')
            a.ins(f's_cselect_b32 s4, {hex(0x7f << 7)}, 0')
            a.ins('s_andn2_b32 s91, s91, s4')
        gather_sel(21, ld1, lambda k: 16 + 4 * k, im)
        set_exec_lanes(64)
        combine_big(21, 16, 100, 101, 104, 102)
        a.ins('s_mov_b32 exec_lo, 0', dst=[], src=[])
        a.ins('s_mov_b32 exec_hi, 0x10000', dst=[], src=[])
        a.ins('v_mov_b32 v104, v100')
        a.ins('v_mov_b32 v105, v101')
        set_exec_lanes(64)
        for e in range(4):
            a.ins(f'v_mov_b32 v{52+e}, v{104+e}')
        set_exec_lanes(49)
        a.lds('ds_write_b128 v118, v[52:55]')
        set_exec_lanes(64)
        a.barrier()
        L0 = only_wave0_begin()
        for k in range(4):
            a.lds(f'ds_read_b128 v[{16+4*k}:{19+4*k}], v13 offset:{RED + k*REC}')
        a.wait_lg_all()
        combine_records(4, 16, 48, 49, 52)
        a.ins('v_rcp_f32 v50, v49')
        for e in range(4):
            a.ins(f'v_mul_f32 v{52+e}, v{52+e}, v50')
        a.ins('v_cvt_pk_bf16_f32 v56, v52, v53')
        a.ins('v_cvt_pk_bf16_f32 v57, v54, v55')
        a.ins('s_mov_b32 exec_lo, 0', dst=[], src=[])
        a.ins('s_mov_b32 exec_hi, 0xffff0000', dst=[], src=[])
        a.ins('v_mov_b32 v56, 0')
        a.ins('v_mov_b32 v57, 0')
        set_exec_lanes(64)
        a.lds(f'ds_write_b64 v12, v[56:57] offset:{XS}')
        only_wave0_end(L0)
        a.barrier()
        stamp(2, 77, 122, 88)
        for ks in range(6):
            xread(80 + 4 * ks, 112, 64 * ks)
        xread(104, 113, 0)
        xread(108, 113, 256)
        a.wait_lg_all()
        mfma_block(48, 104, 'a', 192, True)
        mfma_block(48, 108, 'a', 224, False)
        for ks in range(6):
            mfma_block(16, 80 + 4 * ks, 'a', 32 * ks, ks == 0)
        extract(48, 100)
        extract(16, 92)
        publish_own(92, 81)
        publish_cb4(100, 81)
        stamp(3, 77, 122, 88)
        LD = newlab('Ldf')
        a.ins('s_cmp_eq_u32 s85, 0')
        a.ins(f's_cbranch_scc1 {LD}')
        L0 = only_wave0_begin()
        a.ins('s_mul_i32 s90, s83, 2560')
        a.ins(f's_add_u32 s90, s90, {hex(X2_OFF)}')
        LX = newlab('Lx2'); LXD = newlab('Lx2d')
        smov(75, SPIN_MAX)
        a.label(LX)
        for k in range(5):
            a.ins(f'buffer_load_dwordx2 v[{16+2*k}:{17+2*k}], v12, s[64:67], s90 offen offset:{k*512} sc1')
        a.ins('s_waitcnt vmcnt(0)')
        check_regs(range(16, 26), 127)
        a.ins(f's_cbranch_vccz {LXD}')
        a.ins('s_sleep 2')
        a.ins('s_sub_u32 s75, s75, 1')
        a.ins('s_cmp_lg_u32 s75, 0')
        a.ins(f's_cbranch_scc1 {LX}')
        a.label(LXD)
        store_x(121, XRES)
        only_wave0_end(L0)
        a.label(LD)
        a.fence_hazards()
        gather_ar(81)
        stamp(4, 77, 122, 88)
        L0 = only_wave0_begin()
        ar_sum_wave0()
        residual(121, XRES)
        layernorm_to_xs()
        only_wave0_end(L0)
        a.barrier()
        stamp(5, 77, 122, 88)
        stage_block(48, 14, 0, 'st')
        for i in range(5):
            xread(80 + 4 * i, 114, 64 * i)
        a.wait_lg_all()
        for i in range(4):
            mfma_block(16, 80 + 4 * i, 'v', W1 + 32 * i, i == 0)
        mfma_block(16, 96, 'v', 48, False)
        stage_block(48, 14, 8192, 'st5')
        extract(16, 100)
        set_exec_lanes(12)
        a.lds('ds_write_b128 v11, v[100:103]')
        a.lds('ds_write_b128 v11, v[104:107] offset:16')
        set_exec_lanes(64)
        a.barrier()
        L0 = only_wave0_begin()
        for r in range(4):
            a.lds(f'ds_read_b32 v{16+r}, v119 offset:{RED + r*384}')
            a.lds(f'ds_read_b32 v{36+r}, v119 offset:{RED + r*384 + 192}')
        a.wait_lg_all()
        for r in range(1, 4):
            a.ins(f'v_add_f32 v16, v16, v{16+r}')
            a.ins(f'v_add_f32 v36, v36, v{36+r}')
        bf16r(16, 16); bf16r(36, 36)
        a.ins('v_mul_f32 v17, v16, v16')
        a.ins('v_mul_f32 v17, v17, v16')
        a.ins(f'v_mov_b32 v18, {hex(f32(0.044715))}')
        a.ins('v_fma_f32 v17, v17, v18, v16')
        a.ins(f'v_mul_f32 v17, {hex(f32(2*0.7978845608028654*math.log2(math.e)))}, v17')
        a.ins('v_exp_f32 v17, v17')
        a.ins('v_add_f32 v17, 1.0, v17')
        a.ins('v_rcp_f32 v17, v17')
        a.ins('v_fma_f32 v17, v17, -2.0, 1.0')
        a.ins('v_add_f32 v17, 1.0, v17')
        a.ins('v_mul_f32 v17, v17, v16')
        a.ins('v_mul_f32 v17, 0.5, v17')
        bf16r(17, 17)
        a.ins('v_mul_f32 v17, v17, v36')
        a.ins('v_cvt_pk_bf16_f32 v18, v17, 0')
        a.ins('v_mov_b32 v19, 0')
        a.ins('s_mov_b32 exec_lo, 0', dst=[], src=[])
        a.ins('s_mov_b32 exec_hi, 0xffff0000', dst=[], src=[])
        a.ins('v_mov_b32 v18, 0')
        set_exec_lanes(64)
        a.ins('v_lshlrev_b32 v20, 1, v0')
        a.lds(f'ds_write_b16 v20, v18 offset:{XS}')
        a.lds(f'ds_write_b16 v20, v19 offset:{XS + 128}')
        only_wave0_end(L0)
        a.barrier()
        stamp(6, 77, 122, 88)
        xread(80, 112, 0)
        xread(84, 112, 64)
        xread(88, 113, 0)
        a.wait_lg_all()
        mfma_block(16, 80, 'v', 48, True)
        stage_block(48, 14, 16384, 'st5b')
        a.wait_lg_all()
        mfma_block(16, 84, 'v', 48, False)
        stage_block(48, 120, 0, 'st5c')
        extract(16, 92)
        publish_own(92, 82)
        a.wait_lg_all()
        mfma_block(16, 88, 'v', 48, True)
        extract(16, 100)
        publish_cb4(100, 82)
        stamp(7, 77, 122, 88)
        a.barrier()
    stamp(9, 77, 122, 88)
    a.ins('s_add_u32 s78, s78, 1')
    a.ins('s_cmp_lt_u32 s78, 8')
    a.ins('s_cbranch_scc1 L_aloop')
    a.ins('s_waitcnt vmcnt(0)')
    a.ins('s_endpgm')

def wait_armed_chain():
    L = newlab('Lar'); D = newlab('Lad')
    smov(75, SPIN_MAX)
    a.ins('v_mov_b32 v126, 0')
    a.label(L)
    a.ins('global_load_dword v127, v126, s[28:29] sc1')
    a.ins('s_waitcnt vmcnt(0)')
    a.vm = []
    a.ins(f'v_cmp_gt_u32 vcc, {NCH}, v127')
    a.ins(f's_cbranch_vccz {D}')
    a.ins('s_sleep 2')
    a.ins('s_sub_u32 s75, s75, 1')
    a.ins('s_cmp_lg_u32 s75, 0')
    a.ins(f's_cbranch_scc1 {L}')
    a.label(D)
    a.fence_hazards()

def q_gemv_publish():
    stage_block(48, 14, 0, 'st')
    for i in range(5):
        xread(80 + 4 * i, 114, 64 * i)
    a.wait_lg_all()
    for cb in range(3):
        for i in range(4):
            kind, base = (('a', 128 * cb + 32 * i) if cb < 2 else ('v', W1 + 32 * i))
            mfma_block(16, 80 + 4 * i, kind, base, i == 0)
        a.wait_lg_all()
        mfma_block(16, 96, 'v', 48, False)
        if cb < 2:
            stage_block(48, 14, (cb + 1) * 8192, 'st')
        extract(16, 100)
        set_exec_lanes(16)
        a.lds(f'ds_write_b128 v115, v[100:103] offset:{cb*512}')
        a.lds(f'ds_write_b128 v115, v[104:107] offset:{cb*512+16}')
        set_exec_lanes(64)
    a.barrier()
    L0 = only_wave0_begin()
    a.ins('v_lshlrev_b32 v127, 1, v13')
    for r in range(4):
        a.lds(f'ds_read_b128 v[{16+8*r}:{19+8*r}], v127 offset:{RED + r*1536}')
        a.lds(f'ds_read_b128 v[{20+8*r}:{23+8*r}], v127 offset:{RED + r*1536 + 16}')
    a.wait_lg_all()
    for r in range(1, 4):
        for e in range(8):
            a.ins(f'v_add_f32 v{16+e}, v{16+e}, v{16+8*r+e}')
    for e in range(4):
        a.ins(f'v_cvt_pk_bf16_f32 v{60+e}, v{16+2*e}, v{17+2*e}')
    a.ins('s_add_u32 s76, s70, s86')
    set_exec_lanes(48)
    a.ins('buffer_store_dwordx4 v[60:63], v13, s[64:67], s76 offen sc1')
    set_exec_lanes(64)
    only_wave0_end(L0)
    a.barrier()

def gen_qcu():
    a.label('L_qcu')
    chain_common_init()
    a.ins(f's_sub_u32 s5, s2, {NA}')
    mfma_consts()
    a.ins('s_mul_i32 s70, s5, 768')
    a.ins(f's_sub_u32 s6, {640*12288}, s70')
    srd_off(96, 14, 15, 70, 's6')
    a.ins(f'v_mul_u32_u24 v126, {8*12288}, v4')
    a.ins('v_lshl_add_u32 v126, v3, 4, v126')
    a.ins('s_mul_i32 s4, s3, 24576')
    a.ins(f's_add_u32 s4, s4, {WL}')
    a.ins('v_add_u32 v14, s4, v13')
    a.ins(f's_mul_i32 s42, s3, {160*12288}')
    def ldq(i, cb):
        def em(T, tag):
            for e in range(8):
                a.ins(f's_add_u32 s76, s42, {(32 * i + e) * 12288 + cb * 256}')
                a.vmem(f'buffer_load_dwordx4 v[{T+4*e}:{T+4*e+3}], v126, s[96:99], s76 offen nt', tag)
        return em
    blocks = []
    for cb in range(3):
        for i in range(4):
            blocks.append((ldq(i, cb), ('a', 128 * cb + 32 * i) if cb < 2 else ('v', W1 + 32 * i)))
        blocks.append((ldq(4, cb), ('l', 14, cb * 8192)))
    prep_blocks(blocks)
    load_xres()
    a.ins('s_mul_i32 s4, s3, 1536')
    a.ins('v_lshlrev_b32 v115, 5, v3')
    a.ins('v_add_u32 v115, s4, v115')
    a.ins(f'v_add_u32 v115, {RED}, v115')
    a.barrier()
    wait_flags(2, 126)
    order = 0
    for i, (ly, b) in enumerate(CHAIN_ORDER):
        order |= (ly * 4 + b) << (4 * i)
    srd(92, 26, 27, 4 * 1280)
    a.ins('v_lshlrev_b32 v119, 2, v0')
    a.ins('s_mov_b32 s78, 0')
    a.label('L_qloop')
    a.fence_hazards()
    a.ins('s_lshl_b32 s4, s78, 2')
    a.ins(f's_lshr_b32 s79, {hex(order)}, s4')
    a.ins('s_and_b32 s79, s79, 15')
    a.ins('s_and_b32 s83, s79, 3')
    a.ins('s_lshr_b32 s85, s79, 2')
    a.ins('s_mul_i32 s84, s83, 1280')
    a.ins('s_mul_i32 s4, s83, 2560')
    a.ins('v_add_u32 v121, s4, v12')
    a.ins(f's_mul_i32 s86, s83, {32*384}')
    a.ins(f's_add_u32 s86, s86, {hex(Q_OFF + 4*32*384)}')
    a.ins(f's_mul_i32 s81, s79, {2*AR_SZ}')
    a.ins(f's_add_u32 s81, s81, {hex(AR_OFF)}')
    a.ins(f's_add_u32 s82, s81, {AR_SZ}')
    a.ins('s_lshl_b32 s88, s78, 6')
    stamp(0, 77, 122, 88)
    a.ins('s_cmp_eq_u32 s85, 0')
    a.ins('s_cbranch_scc1 L_qgo')
    a.ins(f's_cmp_lg_u32 s2, {NA}')
    a.ins('s_cbranch_scc1 L_qnext')
    a.label('L_qgo')
    a.fence_hazards()
    gather_ar(81)
    L0 = only_wave0_begin()
    ar_sum_wave0()
    residual(121, XRES)
    store_x(12, X1)
    only_wave0_end(L0)
    a.barrier()
    stamp(1, 77, 122, 88)
    gather_ar(82)
    stamp(2, 77, 122, 88)
    L0 = only_wave0_begin()
    ar_sum_wave0()
    residual(12, X1)
    store_x(121, XRES)
    LO = newlab('Lout'); LX = newlab('Lx2p')
    a.ins('s_cmp_eq_u32 s85, 0')
    a.ins(f's_cbranch_scc1 {LX}')
    for k in range(5):
        a.ins(f'v_cvt_pk_bf16_f32 v{32+k}, v{16+2*k}, v{17+2*k}')
        a.ins(f'buffer_store_dword v{32+k}, v119, s[92:95], s84 offen offset:{k*256}')
    a.ins(f's_branch {L0}')
    a.label(LX)
    a.ins(f's_cmp_lg_u32 s2, {NA}')
    a.ins(f's_cbranch_scc1 {LO}')
    a.ins('s_mul_i32 s90, s83, 2560')
    a.ins(f's_add_u32 s90, s90, {hex(X2_OFF)}')
    for k in range(5):
        a.ins(f'buffer_store_dwordx2 v[{16+2*k}:{17+2*k}], v12, s[64:67], s90 offen offset:{k*512} sc1')
    a.label(LO)
    a.fence_hazards()
    layernorm_to_xs()
    only_wave0_end(L0)
    a.barrier()
    stamp(3, 77, 122, 88)
    a.ins('s_cmp_lg_u32 s85, 0')
    a.ins('s_cbranch_scc1 L_qnext')
    q_gemv_publish()
    a.label('L_qnext')
    a.fence_hazards()
    stamp(4, 77, 122, 88)
    a.ins('s_add_u32 s78, s78, 1')
    a.ins('s_cmp_lt_u32 s78, 8')
    a.ins('s_cbranch_scc1 L_qloop')
    a.ins('s_waitcnt vmcnt(0)')
    a.ins('s_endpgm')

def main(outpath):
    hdr = open('cdna_kernels/' + NAME + '.s.ref').read().split('\n')
    top = [l for l in hdr if l.startswith(';') and '@launch' not in l]
    out = []
    out += top
    out.append('; @launch grid=(256,1,1) block=(256,1,1) lds=163840')
    out.append('.amdgcn_target "amdgcn-amd-amdhsa--gfx950"')
    out.append('.text')
    out.append(MACROS)
    out.append(f'.globl {KNAME}')
    out.append('.p2align 8')
    out.append(f'.type {KNAME},@function')
    out.append(f'{KNAME}:')
    a.ins('s_cmp_ge_u32 s2, 256')
    a.ins('s_cbranch_scc1 L_exit')
    a.ins('s_load_dwordx16 s[8:23], s[0:1], 0')
    a.ins('s_load_dwordx8 s[24:31], s[0:1], 64')
    a.ins('v_lshrrev_b32 v1, 6, v0')
    a.ins('v_and_b32 v0, 63, v0')
    a.ins('v_readfirstlane_b32 s3, v1')
    a.ins('s_waitcnt lgkmcnt(0)')
    srd(64, 30, 31, WS_SIZE)
    a.ins(f's_cmp_ge_u32 s2, {NCH}')
    a.ins('s_cbranch_scc0 L_chain')
    a.ins('s_branch L_stream')
    a.label('L_exit')
    a.ins('s_endpgm')
    a.label('L_chain')
    a.ins(f's_cmp_ge_u32 s2, {NA}')
    a.ins('s_cbranch_scc1 L_qcu')
    a.fence_hazards()
    gen_acu()
    a.hist = []; a.vm = []; a.lg = []
    a.fence_hazards()
    gen_qcu()
    a.hist = []; a.vm = []; a.lg = []
    a.fence_hazards()
    gen_stream()
    out.append(a.text())
    out.append('.section .rodata,"a"')
    out.append('.p2align 6')
    out.append(f'.amdhsa_kernel {KNAME}')
    out.append('  .amdhsa_next_free_vgpr 512')
    out.append('  .amdhsa_next_free_sgpr 102')
    out.append('  .amdhsa_accum_offset 256')
    out.append('  .amdhsa_group_segment_fixed_size 0')
    out.append('  .amdhsa_kernarg_size 96')
    out.append('  .amdhsa_user_sgpr_count 2')
    out.append('  .amdhsa_user_sgpr_kernarg_segment_ptr 1')
    out.append('  .amdhsa_system_sgpr_workgroup_id_x 1')
    out.append('.end_amdhsa_kernel')
    open(outpath, 'w').write('\n'.join(out) + '\n')
    print('instrs', a.ninstr, 'bytes', sum(len(x) + 1 for x in out))

if __name__ == '__main__':
    main(sys.argv[1] if len(sys.argv) > 1 else 'cdna_kernels/' + NAME + '.s')
```

```python
import struct, sys, math, os
from asmlib import *

NAME = 'interleave_layers__mha_block_cached__glu_gated_geglu__decode'
KNAME = NAME + '_kernel'

NA, NQ = 32, 16
NCH = NA + NQ
NST = 256 - NCH
WPH = NST * 4 // 32
REC = 784
PART_OFF = 0
PART_C = 32 * WPH * REC
NR = 21
NL = int(os.environ.get('NL', '4'))
LMODE = os.environ.get('LMODE', 'def')
NN = 40 - NR - NL
NA_HALF = (NN + 1) // 2
NT_ALL = 40
def _d_order():
    L = list(range(NR, NR + NL)); R = list(range(NR))
    if os.environ.get('DORD', '0') == '0' or NL <= 2:
        return L + R
    return L[:2] + R[:4] + L[2:] + R[4:]
NPOL = os.environ.get('NPOL', 'nt')
R_T = list(range(NR + NL)); D_T = _d_order(); N_T = list(range(NR + NL, NT_ALL)); NA_T = N_T[:NA_HALF]; NB_T = N_T[NA_HALF:]
if os.environ.get('SCH', '1') == '0':
    SCHED = [('A', 0, 0, R_T), ('N', 0, 0, N_T), ('N', 0, 1, N_T), ('N', 0, 2, NA_T),
             ('D', 1, 0, D_T), ('A', 0, 1, R_T), ('N', 0, 2, NB_T), ('N', 1, 0, N_T),
             ('D', 1, 1, D_T), ('A', 0, 2, R_T), ('N', 0, 3, N_T), ('N', 1, 1, NA_T),
             ('D', 1, 2, D_T), ('A', 0, 3, R_T), ('N', 1, 1, NB_T), ('N', 1, 2, N_T),
             ('D', 1, 3, D_T), ('N', 1, 3, N_T)]
else:
    SCHED = [('A', 0, 0, R_T), ('N', 0, 0, N_T), ('N', 0, 1, N_T), ('N', 0, 2, NA_T),
             ('D', 1, 0, D_T), ('A', 0, 1, R_T), ('N', 1, 0, N_T), ('N', 0, 2, NB_T),
             ('D', 1, 1, D_T), ('A', 0, 2, R_T), ('N', 1, 1, NA_T), ('N', 0, 3, N_T),
             ('D', 1, 2, D_T), ('A', 0, 3, R_T), ('N', 1, 1, NB_T), ('N', 1, 2, N_T),
             ('D', 1, 3, D_T), ('N', 1, 3, N_T)]
NSEG = len(SCHED)
_last = {}
for _i, (_t, _p, _b, _tl) in enumerate(SCHED):
    _last[(_p, _b)] = _i
CHAIN_ORDER = sorted(_last, key=lambda k: _last[k])
CHAIN_SEGS = {k: [i for i, (t, p, b, tl) in enumerate(SCHED) if (p, b) == k] for k in CHAIN_ORDER}
AR_OFF = ((NSEG * PART_C + 4095) // 4096) * 4096
AR_SZ = 32 * 2560
Q_OFF = AR_OFF + 16 * AR_SZ
X2_OFF = Q_OFF + 8 * 32 * 384
ARM_N = (X2_OFF + 4 * 2560 + 48 * 4096 - 1) // (48 * 4096)
COMM = ARM_N * 48 * 4096
assert Q_OFF % 4096 == 0
ARM_PER = COMM // NCH
BATCH_STRIDE = 32 * 8192 * 384
SPIN_MAX = 400000
import os
DIAG = int(os.environ.get('DIAG', '0'))
STAMP_OFF = COMM
WS_SIZE = COMM + (1 << 20 if DIAG else 0)

def f32(x):
    return struct.unpack('<I', struct.pack('<f', x))[0]

CSCALE = f32((192 ** -0.5) * math.log2(math.e))

a = Asm()
_lab = [0]
def newlab(p='L'):
    _lab[0] += 1
    return f'{p}{_lab[0]}'

MACROS = r'''
.macro QK2 ta, tb, q, s
  v_dot2_f32_bf16 v[\s+0], v[\ta+0], v[\q+0], 0
  v_dot2_f32_bf16 v[\s+1], v[\ta+4], v[\q+4], 0
  v_dot2_f32_bf16 v[\s+2], v[\ta+8], v[\q+8], 0
  v_dot2_f32_bf16 v[\s+3], v[\tb+0], v[\q+0], 0
  v_dot2_f32_bf16 v[\s+4], v[\tb+4], v[\q+4], 0
  v_dot2_f32_bf16 v[\s+5], v[\tb+8], v[\q+8], 0
  .irp k, 1, 2, 3
  v_dot2c_f32_bf16 v[\s+0], v[\ta+\k], v[\q+\k]
  v_dot2c_f32_bf16 v[\s+1], v[\ta+4+\k], v[\q+4+\k]
  v_dot2c_f32_bf16 v[\s+2], v[\ta+8+\k], v[\q+8+\k]
  v_dot2c_f32_bf16 v[\s+3], v[\tb+\k], v[\q+\k]
  v_dot2c_f32_bf16 v[\s+4], v[\tb+4+\k], v[\q+4+\k]
  v_dot2c_f32_bf16 v[\s+5], v[\tb+8+\k], v[\q+8+\k]
  .endr
.endm
.macro PV t, p, acc
  .irp k, 0, 1, 2, 3, 4, 5, 6, 7, 8, 9, 10, 11
  v_dot2c_f32_bf16 v[\acc+2*\k], v[\t+\k], v[\p]
  v_dot2c_f32_bf16 v[\acc+2*\k+1], v[\t+\k], v[\p+1]
  .endr
.endm
.macro ACR t, s
  .irp k, 0, 1, 2, 3, 4, 5, 6, 7, 8, 9, 10, 11
  v_accvgpr_read_b32 v[\t+\k], a[\s+\k]
  .endr
.endm
.macro LDT k, d, srd
  buffer_load_dwordx4 \k[\d:\d+3], v1, s[\srd:\srd+3], s76 offen nt
  buffer_load_dwordx4 \k[\d+4:\d+7], v1, s[\srd:\srd+3], s76 offen offset:128 nt
  buffer_load_dwordx4 \k[\d+8:\d+11], v1, s[\srd:\srd+3], s76 offen offset:256 nt
.endm
.macro LDC k, d, srd
  buffer_load_dwordx4 \k[\d:\d+3], v1, s[\srd:\srd+3], s76 offen
  buffer_load_dwordx4 \k[\d+4:\d+7], v1, s[\srd:\srd+3], s76 offen offset:128
  buffer_load_dwordx4 \k[\d+8:\d+11], v1, s[\srd:\srd+3], s76 offen offset:256
.endm
.macro RESC acc, al
  .irp k, 0, 1, 2, 3, 4, 5, 6, 7, 8, 9, 10, 11, 12, 13, 14, 15, 16, 17, 18, 19, 20, 21, 22, 23
  v_mul_f32 v[\acc+\k], v[\al], v[\acc+\k]
  .endr
.endm
.macro GV8 w, x, acc
  .irp k, 0, 1, 2, 3
  v_dot2c_f32_bf16 v[\acc+2*\k], v[\w+\k], v[\x]
  v_dot2c_f32_bf16 v[\acc+2*\k+1], v[\w+\k], v[\x+1]
  .endr
.endm
.macro AC4 t, s
  .irp k, 0, 1, 2, 3
  v_accvgpr_read_b32 v[\t+\k], a[\s+\k]
  .endr
.endm
'''

def m_qk2(ta, tb, q, s):
    a.mbegin(f'QK2 {ta}, {tb}, {q}, {s}')
    for i, (t, o) in enumerate([(ta, 0), (ta, 4), (ta, 8), (tb, 0), (tb, 4), (tb, 8)]):
        a.ins(f'v_dot2_f32_bf16 v{s+i}, v{t+o}, v{q+o}, 0')
    for k in (1, 2, 3):
        for i, (t, o) in enumerate([(ta, 0), (ta, 4), (ta, 8), (tb, 0), (tb, 4), (tb, 8)]):
            a.ins(f'v_dot2c_f32_bf16 v{s+i}, v{t+o+k}, v{q+o+k}')
    a.mend()

def m_pv(t, p, acc):
    a.mbegin(f'PV {t}, {p}, {acc}')
    for k in range(12):
        a.ins(f'v_dot2c_f32_bf16 v{acc+2*k}, v{t+k}, v{p}')
        a.ins(f'v_dot2c_f32_bf16 v{acc+2*k+1}, v{t+k}, v{p+1}')
    a.mend()

def m_acr(t, s):
    a.mbegin(f'ACR {t}, {s}')
    for k in range(12):
        a.ins(f'v_accvgpr_read_b32 v{t+k}, a{s+k}')
    a.mend()

def m_ldt(kind, d, srd, tag, pol='nt'):
    mac = {'nt': 'LDT', '': 'LDC'}.get(pol)
    if mac:
        a.mbegin(f'{mac} {kind}, {d}, {srd}')
    for i in range(3):
        off = f' offset:{i*128}' if i else ''
        a.vmem(f'buffer_load_dwordx4 {kind}[{d+4*i}:{d+4*i+3}], v1, s[{srd}:{srd+3}], s76 offen{off} {pol}', tag)
    if mac:
        a.mend()

def m_resc(acc, al):
    a.mbegin(f'RESC {acc}, {al}')
    for k in range(24):
        a.ins(f'v_mul_f32 v{acc+k}, v{al}, v{acc+k}')
    a.mend()

def m_gv8(w, x, acc):
    a.mbegin(f'GV8 {w}, {x}, {acc}')
    for k in range(4):
        a.ins(f'v_dot2c_f32_bf16 v{acc+2*k}, v{w+k}, v{x}')
        a.ins(f'v_dot2c_f32_bf16 v{acc+2*k+1}, v{w+k}, v{x+1}')
    a.mend()

def m_ac4(t, s):
    a.mbegin(f'AC4 {t}, {s}')
    for k in range(4):
        a.ins(f'v_accvgpr_read_b32 v{t+k}, a{s+k}')
    a.mend()

DPP = 'row_mask:0xf bank_mask:0xf'

def smov(s, val):
    val &= 0xffffffff
    a.ins(f's_mov_b32 s{s}, {val if val <= 64 else hex(val)}')

def srd(d, lo, hi, nrec):
    a.ins(f's_mov_b32 s{d}, s{lo}')
    a.ins(f's_and_b32 s{d+1}, s{hi}, 0xffff')
    if isinstance(nrec, int):
        smov(d + 2, nrec)
    else:
        a.ins(f's_mov_b32 s{d+2}, {nrec}')
    a.ins(f's_mov_b32 s{d+3}, 0x20000')

def srd_off(d, lo, hi, offs, nrec):
    a.ins(f's_add_u32 s{d}, s{lo}, s{offs}')
    a.ins(f's_addc_u32 s{d+1}, s{hi}, 0')
    a.ins(f's_and_b32 s{d+1}, s{d+1}, 0xffff')
    if isinstance(nrec, int):
        smov(d + 2, nrec)
    else:
        a.ins(f's_mov_b32 s{d+2}, {nrec}')
    a.ins(f's_mov_b32 s{d+3}, 0x20000')

def set_exec_lanes(n):
    if n >= 64:
        a.ins('s_mov_b64 exec, -1')
    elif n <= 32:
        a.ins(f's_mov_b32 exec_lo, {hex((1 << n) - 1)}', dst=[], src=[])
        a.ins('s_mov_b32 exec_hi, 0', dst=[], src=[])
    else:
        a.ins('s_mov_b32 exec_lo, -1', dst=[], src=[])
        a.ins(f's_mov_b32 exec_hi, {hex((1 << (n - 32)) - 1)}', dst=[], src=[])

def stamp(idx, base_s, vt, dyn=None):
    if not DIAG:
        return
    a.ins('s_memrealtime s[100:101]')
    a.ins('s_waitcnt lgkmcnt(0)')
    a.lg = []
    a.ins(f'v_mov_b32 v{vt}, s100')
    a.ins(f'v_mov_b32 v{vt+1}, 0')
    if dyn is None:
        a.ins(f's_add_u32 s101, s{base_s}, {idx*4}')
    else:
        a.ins(f's_add_u32 s101, s{base_s}, s{dyn}')
        a.ins(f's_add_u32 s101, s101, {idx*4}')
    a.vmem(f'buffer_store_dword v{vt}, v{vt+1}, s[64:67], s101 offen', 'stamp')

def flags_addr(va, stage):
    if stage == 1:
        a.ins(f'v_min_u32 v{va}, 11, v0')
        a.ins(f'v_lshlrev_b32 v{va}, 2, v{va}')
    else:
        a.ins(f'v_min_u32 v{va}, 23, v0')
        a.ins(f'v_lshlrev_b32 v{va}, 2, v{va}')
        a.ins(f'v_add_u32 v{va}, 128, v{va}')

def flags_check(vreg, stage):
    a.ins(f'v_cmp_ne_u32 vcc, {1 if stage == 1 else "0x10001"}, v{vreg}')

def wait_flags(stage, va=254, plain_first=True):
    L = newlab('Lar'); D = newlab('Lad')
    smov(75, SPIN_MAX)
    flags_addr(va, stage)
    if plain_first:
        a.ins(f'global_load_dword v{va+1}, v{va}, s[28:29]')
        a.ins('s_waitcnt vmcnt(0)')
        flags_check(va + 1, stage)
        a.ins(f's_cbranch_vccz {D}')
    a.label(L)
    a.ins(f'global_load_dword v{va+1}, v{va}, s[28:29] sc1')
    a.ins('s_waitcnt vmcnt(0)')
    a.vm = []
    flags_check(va + 1, stage)
    a.ins(f's_cbranch_vccz {D}')
    a.ins('s_sleep 8')
    a.ins('s_sub_u32 s75, s75, 1')
    a.ins('s_cmp_lg_u32 s75, 0')
    a.ins(f's_cbranch_scc1 {L}')
    a.label(D)
    a.fence_hazards()

def set_flag(stage):
    L = only_wave0_begin()
    if stage == 1:
        a.ins('s_lshl_b32 s4, s2, 2')
    else:
        a.ins('s_lshl_b32 s4, s2, 1')
        a.ins('s_add_u32 s4, s4, 128')
    a.ins('v_mov_b32 v150, s4')
    a.ins('v_mov_b32 v151, 1')
    set_exec_lanes(1)
    a.ins(f'global_store_{"dword" if stage == 1 else "short"} v150, v151, s[28:29] sc1')
    set_exec_lanes(64)
    a.label(L)
    a.fence_hazards()

SU_W = 56
SU_ACC = 96
SU_X = 226
SU_RED = 20480

def startup1():
    srd(96, 8, 9, 4 * 1280)
    a.ins('v_lshlrev_b32 v254, 2, v0')
    a.ins('s_mul_i32 s76, s3, 1280')
    for k in range(5):
        a.vmem(f'buffer_load_dword v{SU_X+k}, v254, s[96:99], s76 offen offset:{k*256}', 'sux')
    a.ins('s_mul_i32 s4, s2, 48')
    a.ins(f's_sub_u32 s5, {640*12288}, s4')
    srd_off(92, 14, 15, 4, 's5')
    a.ins('v_and_b32 v255, 15, v0')
    a.ins(f'v_mul_u32_u24 v255, {10*12288}, v255')
    a.ins('v_lshrrev_b32 v128, 4, v0')
    a.ins('v_min_u32 v128, 2, v128')
    a.ins('v_lshl_add_u32 v255, v128, 4, v255')
    a.ins(f's_mul_i32 s4, s3, {160*12288}')
    for i in range(10):
        a.ins(f's_add_u32 s76, s4, {i*12288}')
        a.vmem(f'buffer_load_dwordx4 v[{SU_W+4*i}:{SU_W+4*i+3}], v255, s[92:95], s76 offen', 'suw')

def startup2a(topup=None, st=False, after_x=None):
    X = SU_X
    a.wait_vm('sux')
    if after_x:
        after_x()
    if st: stamp(56, 78, 252)
    xs = X + 5
    for k in range(5):
        a.ins(f'v_lshlrev_b32 v{xs+2*k}, 16, v{X+k}')
        a.ins(f'v_and_b32 v{xs+2*k+1}, 0xffff0000, v{X+k}')
    A = SU_ACC
    t, u, mean, var = A, A + 1, A + 2, A + 3
    d0, q0, e0 = A + 4, A + 14, X + 15
    a.ins(f'v_add_f32 v{t}, v{xs}, v{xs+1}')
    for i in range(2, 10):
        a.ins(f'v_add_f32 v{t}, v{t}, v{xs+i}')
    wave_sum(t, u)
    a.ins(f'v_mul_f32 v{mean}, {hex(f32(1.0/640))}, v{t}')
    for i in range(10):
        a.ins(f'v_sub_f32 v{d0+i}, v{xs+i}, v{mean}')
    a.ins(f'v_mul_f32 v{t}, v{d0}, v{d0}')
    for i in range(1, 10):
        a.ins(f'v_fmac_f32 v{t}, v{d0+i}, v{d0+i}')
    wave_sum(t, u)
    a.ins(f'v_mul_f32 v{var}, {hex(f32(1.0/640))}, v{t}')
    bf16r(mean, mean)
    bf16r(var, var)
    a.ins(f'v_add_f32 v{var}, {hex(f32(1e-5))}, v{var}')
    bf16r(var, var)
    a.ins(f'v_sqrt_f32 v{var}, v{var}')
    bf16r(var, var)
    a.ins(f'v_rcp_f32 v{u}, v{var}')
    for i in range(10):
        a.ins(f'v_sub_f32 v{d0+i}, v{xs+i}, v{mean}')
    for i in range(10):
        bf16r(d0 + i, d0 + i)
    for i in range(10):
        a.ins(f'v_mul_f32 v{q0+i}, v{d0+i}, v{u}')
    for i in range(10):
        a.ins(f'v_fma_f32 v{e0+i}, -v{q0+i}, v{var}, v{d0+i}')
    for i in range(10):
        a.ins(f'v_fma_f32 v{q0+i}, v{e0+i}, v{u}, v{q0+i}')
    a.ins('s_mul_i32 s4, s3, 5120')
    a.ins('v_lshlrev_b32 v254, 4, v0')
    a.ins('v_add_u32 v254, s4, v254')
    r = A + 24
    for k in range(5):
        a.ins(f'v_cvt_pk_bf16_f32 v{r}, v{q0+2*k}, 0')
        a.ins(f'v_cvt_pk_bf16_f32 v{r+1}, 0, v{q0+2*k}')
        a.ins(f'v_cvt_pk_bf16_f32 v{r+2}, v{q0+2*k+1}, 0')
        a.ins(f'v_cvt_pk_bf16_f32 v{r+3}, 0, v{q0+2*k+1}')
        a.lds(f'ds_write_b128 v254, v[{r}:{r+3}] offset:{k*1024}')
        a.wait_lg_all()
    a.barrier()
    if st: stamp(57, 78, 252)
    a.ins('v_and_b32 v254, 15, v0')
    a.ins('v_mul_u32_u24 v254, 80, v254')
    a.ins('s_mul_i32 s4, s3, 1280')
    a.ins('v_add_u32 v254, s4, v254')
    for k in range(32):
        a.ins(f'v_mov_b32 v{SU_ACC+k}, 0')
    a.wait_vm('suw')
    if st: stamp(58, 78, 252)
    for b in range(4):
        for k in range(5):
            a.lds(f'ds_read_b128 v[{X+4*k}:{X+4*k+3}], v254 offset:{b*5120 + k*16}')
        a.wait_lg_all()
        for i in range(10):
            m_gv8(SU_W + 4 * i, X + 2 * i, SU_ACC + 8 * b)
    for pat in ('quad_perm:[1,0,3,2]', 'quad_perm:[2,3,0,1]', 'row_half_mirror', 'row_mirror'):
        for k in range(32):
            a.ins(f'v_add_f32_dpp v{SU_ACC+k}, v{SU_ACC+k}, v{SU_ACC+k} {pat} {DPP}')
    a.ins('v_lshrrev_b32 v254, 4, v0')
    a.ins('v_lshlrev_b32 v254, 7, v254')
    a.ins('s_mul_i32 s4, s3, 384')
    a.ins(f's_add_u32 s4, s4, {SU_RED}')
    a.ins('v_add_u32 v254, s4, v254')
    a.ins('s_mov_b32 exec_lo, 0x10001', dst=[], src=[])
    a.ins('s_mov_b32 exec_hi, 1', dst=[], src=[])
    for k in range(8):
        a.lds(f'ds_write_b128 v254, v[{SU_ACC+4*k}:{SU_ACC+4*k+3}] offset:{k*16}')
    set_exec_lanes(64)
    if topup:
        topup()
    if st: stamp(59, 78, 252)
    a.barrier()
    if st: stamp(60, 78, 252)

def startup2b(st=False):
    a.ins('v_mul_u32_u24 v254, 171, v0')
    a.ins('v_lshrrev_b32 v254, 9, v254')
    a.ins('v_mul_u32_u24 v255, 3, v254')
    a.ins('v_sub_u32 v255, v0, v255')
    a.ins('v_lshlrev_b32 v128, 7, v255')
    a.ins('v_lshl_add_u32 v128, v254, 5, v128')
    a.ins('v_and_b32 v128, 0x1ff, v128')
    for wv in range(4):
        a.lds(f'ds_read_b128 v[{SU_W+8*wv}:{SU_W+8*wv+3}], v128 offset:{SU_RED + wv*384}')
        a.lds(f'ds_read_b128 v[{SU_W+8*wv+4}:{SU_W+8*wv+7}], v128 offset:{SU_RED + wv*384 + 16}')
    a.wait_lg_all()
    for wv in range(1, 4):
        for e in range(8):
            a.ins(f'v_add_f32 v{SU_W+e}, v{SU_W+e}, v{SU_W+8*wv+e}')
    for e in range(4):
        a.ins(f'v_cvt_pk_bf16_f32 v{SU_ACC+e}, v{SU_W+2*e}, v{SU_W+2*e+1}')
    a.ins('v_mul_u32_u24 v254, 12288, v254')
    a.ins('v_lshl_add_u32 v254, v255, 4, v254')
    if st: stamp(61, 78, 250)
    wait_flags(1, 252)
    if st: stamp(62, 78, 250)
    a.ins('s_mul_i32 s76, s2, 48')
    a.ins(f's_add_u32 s76, s76, {hex(Q_OFF)}')
    set_exec_lanes(12)
    a.vmem(f'buffer_store_dwordx4 v[{SU_ACC}:{SU_ACC+3}], v254, s[64:67], s76 offen sc1', 'q1pub')
    set_exec_lanes(64)

RING = [8, 20, 32, 44, 56, 68]
T0, T1 = 56, 68
XRING = int(os.environ.get('XRING', '0'))
Q, QS = 80, 92
ST = 104
VSLOT = 130
NVS = 8
WK = 226

def srd_k(b): return 32 + 8 * b
def srd_v(b): return 36 + 8 * b

def r_storage(kind, t):
    if t >= NR:
        return ('c',)
    if kind == 'K':
        return ('a', 12 * t)
    if t < NVS:
        return ('v', VSLOT + 12 * t)
    return ('l', t - NVS)

def groups_of(tiles):
    return [tiles[i:i + 2] for i in range(0, len(tiles), 2)]

class Stream:
    def __init__(self):
        self.P = SCHED
        self.LQ = []
        for pi, (ty, ps, b, tiles) in enumerate(self.P):
            for grp in groups_of(tiles):
                for kind in ('K', 'V'):
                    for t in grp:
                        pol = 'nt'
                        if ty == 'D':
                            if r_storage(kind, t)[0] != 'c':
                                continue
                            dest = ('r', None)
                        elif ty == 'A':
                            stg = r_storage(kind, t)
                            dest = stg if stg[0] in 'av' else ('r', None)
                            if stg[0] == 'c' and LMODE == 'def':
                                pol = ''
                        else:
                            dest = ('r', None)
                            if ps == 0:
                                pol = NPOL
                        self.LQ.append({'pi': pi, 'kind': kind, 't': t, 'b': b, 'dest': dest, 'pol': pol})
        self.lqi = 0
        self.nissued = 0
        self.ring_free = [True] * 6
        self.ring_next = 0
        self.t_ok = False
        self.ded_free = {}
        self.d_done = set()
        self.cur_pi = 0
        self.loc = {}
        self.last_A = max(i for i, p in enumerate(self.P) if p[0] == 'A')
        self.all_ded = [r_storage(k, t) for t in R_T for k in 'KV' if r_storage(k, t)[0] in 'av']

    def ring_alloc(self, e=None):
        n = 4
        if XRING and e is not None and all(self.P[p][0] == 'N' for p in range(self.cur_pi, e['pi'] + 1)) \
                and e['pi'] != len(self.P) - 1 and self.t_ok:
            n = 6
        for s in range(n):
            if self.ring_free[s]:
                self.ring_free[s] = False
                return s
        return None

    def _issue_one(self, e):
        if e['dest'][0] == 'r':
            s = self.ring_alloc(e)
            if s is not None:
                kind, base = 'v', RING[s]
                self.loc[(e['pi'], e['kind'], e['t'])] = ('r', s)
            else:
                key = None
                if self.cur_pi > self.last_A and e['pi'] == len(self.P) - 1:
                    for k in self.all_ded:
                        if self.ded_free.get(k, True):
                            key = k
                            break
                if key is None:
                    return False
                self.ded_free[key] = False
                kind, base = key
                self.loc[(e['pi'], e['kind'], e['t'])] = ('x', key)
        else:
            key = e['dest']
            if not self.ded_free.get(key, True):
                return False
            self.ded_free[key] = False
            kind, base = key
            self.loc[(e['pi'], e['kind'], e['t'])] = key
        smov(76, e['t'] * 3072)
        sd = srd_k(e['b']) if e['kind'] == 'K' else srd_v(e['b'])
        m_ldt(kind, base, sd, ('T', e['pi'], e['kind'], e['t']), e['pol'])
        if LMODE == 'touch' and self.P[e['pi']][0] == 'A' and r_storage(e['kind'], e['t'])[0] == 'c':
            a.vmem(f'buffer_load_dword v249, v248, s[{sd}:{sd+3}], s76 offen sc1', 'touch')
        e['done'] = True
        self.nissued += 1
        return True

    def try_issue(self, cap=None, limit=None):
        if cap is None:
            cap = int(os.environ.get('CAP', '54'))
        while True:
            if len(a.vm) + 4 > cap:
                return
            if limit is not None and self.nissued >= limit:
                return
            cand = []
            seen = set()
            for i in range(self.lqi, len(self.LQ)):
                e = self.LQ[i]
                if e.get('done'):
                    continue
                c = 'r' if e['dest'][0] == 'r' else 'd'
                if c not in seen:
                    seen.add(c)
                    cand.append(e)
                if len(seen) == 2:
                    break
            ok = False
            for e in cand:
                if self._issue_one(e):
                    ok = True
                    break
            while self.lqi < len(self.LQ) and self.LQ[self.lqi].get('done'):
                self.lqi += 1
            if not ok:
                return

    def q_issue(self, ps, b):
        a.ins(f's_add_u32 s76, s72, {hex((ps * 4 + b) * 32 * 384)}')
        for i in range(3):
            off = f' offset:{i*128}' if i else ''
            a.vmem(f'buffer_load_dwordx4 v[{QS+4*i}:{QS+4*i+3}], v2, s[64:67], s76 offen{off} sc1', ('Q', ps, b))

    def q_check(self):
        w = WK
        a.ins(f'v_max3_u32 v{w}, v{QS}, v{QS+1}, v{QS+2}')
        for k in range(3, 12, 2):
            k2 = min(k + 1, 11)
            a.ins(f'v_max3_u32 v{w}, v{w}, v{QS+k}, v{QS+k2}')
        a.ins(f'v_cmp_eq_u32 vcc, -1, v{w}')

    def q_take(self, ps, b):
        a.wait_vm(('Q', ps, b))
        OK = newlab('Lqo'); RT = newlab('Lqr')
        self.q_check()
        a.ins(f's_cbranch_vccz {OK}')
        smov(75, SPIN_MAX)
        a.label(RT)
        a.ins('s_sleep 2')
        a.ins(f's_add_u32 s77, s72, {hex((ps * 4 + b) * 32 * 384)}')
        for i in range(3):
            off = f' offset:{i*128}' if i else ''
            a.ins(f'buffer_load_dwordx4 v[{QS+4*i}:{QS+4*i+3}], v2, s[64:67], s77 offen{off} sc1')
        a.ins('s_waitcnt vmcnt(0)')
        self.q_check()
        a.ins(f's_cbranch_vccz {OK}')
        a.ins('s_sub_u32 s75, s75, 1')
        a.ins('s_cmp_lg_u32 s75, 0')
        a.ins(f's_cbranch_scc1 {RT}')
        a.label(OK)
        for k in range(12):
            a.ins(f'v_mov_b32 v{Q+k}, v{QS+k}')

    def get_tile(self, pi, ty, kind, t, tmp):
        if ty == 'D' and r_storage(kind, t)[0] != 'c':
            stg = r_storage(kind, t)
            if stg[0] == 'a':
                m_acr(tmp, stg[1])
                self.ded_free[stg] = True
                return tmp, None
            if stg[0] == 'v':
                return stg[1], ('ded', stg)
            a.wait_lg(('L', pi, t))
            return tmp, None
        a.wait_vm(('T', pi, kind, t))
        loc = self.loc[(pi, kind, t)]
        if loc[0] == 'x':
            key = loc[1]
            if key[0] == 'a':
                m_acr(tmp, key[1])
                self.ded_free[key] = True
                return tmp, None
            return key[1], ('ded', key)
        if loc[0] == 'a':
            m_acr(tmp, loc[1])
            return tmp, None
        if loc[0] == 'v':
            return loc[1], None
        return RING[loc[1]], ('ring', loc[1])

    def touch(self, pi, ty, kind, t):
        if ty != 'A' or r_storage(kind, t)[0] != 'c':
            return
        b = self.P[pi][2]
        sd = srd_k(b) if kind == 'K' else srd_v(b)
        smov(76, t * 3072)
        a.vmem(f'buffer_load_dword v249, v248, s[{sd}:{sd+3}], s76 offen sc1', 'touch')

    def release(self, rel):
        if rel is None:
            return
        if rel[0] == 'ring':
            self.ring_free[rel[1]] = True
        else:
            self.ded_free[rel[1]] = True

    def lds_prefetch(self, pi, t, tmp):
        slot = t - NVS
        for i in range(3):
            a.lds(f'ds_read_b128 v[{tmp+4*i}:{tmp+4*i+3}], v3 offset:{slot*3072+i*1024}', ('L', pi, t))

    def group(self, pi, ty, grp, last_group):
        st = ST
        acc, m, l = st, st + 24, st + 25
        s = WK
        sa, sb = WK, WK + 3
        mn, cm, al = WK + 6, WK + 7, WK + 8
        pa, pb = WK + 9, WK + 10
        PA, PB = WK + 12, WK + 14
        two = len(grp) == 2
        ta, ra = self.get_tile(pi, ty, 'K', grp[0], T0)
        if two:
            tb, rb = self.get_tile(pi, ty, 'K', grp[1], T1)
            m_qk2(ta, tb, Q, s)
            self.release(ra); self.release(rb)
        else:
            for i, o in enumerate((0, 4, 8)):
                a.ins(f'v_dot2_f32_bf16 v{s+i}, v{ta+o}, v{Q+o}, 0')
            for k in (1, 2, 3):
                for i, o in enumerate((0, 4, 8)):
                    a.ins(f'v_dot2c_f32_bf16 v{s+i}, v{ta+o+k}, v{Q+o+k}')
            self.release(ra)
        if ty == 'D':
            for t, tmp in zip(grp, (T0, T1)):
                if r_storage('V', t)[0] == 'l':
                    self.lds_prefetch(pi, t, tmp)
        self.try_issue()
        a.ins(f'v_add_f32 v{sa}, v{s}, v{s+1}')
        a.ins(f'v_add_f32 v{sa}, v{sa}, v{s+2}')
        if two:
            a.ins(f'v_add_f32 v{sb}, v{s+3}, v{s+4}')
            a.ins(f'v_add_f32 v{sb}, v{sb}, v{s+5}')
        for pat in ('quad_perm:[1,0,3,2]', 'quad_perm:[2,3,0,1]', 'row_half_mirror'):
            a.ins(f'v_add_f32_dpp v{sa}, v{sa}, v{sa} {pat} {DPP}')
            if two:
                a.ins(f'v_add_f32_dpp v{sb}, v{sb}, v{sb} {pat} {DPP}')
        if grp[-1] == NT_ALL - 1:
            x = sb if two else sa
            a.ins(f'v_add_f32 v{x}, s{80+self.P[pi][2]}, v{x}')
        if two:
            a.ins(f'v_max3_f32 v{mn}, v{m}, v{sa}, v{sb}')
        else:
            a.ins(f'v_max_f32 v{mn}, v{m}, v{sa}')
        a.ins(f'v_cmp_gt_f32 vcc, v{mn}, v{m}')
        SK = newlab('Lsk')
        a.ins(f's_cbranch_vccz {SK}')
        a.ins(f'v_sub_f32 v{al}, v{m}, v{mn}')
        a.ins(f'v_mul_f32 v{al}, s74, v{al}')
        a.ins(f'v_exp_f32 v{al}, v{al}')
        a.ins(f'v_mov_b32 v{m}, v{mn}')
        m_resc(acc, al)
        a.ins(f'v_mul_f32 v{l}, v{al}, v{l}')
        a.label(SK)
        a.ins(f'v_mul_f32 v{cm}, s74, v{m}')
        a.ins(f'v_fma_f32 v{pa}, v{sa}, s74, -v{cm}')
        if two:
            a.ins(f'v_fma_f32 v{pb}, v{sb}, s74, -v{cm}')
        a.ins(f'v_exp_f32 v{pa}, v{pa}')
        if two:
            a.ins(f'v_exp_f32 v{pb}, v{pb}')
        a.ins(f'v_cvt_pk_bf16_f32 v{PA}, v{pa}, 0')
        a.ins(f'v_cvt_pk_bf16_f32 v{PA+1}, 0, v{pa}')
        if two:
            a.ins(f'v_cvt_pk_bf16_f32 v{PB}, v{pb}, 0')
            a.ins(f'v_cvt_pk_bf16_f32 v{PB+1}, 0, v{pb}')
        a.ins(f'v_add_f32 v{l}, v{l}, v{PA+1}')
        if two:
            a.ins(f'v_add_f32 v{l}, v{l}, v{PB+1}')
        for (t, P, tmp) in list(zip(grp, (PA, PB), (T0, T1))):
            tv, rv = self.get_tile(pi, ty, 'V', t, tmp)
            m_pv(tv, P, acc)
            if ty == 'A' and r_storage('V', t)[0] == 'l':
                slot = t - NVS
                for i in range(3):
                    a.lds(f'ds_write_b128 v3, v[{tv+4*i}:{tv+4*i+3}] offset:{slot*3072+i*1024}', ('W', pi, t))
            self.release(rv)
            self.try_issue()

    def publish(self, st, c):
        acc, m, l = st, st + 24, st + 25
        M, u, sc = WK, WK + 1, WK + 2
        a.ins(f'v_max_f32_dpp v{M}, v{m}, v{m} row_ror:8 {DPP}')
        a.ins(f'v_mov_b32 v{u}, v{M}')
        a.ins(f'v_permlane16_swap_b32 v{M}, v{u}')
        a.ins(f'v_max_f32 v{M}, v{M}, v{u}')
        a.ins(f'v_mov_b32 v{u}, v{M}')
        a.ins(f'v_permlane32_swap_b32 v{M}, v{u}')
        a.ins(f'v_max_f32 v{M}, v{M}, v{u}')
        a.ins(f'v_sub_f32 v{sc}, v{m}, v{M}')
        a.ins(f'v_mul_f32 v{sc}, s74, v{sc}')
        a.ins(f'v_exp_f32 v{sc}, v{sc}')
        a.ins(f'v_mul_f32 v{M}, s74, v{M}')
        m_resc(acc, sc)
        a.ins(f'v_mul_f32 v{l}, v{sc}, v{l}')
        a.ins(f'v_add_f32_dpp v{l}, v{l}, v{l} row_ror:8 {DPP}')
        a.ins(f'v_mov_b32 v{u}, v{l}')
        a.ins(f'v_permlane16_swap_b32 v{l}, v{u}')
        a.ins(f'v_add_f32 v{l}, v{l}, v{u}')
        a.ins(f'v_mov_b32 v{u}, v{l}')
        a.ins(f'v_permlane32_swap_b32 v{l}, v{u}')
        a.ins(f'v_add_f32 v{l}, v{l}, v{u}')
        for k in range(12):
            a.ins(f'v_permlane32_swap_b32 v{acc+k}, v{acc+k+12}')
        for k in range(12):
            a.ins(f'v_add_f32 v{acc+k}, v{acc+k}, v{acc+k+12}')
        for k in range(6):
            a.ins(f'v_permlane16_swap_b32 v{acc+k}, v{acc+k+6}')
        for k in range(6):
            a.ins(f'v_add_f32 v{acc+k}, v{acc+k}, v{acc+k+6}')
        for k in range(6):
            a.ins(f'v_add_f32_dpp v{acc+k}, v{acc+k}, v{acc+k} row_ror:8 {DPP}')
        t1, t2 = WK + 3, WK + 4
        for k in range(6):
            a.ins(f'v_add_u32 v{t1}, {k}, v7')
            a.ins(f'v_lshrrev_b32 v{t2}, 3, v{t1}')
            a.ins(f'v_and_b32 v{t1}, 7, v{t1}')
            a.ins(f'v_lshlrev_b32 v{t2}, 6, v{t2}')
            a.ins(f'v_add_u32 v{t1}, v{t1}, v{t2}')
            a.ins(f'v_lshl_add_u32 v{t1}, v{t1}, 2, v4')
            a.lds(f'ds_write_b32 v{t1}, v{acc+k}')
        z = WK + 8
        a.ins(f'v_mov_b32 v{z}, v{M}')
        a.ins(f'v_mov_b32 v{z+1}, v{l}')
        a.ins(f'v_mov_b32 v{z+2}, 0')
        a.ins(f'v_mov_b32 v{z+3}, 0')
        a.ins(f'v_and_b32 v{t1}, 0xffffff1f, v4')
        a.lds(f'ds_write_b128 v{t1}, v[{z}:{z+3}] offset:768')
        a.wait_lg_all()
        a.lds(f'ds_read_b128 v[{z}:{z+3}], v5')
        a.wait_lg_all()
        a.ins(f's_add_u32 s76, s73, {hex(c * PART_C)}')
        set_exec_lanes(49)
        a.vmem(f'buffer_store_dwordx4 v[{z}:{z+3}], v6, s[64:67], s76 offen sc1', ('P', c))
        set_exec_lanes(64)

    def run(self):
        P = self.P
        stamp(0, 78, 252)
        SCAP = int(os.environ.get('SCAP', '24'))
        def fill(n_more):
            done = 0
            while done < n_more:
                before = self.nissued
                tags = [t for t in a.vm if isinstance(t, tuple) and t[0] == 'T']
                if len(tags) + 3 > SCAP:
                    a.wait_vm(tags[2])
                self.try_issue(cap=len(a.vm) + 4)
                if self.nissued == before:
                    break
                done += self.nissued - before
        def snapshot():
            return (self.lqi, self.nissued, list(self.ring_free), self.ring_next, dict(self.ded_free), dict(self.loc), list(a.vm), [e.get('done', False) for e in self.LQ])
        def restore(sn):
            self.lqi, self.nissued = sn[0], sn[1]
            self.ring_free, self.ring_next, self.ded_free, self.loc, a.vm = list(sn[2]), sn[3], dict(sn[4]), dict(sn[5]), list(sn[6])
            for e, d in zip(self.LQ, sn[7]):
                e['done'] = d
        FLAG_LDS = 3 * 40960 + 39936 + 1016
        a.ins(f'v_mov_b32 v250, {FLAG_LDS}')
        a.ins('v_mov_b32 v251, 0')
        a.lds('ds_write_b32 v250, v251')
        startup2a(after_x=lambda: self.try_issue(cap=len(a.vm) + SCAP), st=True)
        sv = list(a.vm)
        L0 = only_wave0_begin()
        startup2b(st=True)
        a.ins(f'v_mov_b32 v250, {FLAG_LDS}')
        a.ins('v_mov_b32 v251, 1')
        a.lds('ds_write_b32 v250, v251')
        only_wave0_end(L0)
        a.vm = sv
        fill(100)
        LF = newlab('Llf'); LD = newlab('Lld')
        smov(75, SPIN_MAX)
        a.ins(f'v_mov_b32 v250, {FLAG_LDS}')
        a.label(LF)
        a.ins('ds_read_b32 v251, v250')
        a.ins('s_waitcnt lgkmcnt(0)')
        a.ins('v_cmp_ne_u32 vcc, 1, v251')
        a.ins(f's_cbranch_vccz {LD}')
        a.ins('s_sleep 1')
        a.ins('s_sub_u32 s75, s75, 1')
        a.ins('s_cmp_lg_u32 s75, 0')
        a.ins(f's_cbranch_scc1 {LF}')
        a.label(LD)
        a.fence_hazards()
        stamp(1, 78, 252)
        a.ins('v_min_u32 v248, 23, v0')
        a.ins('v_lshlrev_b32 v248, 7, v248')
        self.q_issue(P[0][1], P[0][2])
        for pi, (ty, ps, b, tiles) in enumerate(P):
            a.comment(f'---- phase {pi}: {ty} pass{ps} b{b}')
            self.cur_pi = pi
            self.t_ok = (ty == 'N')
            assert ty == 'N' or (self.ring_free[4] and self.ring_free[5])
            stamp(2 + 3 * pi, 78, 252)
            self.q_take(ps, b)
            stamp(3 + 3 * pi, 78, 252)
            for k in range(24):
                a.ins(f'v_mov_b32 v{ST+k}, 0')
            a.ins(f'v_mov_b32 v{ST+24}, 0xf149f2ca')
            a.ins(f'v_mov_b32 v{ST+25}, 0')
            gs = groups_of(tiles)
            for g, grp in enumerate(gs):
                qlead = int(os.environ.get('QLEAD', '3')) if (pi + 1 < len(P) and P[pi + 1][0] == 'D') else 3
                if g == len(gs) - qlead and pi + 1 < len(P):
                    self.q_issue(P[pi + 1][1], P[pi + 1][2])
                if g == len(gs) - 4 and pi == 0:
                    flags_addr(250, 2)
                    a.vmem('global_load_dword v251, v250, s[28:29]', 'fl2')
                self.group(pi, ty, grp, g == len(gs) - 1)
                if ty == 'D' and g >= int(os.environ.get('DPOP', '7')):
                    tags = [t for t in a.vm if isinstance(t, tuple) and t[0] == 'T']
                    if len(a.vm) + 4 > int(os.environ.get('CAP', '54')) and len(tags) >= 12:
                        a.wait_vm(tags[5])
                        self.try_issue()
            if pi == 0:
                a.wait_vm('fl2')
                FO = newlab('Lfo')
                flags_check(251, 2)
                a.ins(f's_cbranch_vccz {FO}')
                sv = list(a.vm)
                wait_flags(2, 250, plain_first=False)
                a.vm = sv
                a.label(FO)
                a.fence_hazards()
            self.publish(ST, pi)
            stamp(4 + 3 * pi, 78, 252)
            self.try_issue()
        a.ins('s_waitcnt vmcnt(0)')
        a.ins('s_endpgm')

def gen_stream():
    a.label('L_stream')
    startup1()
    a.ins(f's_sub_u32 s4, s2, {NCH}')
    a.ins('s_lshl_b32 s4, s4, 2')
    a.ins('s_add_u32 s4, s4, s3')
    a.ins('s_mul_i32 s5, s4, 2521')
    a.ins('s_lshr_b32 s5, s5, 16')
    a.ins(f's_mul_i32 s6, s5, {WPH}')
    a.ins('s_sub_u32 s6, s4, s6')
    ROT = int(os.environ.get('ROT', '1'))
    a.ins('s_mul_i32 s70, s5, 3145728')
    for b in range(4):
        al = ((26 - 7 * b) % 26) if ROT else 0
        if al + 10 <= 26:
            a.ins(f's_sub_i32 s7, s6, {al}')
            a.ins('s_max_i32 s7, s7, 0')
            a.ins('s_min_i32 s7, s7, 10')
            a.ins(f's_sub_u32 s68, s6, {al}')
            a.ins('s_cmp_lt_u32 s68, 10')
        else:
            wr = al + 10 - 26
            a.ins(f's_min_u32 s7, s6, {wr}')
            a.ins(f's_sub_i32 s68, s6, {al}')
            a.ins('s_max_i32 s68, s68, 0')
            a.ins('s_add_u32 s7, s7, s68')
            a.ins(f's_sub_u32 s68, s6, {wr}')
            a.ins(f's_cmp_ge_u32 s68, {al - wr}')
        a.ins('s_cselect_b32 s68, 40, 39')
        a.ins(f's_cselect_b32 s{80+b}, 0, 0xff800000')
        a.ins('s_mul_i32 s68, s68, 3072')
        a.ins('s_mul_i32 s71, s6, 39')
        a.ins('s_add_u32 s7, s7, s71')
        a.ins('s_mul_i32 s71, s7, 3072')
        a.ins('s_add_u32 s71, s71, s70')
        a.ins(f's_add_u32 s71, s71, {hex(b * BATCH_STRIDE)}')
        srd_off(srd_k(b), 10, 11, 71, 's68')
        srd_off(srd_v(b), 12, 13, 71, 's68')
    a.ins('s_mul_i32 s72, s5, 384')
    a.ins(f's_add_u32 s72, s72, {hex(Q_OFF)}')
    a.ins(f's_mul_i32 s73, s4, {REC}')
    smov(74, CSCALE)
    a.ins('s_lshl_b32 s78, s4, 8')
    a.ins(f's_add_u32 s78, s78, {hex(STAMP_OFF)}')
    a.ins('v_lshrrev_b32 v1, 3, v0')
    a.ins('v_mul_u32_u24 v1, 384, v1')
    a.ins('v_and_b32 v2, 7, v0')
    a.ins('v_lshlrev_b32 v2, 4, v2')
    a.ins('v_add_u32 v1, v1, v2')
    a.ins('s_mul_i32 s71, s3, 40960')
    a.ins('v_lshlrev_b32 v6, 4, v0')
    a.ins('v_add_u32 v3, s71, v6')
    a.ins('s_add_u32 s71, s71, 39936')
    a.ins('v_add_u32 v5, s71, v6')
    a.ins('v_lshlrev_b32 v4, 1, v2')
    a.ins('v_add_u32 v4, s71, v4')
    a.ins('v_bfe_u32 v7, v0, 4, 1')
    a.ins('v_mul_u32_u24 v7, 6, v7')
    a.ins('v_bfe_u32 v254, v0, 5, 1')
    a.ins('v_mul_u32_u24 v254, 12, v254')
    a.ins('v_add_u32 v7, v7, v254')
    Stream().run()

XS = 0
RED = 5120
XRES = 25600
X1 = 35840
WL = 38912
X1A = 100352
W1 = 128

def vm_auto(text):
    if len(a.vm) >= 60:
        a.ins('s_waitcnt vmcnt(30)')
        a.vm = a.vm[-30:]
    a.vmem(text, None)

def wave_sum(t, u):
    for pat in ('quad_perm:[1,0,3,2]', 'quad_perm:[2,3,0,1]', 'row_half_mirror', 'row_mirror'):
        a.ins(f'v_add_f32_dpp v{t}, v{t}, v{t} {pat} {DPP}')
    a.ins(f'v_mov_b32 v{u}, v{t}')
    a.ins(f'v_permlane16_swap_b32 v{t}, v{u}')
    a.ins(f'v_add_f32 v{t}, v{t}, v{u}')
    a.ins(f'v_mov_b32 v{u}, v{t}')
    a.ins(f'v_permlane32_swap_b32 v{t}, v{u}')
    a.ins(f'v_add_f32 v{t}, v{t}, v{u}')

def bf16r(d, s):
    a.ins(f'v_cvt_pk_bf16_f32 v{d}, 0, v{s}')

def poll_indicator(voff, nl, sreg):
    L = newlab('Lpi'); D = newlab('Lpd')
    smov(75, SPIN_MAX)
    set_exec_lanes(nl)
    a.label(L)
    a.ins(f'buffer_load_dword v127, v{voff}, s[64:67], s{sreg} offen sc1')
    a.ins('s_waitcnt vmcnt(0)')
    if os.environ.get('POLL', 'any') == 'any':
        a.ins('v_cmp_ne_u32 vcc, -1, v127')
        a.ins(f's_cbranch_vccnz {D}')
    else:
        a.ins('v_cmp_eq_u32 vcc, -1, v127')
        a.ins(f's_cbranch_vccz {D}')
    a.ins(f's_sleep {os.environ.get("PSLEEP", "3")}')
    a.ins('s_sub_u32 s75, s75, 1')
    a.ins('s_cmp_lg_u32 s75, 0')
    a.ins(f's_cbranch_scc1 {L}')
    a.label(D)
    set_exec_lanes(64)
    a.vm = []

def gather_sel(n, emit_load, reg_of, init_mask=None):
    L = newlab('Lgs'); D = newlab('Lgsd')
    if init_mask is None:
        smov(91, (1 << n) - 1)
    else:
        init_mask()
    smov(75, SPIN_MAX)
    a.label(L)
    for i in range(n):
        K = newlab('Lgk')
        a.ins(f's_bitcmp1_b32 s91, {i}')
        a.ins(f's_cbranch_scc0 {K}')
        emit_load(i)
        a.label(K)
    a.ins('s_waitcnt vmcnt(0)')
    for i in range(n):
        K = newlab('Lgc')
        r = reg_of(i)
        a.ins(f's_bitcmp1_b32 s91, {i}')
        a.ins(f's_cbranch_scc0 {K}')
        a.ins(f'v_max3_u32 v127, v{r}, v{r+1}, v{r+2}')
        a.ins(f'v_max_u32 v127, v127, v{r+3}')
        a.ins('v_cmp_eq_u32 vcc, -1, v127')
        a.ins(f's_cbranch_vccnz {K}')
        a.ins(f's_bitset0_b32 s91, {i}')
        a.label(K)
    a.ins('s_cmp_eq_u32 s91, 0')
    a.ins(f's_cbranch_scc1 {D}')
    a.ins('s_sub_u32 s75, s75, 1')
    a.ins('s_cmp_lg_u32 s75, 0')
    a.ins(f's_cbranch_scc1 {L}')
    a.label(D)
    a.fence_hazards()

def check_regs(regs, w):
    regs = list(regs)
    a.ins(f'v_max3_u32 v{w}, v{regs[0]}, v{regs[1]}, v{regs[2]}')
    k = 3
    while k < len(regs):
        k2 = min(k + 1, len(regs) - 1)
        a.ins(f'v_max3_u32 v{w}, v{w}, v{regs[k]}, v{regs[k2]}')
        k += 2
    a.ins(f'v_cmp_eq_u32 vcc, -1, v{w}')

def gather_ar(sreg):
    LSK = newlab('Lnoind')
    if os.environ.get('TAILSKIP', '0') == '1':
        a.ins('s_cmp_eq_u32 s78, 7')
        a.ins(f's_cbranch_scc1 {LSK}')
    poll_indicator(8, 8, sreg)
    a.label(LSK)
    def ld(i):
        a.ins(f's_add_u32 s76, s{sreg}, {(i // 4) * 4096}')
        off = f' offset:{(i % 4) * 1024}' if i % 4 else ''
        a.ins(f'buffer_load_dwordx4 v[{16+4*i}:{19+4*i}], v9, s[64:67], s76 offen{off} sc1')
    gather_sel(20, ld, lambda i: 16 + 4 * i)
    for grp in range(5):
        for k in range(1, 4):
            for e in range(4):
                a.ins(f'v_add_f32 v{16+4*grp+e}, v{16+4*grp+e}, v{16+4*(grp+5*k)+e}')
    for grp in range(5):
        a.lds(f'ds_write_b128 v10, v[{16+4*grp}:{19+4*grp}] offset:{grp*1024}')
    a.barrier()

def ar_sum_wave0():
    for wv in range(8):
        for k in range(5):
            r = 32 + (wv * 5 + k) * 2
            a.lds(f'ds_read_b64 v[{r}:{r+1}], v12 offset:{RED + wv*2560 + k*512}')
    a.wait_lg_all()
    for k in range(5):
        for e in range(2):
            d = 16 + 2 * k + e
            a.ins(f'v_add_f32 v{d}, v{32+2*k+e}, v{32+(5+k)*2+e}')
    for p in range(2, 8):
        for k in range(5):
            for e in range(2):
                d = 16 + 2 * k + e
                a.ins(f'v_add_f32 v{d}, v{d}, v{32+(5*p+k)*2+e}')

def residual(areg, src_off):
    for k in range(5):
        a.lds(f'ds_read_b64 v[{32+2*k}:{33+2*k}], v{areg} offset:{src_off + k*512}')
    for i in range(10):
        bf16r(16 + i, 16 + i)
    a.wait_lg_all()
    for i in range(10):
        a.ins(f'v_add_f32 v{16+i}, v{16+i}, v{32+i}')
    for i in range(10):
        bf16r(16 + i, 16 + i)

def store_x(areg, dst_off):
    for k in range(5):
        a.lds(f'ds_write_b64 v{areg}, v[{16+2*k}:{17+2*k}] offset:{dst_off + k*512}')

def layernorm_to_xs():
    t, u, mean, var = 32, 33, 34, 35
    a.ins(f'v_add_f32 v{t}, v16, v17')
    for i in range(2, 10):
        a.ins(f'v_add_f32 v{t}, v{t}, v{16+i}')
    wave_sum(t, u)
    a.ins(f'v_mul_f32 v{mean}, {hex(f32(1.0/640))}, v{t}')
    for i in range(10):
        a.ins(f'v_sub_f32 v{40+i}, v{16+i}, v{mean}')
    a.ins(f'v_mul_f32 v{t}, v40, v40')
    for i in range(1, 10):
        a.ins(f'v_fmac_f32 v{t}, v{40+i}, v{40+i}')
    wave_sum(t, u)
    a.ins(f'v_mul_f32 v{var}, {hex(f32(1.0/640))}, v{t}')
    bf16r(mean, mean)
    bf16r(var, var)
    a.ins(f'v_add_f32 v{var}, {hex(f32(1e-5))}, v{var}')
    bf16r(var, var)
    a.ins(f'v_sqrt_f32 v{var}, v{var}')
    bf16r(var, var)
    a.ins(f'v_rcp_f32 v{u}, v{var}')
    for i in range(10):
        a.ins(f'v_sub_f32 v{40+i}, v{16+i}, v{mean}')
    for i in range(10):
        bf16r(40 + i, 40 + i)
    for i in range(10):
        a.ins(f'v_mul_f32 v{50+i}, v{40+i}, v{u}')
    for i in range(10):
        a.ins(f'v_fma_f32 v{60+i}, -v{50+i}, v{var}, v{40+i}')
    for i in range(10):
        a.ins(f'v_fma_f32 v{50+i}, v{60+i}, v{u}, v{50+i}')
    for k in range(5):
        a.ins(f'v_cvt_pk_bf16_f32 v{72+k}, v{50+2*k}, v{51+2*k}')
        a.lds(f'ds_write_b32 v119, v{72+k} offset:{XS + k*256}')

def only_wave0_begin():
    L = newlab('Lw0')
    a.ins('s_cmp_lg_u32 s3, 0')
    a.ins(f's_cbranch_scc1 {L}')
    return L

def only_wave0_end(L):
    a.wait_lg_all()
    a.label(L)
    a.fence_hazards()

def gemv_rows(nrows, xaddr, wsrc, acc=56):
    for k in range(8):
        a.ins(f'v_mov_b32 v{acc+k}, 0')
    B = 4
    XB = (16, 24); WB = (64, 80)
    nb = nrows // B
    def issue(j):
        r0 = j * B
        for k in range(B // 2):
            a.lds(f'ds_read_b128 v[{XB[j%2]+4*k}:{XB[j%2]+4*k+3}], v{xaddr} offset:{(r0+2*k)*8}', ('g', j))
        for k in range(B):
            ws = wsrc(r0 + k)
            if ws[0] == 'l':
                a.lds(f'ds_read_b128 v[{WB[j%2]+4*k}:{WB[j%2]+4*k+3}], v{ws[1]} offset:{ws[2]}', ('g', j))
    issue(0)
    for j in range(nb):
        if j + 1 < nb:
            issue(j + 1)
        a.wait_lg(('g', j))
        for k in range(B):
            ws = wsrc(j * B + k)
            x = XB[j % 2] + 2 * k
            if ws[0] == 'a':
                tmp = 48 + 4 * (k % 2)
                m_ac4(tmp, ws[1])
                m_gv8(tmp, x, acc)
            elif ws[0] == 'v':
                m_gv8(ws[1], x, acc)
            else:
                m_gv8(WB[j % 2] + 4 * k, x, acc)

def write_red(addr, acc=56):
    set_exec_lanes(60)
    a.lds(f'ds_write_b128 v{addr}, v[{acc}:{acc+3}]')
    a.lds(f'ds_write_b128 v{addr}, v[{acc+4}:{acc+7}] offset:16')
    set_exec_lanes(64)
    a.barrier()

def reduce3_publish(sreg):
    L = newlab('Lr3')
    a.ins('s_cmp_eq_u32 s3, 3')
    a.ins(f's_cbranch_scc1 {L}')
    M = newlab('Lr3m')
    a.ins('s_cmp_lg_u32 s3, 2')
    a.ins(f's_cbranch_scc1 {M}')
    set_exec_lanes(32)
    a.label(M)
    for r in range(3):
        a.lds(f'ds_read_b128 v[{16+4*r}:{19+4*r}], v15 offset:{RED + r*2560}')
    a.wait_lg_all()
    for e in range(4):
        a.ins(f'v_add_f32 v{16+e}, v{16+e}, v{20+e}')
    for e in range(4):
        a.ins(f'v_add_f32 v{16+e}, v{16+e}, v{24+e}')
    a.ins(f's_add_u32 s76, s70, s{sreg}')
    a.ins('buffer_store_dwordx4 v[16:19], v15, s[64:67], s76 offen sc1')
    set_exec_lanes(64)
    a.label(L)
    a.fence_hazards()


def prep_blocks(blocks):
    TB = (16, 48); U = 80
    def issue(i):
        blocks[i][0](TB[i % 2], ('blk', i))
    issue(0)
    for i, (em, dest) in enumerate(blocks):
        if i + 1 < len(blocks):
            issue(i + 1)
        a.wait_vm(('blk', i))
        T = TB[i % 2]
        out = dest[1] if dest[0] == 'v' else U
        for d in range(4):
            for h in range(2):
                c = 2 * d + h
                for p in range(4):
                    a.ins(f'v_perm_b32 v{out+4*c+p}, v{T+4*(2*p+1)+d}, v{T+4*(2*p)+d}, s{62+h}')
        if dest[0] == 'a':
            for k in range(32):
                a.ins(f'v_accvgpr_write_b32 a{dest[1]+k}, v{U+k}')
        elif dest[0] in ('l', 'l?'):
            LS = None
            if dest[0] == 'l?':
                LS = newlab('Lpb')
                a.ins('s_cmp_ge_u32 s3, 2')
                a.ins(f's_cbranch_scc1 {LS}')
            for c in range(8):
                a.lds(f'ds_write_b128 v{dest[1]}, v[{U+4*c}:{U+4*c+3}] offset:{dest[2]+c*1024}')
            a.wait_lg_all()
            if LS:
                a.label(LS)
                a.fence_hazards()
    a.wait_lg_all()

def stage_block(dst, areg, off, tag):
    for c in range(8):
        a.lds(f'ds_read_b128 v[{dst+4*c}:{dst+4*c+3}], v{areg} offset:{off+c*1024}', tag)

def mfma_block(acc, x, kind, base, first):
    for c in range(8):
        cc = '0' if first else f'v[{acc+4*c}:{acc+4*c+3}]'
        a.ins(f'v_mfma_f32_16x16x32_bf16 v[{acc+4*c}:{acc+4*c+3}], v[{x}:{x+3}], {kind}[{base+4*c}:{base+4*c+3}], {cc}')

def extract(acc, E):
    for c in range(8):
        a.ins(f'v_mov_b32 v{E+c}, v{acc+4*c}')

def xread(dst, areg, off, tag='x'):
    a.lds(f'ds_read_b128 v[{dst}:{dst+3}], v{areg} offset:{off}', tag)

def mfma_consts():
    smov(62, 0x05040100)
    smov(63, 0x07060302)
    a.ins('v_and_b32 v3, 15, v0')
    a.ins('v_lshrrev_b32 v4, 4, v0')
    a.ins('v_lshlrev_b32 v112, 4, v4')
    a.ins(f'v_add_u32 v112, {XS}, v112')
    a.ins('s_lshl_b32 s4, s3, 6')
    a.ins('v_add_u32 v113, s4, v112')
    a.ins('s_mul_i32 s4, s3, 320')
    a.ins('v_add_u32 v114, s4, v112')

def direct_and_cb4_publish(sreg):
    pass

def publish_own(E, sreg):
    a.ins(f's_add_u32 s76, s70, s{sreg}')
    set_exec_lanes(16)
    a.ins(f'buffer_store_dwordx4 v[{E}:{E+3}], v115, s[64:67], s76 offen sc1')
    a.ins(f'buffer_store_dwordx4 v[{E+4}:{E+7}], v115, s[64:67], s76 offen offset:16 sc1')
    set_exec_lanes(64)

def publish_cb4(E, sreg):
    set_exec_lanes(16)
    a.lds(f'ds_write_b128 v116, v[{E}:{E+3}]')
    a.lds(f'ds_write_b128 v116, v[{E+4}:{E+7}] offset:16')
    set_exec_lanes(64)
    a.barrier()
    L0 = only_wave0_begin()
    for w in range(4):
        a.lds(f'ds_read_b128 v[{16+4*w}:{19+4*w}], v13 offset:{RED + w*512}')
    a.wait_lg_all()
    for w in range(1, 4):
        for e in range(4):
            a.ins(f'v_add_f32 v{16+e}, v{16+e}, v{16+4*w+e}')
    a.ins(f's_add_u32 s76, s70, s{sreg}')
    set_exec_lanes(32)
    a.ins('buffer_store_dwordx4 v[16:19], v13, s[64:67], s76 offen offset:2048 sc1')
    set_exec_lanes(64)
    only_wave0_end(L0)

def combine_records(n, first_reg, Mv, Lv, out):
    for k in range(n):
        a.ins(f'v_readlane_b32 s{40+k}, v{first_reg+4*k}, 48')
        a.ins(f'v_readlane_b32 s{48+k}, v{first_reg+4*k+1}, 48')
    a.ins(f'v_mov_b32 v{Mv}, s40')
    for k in range(1, n):
        a.ins(f'v_max_f32 v{Mv}, s{40+k}, v{Mv}')
    E = 100
    for k in range(n):
        a.ins(f'v_sub_f32 v{E+k}, s{40+k}, v{Mv}')
    for k in range(n):
        a.ins(f'v_exp_f32 v{E+k}, v{E+k}')
    a.ins(f'v_mul_f32 v{Lv}, s48, v{E}')
    for k in range(1, n):
        a.ins(f'v_fma_f32 v{Lv}, v{E+k}, s{48+k}, v{Lv}')
    for e in range(4):
        a.ins(f'v_mul_f32 v{out+e}, v{E}, v{first_reg+e}')
    for k in range(1, n):
        for e in range(4):
            a.ins(f'v_fma_f32 v{out+e}, v{E+k}, v{first_reg+4*k+e}, v{out+e}')

def combine_big(n, first_reg, Mv, Lv, out, E):
    a.ins(f'v_readlane_b32 s40, v{first_reg}, 48')
    a.ins(f'v_readlane_b32 s41, v{first_reg+4}, 48')
    a.ins(f'v_mov_b32 v{Mv}, s40')
    for k in range(1, n):
        if k + 1 < n:
            a.ins(f'v_readlane_b32 s{40+(k+1)%2}, v{first_reg+4*(k+1)}, 48')
        a.ins(f'v_max_f32 v{Mv}, s{40+k%2}, v{Mv}')
    a.ins(f'v_mov_b32 v{Lv}, 0')
    for e in range(4):
        a.ins(f'v_mov_b32 v{out+e}, 0')
    def rl(k):
        a.ins(f'v_readlane_b32 s{40+2*(k%2)}, v{first_reg+4*k}, 48')
        a.ins(f'v_readlane_b32 s{41+2*(k%2)}, v{first_reg+4*k+1}, 48')
    rl(0)
    for k in range(n):
        if k + 1 < n:
            rl(k + 1)
        e_ = E + k % 2
        a.ins(f'v_sub_f32 v{e_}, s{40+2*(k%2)}, v{Mv}')
        a.ins(f'v_exp_f32 v{e_}, v{e_}')
        a.ins(f'v_fma_f32 v{Lv}, v{e_}, s{41+2*(k%2)}, v{Lv}')
        for e in range(4):
            a.ins(f'v_fma_f32 v{out+e}, v{e_}, v{first_reg+4*k+e}, v{out+e}')

def chain_common_init():
    a.ins('s_lshl_b32 s4, s3, 6')
    a.ins('v_add_u32 v15, s4, v0')
    a.ins('v_lshlrev_b32 v15, 4, v15')
    for k in range(4):
        a.ins(f'v_mov_b32 v{16+k}, -1')
    L1 = newlab('Lst1')
    a.ins('s_cmp_ge_u32 s2, 12')
    a.ins(f's_cbranch_scc1 {L1}')
    a.ins('s_lshl_b32 s76, s2, 12')
    a.ins(f's_add_u32 s76, s76, {hex(Q_OFF)}')
    a.ins('buffer_store_dwordx4 v[16:19], v15, s[64:67], s76 offen sc1')
    a.ins('s_waitcnt vmcnt(0)')
    a.ins('s_barrier')
    set_flag(1)
    a.label(L1)
    a.fence_hazards()
    startup1()
    startup2a()
    L0 = only_wave0_begin()
    startup2b()
    only_wave0_end(L0)
    a.barrier()
    a.ins(f's_mul_i32 s4, s2, {ARM_PER}')
    for k in range(ARM_N):
        LS = newlab('Lsa')
        a.ins(f's_add_u32 s76, s4, {k*4096}')
        a.ins(f's_sub_u32 s5, s76, {hex(Q_OFF)}')
        a.ins('s_cmp_lt_u32 s5, 49152')
        a.ins(f's_cbranch_scc1 {LS}')
        a.ins('buffer_store_dwordx4 v[16:19], v15, s[64:67], s76 offen sc1')
        a.label(LS)
    a.ins('s_waitcnt vmcnt(0)')
    a.ins('s_barrier')
    set_flag(2)
    a.vm = []
    a.ins('s_lshl_b32 s4, s3, 6')
    a.ins('v_add_u32 v1, s4, v0')
    a.ins('v_lshlrev_b32 v15, 4, v1')
    a.ins('v_min_u32 v2, 59, v0')
    a.ins('s_mul_i32 s4, s3, 60')
    a.ins('v_add_u32 v2, s4, v2')
    a.ins('v_lshlrev_b32 v14, 4, v2')
    a.ins(f'v_add_u32 v14, {WL}, v14')
    a.ins('v_add_u32 v120, 61440, v14')
    a.ins('s_lshl_b32 s4, s3, 3')
    a.ins('v_add_u32 v8, s4, v0')
    a.ins('v_mul_u32_u24 v8, 2560, v8')
    a.ins('v_add_u32 v8, 2556, v8')
    a.ins('s_mul_i32 s4, s3, 20480')
    a.ins('v_lshlrev_b32 v13, 4, v0')
    a.ins('v_add_u32 v9, s4, v13')
    a.ins(f's_mul_i32 s4, s3, 5120')
    a.ins(f's_add_u32 s4, s4, {RED}')
    a.ins('v_add_u32 v10, s4, v13')
    a.ins('v_lshlrev_b32 v12, 3, v0')
    a.ins('s_lshl_b32 s4, s2, 2')
    a.ins('s_add_u32 s4, s4, s3')
    a.ins('s_lshl_b32 s77, s4, 9')
    a.ins(f's_add_u32 s77, s77, {hex(STAMP_OFF + 832*256)}')
    stamp(120, 77, 122)

def arm_arrive():
    a.wait_vm('arm')
    a.ins('s_barrier')
    L = only_wave0_begin()
    a.ins('v_mov_b32 v124, 0')
    a.ins('v_mov_b32 v125, 1')
    set_exec_lanes(1)
    a.vmem('global_atomic_add v124, v125, s[28:29] sc1', None)
    set_exec_lanes(64)
    a.label(L)
    a.fence_hazards()

def load_xres():
    L = only_wave0_begin()
    srd(96, 8, 9, 4 * 1280)
    a.ins('v_lshlrev_b32 v127, 2, v0')
    for b in range(4):
        smov(76, b * 1280)
        for k in range(5):
            a.ins(f'buffer_load_dword v{16+b*5+k}, v127, s[96:99], s76 offen offset:{k*256}')
    a.ins('s_waitcnt vmcnt(0)')
    for b in range(4):
        for k in range(5):
            r = 16 + b * 5 + k
            d = 40 + 2 * (b * 5 + k)
            a.ins(f'v_lshlrev_b32 v{d}, 16, v{r}')
            a.ins(f'v_and_b32 v{d+1}, 0xffff0000, v{r}')
            a.lds(f'ds_write_b64 v12, v[{d}:{d+1}] offset:{XRES + b*2560 + k*512}')
    only_wave0_end(L)


def gen_acu():
    a.label('L_acu')
    chain_common_init()
    mfma_consts()
    a.ins('s_mul_i32 s70, s2, 2560')
    a.ins('v_lshlrev_b32 v119, 2, v0')
    a.ins('s_mul_i32 s4, s3, 24576')
    a.ins(f's_add_u32 s4, s4, {WL}')
    a.ins('v_add_u32 v14, s4, v13')
    a.ins('s_and_b32 s4, s3, 1')
    a.ins('s_lshl_b32 s4, s4, 13')
    a.ins(f's_add_u32 s4, s4, {WL + 4*24576}')
    a.ins('v_add_u32 v120, s4, v13')
    a.ins('v_mul_u32_u24 v125, 10240, v4')
    a.ins('v_lshl_add_u32 v125, v3, 4, v125')
    a.ins('v_subrev_u32 v127, 6, v3')
    a.ins('v_min_u32 v127, 5, v127')
    a.ins('v_cmp_gt_u32 vcc, 6, v3')
    a.ins('v_cndmask_b32 v127, v127, v3, vcc')
    a.ins('v_mul_u32_u24 v126, 24576, v4')
    a.ins('v_lshl_add_u32 v126, v127, 4, v126')
    a.ins('s_mov_b64 s[88:89], vcc')
    a.ins('s_not_b64 s[90:91], vcc')
    a.ins('s_mul_i32 s4, s2, 245760')
    srd_off(96, 16, 17, 4, 245760)
    a.ins('s_mul_i32 s4, s2, 96')
    a.ins(f's_sub_u32 s5, {640*3072}, s4')
    srd_off(80, 20, 21, 4, 's5')
    srd_off(84, 22, 23, 4, 's5')
    a.ins('s_mul_i32 s4, s2, 61440')
    srd_off(92, 24, 25, 4, 61440)
    a.ins('s_lshl_b32 s40, s3, 8')
    a.ins('s_mul_i32 s41, s3, 40960')
    a.ins('s_add_u32 s41, s41, 1024')
    a.ins(f's_mul_i32 s42, s3, {160*3072}')
    def ld1280(srd_, sbase, const):
        def em(T, tag):
            for e in range(8):
                if e % 3 == 0:
                    a.ins(f's_add_u32 s76, s{sbase}, {const + (e // 3) * 3840}')
                off = f' offset:{(e % 3) * 1280}' if e % 3 else ''
                a.vmem(f'buffer_load_dwordx4 v[{T+4*e}:{T+4*e+3}], v125, s[{srd_}:{srd_+3}], s76 offen{off} nt', tag)
        return em
    def ldgu(i):
        def em(T, tag):
            for e in range(8):
                a.ins(f's_add_u32 s76, s42, {(32 * i + e) * 3072}')
                a.ins('s_mov_b64 exec, s[88:89]')
                a.vmem(f'buffer_load_dwordx4 v[{T+4*e}:{T+4*e+3}], v126, s[80:83], s76 offen nt', tag)
                a.ins('s_mov_b64 exec, s[90:91]')
                a.vmem(f'buffer_load_dwordx4 v[{T+4*e}:{T+4*e+3}], v126, s[84:87], s76 offen nt', tag)
            a.ins('s_mov_b64 exec, -1')
        return em
    blocks = []
    for ks in range(6):
        blocks.append((ld1280(96, 40, ks * 40960), ('a', 32 * ks)))
    blocks.append((ld1280(96, 41, 0), ('a', 192)))
    blocks.append((ld1280(96, 41, 4 * 40960), ('a', 224)))
    for i in range(4):
        blocks.append((ldgu(i), ('v', W1 + 32 * i)))
    blocks.append((ldgu(4), ('l', 14, 0)))
    blocks.append((ld1280(92, 40, 0), ('l', 14, 8192)))
    blocks.append((ld1280(92, 40, 40960), ('l', 14, 16384)))
    blocks.append((ld1280(92, 41, 0), ('l?', 120, 0)))
    prep_blocks(blocks)
    load_xres()
    a.ins('s_lshl_b32 s4, s3, 9')
    a.ins('v_lshlrev_b32 v115, 5, v3')
    a.ins('v_add_u32 v115, s4, v115')
    a.ins(f'v_add_u32 v116, {RED}, v115')
    a.ins('s_mul_i32 s4, s3, 384')
    a.ins('v_lshlrev_b32 v11, 5, v3')
    a.ins('v_add_u32 v11, s4, v11')
    a.ins(f'v_add_u32 v11, {RED}, v11')
    a.barrier()
    a.ins('v_lshlrev_b32 v117, 2, v0')
    a.ins('v_add_u32 v117, s3, v117')
    a.ins('v_min_u32 v117, 25, v117')
    a.ins(f'v_mul_u32_u24 v117, {REC}, v117')
    a.ins('v_add_u32 v117, 772, v117')
    a.ins(f's_mul_i32 s71, s2, {WPH*REC}')
    a.ins(f's_mul_i32 s72, s3, {REC}')
    a.ins('s_add_u32 s72, s72, s71')
    a.ins(f's_mul_i32 s4, s3, {REC}')
    a.ins(f's_add_u32 s4, s4, {RED}')
    a.ins('v_add_u32 v118, s4, v13')
    a.ins('v_add_u32 v117, s71, v117')
    wait_flags(2, 126)
    order = 0
    for i, (ly, b) in enumerate(CHAIN_ORDER):
        order |= (ly * 4 + b) << (4 * i)
    tab = 0
    for i, k in enumerate(CHAIN_ORDER):
        sg = CHAIN_SEGS[k]
        assert 2 <= len(sg) <= 3
        e = sg[0] | ((sg[1] if len(sg) > 2 else 0) << 5) | (sg[-1] << 10) | ((1 if len(sg) > 2 else 0) << 15)
        tab |= e << (16 * i)
    for w in range(4):
        smov(56 + w, (tab >> (32 * w)) & 0xffffffff)
    a.ins('s_mov_b32 s78, 0')
    a.label('L_aloop')
    a.fence_hazards()
    if True:
        a.ins('s_lshl_b32 s4, s78, 2')
        a.ins(f's_lshr_b32 s79, {hex(order)}, s4')
        a.ins('s_and_b32 s79, s79, 15')
        a.ins(f's_mul_i32 s81, s79, {2*AR_SZ}')
        a.ins(f's_add_u32 s81, s81, {hex(AR_OFF)}')
        a.ins(f's_add_u32 s82, s81, {AR_SZ}')
        a.ins('s_and_b32 s83, s79, 3')
        a.ins('s_mul_i32 s84, s83, 1280')
        a.ins('s_mul_i32 s4, s83, 2560')
        a.ins('v_add_u32 v121, s4, v12')
        a.ins('s_lshr_b32 s85, s79, 2')
        a.ins(f's_add_u32 s4, s4, {X1A}')
        a.ins('v_add_u32 v124, s4, v12')
        a.ins('s_lshl_b32 s88, s78, 6')
        stamp(0, 77, 122, 88)
        a.ins('s_and_b32 s4, s78, 3')
        a.ins('s_lshl_b32 s4, s4, 4')
        a.ins('s_cmp_lt_u32 s78, 4')
        a.ins('s_cselect_b64 s[60:61], s[56:57], s[58:59]')
        a.ins('s_lshr_b64 s[60:61], s[60:61], s4')
        for k in range(3):
            a.ins(f's_bfe_u32 s4, s60, {hex((5 << 16) | (5 * k))}')
            a.ins(f's_mul_i32 s{43+k}, s4, {PART_C}')
        a.ins('s_bfe_u32 s89, s60, 0x1000f')
        poll_indicator(117, 7, 45)
        stamp(1, 77, 122, 88)
        for k in (6, 7, 8, 9, 10, 11, 12, 13, 20):
            a.ins(f'v_mov_b32 v{16+4*k}, 0xf149f2ca')
            for e in range(1, 4):
                a.ins(f'v_mov_b32 v{16+4*k+e}, 0')
        set_exec_lanes(49)
        def ld1(k):
            sg, r = k // 7, k % 7
            a.ins(f's_add_u32 s76, s72, s{43+sg}')
            a.ins(f's_add_u32 s76, s76, {r * 4 * REC}')
            a.ins(f'buffer_load_dwordx4 v[{16+4*k}:{19+4*k}], v13, s[64:67], s76 offen sc1')
        def im():
            full = (1 << 21) - 1
            short = full & ~((1 << 6) | (1 << 13) | (1 << 20))
            a.ins('s_cmp_ge_u32 s3, 2')
            a.ins(f's_mov_b32 s91, {hex(full)}')
            a.ins(f's_cselect_b32 s91, {hex(short)}, s91')
            a.ins('s_cmp_eq_u32 s89, 0')
            a.ins(f's_cselect_b32 s4, {hex(0x7f << 7)}, 0')
            a.ins('s_andn2_b32 s91, s91, s4')
        gather_sel(21, ld1, lambda k: 16 + 4 * k, im)
        set_exec_lanes(64)
        combine_big(21, 16, 100, 101, 104, 102)
        a.ins('s_mov_b32 exec_lo, 0', dst=[], src=[])
        a.ins('s_mov_b32 exec_hi, 0x10000', dst=[], src=[])
        a.ins('v_mov_b32 v104, v100')
        a.ins('v_mov_b32 v105, v101')
        set_exec_lanes(64)
        for e in range(4):
            a.ins(f'v_mov_b32 v{52+e}, v{104+e}')
        set_exec_lanes(49)
        a.lds('ds_write_b128 v118, v[52:55]')
        set_exec_lanes(64)
        a.barrier()
        L0 = only_wave0_begin()
        for k in range(4):
            a.lds(f'ds_read_b128 v[{16+4*k}:{19+4*k}], v13 offset:{RED + k*REC}')
        a.wait_lg_all()
        combine_records(4, 16, 48, 49, 52)
        a.ins('v_rcp_f32 v50, v49')
        for e in range(4):
            a.ins(f'v_mul_f32 v{52+e}, v{52+e}, v50')
        a.ins('v_cvt_pk_bf16_f32 v56, v52, v53')
        a.ins('v_cvt_pk_bf16_f32 v57, v54, v55')
        a.ins('s_mov_b32 exec_lo, 0', dst=[], src=[])
        a.ins('s_mov_b32 exec_hi, 0xffff0000', dst=[], src=[])
        a.ins('v_mov_b32 v56, 0')
        a.ins('v_mov_b32 v57, 0')
        set_exec_lanes(64)
        a.lds(f'ds_write_b64 v12, v[56:57] offset:{XS}')
        only_wave0_end(L0)
        a.barrier()
        stamp(2, 77, 122, 88)
        for ks in range(6):
            xread(80 + 4 * ks, 112, 64 * ks)
        xread(104, 113, 0)
        xread(108, 113, 256)
        a.wait_lg_all()
        mfma_block(48, 104, 'a', 192, True)
        mfma_block(48, 108, 'a', 224, False)
        for ks in range(6):
            mfma_block(16, 80 + 4 * ks, 'a', 32 * ks, ks == 0)
        extract(48, 100)
        extract(16, 92)
        publish_own(92, 81)
        publish_cb4(100, 81)
        stamp(3, 77, 122, 88)
        LD = newlab('Ldf')
        a.ins('s_cmp_eq_u32 s85, 0')
        a.ins(f's_cbranch_scc1 {LD}')
        L0 = only_wave0_begin()
        a.ins('s_mul_i32 s90, s83, 2560')
        a.ins(f's_add_u32 s90, s90, {hex(X2_OFF)}')
        LX = newlab('Lx2'); LXD = newlab('Lx2d')
        smov(75, SPIN_MAX)
        a.label(LX)
        for k in range(5):
            a.ins(f'buffer_load_dwordx2 v[{16+2*k}:{17+2*k}], v12, s[64:67], s90 offen offset:{k*512} sc1')
        a.ins('s_waitcnt vmcnt(0)')
        check_regs(range(16, 26), 127)
        a.ins(f's_cbranch_vccz {LXD}')
        a.ins('s_sleep 2')
        a.ins('s_sub_u32 s75, s75, 1')
        a.ins('s_cmp_lg_u32 s75, 0')
        a.ins(f's_cbranch_scc1 {LX}')
        a.label(LXD)
        store_x(121, XRES)
        only_wave0_end(L0)
        a.label(LD)
        a.fence_hazards()
        gather_ar(81)
        stamp(4, 77, 122, 88)
        L0 = only_wave0_begin()
        ar_sum_wave0()
        residual(121, XRES)
        layernorm_to_xs()
        only_wave0_end(L0)
        a.barrier()
        stamp(5, 77, 122, 88)
        stage_block(48, 14, 0, 'st')
        for i in range(5):
            xread(80 + 4 * i, 114, 64 * i)
        a.wait_lg_all()
        for i in range(4):
            mfma_block(16, 80 + 4 * i, 'v', W1 + 32 * i, i == 0)
        mfma_block(16, 96, 'v', 48, False)
        stage_block(48, 14, 8192, 'st5')
        extract(16, 100)
        set_exec_lanes(12)
        a.lds('ds_write_b128 v11, v[100:103]')
        a.lds('ds_write_b128 v11, v[104:107] offset:16')
        set_exec_lanes(64)
        a.barrier()
        L0 = only_wave0_begin()
        for r in range(4):
            a.lds(f'ds_read_b32 v{16+r}, v119 offset:{RED + r*384}')
            a.lds(f'ds_read_b32 v{36+r}, v119 offset:{RED + r*384 + 192}')
        a.wait_lg_all()
        for r in range(1, 4):
            a.ins(f'v_add_f32 v16, v16, v{16+r}')
            a.ins(f'v_add_f32 v36, v36, v{36+r}')
        bf16r(16, 16); bf16r(36, 36)
        a.ins('v_mul_f32 v17, v16, v16')
        a.ins('v_mul_f32 v17, v17, v16')
        a.ins(f'v_mov_b32 v18, {hex(f32(0.044715))}')
        a.ins('v_fma_f32 v17, v17, v18, v16')
        a.ins(f'v_mul_f32 v17, {hex(f32(2*0.7978845608028654*math.log2(math.e)))}, v17')
        a.ins('v_exp_f32 v17, v17')
        a.ins('v_add_f32 v17, 1.0, v17')
        a.ins('v_rcp_f32 v17, v17')
        a.ins('v_fma_f32 v17, v17, -2.0, 1.0')
        a.ins('v_add_f32 v17, 1.0, v17')
        a.ins('v_mul_f32 v17, v17, v16')
        a.ins('v_mul_f32 v17, 0.5, v17')
        bf16r(17, 17)
        a.ins('v_mul_f32 v17, v17, v36')
        a.ins('v_cvt_pk_bf16_f32 v18, v17, 0')
        a.ins('v_mov_b32 v19, 0')
        a.ins('s_mov_b32 exec_lo, 0', dst=[], src=[])
        a.ins('s_mov_b32 exec_hi, 0xffff0000', dst=[], src=[])
        a.ins('v_mov_b32 v18, 0')
        set_exec_lanes(64)
        a.ins('v_lshlrev_b32 v20, 1, v0')
        a.lds(f'ds_write_b16 v20, v18 offset:{XS}')
        a.lds(f'ds_write_b16 v20, v19 offset:{XS + 128}')
        only_wave0_end(L0)
        a.barrier()
        stamp(6, 77, 122, 88)
        xread(80, 112, 0)
        xread(84, 112, 64)
        xread(88, 113, 0)
        a.wait_lg_all()
        mfma_block(16, 80, 'v', 48, True)
        stage_block(48, 14, 16384, 'st5b')
        a.wait_lg_all()
        mfma_block(16, 84, 'v', 48, False)
        stage_block(48, 120, 0, 'st5c')
        extract(16, 92)
        publish_own(92, 82)
        a.wait_lg_all()
        mfma_block(16, 88, 'v', 48, True)
        extract(16, 100)
        publish_cb4(100, 82)
        stamp(7, 77, 122, 88)
        a.barrier()
    stamp(9, 77, 122, 88)
    a.ins('s_add_u32 s78, s78, 1')
    a.ins('s_cmp_lt_u32 s78, 8')
    a.ins('s_cbranch_scc1 L_aloop')
    a.ins('s_waitcnt vmcnt(0)')
    a.ins('s_endpgm')

def wait_armed_chain():
    L = newlab('Lar'); D = newlab('Lad')
    smov(75, SPIN_MAX)
    a.ins('v_mov_b32 v126, 0')
    a.label(L)
    a.ins('global_load_dword v127, v126, s[28:29] sc1')
    a.ins('s_waitcnt vmcnt(0)')
    a.vm = []
    a.ins(f'v_cmp_gt_u32 vcc, {NCH}, v127')
    a.ins(f's_cbranch_vccz {D}')
    a.ins('s_sleep 2')
    a.ins('s_sub_u32 s75, s75, 1')
    a.ins('s_cmp_lg_u32 s75, 0')
    a.ins(f's_cbranch_scc1 {L}')
    a.label(D)
    a.fence_hazards()

def q_gemv_publish():
    stage_block(48, 14, 0, 'st')
    for i in range(5):
        xread(80 + 4 * i, 114, 64 * i)
    a.wait_lg_all()
    for cb in range(3):
        for i in range(4):
            kind, base = (('a', 128 * cb + 32 * i) if cb < 2 else ('v', W1 + 32 * i))
            mfma_block(16, 80 + 4 * i, kind, base, i == 0)
        a.wait_lg_all()
        mfma_block(16, 96, 'v', 48, False)
        if cb < 2:
            stage_block(48, 14, (cb + 1) * 8192, 'st')
        extract(16, 100)
        set_exec_lanes(16)
        a.lds(f'ds_write_b128 v115, v[100:103] offset:{cb*512}')
        a.lds(f'ds_write_b128 v115, v[104:107] offset:{cb*512+16}')
        set_exec_lanes(64)
    a.barrier()
    L0 = only_wave0_begin()
    a.ins('v_lshlrev_b32 v127, 1, v13')
    for r in range(4):
        a.lds(f'ds_read_b128 v[{16+8*r}:{19+8*r}], v127 offset:{RED + r*1536}')
        a.lds(f'ds_read_b128 v[{20+8*r}:{23+8*r}], v127 offset:{RED + r*1536 + 16}')
    a.wait_lg_all()
    for r in range(1, 4):
        for e in range(8):
            a.ins(f'v_add_f32 v{16+e}, v{16+e}, v{16+8*r+e}')
    for e in range(4):
        a.ins(f'v_cvt_pk_bf16_f32 v{60+e}, v{16+2*e}, v{17+2*e}')
    a.ins('s_add_u32 s76, s70, s86')
    set_exec_lanes(48)
    a.ins('buffer_store_dwordx4 v[60:63], v13, s[64:67], s76 offen sc1')
    set_exec_lanes(64)
    only_wave0_end(L0)
    a.barrier()

def gen_qcu():
    a.label('L_qcu')
    chain_common_init()
    a.ins(f's_sub_u32 s5, s2, {NA}')
    mfma_consts()
    a.ins('s_mul_i32 s70, s5, 768')
    a.ins(f's_sub_u32 s6, {640*12288}, s70')
    srd_off(96, 14, 15, 70, 's6')
    a.ins(f'v_mul_u32_u24 v126, {8*12288}, v4')
    a.ins('v_lshl_add_u32 v126, v3, 4, v126')
    a.ins('s_mul_i32 s4, s3, 24576')
    a.ins(f's_add_u32 s4, s4, {WL}')
    a.ins('v_add_u32 v14, s4, v13')
    a.ins(f's_mul_i32 s42, s3, {160*12288}')
    def ldq(i, cb):
        def em(T, tag):
            for e in range(8):
                a.ins(f's_add_u32 s76, s42, {(32 * i + e) * 12288 + cb * 256}')
                a.vmem(f'buffer_load_dwordx4 v[{T+4*e}:{T+4*e+3}], v126, s[96:99], s76 offen nt', tag)
        return em
    blocks = []
    for cb in range(3):
        for i in range(4):
            blocks.append((ldq(i, cb), ('a', 128 * cb + 32 * i) if cb < 2 else ('v', W1 + 32 * i)))
        blocks.append((ldq(4, cb), ('l', 14, cb * 8192)))
    prep_blocks(blocks)
    load_xres()
    a.ins('s_mul_i32 s4, s3, 1536')
    a.ins('v_lshlrev_b32 v115, 5, v3')
    a.ins('v_add_u32 v115, s4, v115')
    a.ins(f'v_add_u32 v115, {RED}, v115')
    a.barrier()
    wait_flags(2, 126)
    order = 0
    for i, (ly, b) in enumerate(CHAIN_ORDER):
        order |= (ly * 4 + b) << (4 * i)
    srd(92, 26, 27, 4 * 1280)
    a.ins('v_lshlrev_b32 v119, 2, v0')
    a.ins('s_mov_b32 s78, 0')
    a.label('L_qloop')
    a.fence_hazards()
    a.ins('s_lshl_b32 s4, s78, 2')
    a.ins(f's_lshr_b32 s79, {hex(order)}, s4')
    a.ins('s_and_b32 s79, s79, 15')
    a.ins('s_and_b32 s83, s79, 3')
    a.ins('s_lshr_b32 s85, s79, 2')
    a.ins('s_mul_i32 s84, s83, 1280')
    a.ins('s_mul_i32 s4, s83, 2560')
    a.ins('v_add_u32 v121, s4, v12')
    a.ins(f's_mul_i32 s86, s83, {32*384}')
    a.ins(f's_add_u32 s86, s86, {hex(Q_OFF + 4*32*384)}')
    a.ins(f's_mul_i32 s81, s79, {2*AR_SZ}')
    a.ins(f's_add_u32 s81, s81, {hex(AR_OFF)}')
    a.ins(f's_add_u32 s82, s81, {AR_SZ}')
    a.ins('s_lshl_b32 s88, s78, 6')
    stamp(0, 77, 122, 88)
    a.ins('s_cmp_eq_u32 s85, 0')
    a.ins('s_cbranch_scc1 L_qgo')
    a.ins(f's_cmp_lg_u32 s2, {NA}')
    a.ins('s_cbranch_scc1 L_qnext')
    a.label('L_qgo')
    a.fence_hazards()
    gather_ar(81)
    L0 = only_wave0_begin()
    ar_sum_wave0()
    residual(121, XRES)
    store_x(12, X1)
    only_wave0_end(L0)
    a.barrier()
    stamp(1, 77, 122, 88)
    gather_ar(82)
    stamp(2, 77, 122, 88)
    L0 = only_wave0_begin()
    ar_sum_wave0()
    residual(12, X1)
    store_x(121, XRES)
    LO = newlab('Lout'); LX = newlab('Lx2p')
    a.ins('s_cmp_eq_u32 s85, 0')
    a.ins(f's_cbranch_scc1 {LX}')
    for k in range(5):
        a.ins(f'v_cvt_pk_bf16_f32 v{32+k}, v{16+2*k}, v{17+2*k}')
        a.ins(f'buffer_store_dword v{32+k}, v119, s[92:95], s84 offen offset:{k*256}')
    a.ins(f's_branch {L0}')
    a.label(LX)
    a.ins(f's_cmp_lg_u32 s2, {NA}')
    a.ins(f's_cbranch_scc1 {LO}')
    a.ins('s_mul_i32 s90, s83, 2560')
    a.ins(f's_add_u32 s90, s90, {hex(X2_OFF)}')
    for k in range(5):
        a.ins(f'buffer_store_dwordx2 v[{16+2*k}:{17+2*k}], v12, s[64:67], s90 offen offset:{k*512} sc1')
    a.label(LO)
    a.fence_hazards()
    layernorm_to_xs()
    only_wave0_end(L0)
    a.barrier()
    stamp(3, 77, 122, 88)
    a.ins('s_cmp_lg_u32 s85, 0')
    a.ins('s_cbranch_scc1 L_qnext')
    q_gemv_publish()
    a.label('L_qnext')
    a.fence_hazards()
    stamp(4, 77, 122, 88)
    a.ins('s_add_u32 s78, s78, 1')
    a.ins('s_cmp_lt_u32 s78, 8')
    a.ins('s_cbranch_scc1 L_qloop')
    a.ins('s_waitcnt vmcnt(0)')
    a.ins('s_endpgm')

def main(outpath):
    hdr = open('cdna_kernels/' + NAME + '.s.ref').read().split('\n')
    top = [l for l in hdr if l.startswith(';') and '@launch' not in l]
    out = []
    out += top
    out.append('; @launch grid=(256,1,1) block=(256,1,1) lds=163840')
    out.append('.amdgcn_target "amdgcn-amd-amdhsa--gfx950"')
    out.append('.text')
    out.append(MACROS)
    out.append(f'.globl {KNAME}')
    out.append('.p2align 8')
    out.append(f'.type {KNAME},@function')
    out.append(f'{KNAME}:')
    a.ins('s_cmp_ge_u32 s2, 256')
    a.ins('s_cbranch_scc1 L_exit')
    a.ins('s_load_dwordx16 s[8:23], s[0:1], 0')
    a.ins('s_load_dwordx8 s[24:31], s[0:1], 64')
    a.ins('v_lshrrev_b32 v1, 6, v0')
    a.ins('v_and_b32 v0, 63, v0')
    a.ins('v_readfirstlane_b32 s3, v1')
    a.ins('s_waitcnt lgkmcnt(0)')
    srd(64, 30, 31, WS_SIZE)
    a.ins(f's_cmp_ge_u32 s2, {NCH}')
    a.ins('s_cbranch_scc0 L_chain')
    a.ins('s_branch L_stream')
    a.label('L_exit')
    a.ins('s_endpgm')
    a.label('L_chain')
    a.ins(f's_cmp_ge_u32 s2, {NA}')
    a.ins('s_cbranch_scc1 L_qcu')
    a.fence_hazards()
    gen_acu()
    a.hist = []; a.vm = []; a.lg = []
    a.fence_hazards()
    gen_qcu()
    a.hist = []; a.vm = []; a.lg = []
    a.fence_hazards()
    gen_stream()
    out.append(a.text())
    out.append('.section .rodata,"a"')
    out.append('.p2align 6')
    out.append(f'.amdhsa_kernel {KNAME}')
    out.append('  .amdhsa_next_free_vgpr 512')
    out.append('  .amdhsa_next_free_sgpr 102')
    out.append('  .amdhsa_accum_offset 256')
    out.append('  .amdhsa_group_segment_fixed_size 0')
    out.append('  .amdhsa_kernarg_size 96')
    out.append('  .amdhsa_user_sgpr_count 2')
    out.append('  .amdhsa_user_sgpr_kernarg_segment_ptr 1')
    out.append('  .amdhsa_system_sgpr_workgroup_id_x 1')
    out.append('.end_amdhsa_kernel')
    open(outpath, 'w').write('\n'.join(out) + '\n')
    print('instrs', a.ninstr, 'bytes', sum(len(x) + 1 for x in out))

if __name__ == '__main__':
    main(sys.argv[1] if len(sys.argv) > 1 else 'cdna_kernels/' + NAME + '.s')
```

```python
import struct, sys, math, os
from asmlib import *

NAME = 'interleave_layers__mha_block_cached__glu_gated_geglu__decode'
KNAME = NAME + '_kernel'

NA, NQ = 32, 16
NCH = NA + NQ
NST = 256 - NCH
WPH = NST * 4 // 32
REC = 784
PART_OFF = 0
PART_C = 32 * WPH * REC
NR = 21
NL = int(os.environ.get('NL', '4'))
LMODE = os.environ.get('LMODE', 'def')
NN = 40 - NR - NL
NA_HALF = (NN + 1) // 2
NT_ALL = 40
def _d_order():
    L = list(range(NR, NR + NL)); R = list(range(NR))
    if os.environ.get('DORD', '0') == '0' or NL <= 2:
        return L + R
    return L[:2] + R[:4] + L[2:] + R[4:]
NPOL = os.environ.get('NPOL', 'nt')
R_T = list(range(NR + NL)); D_T = _d_order(); N_T = list(range(NR + NL, NT_ALL)); NA_T = N_T[:NA_HALF]; NB_T = N_T[NA_HALF:]
if os.environ.get('SCH', '1') == '0':
    SCHED = [('A', 0, 0, R_T), ('N', 0, 0, N_T), ('N', 0, 1, N_T), ('N', 0, 2, NA_T),
             ('D', 1, 0, D_T), ('A', 0, 1, R_T), ('N', 0, 2, NB_T), ('N', 1, 0, N_T),
             ('D', 1, 1, D_T), ('A', 0, 2, R_T), ('N', 0, 3, N_T), ('N', 1, 1, NA_T),
             ('D', 1, 2, D_T), ('A', 0, 3, R_T), ('N', 1, 1, NB_T), ('N', 1, 2, N_T),
             ('D', 1, 3, D_T), ('N', 1, 3, N_T)]
else:
    SCHED = [('A', 0, 0, R_T), ('N', 0, 0, N_T), ('N', 0, 1, N_T), ('N', 0, 2, NA_T),
             ('D', 1, 0, D_T), ('A', 0, 1, R_T), ('N', 1, 0, N_T), ('N', 0, 2, NB_T),
             ('D', 1, 1, D_T), ('A', 0, 2, R_T), ('N', 1, 1, NA_T), ('N', 0, 3, N_T),
             ('D', 1, 2, D_T), ('A', 0, 3, R_T), ('N', 1, 1, NB_T), ('N', 1, 2, N_T),
             ('D', 1, 3, D_T), ('N', 1, 3, N_T)]
NSEG = len(SCHED)
_last = {}
for _i, (_t, _p, _b, _tl) in enumerate(SCHED):
    _last[(_p, _b)] = _i
CHAIN_ORDER = sorted(_last, key=lambda k: _last[k])
CHAIN_SEGS = {k: [i for i, (t, p, b, tl) in enumerate(SCHED) if (p, b) == k] for k in CHAIN_ORDER}
AR_OFF = ((NSEG * PART_C + 4095) // 4096) * 4096
AR_SZ = 32 * 2560
Q_OFF = AR_OFF + 16 * AR_SZ
X2_OFF = Q_OFF + 8 * 32 * 384
ARM_N = (X2_OFF + 4 * 2560 + 48 * 4096 - 1) // (48 * 4096)
COMM = ARM_N * 48 * 4096
assert Q_OFF % 4096 == 0
ARM_PER = COMM // NCH
BATCH_STRIDE = 32 * 8192 * 384
SPIN_MAX = 400000
SLAST = int(os.environ.get('SLAST', '1'))
import os
DIAG = int(os.environ.get('DIAG', '0'))
STAMP_OFF = COMM
WS_SIZE = COMM + (1 << 20 if DIAG else 0)

def f32(x):
    return struct.unpack('<I', struct.pack('<f', x))[0]

CSCALE = f32((192 ** -0.5) * math.log2(math.e))

a = Asm()
_lab = [0]
def newlab(p='L'):
    _lab[0] += 1
    return f'{p}{_lab[0]}'

MACROS = r'''
.macro QK2 ta, tb, q, s
  v_dot2_f32_bf16 v[\s+0], v[\ta+0], v[\q+0], 0
  v_dot2_f32_bf16 v[\s+1], v[\ta+4], v[\q+4], 0
  v_dot2_f32_bf16 v[\s+2], v[\ta+8], v[\q+8], 0
  v_dot2_f32_bf16 v[\s+3], v[\tb+0], v[\q+0], 0
  v_dot2_f32_bf16 v[\s+4], v[\tb+4], v[\q+4], 0
  v_dot2_f32_bf16 v[\s+5], v[\tb+8], v[\q+8], 0
  .irp k, 1, 2, 3
  v_dot2c_f32_bf16 v[\s+0], v[\ta+\k], v[\q+\k]
  v_dot2c_f32_bf16 v[\s+1], v[\ta+4+\k], v[\q+4+\k]
  v_dot2c_f32_bf16 v[\s+2], v[\ta+8+\k], v[\q+8+\k]
  v_dot2c_f32_bf16 v[\s+3], v[\tb+\k], v[\q+\k]
  v_dot2c_f32_bf16 v[\s+4], v[\tb+4+\k], v[\q+4+\k]
  v_dot2c_f32_bf16 v[\s+5], v[\tb+8+\k], v[\q+8+\k]
  .endr
.endm
.macro PV t, p, acc
  .irp k, 0, 1, 2, 3, 4, 5, 6, 7, 8, 9, 10, 11
  v_dot2c_f32_bf16 v[\acc+2*\k], v[\t+\k], v[\p]
  v_dot2c_f32_bf16 v[\acc+2*\k+1], v[\t+\k], v[\p+1]
  .endr
.endm
.macro ACR t, s
  .irp k, 0, 1, 2, 3, 4, 5, 6, 7, 8, 9, 10, 11
  v_accvgpr_read_b32 v[\t+\k], a[\s+\k]
  .endr
.endm
.macro LDT k, d, srd
  buffer_load_dwordx4 \k[\d:\d+3], v1, s[\srd:\srd+3], s76 offen nt
  buffer_load_dwordx4 \k[\d+4:\d+7], v1, s[\srd:\srd+3], s76 offen offset:128 nt
  buffer_load_dwordx4 \k[\d+8:\d+11], v1, s[\srd:\srd+3], s76 offen offset:256 nt
.endm
.macro LDC k, d, srd
  buffer_load_dwordx4 \k[\d:\d+3], v1, s[\srd:\srd+3], s76 offen
  buffer_load_dwordx4 \k[\d+4:\d+7], v1, s[\srd:\srd+3], s76 offen offset:128
  buffer_load_dwordx4 \k[\d+8:\d+11], v1, s[\srd:\srd+3], s76 offen offset:256
.endm
.macro RESC acc, al
  .irp k, 0, 1, 2, 3, 4, 5, 6, 7, 8, 9, 10, 11, 12, 13, 14, 15, 16, 17, 18, 19, 20, 21, 22, 23
  v_mul_f32 v[\acc+\k], v[\al], v[\acc+\k]
  .endr
.endm
.macro GV8 w, x, acc
  .irp k, 0, 1, 2, 3
  v_dot2c_f32_bf16 v[\acc+2*\k], v[\w+\k], v[\x]
  v_dot2c_f32_bf16 v[\acc+2*\k+1], v[\w+\k], v[\x+1]
  .endr
.endm
.macro AC4 t, s
  .irp k, 0, 1, 2, 3
  v_accvgpr_read_b32 v[\t+\k], a[\s+\k]
  .endr
.endm
'''

def m_qk2(ta, tb, q, s):
    a.mbegin(f'QK2 {ta}, {tb}, {q}, {s}')
    for i, (t, o) in enumerate([(ta, 0), (ta, 4), (ta, 8), (tb, 0), (tb, 4), (tb, 8)]):
        a.ins(f'v_dot2_f32_bf16 v{s+i}, v{t+o}, v{q+o}, 0')
    for k in (1, 2, 3):
        for i, (t, o) in enumerate([(ta, 0), (ta, 4), (ta, 8), (tb, 0), (tb, 4), (tb, 8)]):
            a.ins(f'v_dot2c_f32_bf16 v{s+i}, v{t+o+k}, v{q+o+k}')
    a.mend()

def m_pv(t, p, acc):
    a.mbegin(f'PV {t}, {p}, {acc}')
    for k in range(12):
        a.ins(f'v_dot2c_f32_bf16 v{acc+2*k}, v{t+k}, v{p}')
        a.ins(f'v_dot2c_f32_bf16 v{acc+2*k+1}, v{t+k}, v{p+1}')
    a.mend()

def m_acr(t, s):
    a.mbegin(f'ACR {t}, {s}')
    for k in range(12):
        a.ins(f'v_accvgpr_read_b32 v{t+k}, a{s+k}')
    a.mend()

def m_ldt(kind, d, srd, tag, pol='nt'):
    mac = {'nt': 'LDT', '': 'LDC'}.get(pol)
    if mac:
        a.mbegin(f'{mac} {kind}, {d}, {srd}')
    for i in range(3):
        off = f' offset:{i*128}' if i else ''
        a.vmem(f'buffer_load_dwordx4 {kind}[{d+4*i}:{d+4*i+3}], v1, s[{srd}:{srd+3}], s76 offen{off} {pol}', tag)
    if mac:
        a.mend()

def m_resc(acc, al):
    a.mbegin(f'RESC {acc}, {al}')
    for k in range(24):
        a.ins(f'v_mul_f32 v{acc+k}, v{al}, v{acc+k}')
    a.mend()

def m_gv8(w, x, acc):
    a.mbegin(f'GV8 {w}, {x}, {acc}')
    for k in range(4):
        a.ins(f'v_dot2c_f32_bf16 v{acc+2*k}, v{w+k}, v{x}')
        a.ins(f'v_dot2c_f32_bf16 v{acc+2*k+1}, v{w+k}, v{x+1}')
    a.mend()

def m_ac4(t, s):
    a.mbegin(f'AC4 {t}, {s}')
    for k in range(4):
        a.ins(f'v_accvgpr_read_b32 v{t+k}, a{s+k}')
    a.mend()

DPP = 'row_mask:0xf bank_mask:0xf'

def smov(s, val):
    val &= 0xffffffff
    a.ins(f's_mov_b32 s{s}, {val if val <= 64 else hex(val)}')

def srd(d, lo, hi, nrec):
    a.ins(f's_mov_b32 s{d}, s{lo}')
    a.ins(f's_and_b32 s{d+1}, s{hi}, 0xffff')
    if isinstance(nrec, int):
        smov(d + 2, nrec)
    else:
        a.ins(f's_mov_b32 s{d+2}, {nrec}')
    a.ins(f's_mov_b32 s{d+3}, 0x20000')

def srd_off(d, lo, hi, offs, nrec):
    a.ins(f's_add_u32 s{d}, s{lo}, s{offs}')
    a.ins(f's_addc_u32 s{d+1}, s{hi}, 0')
    a.ins(f's_and_b32 s{d+1}, s{d+1}, 0xffff')
    if isinstance(nrec, int):
        smov(d + 2, nrec)
    else:
        a.ins(f's_mov_b32 s{d+2}, {nrec}')
    a.ins(f's_mov_b32 s{d+3}, 0x20000')

def set_exec_lanes(n):
    if n >= 64:
        a.ins('s_mov_b64 exec, -1')
    elif n <= 32:
        a.ins(f's_mov_b32 exec_lo, {hex((1 << n) - 1)}', dst=[], src=[])
        a.ins('s_mov_b32 exec_hi, 0', dst=[], src=[])
    else:
        a.ins('s_mov_b32 exec_lo, -1', dst=[], src=[])
        a.ins(f's_mov_b32 exec_hi, {hex((1 << (n - 32)) - 1)}', dst=[], src=[])

def stamp(idx, base_s, vt, dyn=None):
    if not DIAG:
        return
    a.ins('s_memrealtime s[100:101]')
    a.ins('s_waitcnt lgkmcnt(0)')
    a.lg = []
    a.ins(f'v_mov_b32 v{vt}, s100')
    a.ins(f'v_mov_b32 v{vt+1}, 0')
    if dyn is None:
        a.ins(f's_add_u32 s101, s{base_s}, {idx*4}')
    else:
        a.ins(f's_add_u32 s101, s{base_s}, s{dyn}')
        a.ins(f's_add_u32 s101, s101, {idx*4}')
    a.vmem(f'buffer_store_dword v{vt}, v{vt+1}, s[64:67], s101 offen', 'stamp')

def flags_addr(va, stage):
    if stage == 1:
        a.ins(f'v_min_u32 v{va}, 11, v0')
        a.ins(f'v_lshlrev_b32 v{va}, 2, v{va}')
    else:
        a.ins(f'v_min_u32 v{va}, 23, v0')
        a.ins(f'v_lshlrev_b32 v{va}, 2, v{va}')
        a.ins(f'v_add_u32 v{va}, 128, v{va}')

def flags_check(vreg, stage):
    a.ins(f'v_cmp_ne_u32 vcc, {1 if stage == 1 else "0x10001"}, v{vreg}')

def wait_flags(stage, va=254, plain_first=True):
    L = newlab('Lar'); D = newlab('Lad')
    smov(75, SPIN_MAX)
    flags_addr(va, stage)
    if plain_first:
        a.ins(f'global_load_dword v{va+1}, v{va}, s[28:29]')
        a.ins('s_waitcnt vmcnt(0)')
        flags_check(va + 1, stage)
        a.ins(f's_cbranch_vccz {D}')
    a.label(L)
    a.ins(f'global_load_dword v{va+1}, v{va}, s[28:29] sc1')
    a.ins('s_waitcnt vmcnt(0)')
    a.vm = []
    flags_check(va + 1, stage)
    a.ins(f's_cbranch_vccz {D}')
    a.ins('s_sleep 8')
    a.ins('s_sub_u32 s75, s75, 1')
    a.ins('s_cmp_lg_u32 s75, 0')
    a.ins(f's_cbranch_scc1 {L}')
    a.label(D)
    a.fence_hazards()

def set_flag(stage):
    L = only_wave0_begin()
    if stage == 1:
        a.ins('s_lshl_b32 s4, s2, 2')
    else:
        a.ins('s_lshl_b32 s4, s2, 1')
        a.ins('s_add_u32 s4, s4, 128')
    a.ins('v_mov_b32 v150, s4')
    a.ins('v_mov_b32 v151, 1')
    set_exec_lanes(1)
    a.ins(f'global_store_{"dword" if stage == 1 else "short"} v150, v151, s[28:29] sc1')
    set_exec_lanes(64)
    a.label(L)
    a.fence_hazards()

SU_W = 56
SU_ACC = 96
SU_X = 226
SU_RED = 20480

def startup1():
    srd(96, 8, 9, 4 * 1280)
    a.ins('v_lshlrev_b32 v254, 2, v0')
    a.ins('s_mul_i32 s76, s3, 1280')
    for k in range(5):
        a.vmem(f'buffer_load_dword v{SU_X+k}, v254, s[96:99], s76 offen offset:{k*256}', 'sux')
    a.ins('s_mul_i32 s4, s2, 48')
    a.ins(f's_sub_u32 s5, {640*12288}, s4')
    srd_off(92, 14, 15, 4, 's5')
    a.ins('v_and_b32 v255, 15, v0')
    a.ins(f'v_mul_u32_u24 v255, {10*12288}, v255')
    a.ins('v_lshrrev_b32 v128, 4, v0')
    a.ins('v_min_u32 v128, 2, v128')
    a.ins('v_lshl_add_u32 v255, v128, 4, v255')
    a.ins(f's_mul_i32 s4, s3, {160*12288}')
    for i in range(10):
        a.ins(f's_add_u32 s76, s4, {i*12288}')
        a.vmem(f'buffer_load_dwordx4 v[{SU_W+4*i}:{SU_W+4*i+3}], v255, s[92:95], s76 offen', 'suw')

def startup2a(topup=None, st=False, after_x=None):
    X = SU_X
    a.wait_vm('sux')
    if after_x:
        after_x()
    if st: stamp(56, 78, 252)
    xs = X + 5
    for k in range(5):
        a.ins(f'v_lshlrev_b32 v{xs+2*k}, 16, v{X+k}')
        a.ins(f'v_and_b32 v{xs+2*k+1}, 0xffff0000, v{X+k}')
    A = SU_ACC
    t, u, mean, var = A, A + 1, A + 2, A + 3
    d0, q0, e0 = A + 4, A + 14, X + 15
    a.ins(f'v_add_f32 v{t}, v{xs}, v{xs+1}')
    for i in range(2, 10):
        a.ins(f'v_add_f32 v{t}, v{t}, v{xs+i}')
    wave_sum(t, u)
    a.ins(f'v_mul_f32 v{mean}, {hex(f32(1.0/640))}, v{t}')
    for i in range(10):
        a.ins(f'v_sub_f32 v{d0+i}, v{xs+i}, v{mean}')
    a.ins(f'v_mul_f32 v{t}, v{d0}, v{d0}')
    for i in range(1, 10):
        a.ins(f'v_fmac_f32 v{t}, v{d0+i}, v{d0+i}')
    wave_sum(t, u)
    a.ins(f'v_mul_f32 v{var}, {hex(f32(1.0/640))}, v{t}')
    bf16r(mean, mean)
    bf16r(var, var)
    a.ins(f'v_add_f32 v{var}, {hex(f32(1e-5))}, v{var}')
    bf16r(var, var)
    a.ins(f'v_sqrt_f32 v{var}, v{var}')
    bf16r(var, var)
    a.ins(f'v_rcp_f32 v{u}, v{var}')
    for i in range(10):
        a.ins(f'v_sub_f32 v{d0+i}, v{xs+i}, v{mean}')
    for i in range(10):
        bf16r(d0 + i, d0 + i)
    for i in range(10):
        a.ins(f'v_mul_f32 v{q0+i}, v{d0+i}, v{u}')
    for i in range(10):
        a.ins(f'v_fma_f32 v{e0+i}, -v{q0+i}, v{var}, v{d0+i}')
    for i in range(10):
        a.ins(f'v_fma_f32 v{q0+i}, v{e0+i}, v{u}, v{q0+i}')
    a.ins('s_mul_i32 s4, s3, 5120')
    a.ins('v_lshlrev_b32 v254, 4, v0')
    a.ins('v_add_u32 v254, s4, v254')
    r = A + 24
    for k in range(5):
        a.ins(f'v_cvt_pk_bf16_f32 v{r}, v{q0+2*k}, 0')
        a.ins(f'v_cvt_pk_bf16_f32 v{r+1}, 0, v{q0+2*k}')
        a.ins(f'v_cvt_pk_bf16_f32 v{r+2}, v{q0+2*k+1}, 0')
        a.ins(f'v_cvt_pk_bf16_f32 v{r+3}, 0, v{q0+2*k+1}')
        a.lds(f'ds_write_b128 v254, v[{r}:{r+3}] offset:{k*1024}')
        a.wait_lg_all()
    a.barrier()
    if st: stamp(57, 78, 252)
    a.ins('v_and_b32 v254, 15, v0')
    a.ins('v_mul_u32_u24 v254, 80, v254')
    a.ins('s_mul_i32 s4, s3, 1280')
    a.ins('v_add_u32 v254, s4, v254')
    for k in range(32):
        a.ins(f'v_mov_b32 v{SU_ACC+k}, 0')
    a.wait_vm('suw')
    if st: stamp(58, 78, 252)
    for b in range(4):
        for k in range(5):
            a.lds(f'ds_read_b128 v[{X+4*k}:{X+4*k+3}], v254 offset:{b*5120 + k*16}')
        a.wait_lg_all()
        for i in range(10):
            m_gv8(SU_W + 4 * i, X + 2 * i, SU_ACC + 8 * b)
    for pat in ('quad_perm:[1,0,3,2]', 'quad_perm:[2,3,0,1]', 'row_half_mirror', 'row_mirror'):
        for k in range(32):
            a.ins(f'v_add_f32_dpp v{SU_ACC+k}, v{SU_ACC+k}, v{SU_ACC+k} {pat} {DPP}')
    a.ins('v_lshrrev_b32 v254, 4, v0')
    a.ins('v_lshlrev_b32 v254, 7, v254')
    a.ins('s_mul_i32 s4, s3, 384')
    a.ins(f's_add_u32 s4, s4, {SU_RED}')
    a.ins('v_add_u32 v254, s4, v254')
    a.ins('s_mov_b32 exec_lo, 0x10001', dst=[], src=[])
    a.ins('s_mov_b32 exec_hi, 1', dst=[], src=[])
    for k in range(8):
        a.lds(f'ds_write_b128 v254, v[{SU_ACC+4*k}:{SU_ACC+4*k+3}] offset:{k*16}')
    set_exec_lanes(64)
    if topup:
        topup()
    if st: stamp(59, 78, 252)
    a.barrier()
    if st: stamp(60, 78, 252)

def startup2b(st=False):
    a.ins('v_mul_u32_u24 v254, 171, v0')
    a.ins('v_lshrrev_b32 v254, 9, v254')
    a.ins('v_mul_u32_u24 v255, 3, v254')
    a.ins('v_sub_u32 v255, v0, v255')
    a.ins('v_lshlrev_b32 v128, 7, v255')
    a.ins('v_lshl_add_u32 v128, v254, 5, v128')
    a.ins('v_and_b32 v128, 0x1ff, v128')
    for wv in range(4):
        a.lds(f'ds_read_b128 v[{SU_W+8*wv}:{SU_W+8*wv+3}], v128 offset:{SU_RED + wv*384}')
        a.lds(f'ds_read_b128 v[{SU_W+8*wv+4}:{SU_W+8*wv+7}], v128 offset:{SU_RED + wv*384 + 16}')
    a.wait_lg_all()
    for wv in range(1, 4):
        for e in range(8):
            a.ins(f'v_add_f32 v{SU_W+e}, v{SU_W+e}, v{SU_W+8*wv+e}')
    for e in range(4):
        a.ins(f'v_cvt_pk_bf16_f32 v{SU_ACC+e}, v{SU_W+2*e}, v{SU_W+2*e+1}')
    a.ins('v_mul_u32_u24 v254, 12288, v254')
    a.ins('v_lshl_add_u32 v254, v255, 4, v254')
    if st: stamp(61, 78, 250)
    wait_flags(1, 252)
    if st: stamp(62, 78, 250)
    a.ins('s_mul_i32 s76, s2, 48')
    a.ins(f's_add_u32 s76, s76, {hex(Q_OFF)}')
    set_exec_lanes(12)
    a.vmem(f'buffer_store_dwordx4 v[{SU_ACC}:{SU_ACC+3}], v254, s[64:67], s76 offen sc1', 'q1pub')
    set_exec_lanes(64)

RING = [8, 20, 32, 44, 56, 68]
T0, T1 = 56, 68
XRING = int(os.environ.get('XRING', '0'))
Q, QS = 80, 92
ST = 104
VSLOT = 130
NVS = 8
WK = 226

def srd_k(b): return 32 + 8 * b
def srd_v(b): return 36 + 8 * b

def r_storage(kind, t):
    if t >= NR:
        return ('c',)
    if kind == 'K':
        return ('a', 12 * t)
    if t < NVS:
        return ('v', VSLOT + 12 * t)
    return ('l', t - NVS)

def groups_of(tiles):
    return [tiles[i:i + 2] for i in range(0, len(tiles), 2)]

class Stream:
    def __init__(self):
        self.P = SCHED
        self.LQ = []
        for pi, (ty, ps, b, tiles) in enumerate(self.P):
            for grp in groups_of(tiles):
                for kind in ('K', 'V'):
                    for t in grp:
                        pol = 'nt'
                        if ty == 'D':
                            if r_storage(kind, t)[0] != 'c':
                                continue
                            dest = ('r', None)
                        elif ty == 'A':
                            stg = r_storage(kind, t)
                            dest = stg if stg[0] in 'av' else ('r', None)
                            if stg[0] == 'c' and LMODE == 'def':
                                pol = ''
                        else:
                            dest = ('r', None)
                            if ps == 0:
                                pol = NPOL
                        self.LQ.append({'pi': pi, 'kind': kind, 't': t, 'b': b, 'dest': dest, 'pol': pol})
        self.lqi = 0
        self.nissued = 0
        self.ring_free = [True] * 6
        self.ring_next = 0
        self.t_ok = False
        self.ded_free = {}
        self.d_done = set()
        self.cur_pi = 0
        self.loc = {}
        self.last_A = max(i for i, p in enumerate(self.P) if p[0] == 'A')
        self.all_ded = [r_storage(k, t) for t in R_T for k in 'KV' if r_storage(k, t)[0] in 'av']

    def ring_alloc(self, e=None):
        n = 4
        if XRING and e is not None and all(self.P[p][0] == 'N' for p in range(self.cur_pi, e['pi'] + 1)) \
                and e['pi'] != len(self.P) - 1 and self.t_ok:
            n = 6
        for s in range(n):
            if self.ring_free[s]:
                self.ring_free[s] = False
                return s
        return None

    def _issue_one(self, e):
        if e['dest'][0] == 'r':
            s = self.ring_alloc(e)
            if s is not None:
                kind, base = 'v', RING[s]
                self.loc[(e['pi'], e['kind'], e['t'])] = ('r', s)
            else:
                key = None
                if self.cur_pi > self.last_A and e['pi'] == len(self.P) - 1:
                    for k in self.all_ded:
                        if self.ded_free.get(k, True):
                            key = k
                            break
                if key is None:
                    return False
                self.ded_free[key] = False
                kind, base = key
                self.loc[(e['pi'], e['kind'], e['t'])] = ('x', key)
        else:
            key = e['dest']
            if not self.ded_free.get(key, True):
                return False
            self.ded_free[key] = False
            kind, base = key
            self.loc[(e['pi'], e['kind'], e['t'])] = key
        smov(76, e['t'] * 3072)
        sd = srd_k(e['b']) if e['kind'] == 'K' else srd_v(e['b'])
        m_ldt(kind, base, sd, ('T', e['pi'], e['kind'], e['t']), e['pol'])
        if LMODE == 'touch' and self.P[e['pi']][0] == 'A' and r_storage(e['kind'], e['t'])[0] == 'c':
            a.vmem(f'buffer_load_dword v249, v248, s[{sd}:{sd+3}], s76 offen sc1', 'touch')
        e['done'] = True
        self.nissued += 1
        return True

    def try_issue(self, cap=None, limit=None):
        if cap is None:
            cap = int(os.environ.get('CAP', '54'))
        while True:
            if len(a.vm) + 4 > cap:
                return
            if limit is not None and self.nissued >= limit:
                return
            cand = []
            seen = set()
            for i in range(self.lqi, len(self.LQ)):
                e = self.LQ[i]
                if e.get('done'):
                    continue
                c = 'r' if e['dest'][0] == 'r' else 'd'
                if c not in seen:
                    seen.add(c)
                    cand.append(e)
                if len(seen) == 2:
                    break
            ok = False
            for e in cand:
                if self._issue_one(e):
                    ok = True
                    break
            while self.lqi < len(self.LQ) and self.LQ[self.lqi].get('done'):
                self.lqi += 1
            if not ok:
                return

    def q_issue(self, ps, b):
        a.ins(f's_add_u32 s76, s72, {hex((ps * 4 + b) * 32 * 384)}')
        for i in range(3):
            off = f' offset:{i*128}' if i else ''
            a.vmem(f'buffer_load_dwordx4 v[{QS+4*i}:{QS+4*i+3}], v2, s[64:67], s76 offen{off} sc1', ('Q', ps, b))

    def q_check(self):
        w = WK
        a.ins(f'v_max3_u32 v{w}, v{QS}, v{QS+1}, v{QS+2}')
        for k in range(3, 12, 2):
            k2 = min(k + 1, 11)
            a.ins(f'v_max3_u32 v{w}, v{w}, v{QS+k}, v{QS+k2}')
        a.ins(f'v_cmp_eq_u32 vcc, -1, v{w}')

    def q_take(self, ps, b):
        a.wait_vm(('Q', ps, b))
        OK = newlab('Lqo'); RT = newlab('Lqr')
        self.q_check()
        a.ins(f's_cbranch_vccz {OK}')
        smov(75, SPIN_MAX)
        a.label(RT)
        a.ins('s_sleep 2')
        a.ins(f's_add_u32 s77, s72, {hex((ps * 4 + b) * 32 * 384)}')
        for i in range(3):
            off = f' offset:{i*128}' if i else ''
            a.ins(f'buffer_load_dwordx4 v[{QS+4*i}:{QS+4*i+3}], v2, s[64:67], s77 offen{off} sc1')
        a.ins('s_waitcnt vmcnt(0)')
        self.q_check()
        a.ins(f's_cbranch_vccz {OK}')
        a.ins('s_sub_u32 s75, s75, 1')
        a.ins('s_cmp_lg_u32 s75, 0')
        a.ins(f's_cbranch_scc1 {RT}')
        a.label(OK)
        for k in range(12):
            a.ins(f'v_mov_b32 v{Q+k}, v{QS+k}')

    def get_tile(self, pi, ty, kind, t, tmp):
        if ty == 'D' and r_storage(kind, t)[0] != 'c':
            stg = r_storage(kind, t)
            if stg[0] == 'a':
                m_acr(tmp, stg[1])
                self.ded_free[stg] = True
                return tmp, None
            if stg[0] == 'v':
                return stg[1], ('ded', stg)
            a.wait_lg(('L', pi, t))
            return tmp, None
        a.wait_vm(('T', pi, kind, t))
        loc = self.loc[(pi, kind, t)]
        if loc[0] == 'x':
            key = loc[1]
            if key[0] == 'a':
                m_acr(tmp, key[1])
                self.ded_free[key] = True
                return tmp, None
            return key[1], ('ded', key)
        if loc[0] == 'a':
            m_acr(tmp, loc[1])
            return tmp, None
        if loc[0] == 'v':
            return loc[1], None
        return RING[loc[1]], ('ring', loc[1])

    def touch(self, pi, ty, kind, t):
        if ty != 'A' or r_storage(kind, t)[0] != 'c':
            return
        b = self.P[pi][2]
        sd = srd_k(b) if kind == 'K' else srd_v(b)
        smov(76, t * 3072)
        a.vmem(f'buffer_load_dword v249, v248, s[{sd}:{sd+3}], s76 offen sc1', 'touch')

    def release(self, rel):
        if rel is None:
            return
        if rel[0] == 'ring':
            self.ring_free[rel[1]] = True
        else:
            self.ded_free[rel[1]] = True

    def lds_prefetch(self, pi, t, tmp):
        slot = t - NVS
        for i in range(3):
            a.lds(f'ds_read_b128 v[{tmp+4*i}:{tmp+4*i+3}], v3 offset:{slot*3072+i*1024}', ('L', pi, t))

    def group(self, pi, ty, grp, last_group):
        st = ST
        acc, m, l = st, st + 24, st + 25
        s = WK
        sa, sb = WK, WK + 3
        mn, cm, al = WK + 6, WK + 7, WK + 8
        pa, pb = WK + 9, WK + 10
        PA, PB = WK + 12, WK + 14
        two = len(grp) == 2
        ta, ra = self.get_tile(pi, ty, 'K', grp[0], T0)
        if two:
            tb, rb = self.get_tile(pi, ty, 'K', grp[1], T1)
            m_qk2(ta, tb, Q, s)
            self.release(ra); self.release(rb)
        else:
            for i, o in enumerate((0, 4, 8)):
                a.ins(f'v_dot2_f32_bf16 v{s+i}, v{ta+o}, v{Q+o}, 0')
            for k in (1, 2, 3):
                for i, o in enumerate((0, 4, 8)):
                    a.ins(f'v_dot2c_f32_bf16 v{s+i}, v{ta+o+k}, v{Q+o+k}')
            self.release(ra)
        if ty == 'D':
            for t, tmp in zip(grp, (T0, T1)):
                if r_storage('V', t)[0] == 'l':
                    self.lds_prefetch(pi, t, tmp)
        self.try_issue()
        a.ins(f'v_add_f32 v{sa}, v{s}, v{s+1}')
        a.ins(f'v_add_f32 v{sa}, v{sa}, v{s+2}')
        if two:
            a.ins(f'v_add_f32 v{sb}, v{s+3}, v{s+4}')
            a.ins(f'v_add_f32 v{sb}, v{sb}, v{s+5}')
        for pat in ('quad_perm:[1,0,3,2]', 'quad_perm:[2,3,0,1]', 'row_half_mirror'):
            a.ins(f'v_add_f32_dpp v{sa}, v{sa}, v{sa} {pat} {DPP}')
            if two:
                a.ins(f'v_add_f32_dpp v{sb}, v{sb}, v{sb} {pat} {DPP}')
        if grp[-1] == NT_ALL - 1:
            x = sb if two else sa
            a.ins(f'v_add_f32 v{x}, s{80+self.P[pi][2]}, v{x}')
        if two:
            a.ins(f'v_max3_f32 v{mn}, v{m}, v{sa}, v{sb}')
        else:
            a.ins(f'v_max_f32 v{mn}, v{m}, v{sa}')
        a.ins(f'v_cmp_gt_f32 vcc, v{mn}, v{m}')
        SK = newlab('Lsk')
        a.ins(f's_cbranch_vccz {SK}')
        a.ins(f'v_sub_f32 v{al}, v{m}, v{mn}')
        a.ins(f'v_mul_f32 v{al}, s74, v{al}')
        a.ins(f'v_exp_f32 v{al}, v{al}')
        a.ins(f'v_mov_b32 v{m}, v{mn}')
        m_resc(acc, al)
        a.ins(f'v_mul_f32 v{l}, v{al}, v{l}')
        a.label(SK)
        a.ins(f'v_mul_f32 v{cm}, s74, v{m}')
        a.ins(f'v_fma_f32 v{pa}, v{sa}, s74, -v{cm}')
        if two:
            a.ins(f'v_fma_f32 v{pb}, v{sb}, s74, -v{cm}')
        a.ins(f'v_exp_f32 v{pa}, v{pa}')
        if two:
            a.ins(f'v_exp_f32 v{pb}, v{pb}')
        a.ins(f'v_cvt_pk_bf16_f32 v{PA}, v{pa}, 0')
        a.ins(f'v_cvt_pk_bf16_f32 v{PA+1}, 0, v{pa}')
        if two:
            a.ins(f'v_cvt_pk_bf16_f32 v{PB}, v{pb}, 0')
            a.ins(f'v_cvt_pk_bf16_f32 v{PB+1}, 0, v{pb}')
        a.ins(f'v_add_f32 v{l}, v{l}, v{PA+1}')
        if two:
            a.ins(f'v_add_f32 v{l}, v{l}, v{PB+1}')
        for (t, P, tmp) in list(zip(grp, (PA, PB), (T0, T1))):
            tv, rv = self.get_tile(pi, ty, 'V', t, tmp)
            m_pv(tv, P, acc)
            if ty == 'A' and r_storage('V', t)[0] == 'l':
                slot = t - NVS
                for i in range(3):
                    a.lds(f'ds_write_b128 v3, v[{tv+4*i}:{tv+4*i+3}] offset:{slot*3072+i*1024}', ('W', pi, t))
            self.release(rv)
            self.try_issue()

    def publish(self, st, c):
        acc, m, l = st, st + 24, st + 25
        M, u, sc = WK, WK + 1, WK + 2
        a.ins(f'v_max_f32_dpp v{M}, v{m}, v{m} row_ror:8 {DPP}')
        a.ins(f'v_mov_b32 v{u}, v{M}')
        a.ins(f'v_permlane16_swap_b32 v{M}, v{u}')
        a.ins(f'v_max_f32 v{M}, v{M}, v{u}')
        a.ins(f'v_mov_b32 v{u}, v{M}')
        a.ins(f'v_permlane32_swap_b32 v{M}, v{u}')
        a.ins(f'v_max_f32 v{M}, v{M}, v{u}')
        a.ins(f'v_sub_f32 v{sc}, v{m}, v{M}')
        a.ins(f'v_mul_f32 v{sc}, s74, v{sc}')
        a.ins(f'v_exp_f32 v{sc}, v{sc}')
        a.ins(f'v_mul_f32 v{M}, s74, v{M}')
        m_resc(acc, sc)
        a.ins(f'v_mul_f32 v{l}, v{sc}, v{l}')
        a.ins(f'v_add_f32_dpp v{l}, v{l}, v{l} row_ror:8 {DPP}')
        a.ins(f'v_mov_b32 v{u}, v{l}')
        a.ins(f'v_permlane16_swap_b32 v{l}, v{u}')
        a.ins(f'v_add_f32 v{l}, v{l}, v{u}')
        a.ins(f'v_mov_b32 v{u}, v{l}')
        a.ins(f'v_permlane32_swap_b32 v{l}, v{u}')
        a.ins(f'v_add_f32 v{l}, v{l}, v{u}')
        for k in range(12):
            a.ins(f'v_permlane32_swap_b32 v{acc+k}, v{acc+k+12}')
        for k in range(12):
            a.ins(f'v_add_f32 v{acc+k}, v{acc+k}, v{acc+k+12}')
        for k in range(6):
            a.ins(f'v_permlane16_swap_b32 v{acc+k}, v{acc+k+6}')
        for k in range(6):
            a.ins(f'v_add_f32 v{acc+k}, v{acc+k}, v{acc+k+6}')
        for k in range(6):
            a.ins(f'v_add_f32_dpp v{acc+k}, v{acc+k}, v{acc+k} row_ror:8 {DPP}')
        t1, t2 = WK + 3, WK + 4
        for k in range(6):
            a.ins(f'v_add_u32 v{t1}, {k}, v7')
            a.ins(f'v_lshrrev_b32 v{t2}, 3, v{t1}')
            a.ins(f'v_and_b32 v{t1}, 7, v{t1}')
            a.ins(f'v_lshlrev_b32 v{t2}, 6, v{t2}')
            a.ins(f'v_add_u32 v{t1}, v{t1}, v{t2}')
            a.ins(f'v_lshl_add_u32 v{t1}, v{t1}, 2, v4')
            a.lds(f'ds_write_b32 v{t1}, v{acc+k}')
        z = WK + 8
        a.ins(f'v_mov_b32 v{z}, v{M}')
        a.ins(f'v_mov_b32 v{z+1}, v{l}')
        a.ins(f'v_mov_b32 v{z+2}, 0')
        a.ins(f'v_mov_b32 v{z+3}, 0')
        a.ins(f'v_and_b32 v{t1}, 0xffffff1f, v4')
        a.lds(f'ds_write_b128 v{t1}, v[{z}:{z+3}] offset:768')
        a.wait_lg_all()
        a.lds(f'ds_read_b128 v[{z}:{z+3}], v5')
        a.wait_lg_all()
        a.ins(f's_add_u32 s76, s73, {hex(c * PART_C)}')
        set_exec_lanes(49)
        a.vmem(f'buffer_store_dwordx4 v[{z}:{z+3}], v6, s[64:67], s76 offen sc1', ('P', c))
        set_exec_lanes(64)

    def run(self):
        P = self.P
        stamp(0, 78, 252)
        SCAP = int(os.environ.get('SCAP', '24'))
        def fill(n_more):
            done = 0
            while done < n_more:
                before = self.nissued
                tags = [t for t in a.vm if isinstance(t, tuple) and t[0] == 'T']
                if len(tags) + 3 > SCAP:
                    a.wait_vm(tags[2])
                self.try_issue(cap=len(a.vm) + 4)
                if self.nissued == before:
                    break
                done += self.nissued - before
        def snapshot():
            return (self.lqi, self.nissued, list(self.ring_free), self.ring_next, dict(self.ded_free), dict(self.loc), list(a.vm), [e.get('done', False) for e in self.LQ])
        def restore(sn):
            self.lqi, self.nissued = sn[0], sn[1]
            self.ring_free, self.ring_next, self.ded_free, self.loc, a.vm = list(sn[2]), sn[3], dict(sn[4]), dict(sn[5]), list(sn[6])
            for e, d in zip(self.LQ, sn[7]):
                e['done'] = d
        FLAG_LDS = 3 * 40960 + 39936 + 1016
        a.ins(f'v_mov_b32 v250, {FLAG_LDS}')
        a.ins('v_mov_b32 v251, 0')
        a.lds('ds_write_b32 v250, v251')
        startup2a(after_x=lambda: self.try_issue(cap=len(a.vm) + SCAP), st=True)
        sv = list(a.vm)
        L0 = only_wave0_begin()
        startup2b(st=True)
        a.ins(f'v_mov_b32 v250, {FLAG_LDS}')
        a.ins('v_mov_b32 v251, 1')
        a.lds('ds_write_b32 v250, v251')
        only_wave0_end(L0)
        a.vm = sv
        fill(100)
        LF = newlab('Llf'); LD = newlab('Lld')
        smov(75, SPIN_MAX)
        a.ins(f'v_mov_b32 v250, {FLAG_LDS}')
        a.label(LF)
        a.ins('ds_read_b32 v251, v250')
        a.ins('s_waitcnt lgkmcnt(0)')
        a.ins('v_cmp_ne_u32 vcc, 1, v251')
        a.ins(f's_cbranch_vccz {LD}')
        a.ins('s_sleep 1')
        a.ins('s_sub_u32 s75, s75, 1')
        a.ins('s_cmp_lg_u32 s75, 0')
        a.ins(f's_cbranch_scc1 {LF}')
        a.label(LD)
        a.fence_hazards()
        stamp(1, 78, 252)
        a.ins('v_min_u32 v248, 23, v0')
        a.ins('v_lshlrev_b32 v248, 7, v248')
        self.q_issue(P[0][1], P[0][2])
        for pi, (ty, ps, b, tiles) in enumerate(P):
            a.comment(f'---- phase {pi}: {ty} pass{ps} b{b}')
            self.cur_pi = pi
            self.t_ok = (ty == 'N')
            assert ty == 'N' or (self.ring_free[4] and self.ring_free[5])
            stamp(2 + 3 * pi, 78, 252)
            self.q_take(ps, b)
            stamp(3 + 3 * pi, 78, 252)
            for k in range(24):
                a.ins(f'v_mov_b32 v{ST+k}, 0')
            a.ins(f'v_mov_b32 v{ST+24}, 0xf149f2ca')
            a.ins(f'v_mov_b32 v{ST+25}, 0')
            gs = groups_of(tiles)
            for g, grp in enumerate(gs):
                qlead = int(os.environ.get('QLEAD', '3')) if (pi + 1 < len(P) and P[pi + 1][0] == 'D') else 3
                if g == len(gs) - qlead and pi + 1 < len(P):
                    self.q_issue(P[pi + 1][1], P[pi + 1][2])
                if g == len(gs) - 4 and pi == 0:
                    flags_addr(250, 2)
                    a.vmem('global_load_dword v251, v250, s[28:29]', 'fl2')
                self.group(pi, ty, grp, g == len(gs) - 1)
                if ty == 'D' and g >= int(os.environ.get('DPOP', '7')):
                    tags = [t for t in a.vm if isinstance(t, tuple) and t[0] == 'T']
                    if len(a.vm) + 4 > int(os.environ.get('CAP', '54')) and len(tags) >= 12:
                        a.wait_vm(tags[5])
                        self.try_issue()
            if pi == 0:
                a.wait_vm('fl2')
                FO = newlab('Lfo')
                flags_check(251, 2)
                a.ins(f's_cbranch_vccz {FO}')
                sv = list(a.vm)
                wait_flags(2, 250, plain_first=False)
                a.vm = sv
                a.label(FO)
                a.fence_hazards()
            self.publish(ST, pi)
            stamp(4 + 3 * pi, 78, 252)
            self.try_issue()
        a.ins('s_waitcnt vmcnt(0)')
        a.ins('s_endpgm')

def gen_stream():
    a.label('L_stream')
    if SLAST:
        stage1_arm()
    startup1()
    a.ins(f's_sub_u32 s4, s2, {0 if SLAST else NCH}')
    a.ins('s_lshl_b32 s4, s4, 2')
    a.ins('s_add_u32 s4, s4, s3')
    a.ins('s_mul_i32 s5, s4, 2521')
    a.ins('s_lshr_b32 s5, s5, 16')
    a.ins(f's_mul_i32 s6, s5, {WPH}')
    a.ins('s_sub_u32 s6, s4, s6')
    ROT = int(os.environ.get('ROT', '1'))
    a.ins('s_mul_i32 s70, s5, 3145728')
    for b in range(4):
        al = ((26 - 7 * b) % 26) if ROT else 0
        if al + 10 <= 26:
            a.ins(f's_sub_i32 s7, s6, {al}')
            a.ins('s_max_i32 s7, s7, 0')
            a.ins('s_min_i32 s7, s7, 10')
            a.ins(f's_sub_u32 s68, s6, {al}')
            a.ins('s_cmp_lt_u32 s68, 10')
        else:
            wr = al + 10 - 26
            a.ins(f's_min_u32 s7, s6, {wr}')
            a.ins(f's_sub_i32 s68, s6, {al}')
            a.ins('s_max_i32 s68, s68, 0')
            a.ins('s_add_u32 s7, s7, s68')
            a.ins(f's_sub_u32 s68, s6, {wr}')
            a.ins(f's_cmp_ge_u32 s68, {al - wr}')
        a.ins('s_cselect_b32 s68, 40, 39')
        a.ins(f's_cselect_b32 s{80+b}, 0, 0xff800000')
        a.ins('s_mul_i32 s68, s68, 3072')
        a.ins('s_mul_i32 s71, s6, 39')
        a.ins('s_add_u32 s7, s7, s71')
        a.ins('s_mul_i32 s71, s7, 3072')
        a.ins('s_add_u32 s71, s71, s70')
        a.ins(f's_add_u32 s71, s71, {hex(b * BATCH_STRIDE)}')
        srd_off(srd_k(b), 10, 11, 71, 's68')
        srd_off(srd_v(b), 12, 13, 71, 's68')
    a.ins('s_mul_i32 s72, s5, 384')
    a.ins(f's_add_u32 s72, s72, {hex(Q_OFF)}')
    a.ins(f's_mul_i32 s73, s4, {REC}')
    smov(74, CSCALE)
    a.ins('s_lshl_b32 s78, s4, 8')
    a.ins(f's_add_u32 s78, s78, {hex(STAMP_OFF)}')
    a.ins('v_lshrrev_b32 v1, 3, v0')
    a.ins('v_mul_u32_u24 v1, 384, v1')
    a.ins('v_and_b32 v2, 7, v0')
    a.ins('v_lshlrev_b32 v2, 4, v2')
    a.ins('v_add_u32 v1, v1, v2')
    a.ins('s_mul_i32 s71, s3, 40960')
    a.ins('v_lshlrev_b32 v6, 4, v0')
    a.ins('v_add_u32 v3, s71, v6')
    a.ins('s_add_u32 s71, s71, 39936')
    a.ins('v_add_u32 v5, s71, v6')
    a.ins('v_lshlrev_b32 v4, 1, v2')
    a.ins('v_add_u32 v4, s71, v4')
    a.ins('v_bfe_u32 v7, v0, 4, 1')
    a.ins('v_mul_u32_u24 v7, 6, v7')
    a.ins('v_bfe_u32 v254, v0, 5, 1')
    a.ins('v_mul_u32_u24 v254, 12, v254')
    a.ins('v_add_u32 v7, v7, v254')
    Stream().run()

XS = 0
RED = 5120
XRES = 25600
X1 = 35840
WL = 38912
X1A = 100352
W1 = 128

def vm_auto(text):
    if len(a.vm) >= 60:
        a.ins('s_waitcnt vmcnt(30)')
        a.vm = a.vm[-30:]
    a.vmem(text, None)

def wave_sum(t, u):
    for pat in ('quad_perm:[1,0,3,2]', 'quad_perm:[2,3,0,1]', 'row_half_mirror', 'row_mirror'):
        a.ins(f'v_add_f32_dpp v{t}, v{t}, v{t} {pat} {DPP}')
    a.ins(f'v_mov_b32 v{u}, v{t}')
    a.ins(f'v_permlane16_swap_b32 v{t}, v{u}')
    a.ins(f'v_add_f32 v{t}, v{t}, v{u}')
    a.ins(f'v_mov_b32 v{u}, v{t}')
    a.ins(f'v_permlane32_swap_b32 v{t}, v{u}')
    a.ins(f'v_add_f32 v{t}, v{t}, v{u}')

def bf16r(d, s):
    a.ins(f'v_cvt_pk_bf16_f32 v{d}, 0, v{s}')

def poll_indicator(voff, nl, sreg):
    L = newlab('Lpi'); D = newlab('Lpd')
    smov(75, SPIN_MAX)
    set_exec_lanes(nl)
    a.label(L)
    a.ins(f'buffer_load_dword v127, v{voff}, s[64:67], s{sreg} offen sc1')
    a.ins('s_waitcnt vmcnt(0)')
    if os.environ.get('POLL', 'any') == 'any':
        a.ins('v_cmp_ne_u32 vcc, -1, v127')
        a.ins(f's_cbranch_vccnz {D}')
    else:
        a.ins('v_cmp_eq_u32 vcc, -1, v127')
        a.ins(f's_cbranch_vccz {D}')
    a.ins(f's_sleep {os.environ.get("PSLEEP", "3")}')
    a.ins('s_sub_u32 s75, s75, 1')
    a.ins('s_cmp_lg_u32 s75, 0')
    a.ins(f's_cbranch_scc1 {L}')
    a.label(D)
    set_exec_lanes(64)
    a.vm = []

def gather_sel(n, emit_load, reg_of, init_mask=None):
    L = newlab('Lgs'); D = newlab('Lgsd')
    if init_mask is None:
        smov(91, (1 << n) - 1)
    else:
        init_mask()
    smov(75, SPIN_MAX)
    a.label(L)
    for i in range(n):
        K = newlab('Lgk')
        a.ins(f's_bitcmp1_b32 s91, {i}')
        a.ins(f's_cbranch_scc0 {K}')
        emit_load(i)
        a.label(K)
    a.ins('s_waitcnt vmcnt(0)')
    for i in range(n):
        K = newlab('Lgc')
        r = reg_of(i)
        a.ins(f's_bitcmp1_b32 s91, {i}')
        a.ins(f's_cbranch_scc0 {K}')
        a.ins(f'v_max3_u32 v127, v{r}, v{r+1}, v{r+2}')
        a.ins(f'v_max_u32 v127, v127, v{r+3}')
        a.ins('v_cmp_eq_u32 vcc, -1, v127')
        a.ins(f's_cbranch_vccnz {K}')
        a.ins(f's_bitset0_b32 s91, {i}')
        a.label(K)
    a.ins('s_cmp_eq_u32 s91, 0')
    a.ins(f's_cbranch_scc1 {D}')
    a.ins('s_sub_u32 s75, s75, 1')
    a.ins('s_cmp_lg_u32 s75, 0')
    a.ins(f's_cbranch_scc1 {L}')
    a.label(D)
    a.fence_hazards()

def check_regs(regs, w):
    regs = list(regs)
    a.ins(f'v_max3_u32 v{w}, v{regs[0]}, v{regs[1]}, v{regs[2]}')
    k = 3
    while k < len(regs):
        k2 = min(k + 1, len(regs) - 1)
        a.ins(f'v_max3_u32 v{w}, v{w}, v{regs[k]}, v{regs[k2]}')
        k += 2
    a.ins(f'v_cmp_eq_u32 vcc, -1, v{w}')

def gather_ar(sreg):
    LSK = newlab('Lnoind')
    if os.environ.get('TAILSKIP', '0') == '1':
        a.ins('s_cmp_eq_u32 s78, 7')
        a.ins(f's_cbranch_scc1 {LSK}')
    poll_indicator(8, 8, sreg)
    a.label(LSK)
    def ld(i):
        a.ins(f's_add_u32 s76, s{sreg}, {(i // 4) * 4096}')
        off = f' offset:{(i % 4) * 1024}' if i % 4 else ''
        a.ins(f'buffer_load_dwordx4 v[{16+4*i}:{19+4*i}], v9, s[64:67], s76 offen{off} sc1')
    gather_sel(20, ld, lambda i: 16 + 4 * i)
    for grp in range(5):
        for k in range(1, 4):
            for e in range(4):
                a.ins(f'v_add_f32 v{16+4*grp+e}, v{16+4*grp+e}, v{16+4*(grp+5*k)+e}')
    for grp in range(5):
        a.lds(f'ds_write_b128 v10, v[{16+4*grp}:{19+4*grp}] offset:{grp*1024}')
    a.barrier()

def ar_sum_wave0():
    for wv in range(8):
        for k in range(5):
            r = 32 + (wv * 5 + k) * 2
            a.lds(f'ds_read_b64 v[{r}:{r+1}], v12 offset:{RED + wv*2560 + k*512}')
    a.wait_lg_all()
    for k in range(5):
        for e in range(2):
            d = 16 + 2 * k + e
            a.ins(f'v_add_f32 v{d}, v{32+2*k+e}, v{32+(5+k)*2+e}')
    for p in range(2, 8):
        for k in range(5):
            for e in range(2):
                d = 16 + 2 * k + e
                a.ins(f'v_add_f32 v{d}, v{d}, v{32+(5*p+k)*2+e}')

def residual(areg, src_off):
    for k in range(5):
        a.lds(f'ds_read_b64 v[{32+2*k}:{33+2*k}], v{areg} offset:{src_off + k*512}')
    for i in range(10):
        bf16r(16 + i, 16 + i)
    a.wait_lg_all()
    for i in range(10):
        a.ins(f'v_add_f32 v{16+i}, v{16+i}, v{32+i}')
    for i in range(10):
        bf16r(16 + i, 16 + i)

def store_x(areg, dst_off):
    for k in range(5):
        a.lds(f'ds_write_b64 v{areg}, v[{16+2*k}:{17+2*k}] offset:{dst_off + k*512}')

def layernorm_to_xs():
    t, u, mean, var = 32, 33, 34, 35
    a.ins(f'v_add_f32 v{t}, v16, v17')
    for i in range(2, 10):
        a.ins(f'v_add_f32 v{t}, v{t}, v{16+i}')
    wave_sum(t, u)
    a.ins(f'v_mul_f32 v{mean}, {hex(f32(1.0/640))}, v{t}')
    for i in range(10):
        a.ins(f'v_sub_f32 v{40+i}, v{16+i}, v{mean}')
    a.ins(f'v_mul_f32 v{t}, v40, v40')
    for i in range(1, 10):
        a.ins(f'v_fmac_f32 v{t}, v{40+i}, v{40+i}')
    wave_sum(t, u)
    a.ins(f'v_mul_f32 v{var}, {hex(f32(1.0/640))}, v{t}')
    bf16r(mean, mean)
    bf16r(var, var)
    a.ins(f'v_add_f32 v{var}, {hex(f32(1e-5))}, v{var}')
    bf16r(var, var)
    a.ins(f'v_sqrt_f32 v{var}, v{var}')
    bf16r(var, var)
    a.ins(f'v_rcp_f32 v{u}, v{var}')
    for i in range(10):
        a.ins(f'v_sub_f32 v{40+i}, v{16+i}, v{mean}')
    for i in range(10):
        bf16r(40 + i, 40 + i)
    for i in range(10):
        a.ins(f'v_mul_f32 v{50+i}, v{40+i}, v{u}')
    for i in range(10):
        a.ins(f'v_fma_f32 v{60+i}, -v{50+i}, v{var}, v{40+i}')
    for i in range(10):
        a.ins(f'v_fma_f32 v{50+i}, v{60+i}, v{u}, v{50+i}')
    for k in range(5):
        a.ins(f'v_cvt_pk_bf16_f32 v{72+k}, v{50+2*k}, v{51+2*k}')
        a.lds(f'ds_write_b32 v119, v{72+k} offset:{XS + k*256}')

def only_wave0_begin():
    L = newlab('Lw0')
    a.ins('s_cmp_lg_u32 s3, 0')
    a.ins(f's_cbranch_scc1 {L}')
    return L

def only_wave0_end(L):
    a.wait_lg_all()
    a.label(L)
    a.fence_hazards()

def gemv_rows(nrows, xaddr, wsrc, acc=56):
    for k in range(8):
        a.ins(f'v_mov_b32 v{acc+k}, 0')
    B = 4
    XB = (16, 24); WB = (64, 80)
    nb = nrows // B
    def issue(j):
        r0 = j * B
        for k in range(B // 2):
            a.lds(f'ds_read_b128 v[{XB[j%2]+4*k}:{XB[j%2]+4*k+3}], v{xaddr} offset:{(r0+2*k)*8}', ('g', j))
        for k in range(B):
            ws = wsrc(r0 + k)
            if ws[0] == 'l':
                a.lds(f'ds_read_b128 v[{WB[j%2]+4*k}:{WB[j%2]+4*k+3}], v{ws[1]} offset:{ws[2]}', ('g', j))
    issue(0)
    for j in range(nb):
        if j + 1 < nb:
            issue(j + 1)
        a.wait_lg(('g', j))
        for k in range(B):
            ws = wsrc(j * B + k)
            x = XB[j % 2] + 2 * k
            if ws[0] == 'a':
                tmp = 48 + 4 * (k % 2)
                m_ac4(tmp, ws[1])
                m_gv8(tmp, x, acc)
            elif ws[0] == 'v':
                m_gv8(ws[1], x, acc)
            else:
                m_gv8(WB[j % 2] + 4 * k, x, acc)

def write_red(addr, acc=56):
    set_exec_lanes(60)
    a.lds(f'ds_write_b128 v{addr}, v[{acc}:{acc+3}]')
    a.lds(f'ds_write_b128 v{addr}, v[{acc+4}:{acc+7}] offset:16')
    set_exec_lanes(64)
    a.barrier()

def reduce3_publish(sreg):
    L = newlab('Lr3')
    a.ins('s_cmp_eq_u32 s3, 3')
    a.ins(f's_cbranch_scc1 {L}')
    M = newlab('Lr3m')
    a.ins('s_cmp_lg_u32 s3, 2')
    a.ins(f's_cbranch_scc1 {M}')
    set_exec_lanes(32)
    a.label(M)
    for r in range(3):
        a.lds(f'ds_read_b128 v[{16+4*r}:{19+4*r}], v15 offset:{RED + r*2560}')
    a.wait_lg_all()
    for e in range(4):
        a.ins(f'v_add_f32 v{16+e}, v{16+e}, v{20+e}')
    for e in range(4):
        a.ins(f'v_add_f32 v{16+e}, v{16+e}, v{24+e}')
    a.ins(f's_add_u32 s76, s70, s{sreg}')
    a.ins('buffer_store_dwordx4 v[16:19], v15, s[64:67], s76 offen sc1')
    set_exec_lanes(64)
    a.label(L)
    a.fence_hazards()


def prep_blocks(blocks):
    TB = (16, 48); U = 80
    def issue(i):
        blocks[i][0](TB[i % 2], ('blk', i))
    issue(0)
    for i, (em, dest) in enumerate(blocks):
        if i + 1 < len(blocks):
            issue(i + 1)
        a.wait_vm(('blk', i))
        T = TB[i % 2]
        out = dest[1] if dest[0] == 'v' else U
        for d in range(4):
            for h in range(2):
                c = 2 * d + h
                for p in range(4):
                    a.ins(f'v_perm_b32 v{out+4*c+p}, v{T+4*(2*p+1)+d}, v{T+4*(2*p)+d}, s{62+h}')
        if dest[0] == 'a':
            for k in range(32):
                a.ins(f'v_accvgpr_write_b32 a{dest[1]+k}, v{U+k}')
        elif dest[0] in ('l', 'l?'):
            LS = None
            if dest[0] == 'l?':
                LS = newlab('Lpb')
                a.ins('s_cmp_ge_u32 s3, 2')
                a.ins(f's_cbranch_scc1 {LS}')
            for c in range(8):
                a.lds(f'ds_write_b128 v{dest[1]}, v[{U+4*c}:{U+4*c+3}] offset:{dest[2]+c*1024}')
            a.wait_lg_all()
            if LS:
                a.label(LS)
                a.fence_hazards()
    a.wait_lg_all()

def stage_block(dst, areg, off, tag):
    for c in range(8):
        a.lds(f'ds_read_b128 v[{dst+4*c}:{dst+4*c+3}], v{areg} offset:{off+c*1024}', tag)

def mfma_block(acc, x, kind, base, first):
    for c in range(8):
        cc = '0' if first else f'v[{acc+4*c}:{acc+4*c+3}]'
        a.ins(f'v_mfma_f32_16x16x32_bf16 v[{acc+4*c}:{acc+4*c+3}], v[{x}:{x+3}], {kind}[{base+4*c}:{base+4*c+3}], {cc}')

def extract(acc, E):
    for c in range(8):
        a.ins(f'v_mov_b32 v{E+c}, v{acc+4*c}')

def xread(dst, areg, off, tag='x'):
    a.lds(f'ds_read_b128 v[{dst}:{dst+3}], v{areg} offset:{off}', tag)

def mfma_consts():
    smov(62, 0x05040100)
    smov(63, 0x07060302)
    a.ins('v_and_b32 v3, 15, v0')
    a.ins('v_lshrrev_b32 v4, 4, v0')
    a.ins('v_lshlrev_b32 v112, 4, v4')
    a.ins(f'v_add_u32 v112, {XS}, v112')
    a.ins('s_lshl_b32 s4, s3, 6')
    a.ins('v_add_u32 v113, s4, v112')
    a.ins('s_mul_i32 s4, s3, 320')
    a.ins('v_add_u32 v114, s4, v112')

def direct_and_cb4_publish(sreg):
    pass

def publish_own(E, sreg):
    a.ins(f's_add_u32 s76, s70, s{sreg}')
    set_exec_lanes(16)
    a.ins(f'buffer_store_dwordx4 v[{E}:{E+3}], v115, s[64:67], s76 offen sc1')
    a.ins(f'buffer_store_dwordx4 v[{E+4}:{E+7}], v115, s[64:67], s76 offen offset:16 sc1')
    set_exec_lanes(64)

def publish_cb4(E, sreg):
    set_exec_lanes(16)
    a.lds(f'ds_write_b128 v116, v[{E}:{E+3}]')
    a.lds(f'ds_write_b128 v116, v[{E+4}:{E+7}] offset:16')
    set_exec_lanes(64)
    a.barrier()
    L0 = only_wave0_begin()
    for w in range(4):
        a.lds(f'ds_read_b128 v[{16+4*w}:{19+4*w}], v13 offset:{RED + w*512}')
    a.wait_lg_all()
    for w in range(1, 4):
        for e in range(4):
            a.ins(f'v_add_f32 v{16+e}, v{16+e}, v{16+4*w+e}')
    a.ins(f's_add_u32 s76, s70, s{sreg}')
    set_exec_lanes(32)
    a.ins('buffer_store_dwordx4 v[16:19], v13, s[64:67], s76 offen offset:2048 sc1')
    set_exec_lanes(64)
    only_wave0_end(L0)

def combine_records(n, first_reg, Mv, Lv, out):
    for k in range(n):
        a.ins(f'v_readlane_b32 s{40+k}, v{first_reg+4*k}, 48')
        a.ins(f'v_readlane_b32 s{48+k}, v{first_reg+4*k+1}, 48')
    a.ins(f'v_mov_b32 v{Mv}, s40')
    for k in range(1, n):
        a.ins(f'v_max_f32 v{Mv}, s{40+k}, v{Mv}')
    E = 100
    for k in range(n):
        a.ins(f'v_sub_f32 v{E+k}, s{40+k}, v{Mv}')
    for k in range(n):
        a.ins(f'v_exp_f32 v{E+k}, v{E+k}')
    a.ins(f'v_mul_f32 v{Lv}, s48, v{E}')
    for k in range(1, n):
        a.ins(f'v_fma_f32 v{Lv}, v{E+k}, s{48+k}, v{Lv}')
    for e in range(4):
        a.ins(f'v_mul_f32 v{out+e}, v{E}, v{first_reg+e}')
    for k in range(1, n):
        for e in range(4):
            a.ins(f'v_fma_f32 v{out+e}, v{E+k}, v{first_reg+4*k+e}, v{out+e}')

def combine_big(n, first_reg, Mv, Lv, out, E):
    a.ins(f'v_readlane_b32 s40, v{first_reg}, 48')
    a.ins(f'v_readlane_b32 s41, v{first_reg+4}, 48')
    a.ins(f'v_mov_b32 v{Mv}, s40')
    for k in range(1, n):
        if k + 1 < n:
            a.ins(f'v_readlane_b32 s{40+(k+1)%2}, v{first_reg+4*(k+1)}, 48')
        a.ins(f'v_max_f32 v{Mv}, s{40+k%2}, v{Mv}')
    a.ins(f'v_mov_b32 v{Lv}, 0')
    for e in range(4):
        a.ins(f'v_mov_b32 v{out+e}, 0')
    def rl(k):
        a.ins(f'v_readlane_b32 s{40+2*(k%2)}, v{first_reg+4*k}, 48')
        a.ins(f'v_readlane_b32 s{41+2*(k%2)}, v{first_reg+4*k+1}, 48')
    rl(0)
    for k in range(n):
        if k + 1 < n:
            rl(k + 1)
        e_ = E + k % 2
        a.ins(f'v_sub_f32 v{e_}, s{40+2*(k%2)}, v{Mv}')
        a.ins(f'v_exp_f32 v{e_}, v{e_}')
        a.ins(f'v_fma_f32 v{Lv}, v{e_}, s{41+2*(k%2)}, v{Lv}')
        for e in range(4):
            a.ins(f'v_fma_f32 v{out+e}, v{e_}, v{first_reg+4*k+e}, v{out+e}')

def stage1_arm():
    a.ins('s_lshl_b32 s4, s3, 6')
    a.ins('v_add_u32 v15, s4, v0')
    a.ins('v_lshlrev_b32 v15, 4, v15')
    for k in range(4):
        a.ins(f'v_mov_b32 v{16+k}, -1')
    L1 = newlab('Lst1')
    a.ins('s_cmp_ge_u32 s2, 12')
    a.ins(f's_cbranch_scc1 {L1}')
    a.ins('s_lshl_b32 s76, s2, 12')
    a.ins(f's_add_u32 s76, s76, {hex(Q_OFF)}')
    a.ins('buffer_store_dwordx4 v[16:19], v15, s[64:67], s76 offen sc1')
    a.ins('s_waitcnt vmcnt(0)')
    a.ins('s_barrier')
    set_flag(1)
    a.label(L1)
    a.fence_hazards()

def chain_common_init():
    a.ins('s_lshl_b32 s4, s3, 6')
    a.ins('v_add_u32 v15, s4, v0')
    a.ins('v_lshlrev_b32 v15, 4, v15')
    for k in range(4):
        a.ins(f'v_mov_b32 v{16+k}, -1')
    if not SLAST:
        stage1_arm()
    startup1()
    startup2a()
    L0 = only_wave0_begin()
    startup2b()
    only_wave0_end(L0)
    a.barrier()
    if SLAST:
        a.ins(f's_sub_u32 s2, s2, {NST}')
    a.ins(f's_mul_i32 s4, s2, {ARM_PER}')
    for k in range(ARM_N):
        LS = newlab('Lsa')
        a.ins(f's_add_u32 s76, s4, {k*4096}')
        a.ins(f's_sub_u32 s5, s76, {hex(Q_OFF)}')
        a.ins('s_cmp_lt_u32 s5, 49152')
        a.ins(f's_cbranch_scc1 {LS}')
        a.ins('buffer_store_dwordx4 v[16:19], v15, s[64:67], s76 offen sc1')
        a.label(LS)
    a.ins('s_waitcnt vmcnt(0)')
    a.ins('s_barrier')
    set_flag(2)
    a.vm = []
    a.ins('s_lshl_b32 s4, s3, 6')
    a.ins('v_add_u32 v1, s4, v0')
    a.ins('v_lshlrev_b32 v15, 4, v1')
    a.ins('v_min_u32 v2, 59, v0')
    a.ins('s_mul_i32 s4, s3, 60')
    a.ins('v_add_u32 v2, s4, v2')
    a.ins('v_lshlrev_b32 v14, 4, v2')
    a.ins(f'v_add_u32 v14, {WL}, v14')
    a.ins('v_add_u32 v120, 61440, v14')
    a.ins('s_lshl_b32 s4, s3, 3')
    a.ins('v_add_u32 v8, s4, v0')
    a.ins('v_mul_u32_u24 v8, 2560, v8')
    a.ins('v_add_u32 v8, 2556, v8')
    a.ins('s_mul_i32 s4, s3, 20480')
    a.ins('v_lshlrev_b32 v13, 4, v0')
    a.ins('v_add_u32 v9, s4, v13')
    a.ins(f's_mul_i32 s4, s3, 5120')
    a.ins(f's_add_u32 s4, s4, {RED}')
    a.ins('v_add_u32 v10, s4, v13')
    a.ins('v_lshlrev_b32 v12, 3, v0')
    a.ins('s_lshl_b32 s4, s2, 2')
    a.ins('s_add_u32 s4, s4, s3')
    a.ins('s_lshl_b32 s77, s4, 9')
    a.ins(f's_add_u32 s77, s77, {hex(STAMP_OFF + 832*256)}')
    stamp(120, 77, 122)

def arm_arrive():
    a.wait_vm('arm')
    a.ins('s_barrier')
    L = only_wave0_begin()
    a.ins('v_mov_b32 v124, 0')
    a.ins('v_mov_b32 v125, 1')
    set_exec_lanes(1)
    a.vmem('global_atomic_add v124, v125, s[28:29] sc1', None)
    set_exec_lanes(64)
    a.label(L)
    a.fence_hazards()

def load_xres():
    L = only_wave0_begin()
    srd(96, 8, 9, 4 * 1280)
    a.ins('v_lshlrev_b32 v127, 2, v0')
    for b in range(4):
        smov(76, b * 1280)
        for k in range(5):
            a.ins(f'buffer_load_dword v{16+b*5+k}, v127, s[96:99], s76 offen offset:{k*256}')
    a.ins('s_waitcnt vmcnt(0)')
    for b in range(4):
        for k in range(5):
            r = 16 + b * 5 + k
            d = 40 + 2 * (b * 5 + k)
            a.ins(f'v_lshlrev_b32 v{d}, 16, v{r}')
            a.ins(f'v_and_b32 v{d+1}, 0xffff0000, v{r}')
            a.lds(f'ds_write_b64 v12, v[{d}:{d+1}] offset:{XRES + b*2560 + k*512}')
    only_wave0_end(L)


def gen_acu():
    a.label('L_acu')
    chain_common_init()
    mfma_consts()
    a.ins('s_mul_i32 s70, s2, 2560')
    a.ins('v_lshlrev_b32 v119, 2, v0')
    a.ins('s_mul_i32 s4, s3, 24576')
    a.ins(f's_add_u32 s4, s4, {WL}')
    a.ins('v_add_u32 v14, s4, v13')
    a.ins('s_and_b32 s4, s3, 1')
    a.ins('s_lshl_b32 s4, s4, 13')
    a.ins(f's_add_u32 s4, s4, {WL + 4*24576}')
    a.ins('v_add_u32 v120, s4, v13')
    a.ins('v_mul_u32_u24 v125, 10240, v4')
    a.ins('v_lshl_add_u32 v125, v3, 4, v125')
    a.ins('v_subrev_u32 v127, 6, v3')
    a.ins('v_min_u32 v127, 5, v127')
    a.ins('v_cmp_gt_u32 vcc, 6, v3')
    a.ins('v_cndmask_b32 v127, v127, v3, vcc')
    a.ins('v_mul_u32_u24 v126, 24576, v4')
    a.ins('v_lshl_add_u32 v126, v127, 4, v126')
    a.ins('s_mov_b64 s[88:89], vcc')
    a.ins('s_not_b64 s[90:91], vcc')
    a.ins('s_mul_i32 s4, s2, 245760')
    srd_off(96, 16, 17, 4, 245760)
    a.ins('s_mul_i32 s4, s2, 96')
    a.ins(f's_sub_u32 s5, {640*3072}, s4')
    srd_off(80, 20, 21, 4, 's5')
    srd_off(84, 22, 23, 4, 's5')
    a.ins('s_mul_i32 s4, s2, 61440')
    srd_off(92, 24, 25, 4, 61440)
    a.ins('s_lshl_b32 s40, s3, 8')
    a.ins('s_mul_i32 s41, s3, 40960')
    a.ins('s_add_u32 s41, s41, 1024')
    a.ins(f's_mul_i32 s42, s3, {160*3072}')
    def ld1280(srd_, sbase, const):
        def em(T, tag):
            for e in range(8):
                if e % 3 == 0:
                    a.ins(f's_add_u32 s76, s{sbase}, {const + (e // 3) * 3840}')
                off = f' offset:{(e % 3) * 1280}' if e % 3 else ''
                a.vmem(f'buffer_load_dwordx4 v[{T+4*e}:{T+4*e+3}], v125, s[{srd_}:{srd_+3}], s76 offen{off} nt', tag)
        return em
    def ldgu(i):
        def em(T, tag):
            for e in range(8):
                a.ins(f's_add_u32 s76, s42, {(32 * i + e) * 3072}')
                a.ins('s_mov_b64 exec, s[88:89]')
                a.vmem(f'buffer_load_dwordx4 v[{T+4*e}:{T+4*e+3}], v126, s[80:83], s76 offen nt', tag)
                a.ins('s_mov_b64 exec, s[90:91]')
                a.vmem(f'buffer_load_dwordx4 v[{T+4*e}:{T+4*e+3}], v126, s[84:87], s76 offen nt', tag)
            a.ins('s_mov_b64 exec, -1')
        return em
    blocks = []
    for ks in range(6):
        blocks.append((ld1280(96, 40, ks * 40960), ('a', 32 * ks)))
    blocks.append((ld1280(96, 41, 0), ('a', 192)))
    blocks.append((ld1280(96, 41, 4 * 40960), ('a', 224)))
    for i in range(4):
        blocks.append((ldgu(i), ('v', W1 + 32 * i)))
    blocks.append((ldgu(4), ('l', 14, 0)))
    blocks.append((ld1280(92, 40, 0), ('l', 14, 8192)))
    blocks.append((ld1280(92, 40, 40960), ('l', 14, 16384)))
    blocks.append((ld1280(92, 41, 0), ('l?', 120, 0)))
    prep_blocks(blocks)
    load_xres()
    a.ins('s_lshl_b32 s4, s3, 9')
    a.ins('v_lshlrev_b32 v115, 5, v3')
    a.ins('v_add_u32 v115, s4, v115')
    a.ins(f'v_add_u32 v116, {RED}, v115')
    a.ins('s_mul_i32 s4, s3, 384')
    a.ins('v_lshlrev_b32 v11, 5, v3')
    a.ins('v_add_u32 v11, s4, v11')
    a.ins(f'v_add_u32 v11, {RED}, v11')
    a.barrier()
    a.ins('v_lshlrev_b32 v117, 2, v0')
    a.ins('v_add_u32 v117, s3, v117')
    a.ins('v_min_u32 v117, 25, v117')
    a.ins(f'v_mul_u32_u24 v117, {REC}, v117')
    a.ins('v_add_u32 v117, 772, v117')
    a.ins(f's_mul_i32 s71, s2, {WPH*REC}')
    a.ins(f's_mul_i32 s72, s3, {REC}')
    a.ins('s_add_u32 s72, s72, s71')
    a.ins(f's_mul_i32 s4, s3, {REC}')
    a.ins(f's_add_u32 s4, s4, {RED}')
    a.ins('v_add_u32 v118, s4, v13')
    a.ins('v_add_u32 v117, s71, v117')
    wait_flags(2, 126)
    order = 0
    for i, (ly, b) in enumerate(CHAIN_ORDER):
        order |= (ly * 4 + b) << (4 * i)
    tab = 0
    for i, k in enumerate(CHAIN_ORDER):
        sg = CHAIN_SEGS[k]
        assert 2 <= len(sg) <= 3
        e = sg[0] | ((sg[1] if len(sg) > 2 else 0) << 5) | (sg[-1] << 10) | ((1 if len(sg) > 2 else 0) << 15)
        tab |= e << (16 * i)
    for w in range(4):
        smov(56 + w, (tab >> (32 * w)) & 0xffffffff)
    a.ins('s_mov_b32 s78, 0')
    a.label('L_aloop')
    a.fence_hazards()
    if True:
        a.ins('s_lshl_b32 s4, s78, 2')
        a.ins(f's_lshr_b32 s79, {hex(order)}, s4')
        a.ins('s_and_b32 s79, s79, 15')
        a.ins(f's_mul_i32 s81, s79, {2*AR_SZ}')
        a.ins(f's_add_u32 s81, s81, {hex(AR_OFF)}')
        a.ins(f's_add_u32 s82, s81, {AR_SZ}')
        a.ins('s_and_b32 s83, s79, 3')
        a.ins('s_mul_i32 s84, s83, 1280')
        a.ins('s_mul_i32 s4, s83, 2560')
        a.ins('v_add_u32 v121, s4, v12')
        a.ins('s_lshr_b32 s85, s79, 2')
        a.ins(f's_add_u32 s4, s4, {X1A}')
        a.ins('v_add_u32 v124, s4, v12')
        a.ins('s_lshl_b32 s88, s78, 6')
        stamp(0, 77, 122, 88)
        a.ins('s_and_b32 s4, s78, 3')
        a.ins('s_lshl_b32 s4, s4, 4')
        a.ins('s_cmp_lt_u32 s78, 4')
        a.ins('s_cselect_b64 s[60:61], s[56:57], s[58:59]')
        a.ins('s_lshr_b64 s[60:61], s[60:61], s4')
        for k in range(3):
            a.ins(f's_bfe_u32 s4, s60, {hex((5 << 16) | (5 * k))}')
            a.ins(f's_mul_i32 s{43+k}, s4, {PART_C}')
        a.ins('s_bfe_u32 s89, s60, 0x1000f')
        poll_indicator(117, 7, 45)
        stamp(1, 77, 122, 88)
        for k in (6, 7, 8, 9, 10, 11, 12, 13, 20):
            a.ins(f'v_mov_b32 v{16+4*k}, 0xf149f2ca')
            for e in range(1, 4):
                a.ins(f'v_mov_b32 v{16+4*k+e}, 0')
        set_exec_lanes(49)
        def ld1(k):
            sg, r = k // 7, k % 7
            a.ins(f's_add_u32 s76, s72, s{43+sg}')
            a.ins(f's_add_u32 s76, s76, {r * 4 * REC}')
            a.ins(f'buffer_load_dwordx4 v[{16+4*k}:{19+4*k}], v13, s[64:67], s76 offen sc1')
        def im():
            full = (1 << 21) - 1
            short = full & ~((1 << 6) | (1 << 13) | (1 << 20))
            a.ins('s_cmp_ge_u32 s3, 2')
            a.ins(f's_mov_b32 s91, {hex(full)}')
            a.ins(f's_cselect_b32 s91, {hex(short)}, s91')
            a.ins('s_cmp_eq_u32 s89, 0')
            a.ins(f's_cselect_b32 s4, {hex(0x7f << 7)}, 0')
            a.ins('s_andn2_b32 s91, s91, s4')
        gather_sel(21, ld1, lambda k: 16 + 4 * k, im)
        set_exec_lanes(64)
        combine_big(21, 16, 100, 101, 104, 102)
        a.ins('s_mov_b32 exec_lo, 0', dst=[], src=[])
        a.ins('s_mov_b32 exec_hi, 0x10000', dst=[], src=[])
        a.ins('v_mov_b32 v104, v100')
        a.ins('v_mov_b32 v105, v101')
        set_exec_lanes(64)
        for e in range(4):
            a.ins(f'v_mov_b32 v{52+e}, v{104+e}')
        set_exec_lanes(49)
        a.lds('ds_write_b128 v118, v[52:55]')
        set_exec_lanes(64)
        a.barrier()
        L0 = only_wave0_begin()
        for k in range(4):
            a.lds(f'ds_read_b128 v[{16+4*k}:{19+4*k}], v13 offset:{RED + k*REC}')
        a.wait_lg_all()
        combine_records(4, 16, 48, 49, 52)
        a.ins('v_rcp_f32 v50, v49')
        for e in range(4):
            a.ins(f'v_mul_f32 v{52+e}, v{52+e}, v50')
        a.ins('v_cvt_pk_bf16_f32 v56, v52, v53')
        a.ins('v_cvt_pk_bf16_f32 v57, v54, v55')
        a.ins('s_mov_b32 exec_lo, 0', dst=[], src=[])
        a.ins('s_mov_b32 exec_hi, 0xffff0000', dst=[], src=[])
        a.ins('v_mov_b32 v56, 0')
        a.ins('v_mov_b32 v57, 0')
        set_exec_lanes(64)
        a.lds(f'ds_write_b64 v12, v[56:57] offset:{XS}')
        only_wave0_end(L0)
        a.barrier()
        stamp(2, 77, 122, 88)
        for ks in range(6):
            xread(80 + 4 * ks, 112, 64 * ks)
        xread(104, 113, 0)
        xread(108, 113, 256)
        a.wait_lg_all()
        mfma_block(48, 104, 'a', 192, True)
        mfma_block(48, 108, 'a', 224, False)
        for ks in range(6):
            mfma_block(16, 80 + 4 * ks, 'a', 32 * ks, ks == 0)
        extract(48, 100)
        extract(16, 92)
        publish_own(92, 81)
        publish_cb4(100, 81)
        stamp(3, 77, 122, 88)
        LD = newlab('Ldf')
        a.ins('s_cmp_eq_u32 s85, 0')
        a.ins(f's_cbranch_scc1 {LD}')
        L0 = only_wave0_begin()
        a.ins('s_mul_i32 s90, s83, 2560')
        a.ins(f's_add_u32 s90, s90, {hex(X2_OFF)}')
        LX = newlab('Lx2'); LXD = newlab('Lx2d')
        smov(75, SPIN_MAX)
        a.label(LX)
        for k in range(5):
            a.ins(f'buffer_load_dwordx2 v[{16+2*k}:{17+2*k}], v12, s[64:67], s90 offen offset:{k*512} sc1')
        a.ins('s_waitcnt vmcnt(0)')
        check_regs(range(16, 26), 127)
        a.ins(f's_cbranch_vccz {LXD}')
        a.ins('s_sleep 2')
        a.ins('s_sub_u32 s75, s75, 1')
        a.ins('s_cmp_lg_u32 s75, 0')
        a.ins(f's_cbranch_scc1 {LX}')
        a.label(LXD)
        store_x(121, XRES)
        only_wave0_end(L0)
        a.label(LD)
        a.fence_hazards()
        gather_ar(81)
        stamp(4, 77, 122, 88)
        L0 = only_wave0_begin()
        ar_sum_wave0()
        residual(121, XRES)
        layernorm_to_xs()
        only_wave0_end(L0)
        a.barrier()
        stamp(5, 77, 122, 88)
        stage_block(48, 14, 0, 'st')
        for i in range(5):
            xread(80 + 4 * i, 114, 64 * i)
        a.wait_lg_all()
        for i in range(4):
            mfma_block(16, 80 + 4 * i, 'v', W1 + 32 * i, i == 0)
        mfma_block(16, 96, 'v', 48, False)
        stage_block(48, 14, 8192, 'st5')
        extract(16, 100)
        set_exec_lanes(12)
        a.lds('ds_write_b128 v11, v[100:103]')
        a.lds('ds_write_b128 v11, v[104:107] offset:16')
        set_exec_lanes(64)
        a.barrier()
        L0 = only_wave0_begin()
        for r in range(4):
            a.lds(f'ds_read_b32 v{16+r}, v119 offset:{RED + r*384}')
            a.lds(f'ds_read_b32 v{36+r}, v119 offset:{RED + r*384 + 192}')
        a.wait_lg_all()
        for r in range(1, 4):
            a.ins(f'v_add_f32 v16, v16, v{16+r}')
            a.ins(f'v_add_f32 v36, v36, v{36+r}')
        bf16r(16, 16); bf16r(36, 36)
        a.ins('v_mul_f32 v17, v16, v16')
        a.ins('v_mul_f32 v17, v17, v16')
        a.ins(f'v_mov_b32 v18, {hex(f32(0.044715))}')
        a.ins('v_fma_f32 v17, v17, v18, v16')
        a.ins(f'v_mul_f32 v17, {hex(f32(2*0.7978845608028654*math.log2(math.e)))}, v17')
        a.ins('v_exp_f32 v17, v17')
        a.ins('v_add_f32 v17, 1.0, v17')
        a.ins('v_rcp_f32 v17, v17')
        a.ins('v_fma_f32 v17, v17, -2.0, 1.0')
        a.ins('v_add_f32 v17, 1.0, v17')
        a.ins('v_mul_f32 v17, v17, v16')
        a.ins('v_mul_f32 v17, 0.5, v17')
        bf16r(17, 17)
        a.ins('v_mul_f32 v17, v17, v36')
        a.ins('v_cvt_pk_bf16_f32 v18, v17, 0')
        a.ins('v_mov_b32 v19, 0')
        a.ins('s_mov_b32 exec_lo, 0', dst=[], src=[])
        a.ins('s_mov_b32 exec_hi, 0xffff0000', dst=[], src=[])
        a.ins('v_mov_b32 v18, 0')
        set_exec_lanes(64)
        a.ins('v_lshlrev_b32 v20, 1, v0')
        a.lds(f'ds_write_b16 v20, v18 offset:{XS}')
        a.lds(f'ds_write_b16 v20, v19 offset:{XS + 128}')
        only_wave0_end(L0)
        a.barrier()
        stamp(6, 77, 122, 88)
        xread(80, 112, 0)
        xread(84, 112, 64)
        xread(88, 113, 0)
        a.wait_lg_all()
        mfma_block(16, 80, 'v', 48, True)
        stage_block(48, 14, 16384, 'st5b')
        a.wait_lg_all()
        mfma_block(16, 84, 'v', 48, False)
        stage_block(48, 120, 0, 'st5c')
        extract(16, 92)
        publish_own(92, 82)
        a.wait_lg_all()
        mfma_block(16, 88, 'v', 48, True)
        extract(16, 100)
        publish_cb4(100, 82)
        stamp(7, 77, 122, 88)
        a.barrier()
    stamp(9, 77, 122, 88)
    a.ins('s_add_u32 s78, s78, 1')
    a.ins('s_cmp_lt_u32 s78, 8')
    a.ins('s_cbranch_scc1 L_aloop')
    a.ins('s_waitcnt vmcnt(0)')
    a.ins('s_endpgm')

def wait_armed_chain():
    L = newlab('Lar'); D = newlab('Lad')
    smov(75, SPIN_MAX)
    a.ins('v_mov_b32 v126, 0')
    a.label(L)
    a.ins('global_load_dword v127, v126, s[28:29] sc1')
    a.ins('s_waitcnt vmcnt(0)')
    a.vm = []
    a.ins(f'v_cmp_gt_u32 vcc, {NCH}, v127')
    a.ins(f's_cbranch_vccz {D}')
    a.ins('s_sleep 2')
    a.ins('s_sub_u32 s75, s75, 1')
    a.ins('s_cmp_lg_u32 s75, 0')
    a.ins(f's_cbranch_scc1 {L}')
    a.label(D)
    a.fence_hazards()

def q_gemv_publish():
    stage_block(48, 14, 0, 'st')
    for i in range(5):
        xread(80 + 4 * i, 114, 64 * i)
    a.wait_lg_all()
    for cb in range(3):
        for i in range(4):
            kind, base = (('a', 128 * cb + 32 * i) if cb < 2 else ('v', W1 + 32 * i))
            mfma_block(16, 80 + 4 * i, kind, base, i == 0)
        a.wait_lg_all()
        mfma_block(16, 96, 'v', 48, False)
        if cb < 2:
            stage_block(48, 14, (cb + 1) * 8192, 'st')
        extract(16, 100)
        set_exec_lanes(16)
        a.lds(f'ds_write_b128 v115, v[100:103] offset:{cb*512}')
        a.lds(f'ds_write_b128 v115, v[104:107] offset:{cb*512+16}')
        set_exec_lanes(64)
    a.barrier()
    L0 = only_wave0_begin()
    a.ins('v_lshlrev_b32 v127, 1, v13')
    for r in range(4):
        a.lds(f'ds_read_b128 v[{16+8*r}:{19+8*r}], v127 offset:{RED + r*1536}')
        a.lds(f'ds_read_b128 v[{20+8*r}:{23+8*r}], v127 offset:{RED + r*1536 + 16}')
    a.wait_lg_all()
    for r in range(1, 4):
        for e in range(8):
            a.ins(f'v_add_f32 v{16+e}, v{16+e}, v{16+8*r+e}')
    for e in range(4):
        a.ins(f'v_cvt_pk_bf16_f32 v{60+e}, v{16+2*e}, v{17+2*e}')
    a.ins('s_add_u32 s76, s70, s86')
    set_exec_lanes(48)
    a.ins('buffer_store_dwordx4 v[60:63], v13, s[64:67], s76 offen sc1')
    set_exec_lanes(64)
    only_wave0_end(L0)
    a.barrier()

def gen_qcu():
    a.label('L_qcu')
    chain_common_init()
    a.ins(f's_sub_u32 s5, s2, {NA}')
    mfma_consts()
    a.ins('s_mul_i32 s70, s5, 768')
    a.ins(f's_sub_u32 s6, {640*12288}, s70')
    srd_off(96, 14, 15, 70, 's6')
    a.ins(f'v_mul_u32_u24 v126, {8*12288}, v4')
    a.ins('v_lshl_add_u32 v126, v3, 4, v126')
    a.ins('s_mul_i32 s4, s3, 24576')
    a.ins(f's_add_u32 s4, s4, {WL}')
    a.ins('v_add_u32 v14, s4, v13')
    a.ins(f's_mul_i32 s42, s3, {160*12288}')
    def ldq(i, cb):
        def em(T, tag):
            for e in range(8):
                a.ins(f's_add_u32 s76, s42, {(32 * i + e) * 12288 + cb * 256}')
                a.vmem(f'buffer_load_dwordx4 v[{T+4*e}:{T+4*e+3}], v126, s[96:99], s76 offen nt', tag)
        return em
    blocks = []
    for cb in range(3):
        for i in range(4):
            blocks.append((ldq(i, cb), ('a', 128 * cb + 32 * i) if cb < 2 else ('v', W1 + 32 * i)))
        blocks.append((ldq(4, cb), ('l', 14, cb * 8192)))
    prep_blocks(blocks)
    load_xres()
    a.ins('s_mul_i32 s4, s3, 1536')
    a.ins('v_lshlrev_b32 v115, 5, v3')
    a.ins('v_add_u32 v115, s4, v115')
    a.ins(f'v_add_u32 v115, {RED}, v115')
    a.barrier()
    wait_flags(2, 126)
    order = 0
    for i, (ly, b) in enumerate(CHAIN_ORDER):
        order |= (ly * 4 + b) << (4 * i)
    srd(92, 26, 27, 4 * 1280)
    a.ins('v_lshlrev_b32 v119, 2, v0')
    a.ins('s_mov_b32 s78, 0')
    a.label('L_qloop')
    a.fence_hazards()
    a.ins('s_lshl_b32 s4, s78, 2')
    a.ins(f's_lshr_b32 s79, {hex(order)}, s4')
    a.ins('s_and_b32 s79, s79, 15')
    a.ins('s_and_b32 s83, s79, 3')
    a.ins('s_lshr_b32 s85, s79, 2')
    a.ins('s_mul_i32 s84, s83, 1280')
    a.ins('s_mul_i32 s4, s83, 2560')
    a.ins('v_add_u32 v121, s4, v12')
    a.ins(f's_mul_i32 s86, s83, {32*384}')
    a.ins(f's_add_u32 s86, s86, {hex(Q_OFF + 4*32*384)}')
    a.ins(f's_mul_i32 s81, s79, {2*AR_SZ}')
    a.ins(f's_add_u32 s81, s81, {hex(AR_OFF)}')
    a.ins(f's_add_u32 s82, s81, {AR_SZ}')
    a.ins('s_lshl_b32 s88, s78, 6')
    stamp(0, 77, 122, 88)
    a.ins('s_cmp_eq_u32 s85, 0')
    a.ins('s_cbranch_scc1 L_qgo')
    a.ins(f's_cmp_lg_u32 s2, {NA}')
    a.ins('s_cbranch_scc1 L_qnext')
    a.label('L_qgo')
    a.fence_hazards()
    gather_ar(81)
    L0 = only_wave0_begin()
    ar_sum_wave0()
    residual(121, XRES)
    store_x(12, X1)
    only_wave0_end(L0)
    a.barrier()
    stamp(1, 77, 122, 88)
    gather_ar(82)
    stamp(2, 77, 122, 88)
    L0 = only_wave0_begin()
    ar_sum_wave0()
    residual(12, X1)
    store_x(121, XRES)
    LO = newlab('Lout'); LX = newlab('Lx2p')
    a.ins('s_cmp_eq_u32 s85, 0')
    a.ins(f's_cbranch_scc1 {LX}')
    for k in range(5):
        a.ins(f'v_cvt_pk_bf16_f32 v{32+k}, v{16+2*k}, v{17+2*k}')
        a.ins(f'buffer_store_dword v{32+k}, v119, s[92:95], s84 offen offset:{k*256}')
    a.ins(f's_branch {L0}')
    a.label(LX)
    a.ins(f's_cmp_lg_u32 s2, {NA}')
    a.ins(f's_cbranch_scc1 {LO}')
    a.ins('s_mul_i32 s90, s83, 2560')
    a.ins(f's_add_u32 s90, s90, {hex(X2_OFF)}')
    for k in range(5):
        a.ins(f'buffer_store_dwordx2 v[{16+2*k}:{17+2*k}], v12, s[64:67], s90 offen offset:{k*512} sc1')
    a.label(LO)
    a.fence_hazards()
    layernorm_to_xs()
    only_wave0_end(L0)
    a.barrier()
    stamp(3, 77, 122, 88)
    a.ins('s_cmp_lg_u32 s85, 0')
    a.ins('s_cbranch_scc1 L_qnext')
    q_gemv_publish()
    a.label('L_qnext')
    a.fence_hazards()
    stamp(4, 77, 122, 88)
    a.ins('s_add_u32 s78, s78, 1')
    a.ins('s_cmp_lt_u32 s78, 8')
    a.ins('s_cbranch_scc1 L_qloop')
    a.ins('s_waitcnt vmcnt(0)')
    a.ins('s_endpgm')

def main(outpath):
    hdr = open('cdna_kernels/' + NAME + '.s.ref').read().split('\n')
    top = [l for l in hdr if l.startswith(';') and '@launch' not in l]
    out = []
    out += top
    out.append('; @launch grid=(256,1,1) block=(256,1,1) lds=163840')
    out.append('.amdgcn_target "amdgcn-amd-amdhsa--gfx950"')
    out.append('.text')
    out.append(MACROS)
    out.append(f'.globl {KNAME}')
    out.append('.p2align 8')
    out.append(f'.type {KNAME},@function')
    out.append(f'{KNAME}:')
    a.ins('s_cmp_ge_u32 s2, 256')
    a.ins('s_cbranch_scc1 L_exit')
    a.ins('s_load_dwordx16 s[8:23], s[0:1], 0')
    a.ins('s_load_dwordx8 s[24:31], s[0:1], 64')
    a.ins('v_lshrrev_b32 v1, 6, v0')
    a.ins('v_and_b32 v0, 63, v0')
    a.ins('v_readfirstlane_b32 s3, v1')
    a.ins('s_waitcnt lgkmcnt(0)')
    srd(64, 30, 31, WS_SIZE)
    if SLAST:
        a.ins(f's_cmp_ge_u32 s2, {NST}')
        a.ins('s_cbranch_scc1 L_chain')
    else:
        a.ins(f's_cmp_ge_u32 s2, {NCH}')
        a.ins('s_cbranch_scc0 L_chain')
    a.ins('s_branch L_stream')
    a.label('L_exit')
    a.ins('s_endpgm')
    a.label('L_chain')
    a.ins(f's_cmp_ge_u32 s2, {NA + (NST if SLAST else 0)}')
    a.ins('s_cbranch_scc1 L_qcu')
    a.fence_hazards()
    gen_acu()
    a.hist = []; a.vm = []; a.lg = []
    a.fence_hazards()
    gen_qcu()
    a.hist = []; a.vm = []; a.lg = []
    a.fence_hazards()
    gen_stream()
    out.append(a.text())
    out.append('.section .rodata,"a"')
    out.append('.p2align 6')
    out.append(f'.amdhsa_kernel {KNAME}')
    out.append('  .amdhsa_next_free_vgpr 512')
    out.append('  .amdhsa_next_free_sgpr 102')
    out.append('  .amdhsa_accum_offset 256')
    out.append('  .amdhsa_group_segment_fixed_size 0')
    out.append('  .amdhsa_kernarg_size 96')
    out.append('  .amdhsa_user_sgpr_count 2')
    out.append('  .amdhsa_user_sgpr_kernarg_segment_ptr 1')
    out.append('  .amdhsa_system_sgpr_workgroup_id_x 1')
    out.append('.end_amdhsa_kernel')
    open(outpath, 'w').write('\n'.join(out) + '\n')
    print('instrs', a.ninstr, 'bytes', sum(len(x) + 1 for x in out))

if __name__ == '__main__':
    main(sys.argv[1] if len(sys.argv) > 1 else 'cdna_kernels/' + NAME + '.s')
```
